```python
import torch

def _softmax(x, axis=-1):
    return torch.softmax(x, dim=axis)
def _gelu(x):
    return torch.nn.functional.gelu(x, approximate="tanh")
def _silu(x):
    return torch.nn.functional.silu(x)
def _sigmoid(x):
    return torch.sigmoid(x)
def _layernorm(x, axis=-1, eps=1e-5):
    m = x.mean(dim=axis, keepdim=True)
    v = x.var(dim=axis, keepdim=True, unbiased=False)
    return (x - m) / torch.sqrt(v + eps)
def _scatter_add(tgt, idx, src, axis=0):
    return tgt.clone().index_add_(axis, idx, src)
def _segment_sum(src, seg, n):
    out = torch.zeros((n,) + src.shape[1:], dtype=src.dtype)
    return out.index_add_(0, seg, src)
def _pad(x, pw):
    flat = tuple(v for pair in reversed(pw) for v in pair)
    return torch.nn.functional.pad(x, flat)

kernel_name = 'recurrent_scan__gqa_block_cached__glu_gated_geglu__decode'

def setup_inputs():

    _w = (lambda a: (lambda t: t.to(torch.bfloat16) if t.is_floating_point() else t)(torch.as_tensor(a)))
    def _A_setup():
        B, Sq, D = 2, 1, 448
        Hq, Hkv, Sk, Dh = 16, 8, 32768, 256
        assert Hq % Hkv == 0, (Hq, Hkv)
        return {
            "x": _w((lambda *s: torch.randn(*s, dtype=torch.bfloat16) * 0.4)(B, Sq, D)),
            "k_cache": _w((lambda *s: torch.randn(*s, dtype=torch.bfloat16) * 1.6)(B, Hkv, Sk, Dh)),
            "v_cache": _w((lambda *s: torch.randn(*s, dtype=torch.bfloat16) * 1.6)(B, Hkv, Sk, Dh)),
            "wq": _w((lambda *s: torch.randn(*s, dtype=torch.bfloat16) * 1.6)(D, Hq * Dh) * (D ** -0.5)),
            "wo": _w((lambda *s: torch.randn(*s, dtype=torch.bfloat16) * 1.6)(Hq * Dh, D) * ((Hq * Dh) ** -0.5)),
        }
    _A_in = _A_setup()

    def _B_setup():
        B, S, Dm, Df = 2, 1, 448, 1792
        return {
            "x": _w((lambda *s: torch.randn(*s, dtype=torch.bfloat16) * 0.4)(B, S, Dm)),
            "w_gate": _w((lambda *s: torch.randn(*s, dtype=torch.bfloat16) * 1.6)(Dm, Df) * (Dm ** -0.5)),
            "w_up": _w((lambda *s: torch.randn(*s, dtype=torch.bfloat16) * 1.6)(Dm, Df) * (Dm ** -0.5)),
            "w_down": _w((lambda *s: torch.randn(*s, dtype=torch.bfloat16) * 1.6)(Df, Dm) * (Df ** -0.5)),
        }
    _B_in = _B_setup()

    return {
        "A_x": _A_in["x"],
        "A_k_cache": _A_in["k_cache"],
        "A_v_cache": _A_in["v_cache"],
        "A_wq": _A_in["wq"],
        "A_wo": _A_in["wo"],
        "B_x": _B_in["x"],
        "B_w_gate": _B_in["w_gate"],
        "B_w_up": _B_in["w_up"],
        "B_w_down": _B_in["w_down"],
    }

def reference(A_x, A_k_cache, A_v_cache, A_wq, A_wo, B_x, B_w_gate, B_w_up, B_w_down):
    def _A_ref(x, k_cache, v_cache, wq, wo):
        B, Sq, D = x.shape
        Hq, Dh = 16, 256
        Hkv = k_cache.shape[1]
        rep = Hq // Hkv
        q = (lambda x, *d: x.permute(*d))((x @ wq).reshape(B, Sq, Hq, Dh), 0, 2, 1, 3)
        k = (lambda x, n, axis: torch.repeat_interleave(x, n, dim=axis))(k_cache, rep, axis=1)
        v = (lambda x, n, axis: torch.repeat_interleave(x, n, dim=axis))(v_cache, rep, axis=1)
        scores = torch.einsum("bhqd,bhkd->bhqk", q, k) * (Dh ** -0.5)
        p = _softmax(scores, axis=-1)
        o = torch.einsum("bhqk,bhkd->bhqd", p, v)
        return (lambda x, *d: x.permute(*d))(o, 0, 2, 1, 3).reshape(B, Sq, Hq * Dh) @ wo

    def _B_ref(x, w_gate, w_up, w_down):
        g = torch.einsum("bsd,df->bsf", x, w_gate)
        u = torch.einsum("bsd,df->bsf", x, w_up)
        h = _gelu(g) * u
        return torch.einsum("bsf,fd->bsd", h, w_down)

    x = A_x
    xn = _layernorm(x, axis=-1)
    s = _A_ref(xn, A_k_cache, A_v_cache, A_wq, A_wo)
    g = _silu(_B_ref(xn, B_w_gate, B_w_up, B_w_down))
    return x + s * g
```

```python
import sys, math
NAME = "recurrent_scan__gqa_block_cached__glu_gated_geglu__decode_kernel"

class Cfg:
    F = 20
    R = 9
    C = 6
    DIAG = False
    SPIN = 1 << 22

def lds_layout(R):
    o = R * 16384
    L = {}
    L['FLAGS'] = o; o += 256
    L['Q'] = o; o += 1024
    L['XN'] = o; o += 1792
    L['H'] = o; o += 512
    L['CM'] = o; o += 64
    L['CL'] = o; o += 256
    L['CO'] = o; o += 6 * 2048
    L['END'] = o
    return L

WS_QP = 0
WS_HA = 0x20000
WS_HM = 0xA0000
WS_HB = 0xB0000
WS_HY = 0x130000
WS_DIAG = 0x200000
WS_SIZE = 0x400000
FF0 = 40
CSC = 0.0625 * math.log2(math.e)

import struct
def f2u(x):
    return struct.unpack('<I', struct.pack('<f', x))[0]

class Asm:
    def __init__(self):
        self.L = []
        self.n = 0
    def __call__(self, s):
        for line in s.strip('\n').split('\n'):
            self.L.append(line.strip() if not line.strip().endswith(':') else line.strip())
    def label(self, base):
        self.n += 1
        return f"L_{base}_{self.n}"

def gen(cfg):
    F, R, C = cfg.F, cfg.R, cfg.C
    LD = lds_layout(R)
    assert LD['END'] <= 163840, LD['END']
    A = Asm()
    NUNITS = 128
    def srd(dst, base, size, add=None):
        if add is None:
            A(f"s_mov_b32 s{dst}, s{base}")
            A(f"s_and_b32 s{dst+1}, s{base+1}, 0xffff")
        else:
            A(f"s_add_u32 s{dst}, s{base}, s{add}")
            A(f"s_addc_u32 s{dst+1}, s{base+1}, 0")
            A(f"s_and_b32 s{dst+1}, s{dst+1}, 0xffff")
        A(f"s_mov_b32 s{dst+2}, {size}")
        A(f"s_mov_b32 s{dst+3}, 0x20000")
    def stamp(idx, tmpv=(250, 251, 252)):
        if not cfg.DIAG:
            return
        A(f"s_memrealtime s[96:97]")
        A(f"s_lshl_b32 s98, s2, 3")
        A(f"s_add_u32 s98, s98, s3")
        A(f"s_lshl_b32 s98, s98, 7")
        A(f"s_add_u32 s98, s98, {WS_DIAG + idx*8}")
        A(f"s_waitcnt lgkmcnt(0)")
        A(f"v_mov_b32 v{tmpv[0]}, s96")
        A(f"v_mov_b32 v{tmpv[1]}, s97")
        A(f"v_mov_b32 v{tmpv[2]}, 0")
        A(f"s_mov_b64 s[94:95], exec")
        A(f"s_mov_b64 exec, 1")
        A(f"buffer_store_dwordx2 v[{tmpv[0]}:{tmpv[1]}], v{tmpv[2]}, s[36:39], s98 offen")
        A(f"s_mov_b64 exec, s[94:95]")
    def spin_tail(lbl, cnt="s45", sleep=1):
        A(f"s_sleep {sleep}")
        A(f"s_sub_u32 {cnt}, {cnt}, 1")
        A(f"s_cmp_lg_u32 {cnt}, 0")
        A(f"s_cbranch_scc1 {lbl}")
        A("s_endpgm")

    hdr = open('recurrent_scan__gqa_block_cached__glu_gated_geglu__decode.s.ref').read().split('\n')
    for line in hdr:
        if line.startswith('; @launch') or not line.startswith(';'):
            break
        A.L.append(line)
    A(f"; @launch grid=(256,1,1) block=(512,1,1) lds={LD['END']}")
    A('.amdgcn_target "amdgcn-amd-amdhsa--gfx950"')
    A(".text"); A(f".globl {NAME}"); A(".p2align 8"); A(f".type {NAME},@function"); A(f"{NAME}:")
    A(f"""
    s_cmp_ge_u32 s2, 256
    s_cbranch_scc1 L_end
    s_load_dwordx8 s[4:11], s[0:1], 0
    s_load_dwordx8 s[12:19], s[0:1], 32
    s_load_dwordx8 s[20:27], s[0:1], 64
    v_lshrrev_b32 v2, 6, v0
    v_and_b32 v1, 63, v0
    v_readfirstlane_b32 s3, v2
    s_mov_b32 s45, {cfg.SPIN}
    s_cmp_lg_u32 s3, 0
    s_cbranch_scc1 L_notloader
    """)
    A("s_setprio 3")
    A(f"v_lshlrev_b32 v3, 2, v1")
    A(f"v_mov_b32 v4, 0")
    A(f"ds_write_b32 v3, v4 offset:{LD['FLAGS'] & 0xffff}" if LD['FLAGS'] < 65536 else f"v_add_u32 v3, {LD['FLAGS']}, v3\nds_write_b32 v3, v4")
    A("v_lshrrev_b32 v5, 5, v1")
    A("v_and_b32 v6, 31, v1")
    A("v_xor_b32 v6, v6, v5")
    A("v_lshlrev_b32 v5, 9, v5")
    for j in range(8):
        A(f"v_xor_b32 v7, {2*j}, v6")
        A(f"v_lshl_add_u32 v{8+j}, v7, 4, v5")
    A("v_lshlrev_b32 v16, 4, v1")
    A(f"v_mov_b32 v17, {LD['FLAGS']}")
    A("s_lshl_b32 s46, s2, 20")
    A("s_waitcnt lgkmcnt(0)")
    srd(28, 6, 1 << 20, add=46)
    srd(32, 8, 1 << 20, add=46)
    if cfg.DIAG:
        srd(36, 26, WS_SIZE)
    stamp(0)
    a_, jp = divmod(F - 1, 16)
    A("s_mov_b32 s40, 0"); A("s_mov_b32 s41, 0"); A("s_mov_b32 s42, 0"); A("s_mov_b32 s43, 0"); A("s_mov_b32 s44, 0")
    A("L_ld_loop:")
    for j in range(16):
        A(f"s_waitcnt vmcnt({F-1})")
        if j == jp:
            A(f"s_sub_i32 s49, s40, {a_}")
            A("s_max_i32 s43, s43, s49")
            A("v_mov_b32 v18, s43")
            A("ds_write_b32 v17, v18")
        if j % 4 == 0:
            A(f"s_add_u32 m0, s41, {j*1024}")
            A(f"s_add_u32 s47, s42, {(j % 8)*1024}")
        if j == 8:
            A("s_add_u32 s44, s44, 4"); A(f"s_cmp_ge_u32 s44, {R*4}"); A("s_cselect_b32 s44, 0, s44")
            A("v_add_u32 v19, s44, v17")
            A("ds_read_b32 v20, v19 offset:64")
        if j < 8:
            A(f"buffer_load_dwordx4 v{8+j}, s[28:31], s47 offen offset:{(j%4)*1024} nt lds")
        else:
            A(f"buffer_load_dwordx4 v16, s[32:35], s47 offen offset:{(j%4)*1024} nt lds")
    A("s_cmp_lg_u32 s40, 0")
    A("s_cbranch_scc1 L_ld_nobar")
    A("s_barrier")
    A("L_ld_nobar:")
    A("s_add_u32 s40, s40, 1")
    A("s_add_u32 s42, s42, 8192")
    A("s_add_u32 s41, s41, 16384"); A(f"s_cmp_ge_u32 s41, {R*16384}"); A("s_cselect_b32 s41, 0, s41")
    A(f"s_cmp_ge_u32 s40, {NUNITS}")
    A("s_cbranch_scc1 L_ld_done")
    A(f"s_sub_i32 s48, s40, {R-1}")
    A("s_waitcnt lgkmcnt(0)")
    A("v_readfirstlane_b32 s47, v20")
    A("s_cmp_ge_i32 s47, s48")
    A("s_cbranch_scc1 L_ld_loop")
    A("s_waitcnt vmcnt(0)")
    A("s_mov_b32 s43, s40")
    A("v_mov_b32 v18, s43")
    A("ds_write_b32 v17, v18")
    A("L_ld_spin:")
    A("ds_read_b32 v20, v19 offset:64")
    A("s_waitcnt lgkmcnt(0)")
    A("v_readfirstlane_b32 s47, v20")
    A("s_cmp_ge_i32 s47, s48")
    A("s_cbranch_scc1 L_ld_loop")
    spin_tail("L_ld_spin")
    A("L_ld_done:")
    for k in range(a_ + 1, -1, -1):
        if 16 * k < F:
            A(f"s_waitcnt vmcnt({16*k})")
            A(f"v_mov_b32 v18, {NUNITS - k}")
            A("ds_write_b32 v17, v18")
    stamp(1)
    A("s_endpgm")

    A("L_notloader:")
    A("v_and_b32 v3, 7, v1")
    A("v_lshrrev_b32 v4, 1, v3")
    A("v_and_b32 v5, 1, v3")
    A("v_mov_b32 v6, 0x0c0c0100")
    A("v_mov_b32 v7, 0x01000c0c")
    A("v_cmp_eq_u32 vcc, 1, v5")
    A("v_mov_b32 v8, 0x0c0c0302")
    A("v_mov_b32 v9, 0x03020c0c")
    A("v_cndmask_b32 v6, v6, v7, vcc")
    A("v_cndmask_b32 v8, v8, v9, vcc")
    A("v_mov_b32 v7, 0x0c0c0c0c")
    for k in range(4):
        A(f"v_cmp_eq_u32 vcc, {k}, v4")
        A("s_nop 1")
        A(f"v_cndmask_b32 v{12+k}, v7, v6, vcc")
        A(f"v_cndmask_b32 v{16+k}, v7, v8, vcc")
    A("v_and_b32 v10, 15, v1")
    A("v_lshrrev_b32 v11, 4, v1")
    A("s_lshr_b32 s50, s2, 4")
    A("s_and_b32 s51, s2, 15")
    A("s_lshr_b32 s52, s2, 7")
    A("s_and_b32 s53, s50, 7")
    A(f"s_mov_b32 s54, {hex(f2u(CSC))}")
    A("s_waitcnt lgkmcnt(0)")
    srd(36, 26, WS_SIZE)
    A("s_cmp_eq_u32 s3, 4")
    A("s_cbranch_scc1 L_helper")

    A("s_sub_u32 s55, s3, 1")
    A("s_cmp_gt_u32 s3, 4")
    A("s_cselect_b32 s47, 1, 0")
    A("s_sub_u32 s55, s55, s47")
    A("s_cmp_ge_u32 s55, 4")
    A("s_cbranch_scc1 L_c_nowo")
    srd(28, 12, 4096 * 896)
    A("s_lshl_b32 s46, s53, 9"); A("s_lshl_b32 s47, s51, 5"); A("s_add_u32 s46, s46, s47")
    A("s_mul_i32 s46, s46, 896"); A("s_lshl_b32 s47, s55, 8"); A("s_add_u32 s46, s46, s47")
    A(f"v_mul_u32_u24 v23, {8*896}, v11")
    A("v_lshl_add_u32 v23, v10, 4, v23")
    for t in range(8):
        if t == 4:
            A(f"s_add_u32 s46, s46, {4*896}")
        A(f"buffer_load_dwordx4 v[{156+4*t}:{159+4*t}], v23, s[28:31], s46 offen offset:{(t%4)*896} nt")
    A("L_c_nowo:")
    A("v_xor_b32 v23, v10, v11")
    A("v_lshlrev_b32 v24, 9, v10")
    for a in range(4):
        A(f"v_xor_b32 v25, {4*a}, v23")
        A(f"v_lshl_add_u32 v{2+a}, v25, 4, v24")
    A("v_lshlrev_b32 v24, 11, v11")
    A("v_lshl_add_u32 v6, v10, 4, v24")
    A(f"v_mov_b32 v188, {LD['FLAGS']}")
    A(f"v_mov_b32 v20, {hex(f2u(-3.0e38))}")
    A("v_mul_f32 v21, s54, v20")
    A("v_mov_b32 v22, 0")
    for k in range(8):
        A(f"v_mov_b32 v{132+k}, 0")
    A("v_mov_b32 v189, v10"); A("v_mov_b32 v190, v11")
    A("s_mov_b32 s40, s55")
    A("s_lshl_b32 s41, s55, 14")
    A("s_mov_b32 s44, 0")
    A("s_barrier")
    A("L_c_loop:")
    A("L_c_wait:")
    A("ds_read_b32 v23, v188")
    A("s_waitcnt lgkmcnt(0)")
    A("v_readfirstlane_b32 s43, v23")
    A("s_cmp_gt_u32 s43, s40")
    A("s_cbranch_scc1 L_c_go")
    spin_tail("L_c_wait")
    A("L_c_go:")
    for a in range(4):
        A(f"v_add_u32 v{7+a}, s41, v{2+a}")
    A("v_add_u32 v11, s41, v6")
    for t in range(8):
        A(f"ds_read_b128 v[{64+4*t}:{67+4*t}], v{7 + t % 4} offset:{(t//4)*256}")
    for r in range(4):
        for h in range(2):
            A(f"ds_read_b128 v[{96+8*r+4*h}:{99+8*r+4*h}], v11 offset:{8192 + r*512 + h*256}")
    A("s_lshr_b32 s47, s41, 12")
    A("v_add_u32 v191, s47, v188")
    A("s_add_u32 s42, s40, 1")
    A("v_mov_b32 v192, s42")
    A("s_cmp_eq_u32 s44, 0")
    A("s_cbranch_scc1 L_c_first")
    A("L_c_comp:")
    A("s_waitcnt lgkmcnt(8)")
    for t in range(8):
        A(f"v_mfma_f32_16x16x32_bf16 v[128:131], v[{64+4*t}:{67+4*t}], v[{32+4*t}:{35+4*t}], {'0' if t == 0 else 'v[128:131]'}")
    A("s_waitcnt lgkmcnt(0)")
    A("ds_write_b32 v191, v192 offset:64")
    A("s_nop 5")
    A("v_cvt_pk_bf16_f32 v24, v128, v129")
    A("v_cvt_pk_bf16_f32 v25, v130, v131")
    A("v_lshlrev_b32 v26, 16, v24")
    A("v_and_b32 v27, 0xffff0000, v24")
    A("v_lshlrev_b32 v28, 16, v25")
    A("v_and_b32 v29, 0xffff0000, v25")
    A("v_max3_f32 v30, v26, v27, v28")
    A("v_max_f32 v30, v30, v29")
    A("v_cmp_gt_f32 vcc, v30, v20")
    A("s_cbranch_vccnz L_c_resc")
    A("L_c_resc_ret:")
    for k in range(4):
        A(f"v_fma_f32 v{26+k}, v{26+k}, s54, -v21")
    for k in range(4):
        A(f"v_exp_f32 v{26+k}, v{26+k}")
    A("s_nop 0")
    A("v_cvt_pk_bf16_f32 v24, v26, v27")
    A("v_cvt_pk_bf16_f32 v25, v28, v29")
    A("v_add_f32 v30, v26, v27")
    A("v_add_f32 v31, v28, v29")
    for r in range(4):
        src = 24 + r // 2
        sel = 12 + 4 * (r % 2)
        for k in range(4):
            A(f"v_perm_b32 v{140+4*r+k}, v{src}, v{src}, v{sel+k}")
        if r == 0:
            A("v_add_f32 v22, v22, v30")
            A("v_add_f32 v22, v22, v31")
        if r >= 1:
            rr = r - 1
            for h in range(2):
                A(f"v_mfma_f32_16x16x32_bf16 v[{132+4*h}:{135+4*h}], v[{96+8*rr+4*h}:{99+8*rr+4*h}], v[{140+4*rr}:{143+4*rr}], v[{132+4*h}:{135+4*h}]")
    rr = 3
    for h in range(2):
        A(f"v_mfma_f32_16x16x32_bf16 v[{132+4*h}:{135+4*h}], v[{96+8*rr+4*h}:{99+8*rr+4*h}], v[{140+4*rr}:{143+4*rr}], v[{132+4*h}:{135+4*h}]")
    A(f"s_add_u32 s40, s40, {C}")
    A(f"s_add_u32 s41, s41, {C*16384}")
    A(f"s_sub_u32 s47, s41, {R*16384}")
    A(f"s_cmp_ge_u32 s41, {R*16384}")
    A("s_cselect_b32 s41, s47, s41")
    A(f"s_cmp_lt_u32 s40, {NUNITS}")
    A("s_cbranch_scc1 L_c_loop")
    A("s_branch L_c_tail")
    A("L_c_resc:")
    A("v_mov_b32 v31, v30")
    A("s_nop 1")
    A("v_permlane16_swap_b32 v30, v31")
    A("v_max_f32 v30, v30, v31")
    A("v_mov_b32 v31, v30")
    A("s_nop 1")
    A("v_permlane32_swap_b32 v30, v31")
    A("v_max3_f32 v20, v30, v31, v20")
    A("v_mul_f32 v30, s54, v20")
    A("v_sub_f32 v31, v21, v30")
    A("v_exp_f32 v31, v31")
    A("v_mov_b32 v21, v30")
    for k in range(8):
        A(f"v_mul_f32 v{132+k}, v{132+k}, v31")
    A("v_mul_f32 v22, v22, v31")
    A("s_branch L_c_resc_ret")
    A("L_c_first:")
    A("s_waitcnt lgkmcnt(0)")
    A("ds_write_b32 v191, v192 offset:64")
    A("L_c_qwait:")
    A("ds_read_b32 v23, v188 offset:4")
    A("s_waitcnt lgkmcnt(0)")
    A("v_readfirstlane_b32 s43, v23")
    A("s_cmp_lg_u32 s43, 0")
    A("s_cbranch_scc1 L_c_qgo")
    spin_tail("L_c_qwait")
    A("L_c_qgo:")
    A("v_lshrrev_b32 v23, 3, v189")
    A("v_lshlrev_b32 v23, 9, v23")
    A("v_lshl_add_u32 v23, v190, 4, v23")
    A(f"v_add_u32 v23, {LD['Q']}, v23")
    for t in range(8):
        A(f"ds_read_b128 v[{32+4*t}:{35+4*t}], v23 offset:{64*t}")
    A("s_mov_b32 s44, 1")
    A("s_waitcnt lgkmcnt(0)")
    stamp(2)
    A("s_branch L_c_comp")
    A("L_c_tail:")
    stamp(3)
    A("v_lshrrev_b32 v23, 3, v189")
    A("v_and_b32 v24, 7, v189")
    A("v_lshlrev_b32 v25, 10, v23")
    A("v_lshl_add_u32 v25, v190, 7, v25")
    A("v_lshl_add_u32 v25, v24, 2, v25")
    A("s_lshl_b32 s47, s55, 11")
    A(f"s_add_u32 s47, s47, {LD['CO']}")
    A("v_add_u32 v25, s47, v25")
    A("s_nop 3")
    for h in range(2):
        for rr in range(4):
            A(f"ds_write_b32 v25, v{132+4*h+rr} offset:{h*512+rr*32}")
    A("v_lshlrev_b32 v26, 3, v23")
    A("v_add_u32 v26, s55, v26")
    A("v_lshlrev_b32 v27, 2, v26")
    A(f"v_add_u32 v27, {LD['CM']}, v27")
    A("v_lshl_add_u32 v28, v26, 2, v190")
    A("v_lshlrev_b32 v28, 2, v28")
    A(f"v_add_u32 v28, {LD['CL']}, v28")
    A("s_mov_b32 exec_lo, 0x01010101"); A("s_mov_b32 exec_hi, 0x01010101")
    A("ds_write_b32 v27, v21")
    A("ds_write_b32 v28, v22")
    A("s_mov_b64 exec, -1")
    A("s_waitcnt lgkmcnt(0)")
    A("s_barrier")
    A("s_cmp_lt_u32 s55, 4")
    A("s_cbranch_scc1 L_p_wave")
    A("s_sub_u32 s56, s55, 4")
    A("s_lshl_b32 s47, s56, 5")
    A(f"s_add_u32 s47, s47, {LD['CM']}")
    A("v_mov_b32 v23, s47")
    A("ds_read_b128 v[64:67], v23")
    A("ds_read_b64 v[68:69], v23 offset:16")
    A("s_lshl_b32 s47, s56, 7")
    A(f"s_add_u32 s47, s47, {LD['CL']}")
    A("v_mov_b32 v24, s47")
    A("s_lshl_b32 s47, s56, 10")
    A(f"s_add_u32 s47, s47, {LD['CO']}")
    A("v_lshl_add_u32 v25, v1, 4, s47")
    for w in range(6):
        A(f"ds_read_b128 v[{96+4*w}:{99+4*w}], v25 offset:{w*2048}")
    for w in range(6):
        A(f"ds_read_b128 v[{72+4*w}:{75+4*w}], v24 offset:{w*16}")
    A("v_lshrrev_b32 v26, 3, v1")
    A("v_lshlrev_b32 v26, 11, v26")
    A("v_and_b32 v27, 7, v1")
    A("v_lshl_add_u32 v26, v27, 4, v26")
    A("s_lshl_b32 s46, s50, 15"); A("s_lshl_b32 s47, s56, 14"); A("s_add_u32 s46, s46, s47")
    A("s_lshl_b32 s47, s51, 7"); A("s_add_u32 s46, s46, s47"); A(f"s_add_u32 s46, s46, {WS_HA}")
    A("s_lshl_b32 s48, s50, 8"); A("s_lshl_b32 s47, s56, 7"); A("s_add_u32 s48, s48, s47")
    A("s_lshl_b32 s47, s51, 3"); A("s_add_u32 s48, s48, s47"); A(f"s_add_u32 s48, s48, {WS_HM}")
    A("s_waitcnt lgkmcnt(12)")
    A("v_max3_f32 v28, v64, v65, v66")
    A("v_max3_f32 v28, v28, v67, v68")
    A("v_max_f32 v28, v28, v69")
    for w in range(6):
        A(f"v_sub_f32 v{64+w}, v{64+w}, v28")
    for w in range(6):
        A(f"v_exp_f32 v{64+w}, v{64+w}")
    A("s_waitcnt lgkmcnt(6)")
    for k in range(4):
        A(f"v_mul_f32 v{120+k}, v64, v{96+k}")
    for w in range(1, 6):
        for k in range(4):
            A(f"v_fmac_f32 v{120+k}, v{64+w}, v{96+4*w+k}")
    for k in range(4):
        A(f"v_min_u32 v{120+k}, 0xfffffffe, v{120+k}")
    A("buffer_store_dwordx4 v[120:123], v26, s[36:39], s46 offen sc1")
    A("s_waitcnt lgkmcnt(0)")
    for w in range(6):
        A(f"v_add_f32 v{72+4*w}, v{72+4*w}, v{73+4*w}")
        A(f"v_add_f32 v{74+4*w}, v{74+4*w}, v{75+4*w}")
    for w in range(6):
        A(f"v_add_f32 v{72+4*w}, v{72+4*w}, v{74+4*w}")
    A("v_mul_f32 v29, v64, v72")
    for w in range(1, 6):
        A(f"v_fmac_f32 v29, v{64+w}, v{72+4*w}")
    A("v_min_u32 v28, 0xfffffffe, v28")
    A("v_min_u32 v29, 0xfffffffe, v29")
    A("v_mov_b32 v30, 0")
    A("s_mov_b64 exec, 1")
    A("buffer_store_dwordx2 v[28:29], v30, s[36:39], s48 offen sc1")
    A("s_mov_b64 exec, -1")
    stamp(4)
    A("s_endpgm")
    A("L_p_wave:")
    A("v_lshlrev_b32 v23, 7, v189")
    A("v_lshl_add_u32 v23, v190, 5, v23")
    A("s_lshl_b32 s46, s2, 11"); A(f"s_add_u32 s46, s46, {WS_HA}")
    A("v_lshlrev_b32 v24, 3, v189")
    A("s_lshl_b32 s48, s50, 8"); A("s_lshr_b32 s47, s51, 3"); A("s_lshl_b32 s47, s47, 7"); A("s_add_u32 s48, s48, s47"); A(f"s_add_u32 s48, s48, {WS_HM}")
    A("L_p_poll:")
    A("buffer_load_dwordx4 v[64:67], v23, s[36:39], s46 offen sc1")
    A("buffer_load_dwordx4 v[68:71], v23, s[36:39], s46 offen offset:16 sc1")
    A("buffer_load_dwordx2 v[72:73], v24, s[36:39], s48 offen sc1")
    A("s_waitcnt vmcnt(0)")
    A("v_max3_u32 v25, v64, v65, v66")
    A("v_max3_u32 v26, v67, v68, v69")
    A("v_max3_u32 v27, v70, v71, v72")
    A("v_max3_u32 v25, v25, v26, v73")
    A("v_max_u32 v25, v25, v27")
    A("v_cmp_eq_u32 vcc, -1, v25")
    A("s_cbranch_vccz L_p_go")
    spin_tail("L_p_poll")
    A("L_p_go:")
    stamp(5)
    A("v_mov_b32 v26, v72")
    for sh in (8, 4, 2, 1):
        A("s_nop 1")
        A(f"v_max_f32_dpp v26, v26, v26 row_ror:{sh} row_mask:0xf bank_mask:0xf")
    A("v_sub_f32 v26, v72, v26")
    A("v_exp_f32 v26, v26")
    A("s_nop 0")
    A("v_mul_f32 v72, v73, v26")
    for k in range(8):
        A(f"v_mul_f32 v{64+k}, v{64+k}, v26")
    for sh in (8, 4, 2, 1):
        for k in (8, 0, 1, 2, 3, 4, 5, 6, 7):
            A(f"v_add_f32_dpp v{64+k}, v{64+k}, v{64+k} row_ror:{sh} row_mask:0xf bank_mask:0xf")
    A("v_rcp_f32 v72, v72")
    A("s_nop 0")
    for k in range(8):
        A(f"v_mul_f32 v{64+k}, v{64+k}, v72")
    for k in range(4):
        A(f"v_cvt_pk_bf16_f32 v{76+k}, v{64+2*k}, v{65+2*k}")
    for t in range(8):
        src = 76 + t // 2; sel = 12 + 4 * (t % 2)
        for k in range(4):
            A(f"v_perm_b32 v{96+4*t+k}, v{src}, v{src}, v{sel+k}")
    A("s_nop 1")
    for t in range(8):
        A(f"v_mfma_f32_16x16x32_bf16 v[128:131], v[{156+4*t}:{159+4*t}], v[{96+4*t}:{99+4*t}], {'0' if t == 0 else 'v[128:131]'}")
    A("v_lshlrev_b32 v23, 7, v190")
    A("v_lshl_add_u32 v23, v189, 4, v23")
    A("s_lshl_b32 s46, s2, 11"); A("s_lshl_b32 s47, s55, 9"); A("s_add_u32 s46, s46, s47"); A(f"s_add_u32 s46, s46, {WS_HB}")
    A("s_cmp_eq_u32 s55, 3")
    A("s_cselect_b32 s47, 0, 0x00ff00ff")
    A("s_nop 1")
    for k in range(4):
        A(f"v_min_u32 v{128+k}, 0xfffffffe, v{128+k}")
    A("s_mov_b32 exec_lo, 0x00ff00ff"); A("s_mov_b32 exec_hi, s47")
    A("buffer_store_dwordx4 v[128:131], v23, s[36:39], s46 offen sc1")
    A("s_mov_b64 exec, -1")
    stamp(6)
    A("s_endpgm")

    A("L_helper:")
    srd(28, 4, 1792)
    srd(32, 10, 448 * 8192)
    srd(60, 24, 256)
    A("v_lshrrev_b32 v20, 5, v1")
    A("v_and_b32 v21, 31, v1")
    A("v_mul_u32_u24 v22, 896, v20")
    A("v_lshl_add_u32 v22, v21, 2, v22")
    for m in range(7):
        A(f"buffer_load_dword v{24+m}, v22, s[28:31], 0 offen offset:{128*m}")
    A("s_and_b32 s56, s51, 3"); A("s_lshr_b32 s57, s51, 2")
    A(f"v_mul_u32_u24 v23, {28*8192}, v11")
    A("v_lshl_add_u32 v23, v10, 4, v23")
    A(f"s_mul_i32 s46, s57, {112*8192}"); A("s_lshl_b32 s47, s53, 10"); A("s_add_u32 s46, s46, s47")
    A("s_lshl_b32 s47, s56, 8"); A("s_add_u32 s46, s46, s47")
    for t in range(28):
        A(f"buffer_load_dwordx4 v[{64+4*t}:{67+4*t}], v23, s[32:35], s46 offen nt")
        if t < 27:
            A("s_add_u32 s46, s46, 8192")
    for k in range(4):
        A(f"v_mov_b32 v{180+k}, -1")
    A("v_lshrrev_b32 v184, 3, v1"); A("v_lshlrev_b32 v184, 11, v184"); A("v_and_b32 v185, 7, v1"); A("v_lshl_add_u32 v184, v185, 4, v184")
    A("s_lshl_b32 s46, s50, 15"); A("s_lshl_b32 s47, s51, 7"); A("s_add_u32 s46, s46, s47"); A(f"s_add_u32 s46, s46, {WS_HA}")
    A("buffer_store_dwordx4 v[180:183], v184, s[36:39], s46 offen sc1")
    A("s_add_u32 s46, s46, 16384")
    A("buffer_store_dwordx4 v[180:183], v184, s[36:39], s46 offen sc1")
    A("v_lshlrev_b32 v185, 4, v1")
    A("s_lshl_b32 s46, s2, 11"); A(f"s_add_u32 s46, s46, {WS_HB}")
    A("buffer_store_dwordx4 v[180:183], v185, s[36:39], s46 offen sc1")
    A("buffer_store_dwordx4 v[180:183], v185, s[36:39], s46 offen offset:1024 sc1")
    A("v_lshlrev_b32 v185, 7, v1")
    A("s_lshl_b32 s46, s50, 8"); A("s_lshl_b32 s47, s51, 3"); A("s_add_u32 s46, s46, s47"); A(f"s_add_u32 s46, s46, {WS_HM}")
    A("s_mov_b64 exec, 3")
    A("buffer_store_dwordx2 v[180:181], v185, s[36:39], s46 offen sc1")
    A("s_mov_b64 exec, -1")
    NAFTER = 28 + 5
    A("s_barrier")
    stamp(0)
    ND = 1 if cfg.DIAG else 0
    A(f"s_waitcnt vmcnt({NAFTER + ND})")
    for m in range(7):
        A(f"v_lshlrev_b32 v{32+2*m}, 16, v{24+m}")
        A(f"v_and_b32 v{33+2*m}, 0xffff0000, v{24+m}")
    def red32(v, t):
        for sh in (8, 4, 2, 1):
            A("s_nop 1")
            A(f"v_add_f32_dpp v{v}, v{v}, v{v} row_ror:{sh} row_mask:0xf bank_mask:0xf")
        A(f"v_mov_b32 v{t}, v{v}")
        A("s_nop 1")
        A(f"v_permlane16_swap_b32 v{v}, v{t}")
        A(f"v_add_f32 v{v}, v{v}, v{t}")
    A("v_add_f32 v46, v32, v33")
    for k in range(2, 14):
        A(f"v_add_f32 v46, v46, v{32+k}")
    red32(46, 47)
    A(f"v_mul_f32 v46, {hex(f2u(1.0/448))}, v46")
    A("v_sub_f32 v48, v32, v46")
    A("v_mul_f32 v47, v48, v48")
    for k in range(1, 14):
        A(f"v_sub_f32 v48, v{32+k}, v46")
        A("v_fmac_f32 v47, v48, v48")
    red32(47, 48)
    A(f"v_mul_f32 v47, {hex(f2u(1.0/448))}, v47")
    A("v_cvt_pk_bf16_f32 v48, v46, v47")
    A("v_lshlrev_b32 v46, 16, v48")
    A("v_and_b32 v47, 0xffff0000, v48")
    A(f"v_add_f32 v47, {hex(f2u(1e-5))}, v47")
    A("v_cvt_pk_bf16_f32 v47, v47, v47")
    A("v_lshlrev_b32 v47, 16, v47")
    A("v_sqrt_f32 v47, v47")
    A("s_nop 0")
    A("v_cvt_pk_bf16_f32 v47, v47, v47")
    A("v_lshlrev_b32 v47, 16, v47")
    A("v_rcp_f32 v47, v47")
    for k in range(14):
        A(f"v_sub_f32 v{32+k}, v{32+k}, v46")
    for m in range(7):
        A(f"v_cvt_pk_bf16_f32 v{24+m}, v{32+2*m}, v{33+2*m}")
    for m in range(7):
        A(f"v_lshlrev_b32 v{32+2*m}, 16, v{24+m}")
        A(f"v_and_b32 v{33+2*m}, 0xffff0000, v{24+m}")
    for k in range(14):
        A(f"v_mul_f32 v{32+k}, v{32+k}, v47")
    for m in range(7):
        A(f"v_cvt_pk_bf16_f32 v{24+m}, v{32+2*m}, v{33+2*m}")
    A(f"v_add_u32 v22, {LD['XN']}, v22")
    for m in range(7):
        A(f"ds_write_b32 v22, v{24+m} offset:{128*m}")
    A("s_mul_i32 s46, s52, 896"); A("s_mul_i32 s47, s57, 224"); A("s_add_u32 s46, s46, s47"); A(f"s_add_u32 s46, s46, {LD['XN']}")
    A("v_mul_u32_u24 v22, 56, v11")
    A("v_add_u32 v22, s46, v22")
    A("s_waitcnt lgkmcnt(0)")
    for m in range(7):
        A(f"ds_read_b64 v[{32+2*m}:{33+2*m}], v22 offset:{8*m}")
    A("s_waitcnt lgkmcnt(0)")
    for t in range(28):
        src = 32 + t // 2; sel = 12 + 4 * (t % 2); bb = 48 + 4 * (t % 2)
        for k in range(4):
            A(f"v_perm_b32 v{bb+k}, v{src}, v{src}, v{sel+k}")
        A(f"s_waitcnt vmcnt({27 - t + 5 + ND})")
        A("s_nop 0")
        A(f"v_mfma_f32_16x16x32_bf16 v[56:59], v[{64+4*t}:{67+4*t}], v[{bb}:{bb+3}], {'0' if t == 0 else 'v[56:59]'}")
    A("v_lshlrev_b32 v23, 7, v11")
    A("v_lshl_add_u32 v23, v10, 4, v23")
    A("s_lshl_b32 s46, s50, 13"); A("s_lshl_b32 s47, s56, 11"); A("s_add_u32 s46, s46, s47")
    A("s_lshl_b32 s47, s57, 9"); A("s_add_u32 s46, s46, s47"); A(f"s_add_u32 s46, s46, {WS_QP}")
    A("s_mov_b32 exec_lo, 0x00ff00ff"); A("s_mov_b32 exec_hi, 0x00ff00ff")
    A("s_nop 1")
    A("buffer_store_dwordx4 v[56:59], v23, s[36:39], s46 offen sc1")
    A("s_mov_b64 exec, 1")
    A("s_lshl_b32 s46, s50, 4")
    A("v_mov_b32 v24, 1"); A("v_mov_b32 v25, 0")
    A("s_waitcnt vmcnt(0)")
    A("buffer_atomic_add v24, v25, s[60:63], s46 offen sc1")
    A("s_mov_b64 exec, -1")
    stamp(1)
    A("v_mov_b32 v25, 0")
    A("L_h_qpoll:")
    A("buffer_load_dword v26, v25, s[60:63], s46 offen sc1")
    A("s_waitcnt vmcnt(0)")
    A("v_readfirstlane_b32 s47, v26")
    A("s_cmp_ge_u32 s47, 16")
    A("s_cbranch_scc1 L_h_qgo")
    spin_tail("L_h_qpoll", sleep=2)
    A("L_h_qgo:")
    A("v_lshlrev_b32 v22, 11, v20")
    A("v_lshl_add_u32 v22, v21, 4, v22")
    A("s_lshl_b32 s46, s50, 13"); A(f"s_add_u32 s46, s46, {WS_QP}")
    for z in range(2):
        if z == 1:
            A("s_add_u32 s46, s46, 4096")
        for rs in range(4):
            A(f"buffer_load_dwordx4 v[{64+16*z+4*rs}:{67+16*z+4*rs}], v22, s[36:39], s46 offen offset:{rs*512} sc1")
    A("v_lshrrev_b32 v23, 3, v21")
    A("v_lshlrev_b32 v23, 6, v23")
    A("v_lshl_add_u32 v23, v20, 8, v23")
    A("v_lshl_add_u32 v23, v3, 1, v23")
    A(f"v_add_u32 v23, {LD['Q']}, v23")
    for z in range(2):
        A(f"s_waitcnt vmcnt({4*(1-z)})")
        b0 = 64 + 16 * z
        for k in range(4):
            A(f"v_add_f32 v{b0+k}, v{b0+k}, v{b0+4+k}")
            A(f"v_add_f32 v{b0+8+k}, v{b0+8+k}, v{b0+12+k}")
        for k in range(4):
            A(f"v_add_f32 v{b0+k}, v{b0+k}, v{b0+8+k}")
        A(f"v_cvt_pk_bf16_f32 v{b0}, v{b0}, v{b0+1}")
        A(f"v_cvt_pk_bf16_f32 v{b0+1}, v{b0+2}, v{b0+3}")
        A(f"ds_write_b16 v23, v{b0} offset:{z*512}")
        A(f"ds_write_b16_d16_hi v23, v{b0} offset:{z*512+16}")
        A(f"ds_write_b16 v23, v{b0+1} offset:{z*512+32}")
        A(f"ds_write_b16_d16_hi v23, v{b0+1} offset:{z*512+48}")
    A(f"v_mov_b32 v24, {LD['FLAGS']}"); A("v_mov_b32 v25, 1")
    A("s_waitcnt lgkmcnt(0)")
    A("ds_write_b32 v24, v25 offset:4")
    stamp(2)
    A(f"s_sub_u32 s56, s2, {FF0}")
    A("s_cmp_ge_u32 s56, 14")
    A("s_cbranch_scc1 L_h_noffn")
    srd(28, 16, 448 * 3584)
    srd(32, 18, 448 * 3584)
    A(f"v_mul_u32_u24 v23, {112*3584}, v11")
    A("v_lshl_add_u32 v23, v10, 4, v23")
    A("s_lshl_b32 s46, s56, 8")
    A("v_lshrrev_b32 v22, 3, v10")
    A("v_mul_u32_u24 v22, 896, v22")
    A("v_mul_u32_u24 v24, 224, v11")
    A(f"v_add3_u32 v22, v22, v24, 0")
    A(f"v_add_u32 v22, {LD['XN']}, v22")
    for k in range(8):
        A(f"v_mov_b32 v{56+k}, 0")
    def ffn_loads(t):
        A(f"buffer_load_dwordx4 v[{64+8*t}:{67+8*t}], v23, s[28:31], s46 offen nt")
        A(f"buffer_load_dwordx4 v[{68+8*t}:{71+8*t}], v23, s[32:35], s46 offen nt")
        A("s_add_u32 s46, s46, 3584")
    A("s_waitcnt vmcnt(0)")
    for t in range(8):
        ffn_loads(t)
    A("s_mov_b32 s57, 13")
    def ffn_iter(reissue):
        A("ds_read_b128 v[32:35], v22")
        A("v_add_u32 v22, 16, v22")
        A("s_waitcnt lgkmcnt(0)")
        for t in range(8):
            src = 32 + t // 2; sel = 12 + 4 * (t % 2); bb = 48 + 4 * (t % 2)
            for k in range(4):
                A(f"v_perm_b32 v{bb+k}, v{src}, v{src}, v{sel+k}")
            A(f"s_waitcnt vmcnt({14 if reissue else 14 - 2*t})")
            A("s_nop 0")
            A(f"v_mfma_f32_16x16x32_bf16 v[56:59], v[{64+8*t}:{67+8*t}], v[{bb}:{bb+3}], v[56:59]")
            A(f"v_mfma_f32_16x16x32_bf16 v[60:63], v[{68+8*t}:{71+8*t}], v[{bb}:{bb+3}], v[60:63]")
            if reissue:
                ffn_loads(t)
    A("L_h_f1:")
    ffn_iter(True)
    A("s_sub_u32 s57, s57, 1"); A("s_cmp_lg_u32 s57, 0"); A("s_cbranch_scc1 L_h_f1")
    ffn_iter(False)
    srd(28, 20, 1792 * 896)
    A(f"v_mul_u32_u24 v23, {32*896}, v11")
    A("v_lshl_add_u32 v23, v10, 4, v23")
    A(f"s_mul_i32 s46, s56, {128*896}")
    def dn_loads(t):
        for nb in range(4):
            A(f"buffer_load_dwordx4 v[{64+16*t+4*nb}:{67+16*t+4*nb}], v23, s[28:31], s46 offen offset:{nb*256} nt")
        A("s_add_u32 s46, s46, 896")
    A("s_nop 4")
    for t in range(4):
        dn_loads(t)
    A("v_cvt_pk_bf16_f32 v32, v56, v57"); A("v_cvt_pk_bf16_f32 v33, v58, v59")
    A("v_cvt_pk_bf16_f32 v34, v60, v61"); A("v_cvt_pk_bf16_f32 v35, v62, v63")
    for k in range(4):
        A(f"v_lshlrev_b32 v{36+2*k}, 16, v{32+k}")
        A(f"v_and_b32 v{37+2*k}, 0xffff0000, v{32+k}")
    K0 = -2.0 * math.sqrt(2.0 / math.pi) * math.log2(math.e)
    A(f"s_mov_b32 s58, {hex(f2u(0.044715))}")
    for k in range(4):
        A(f"v_mul_f32 v{44+k}, v{36+k}, v{36+k}")
        A(f"v_mul_f32 v{44+k}, v{44+k}, v{36+k}")
        A(f"v_fma_f32 v{44+k}, v{44+k}, s58, v{36+k}")
        A(f"v_mul_f32 v{44+k}, {hex(f2u(K0))}, v{44+k}")
    for k in range(4):
        A(f"v_exp_f32 v{44+k}, v{44+k}")
    A("s_nop 0")
    for k in range(4):
        A(f"v_add_f32 v{44+k}, 1.0, v{44+k}")
    for k in range(4):
        A(f"v_rcp_f32 v{44+k}, v{44+k}")
    A("s_nop 0")
    for k in range(4):
        A(f"v_mul_f32 v{44+k}, v{44+k}, v{36+k}")
    A("v_cvt_pk_bf16_f32 v32, v44, v45"); A("v_cvt_pk_bf16_f32 v33, v46, v47")
    for k in range(2):
        A(f"v_lshlrev_b32 v{44+2*k}, 16, v{32+k}")
        A(f"v_and_b32 v{45+2*k}, 0xffff0000, v{32+k}")
    for k in range(4):
        A(f"v_mul_f32 v{44+k}, v{44+k}, v{40+k}")
    A("v_cvt_pk_bf16_f32 v32, v44, v45"); A("v_cvt_pk_bf16_f32 v33, v46, v47")
    A("v_lshrrev_b32 v22, 3, v10")
    A("v_lshlrev_b32 v22, 8, v22")
    A("v_lshl_add_u32 v22, v11, 6, v22")
    A(f"v_add_u32 v22, {LD['H']}, v22")
    A("v_lshl_add_u32 v24, v3, 1, v22")
    A("ds_write_b16 v24, v32")
    A("ds_write_b16_d16_hi v24, v32 offset:16")
    A("ds_write_b16 v24, v33 offset:32")
    A("ds_write_b16_d16_hi v24, v33 offset:48")
    for k in range(16):
        A(f"v_mov_b32 v{128+k}, 0")
    A("s_waitcnt lgkmcnt(0)")
    A("s_mov_b32 s57, 7")
    def dn_iter(reissue):
        A("ds_read_b64 v[32:33], v22")
        A("v_add_u32 v22, 8, v22")
        A("s_waitcnt lgkmcnt(0)")
        for t in range(4):
            src = 32 + t // 2; sel = 12 + 4 * (t % 2); bb = 48 + 4 * (t % 2)
            for k in range(4):
                A(f"v_perm_b32 v{bb+k}, v{src}, v{src}, v{sel+k}")
            A(f"s_waitcnt vmcnt({12 if reissue else 12 - 4*t})")
            A("s_nop 0")
            for nb in range(4):
                A(f"v_mfma_f32_16x16x32_bf16 v[{128+4*nb}:{131+4*nb}], v[{64+16*t+4*nb}:{67+16*t+4*nb}], v[{bb}:{bb+3}], v[{128+4*nb}:{131+4*nb}]")
            if reissue:
                dn_loads(t)
    A("L_h_f2:")
    dn_iter(True)
    A("s_sub_u32 s57, s57, 1"); A("s_cmp_lg_u32 s57, 0"); A("s_cbranch_scc1 L_h_f2")
    dn_iter(False)
    A("v_lshrrev_b32 v22, 3, v10")
    A("v_lshlrev_b32 v22, 11, v22")
    A("v_lshl_add_u32 v22, v11, 7, v22")
    A("v_lshl_add_u32 v22, v3, 4, v22")
    A("s_lshl_b32 s46, s56, 12"); A(f"s_add_u32 s46, s46, {WS_HY}")
    A("s_nop 4")
    for nb in range(4):
        A(f"buffer_store_dwordx4 v[{128+4*nb}:{131+4*nb}], v22, s[36:39], s46 offen offset:{nb*512} sc1")
    A("s_mov_b64 exec, 1")
    A("v_mov_b32 v24, 1"); A("v_mov_b32 v25, 4")
    A("s_waitcnt vmcnt(0)")
    A("buffer_atomic_add v24, v25, s[60:63], 0 offen sc1")
    A("s_mov_b64 exec, -1")
    stamp(3)
    A("L_h_noffn:")
    A("s_and_b32 s56, s2, 127")
    A("s_cmp_ge_u32 s56, 28")
    A("s_cbranch_scc1 L_end")
    A("v_lshlrev_b32 v22, 4, v1")
    A("s_lshl_b32 s46, s52, 7")
    A("v_add_u32 v22, s46, v22")
    A("v_mov_b32 v23, 16")
    A("v_cmp_eq_u32 vcc, 8, v1")
    A("s_nop 1")
    A("v_cndmask_b32 v22, v22, 4, vcc" if False else "v_mov_b32 v24, 4")
    A("v_cndmask_b32 v22, v22, v24, vcc")
    A("v_mov_b32 v24, 14")
    A("v_cndmask_b32 v23, v23, v24, vcc")
    A("s_mov_b64 exec, 0x1ff")
    A("L_h_cpoll:")
    A("buffer_load_dword v26, v22, s[60:63], 0 offen sc1")
    A("s_waitcnt vmcnt(0)")
    A("v_cmp_lt_u32 vcc, v26, v23")
    A("s_cbranch_vccz L_h_cgo")
    spin_tail("L_h_cpoll", sleep=32)
    A("L_h_cgo:")
    A("s_mov_b64 exec, -1")
    for k in range(4):
        A(f"v_mov_b32 v{64+k}, 0")
    A("v_lshlrev_b32 v22, 12, v10")
    A("v_lshl_add_u32 v22, v11, 4, v22")
    A("s_lshl_b32 s46, s52, 11"); A("s_lshl_b32 s47, s56, 6"); A("s_add_u32 s46, s46, s47"); A(f"s_add_u32 s46, s46, {WS_HY}")
    A("s_mov_b32 exec_lo, 0x3fff3fff"); A("s_mov_b32 exec_hi, 0x3fff3fff")
    A("buffer_load_dwordx4 v[64:67], v22, s[36:39], s46 offen sc1")
    A("s_mov_b64 exec, -1")
    A("s_lshr_b32 s47, s56, 1"); A("s_lshl_b32 s47, s47, 5"); A("s_and_b32 s48, s56, 1"); A("s_lshl_b32 s48, s48, 2")
    A("s_add_u32 s47, s47, s48"); A("s_mul_i32 s48, s52, 448"); A("s_add_u32 s47, s47, s48"); A("s_lshl_b32 s57, s47, 1")
    srd(28, 4, 1792)
    srd(32, 22, 1792)
    A("v_lshlrev_b32 v23, 1, v11")
    for rr in range(4):
        A(f"buffer_load_ushort v{72+rr}, v23, s[28:31], s57 offen offset:{16*rr}")
    A("s_waitcnt vmcnt(0)")
    for sh in (8, 4, 2, 1):
        for k in range(4):
            A(f"v_add_f32_dpp v{64+k}, v{64+k}, v{64+k} row_ror:{sh} row_mask:0xf bank_mask:0xf")
    A("v_cvt_pk_bf16_f32 v68, v64, v65"); A("v_cvt_pk_bf16_f32 v69, v66, v67")
    for k in range(2):
        A(f"v_lshlrev_b32 v{64+2*k}, 16, v{68+k}")
        A(f"v_and_b32 v{65+2*k}, 0xffff0000, v{68+k}")
    for k in range(4):
        A(f"v_mul_f32 v{68+k}, {hex(f2u(-math.log2(math.e)))}, v{64+k}")
    for k in range(4):
        A(f"v_exp_f32 v{68+k}, v{68+k}")
    A("s_nop 0")
    for k in range(4):
        A(f"v_add_f32 v{68+k}, 1.0, v{68+k}")
    for k in range(4):
        A(f"v_rcp_f32 v{68+k}, v{68+k}")
    A("s_nop 0")
    for k in range(4):
        A(f"v_mul_f32 v{64+k}, v{64+k}, v{68+k}")
    A("v_cvt_pk_bf16_f32 v68, v64, v65"); A("v_cvt_pk_bf16_f32 v69, v66, v67")
    for k in range(2):
        A(f"v_lshlrev_b32 v{76+2*k}, 16, v{68+k}")
        A(f"v_and_b32 v{77+2*k}, 0xffff0000, v{68+k}")
    for k in range(4):
        A(f"v_lshlrev_b32 v{72+k}, 16, v{72+k}")
    A("v_lshlrev_b32 v22, 11, v10")
    A("v_lshl_add_u32 v22, v11, 4, v22")
    A("s_lshl_b32 s46, s52, 18"); A("s_lshl_b32 s47, s56, 6"); A("s_add_u32 s46, s46, s47"); A(f"s_add_u32 s46, s46, {WS_HB}")
    for k in range(1, 8):
        A(f"s_add_u32 s{63+k}, s46, {k*32768}")
    stamp(4)
    A("s_barrier")
    A("L_h_bpoll:")
    for k in range(8):
        A(f"buffer_load_dwordx4 v[{96+4*k}:{99+4*k}], v22, s[36:39], s{46 if k == 0 else 63+k} offen sc1")
    for k in range(8):
        A(f"s_waitcnt vmcnt({7-k})")
        if k == 0:
            A("v_max3_u32 v24, v96, v97, v98"); A("v_max_u32 v24, v24, v99")
        else:
            A(f"v_max3_u32 v24, v24, v{96+4*k}, v{97+4*k}"); A(f"v_max3_u32 v24, v24, v{98+4*k}, v{99+4*k}")
    A("v_cmp_eq_u32 vcc, -1, v24")
    A("s_cbranch_vccz L_h_bgo")
    spin_tail("L_h_bpoll")
    A("L_h_bgo:")
    stamp(5)
    for step in (16, 8, 4):
        for k in range(step):
            A(f"v_add_f32 v{96+k}, v{96+k}, v{96+step+k}")
    A("s_nop 0")
    for sh in (8, 4, 2, 1):
        for k in range(4):
            A(f"v_add_f32_dpp v{96+k}, v{96+k}, v{96+k} row_ror:{sh} row_mask:0xf bank_mask:0xf")
    A("v_cvt_pk_bf16_f32 v100, v96, v97"); A("v_cvt_pk_bf16_f32 v101, v98, v99")
    for k in range(2):
        A(f"v_lshlrev_b32 v{96+2*k}, 16, v{100+k}")
        A(f"v_and_b32 v{97+2*k}, 0xffff0000, v{100+k}")
    for k in range(4):
        A(f"v_mul_f32 v{96+k}, v{96+k}, v{76+k}")
    A("v_cvt_pk_bf16_f32 v100, v96, v97"); A("v_cvt_pk_bf16_f32 v101, v98, v99")
    for k in range(2):
        A(f"v_lshlrev_b32 v{96+2*k}, 16, v{100+k}")
        A(f"v_and_b32 v{97+2*k}, 0xffff0000, v{100+k}")
    for k in range(4):
        A(f"v_add_f32 v{96+k}, v{96+k}, v{72+k}")
    A("v_cvt_pk_bf16_f32 v100, v96, v97"); A("v_cvt_pk_bf16_f32 v101, v98, v99")
    A("s_mov_b32 exec_lo, 0x00010001"); A("s_mov_b32 exec_hi, 0x00010001")
    A("buffer_store_short v100, v23, s[32:35], s57 offen")
    A("buffer_store_short_d16_hi v100, v23, s[32:35], s57 offen offset:16")
    A("buffer_store_short v101, v23, s[32:35], s57 offen offset:32")
    A("buffer_store_short_d16_hi v101, v23, s[32:35], s57 offen offset:48")
    A("s_mov_b64 exec, -1")
    stamp(6)
    A("L_end:")
    A("s_endpgm")
    nv = 256 if cfg.DIAG else 200
    A('.section .rodata,"a"'); A(".p2align 6"); A(f".amdhsa_kernel {NAME}")
    A.L.append(f"  .amdhsa_next_free_vgpr {nv}"); A.L.append("  .amdhsa_next_free_sgpr 102"); A.L.append(f"  .amdhsa_accum_offset {nv}")
    A.L.append("  .amdhsa_group_segment_fixed_size 0"); A.L.append("  .amdhsa_kernarg_size 96"); A.L.append("  .amdhsa_user_sgpr_count 2")
    A.L.append("  .amdhsa_user_sgpr_kernarg_segment_ptr 1"); A.L.append("  .amdhsa_system_sgpr_workgroup_id_x 1"); A(".end_amdhsa_kernel")
    return "\n".join(A.L) + "\n"

if __name__ == "__main__":
    cfg = Cfg()
    out = sys.argv[1]
    for kv in sys.argv[2:]:
        k, v = kv.split("=")
        setattr(cfg, k, int(v))
    open(out, "w").write(gen(cfg))
```

```python
import sys, math
NAME = "recurrent_scan__gqa_block_cached__glu_gated_geglu__decode_kernel"

class Cfg:
    F = 20
    R = 9
    C = 6
    DIAG = False
    SPIN = 1 << 22
    NOSWZ = 0
    NOCOMP = 0
    NOWO = 0
    NOWQ = 0
    PSLEEP = 1
    QSLEEP = 4
    BAR3 = 1
    HSLEEP = 1
    PF = 0
    ROT = 5
    GS = 3
    WIN = 1
    SF = 0
    SIZES = (12, 6, 3, 2, 1)
    NOFFN = 0

def lds_layout(R):
    o = R * 16384
    L = {}
    L['FLAGS'] = o; o += 256
    L['Q'] = o; o += 1024
    L['XN'] = o; o += 1792
    L['H'] = o; o += 512
    L['CM'] = o; o += 64
    L['CL'] = o; o += 256
    L['CO'] = o; o += 6 * 2048
    L['END'] = o
    return L

WS_EP = 0
WS_PC = 0x1000
PCS = 4352
WS_QP = 0x20000
WS_HA = 0x40000
WS_HM = 0xC0000
WS_HB = 0xD0000
WS_HY = 0x150000
WS_DIAG = 0x200000
WS_SIZE = 0x400000
TAGM = 0xf
CSC = 0.0625 * math.log2(math.e)

import struct
def f2u(x):
    return struct.unpack('<I', struct.pack('<f', x))[0]

class Asm:
    def __init__(self):
        self.L = []
        self.n = 0
    def __call__(self, s):
        for line in s.strip('\n').split('\n'):
            self.L.append(line.strip() if not line.strip().endswith(':') else line.strip())
    def label(self, base):
        self.n += 1
        return f"L_{base}_{self.n}"

def gen(cfg):
    F, R, C = cfg.F, cfg.R, cfg.C
    LD = lds_layout(R)
    assert LD['END'] <= 163840, LD['END']
    A = Asm()
    NUNITS = 128
    SIZES = tuple(cfg.SIZES)
    S = NUNITS - sum(SIZES)
    NT = 16 * len(SIZES)
    assert len(SIZES) <= 8
    SZP = sum(v << (8 * r) for r, v in enumerate(SIZES))
    STP = sum((S + sum(SIZES[:r])) << (8 * r) for r in range(len(SIZES)))
    def srd(dst, base, size, add=None):
        if add is None:
            A(f"s_mov_b32 s{dst}, s{base}")
            A(f"s_and_b32 s{dst+1}, s{base+1}, 0xffff")
        else:
            A(f"s_add_u32 s{dst}, s{base}, s{add}")
            A(f"s_addc_u32 s{dst+1}, s{base+1}, 0")
            A(f"s_and_b32 s{dst+1}, s{dst+1}, 0xffff")
        A(f"s_mov_b32 s{dst+2}, {size}")
        A(f"s_mov_b32 s{dst+3}, 0x20000")
    def stamp(idx, tmpv=(250, 251, 252)):
        if not cfg.DIAG:
            return
        A(f"s_memrealtime s[96:97]")
        A(f"s_lshl_b32 s98, s2, 3")
        A(f"s_add_u32 s98, s98, s3")
        A(f"s_lshl_b32 s98, s98, 7")
        A(f"s_add_u32 s98, s98, {WS_DIAG + idx*8}")
        A(f"s_waitcnt lgkmcnt(0)")
        A(f"v_mov_b32 v{tmpv[0]}, s96")
        A(f"v_mov_b32 v{tmpv[1]}, s97")
        A(f"v_mov_b32 v{tmpv[2]}, 0")
        A(f"s_mov_b64 s[94:95], exec")
        A(f"s_mov_b64 exec, 1")
        A(f"buffer_store_dwordx2 v[{tmpv[0]}:{tmpv[1]}], v{tmpv[2]}, s[36:39], s98 offen")
        A(f"s_mov_b64 exec, s[94:95]")
    TG = 193
    def tag(v):
        A(f"v_bfi_b32 v{v}, s59, v{TG}, v{v}")
    def tagcheck(regs, acc, full=()):
        regs = list(regs)
        if len(regs) == 0:
            A(f"v_mov_b32 v{acc}, 0")
        elif len(regs) == 1:
            A(f"v_xor_b32 v{acc}, v{regs[0]}, v{TG}")
        else:
            A(f"v_bitop3_b32 v{acc}, v{regs[0]}, v{regs[1]}, v{TG} bitop3:0x7e")
            for r in regs[2:]:
                A(f"v_bitop3_b32 v{acc}, v{acc}, v{r}, v{TG} bitop3:0xf6")
        A(f"v_and_b32 v{acc}, s59, v{acc}")
        for r in full:
            A(f"v_bitop3_b32 v{acc}, v{acc}, v{r}, s58 bitop3:0xf6")
        A(f"v_cmp_ne_u32 vcc, 0, v{acc}")
    codes = {}
    def die(lbl):
        if cfg.DIAG:
            codes.setdefault(lbl, len(codes) + 1)
            A("s_mov_b64 exec, 1")
            A(f"v_mov_b32 v248, {codes[lbl]}"); A("v_mov_b32 v249, s40"); A("v_mov_b32 v250, s43"); A("v_mov_b32 v251, s73"); A("v_mov_b32 v252, 0")
            A("s_lshl_b32 s98, s2, 3"); A("s_add_u32 s98, s98, s3"); A("s_lshl_b32 s98, s98, 7"); A(f"s_add_u32 s98, s98, {WS_DIAG + 112}")
            A("buffer_store_dwordx4 v[248:251], v252, s[36:39], s98 offen")
        A("s_endpgm")
    def spin_tail(lbl, cnt="s45", sleep=1):
        A(f"s_sleep {sleep}")
        A(f"s_sub_u32 {cnt}, {cnt}, 1")
        A(f"s_cmp_lg_u32 {cnt}, 0")
        A(f"s_cbranch_scc1 {lbl}")
        die(lbl)

    hdr = open('recurrent_scan__gqa_block_cached__glu_gated_geglu__decode.s.ref').read().split('\n')
    for line in hdr:
        if line.startswith('; @launch') or not line.startswith(';'):
            break
        A.L.append(line)
    A(f"; @launch grid=(256,1,1) block=(512,1,1) lds={LD['END']}")
    A('.amdgcn_target "amdgcn-amd-amdhsa--gfx950"')
    A(".text"); A(f".globl {NAME}"); A(".p2align 8"); A(f".type {NAME},@function"); A(f"{NAME}:")
    A(f"""
    s_cmp_ge_u32 s2, 256
    s_cbranch_scc1 L_end
    s_load_dwordx8 s[4:11], s[0:1], 0
    s_load_dwordx8 s[12:19], s[0:1], 32
    s_load_dwordx8 s[20:27], s[0:1], 64
    v_and_b32 v1, 63, v0
    v_lshrrev_b32 v2, 6, v0
    v_lshlrev_b32 v3, 2, v1
    v_add_u32 v3, {LD['FLAGS']}, v3
    v_mov_b32 v4, 0
    ds_write_b32 v3, v4
    v_readfirstlane_b32 s3, v2
    s_mov_b32 s45, {cfg.SPIN}
    s_mov_b32 s40, 0
    s_mov_b32 s43, 0
    s_mov_b32 s73, 0
    """)
    A("v_lshrrev_b32 v5, 5, v1")
    A("v_and_b32 v6, 31, v1")
    A("v_xor_b32 v6, v6, v5")
    A("v_lshlrev_b32 v5, 9, v5")
    for j in range(8):
        A(f"v_xor_b32 v7, {2*j}, v6")
        A(f"v_lshl_add_u32 v{8+j}, v7, 4, v5")
    A("v_lshlrev_b32 v16, 4, v1")
    A(f"v_mov_b32 v17, {LD['FLAGS']}")
    A("s_lshr_b32 s46, s2, 4")
    A("s_lshl_b32 s46, s46, 24")
    A("s_waitcnt lgkmcnt(0)")
    A("s_barrier")
    A("s_cmp_lg_u32 s3, 0")
    A("s_cbranch_scc1 L_notloader")
    A("s_setprio 3")
    srd(28, 6, 1 << 24, add=46)
    srd(32, 8, 1 << 24, add=46)
    if cfg.DIAG:
        srd(36, 26, WS_SIZE)
    stamp(0)
    a_, jp = divmod(F - 1, 16)
    A("s_mov_b32 s90, 0")
    A("s_mov_b32 s40, 0"); A("s_mov_b32 s41, 0"); A("s_and_b32 s66, s2, 15"); A("s_mov_b32 s67, 0"); A("s_mov_b32 s43, 0"); A("s_mov_b32 s44, 0")
    A("s_lshr_b32 s68, s2, 4"); A(f"s_mul_i32 s68, s68, {cfg.GS}")
    def ld_addr():
        if cfg.WIN:
            A("s_add_u32 s42, s67, s68"); A("s_and_b32 s42, s42, 127"); A("s_lshl_b32 s42, s42, 17")
            A(f"s_mul_i32 s69, s67, {cfg.ROT}"); A("s_add_u32 s69, s69, s66"); A("s_and_b32 s69, s69, 15"); A("s_lshl_b32 s69, s69, 13")
        else:
            A("s_lshl_b32 s42, s66, 20"); A("s_lshl_b32 s69, s67, 13")
        A("s_or_b32 s42, s42, s69")
    ld_addr()
    A(f"s_mov_b32 s53, {S}")
    A("s_lshr_b32 s50, s2, 4"); A(f"s_mul_i32 s50, s50, {PCS}"); A(f"s_add_u32 s50, s50, {WS_PC}")
    A("s_add_u32 s56, s26, s50"); A("s_addc_u32 s57, s27, 0")
    A(f"s_mov_b32 s60, {hex(SZP & 0xffffffff)}"); A(f"s_mov_b32 s61, {hex(SZP >> 32)}")
    A(f"s_mov_b32 s62, {hex(STP & 0xffffffff)}"); A(f"s_mov_b32 s63, {hex(STP >> 32)}")
    A("s_mov_b32 s54, 0")
    A("L_ld_loop:")
    A("s_cmp_lg_u32 s53, 1")
    A("s_cbranch_scc1 L_ld_noat")
    A("s_mov_b32 s54, 1")
    if NT:
        A("s_atomic_add s54, s[56:57], 0x0 glc")
    A("L_ld_noat:")
    for j in range(16):
        A(f"s_waitcnt vmcnt({F-1})")
        if j == jp:
            A(f"s_sub_i32 s49, s40, {a_}")
            A("s_max_i32 s43, s43, s49")
            A("v_mov_b32 v18, s43")
            A("ds_write_b32 v17, v18")
        if j % 4 == 0:
            A(f"s_add_u32 m0, s41, {j*1024}")
            A(f"s_add_u32 s47, s42, {(j % 8)*1024}")
        if j == 8:
            A("s_add_u32 s44, s44, 4"); A(f"s_cmp_ge_u32 s44, {R*4}"); A("s_cselect_b32 s44, 0, s44")
            A("v_add_u32 v19, s44, v17")
            A("ds_read_b32 v20, v19 offset:64")
        if j < 8:
            A(f"buffer_load_dwordx4 v{16 if cfg.NOSWZ else 8+j}, s[28:31], s47 offen offset:{(j%4)*1024} nt lds")
        else:
            A(f"buffer_load_dwordx4 v16, s[32:35], s47 offen offset:{(j%4)*1024} nt lds")
    A("s_add_u32 s40, s40, 1")
    A("s_add_u32 s67, s67, 1")
    A("s_add_u32 s41, s41, 16384"); A(f"s_cmp_ge_u32 s41, {R*16384}"); A("s_cselect_b32 s41, 0, s41")
    A("s_sub_u32 s53, s53, 1")
    A("s_waitcnt lgkmcnt(0)")
    A("s_cmp_lg_u32 s53, 0")
    A("s_cbranch_scc1 L_ld_static")
    A(f"s_cmp_ge_u32 s54, {NT}")
    A("s_cbranch_scc1 L_ld_done")
    A("s_lshr_b32 s51, s54, 4"); A("s_lshl_b32 s51, s51, 3")
    A("s_lshr_b64 s[64:65], s[60:61], s51"); A("s_and_b32 s53, s64, 0xff")
    A("s_lshr_b64 s[64:65], s[62:63], s51"); A("s_and_b32 s67, s64, 0xff")
    A("s_and_b32 s66, s54, 15")
    A("L_ld_static:")
    ld_addr()
    if cfg.DIAG:
        A("s_and_b32 s91, s40, 15"); A("s_cmp_lg_u32 s91, 0"); A("s_cbranch_scc1 L_ld_nops")
        A("s_cmp_gt_u32 s40, 80"); A("s_cbranch_scc1 L_ld_nops")
        A("s_memrealtime s[96:97]")
        A("s_lshl_b32 s98, s2, 10"); A("s_lshr_b32 s91, s40, 1"); A("s_add_u32 s98, s98, s91"); A(f"s_add_u32 s98, s98, {WS_DIAG + 64}")
        A("s_waitcnt lgkmcnt(0)")
        A("v_mov_b32 v250, s96"); A("v_mov_b32 v251, s97"); A("v_mov_b32 v252, 0")
        A("s_mov_b64 exec, 1")
        A("buffer_store_dwordx2 v[250:251], v252, s[36:39], s98 offen")
        A("s_mov_b64 exec, -1")
        A("L_ld_nops:")
    A(f"s_sub_i32 s48, s40, {R-1}")
    A("v_readfirstlane_b32 s47, v20")
    A("s_cmp_ge_i32 s47, s48")
    A("s_cbranch_scc1 L_ld_loop")
    if cfg.DIAG:
        A("s_cmp_lg_u32 s90, 0"); A("s_cbranch_scc1 L_ld_nost"); A("s_mov_b32 s90, 1")
        stamp(2)
        A("L_ld_nost:")
        stamp(3)
    A("s_waitcnt vmcnt(0)")
    A("s_mov_b32 s43, s40")
    A("v_mov_b32 v18, s43")
    A("ds_write_b32 v17, v18")
    A("L_ld_spin:")
    A("ds_read_b32 v20, v19 offset:64")
    A("s_waitcnt lgkmcnt(0)")
    A("v_readfirstlane_b32 s47, v20")
    A("s_cmp_ge_i32 s47, s48")
    A("s_cbranch_scc1 L_ld_loop")
    spin_tail("L_ld_spin")
    A("L_ld_done:")
    A("s_lshl_b32 s50, s40, 16")
    A("s_or_b32 s51, s50, s43")
    A("v_mov_b32 v18, s51")
    A("ds_write_b32 v17, v18")
    for k in range(a_ + 1, -1, -1):
        if 16 * k < F:
            A(f"s_sub_u32 s51, s40, {k}")
            A("s_max_u32 s51, s51, s43")
            A("s_or_b32 s51, s51, s50")
            A(f"s_waitcnt vmcnt({16*k})")
            A(f"v_mov_b32 v18, s51")
            A("ds_write_b32 v17, v18")
    if cfg.DIAG:
        A("v_mov_b32 v250, s40"); A("v_mov_b32 v251, 0"); A("v_mov_b32 v252, 0")
        A("s_lshl_b32 s98, s2, 10"); A(f"s_add_u32 s98, s98, {WS_DIAG + 8*8}")
        A("s_mov_b64 exec, 1")
        A("buffer_store_dwordx2 v[250:251], v252, s[36:39], s98 offen")
        A("s_mov_b64 exec, -1")
        A("s_nop 1")
    stamp(1)
    A("s_endpgm")

    A("L_notloader:")
    A(f"s_load_dword s58, s[26:27], {WS_EP}")
    A(f"s_mov_b32 s59, {TAGM}")
    A("v_and_b32 v3, 7, v1")
    A("v_lshrrev_b32 v4, 1, v3")
    A("v_and_b32 v5, 1, v3")
    A("v_mov_b32 v6, 0x0c0c0100")
    A("v_mov_b32 v7, 0x01000c0c")
    A("v_cmp_eq_u32 vcc, 1, v5")
    A("v_mov_b32 v8, 0x0c0c0302")
    A("v_mov_b32 v9, 0x03020c0c")
    A("v_cndmask_b32 v6, v6, v7, vcc")
    A("v_cndmask_b32 v8, v8, v9, vcc")
    A("v_mov_b32 v7, 0x0c0c0c0c")
    for k in range(4):
        A(f"v_cmp_eq_u32 vcc, {k}, v4")
        A("s_nop 1")
        A(f"v_cndmask_b32 v{12+k}, v7, v6, vcc")
        A(f"v_cndmask_b32 v{16+k}, v7, v8, vcc")
    A("v_and_b32 v10, 15, v1")
    A("v_lshrrev_b32 v11, 4, v1")
    A("s_lshr_b32 s50, s2, 4")
    A("s_and_b32 s51, s2, 15")
    A("s_lshr_b32 s52, s2, 7")
    A("s_and_b32 s53, s50, 7")
    A(f"s_mov_b32 s54, {hex(f2u(CSC))}")
    srd(36, 26, WS_SIZE)
    A("s_cmp_eq_u32 s3, 4")
    A("s_cbranch_scc1 L_helper")

    A("s_sub_u32 s55, s3, 1")
    A("s_cmp_gt_u32 s3, 4")
    A("s_cselect_b32 s47, 1, 0")
    A("s_sub_u32 s55, s55, s47")
    A(f"s_cmp_ge_u32 s55, {0 if cfg.NOWO else 4}")
    A("s_cbranch_scc1 L_c_nowo")
    srd(28, 12, 4096 * 896)
    A("s_lshl_b32 s46, s53, 9"); A("s_lshl_b32 s47, s51, 5"); A("s_add_u32 s46, s46, s47")
    A("s_mul_i32 s46, s46, 896"); A("s_lshl_b32 s47, s55, 8"); A("s_add_u32 s46, s46, s47")
    A(f"v_mul_u32_u24 v23, {8*896}, v11")
    A("v_lshl_add_u32 v23, v10, 4, v23")
    A("s_cmp_eq_u32 s55, 3")
    A("s_cselect_b32 s47, 8, 16")
    A("v_cmp_le_u32 vcc, s47, v10")
    A("v_bfrev_b32 v24, 2")
    A("s_nop 0")
    A("v_cndmask_b32 v23, v23, v24, vcc")
    for t in range(8):
        if t == 4:
            A(f"s_add_u32 s46, s46, {4*896}")
        A(f"buffer_load_dwordx4 v[{156+4*t}:{159+4*t}], v23, s[28:31], s46 offen offset:{(t%4)*896} nt")
    A("L_c_nowo:")
    A("v_xor_b32 v23, v10, v11")
    A("v_lshlrev_b32 v24, 9, v10")
    for a in range(4):
        A(f"v_xor_b32 v25, {4*a}, v23")
        A(f"v_lshl_add_u32 v{2+a}, v25, 4, v24")
    A("v_lshlrev_b32 v24, 11, v11")
    A("v_lshl_add_u32 v6, v10, 4, v24")
    A(f"v_mov_b32 v188, {LD['FLAGS']}")
    A(f"v_mov_b32 v20, {hex(f2u(-3.0e38))}")
    A("v_mul_f32 v21, s54, v20")
    A("v_mov_b32 v22, 0")
    for k in range(8):
        A(f"v_mov_b32 v{132+k}, 0")
    A("v_mov_b32 v189, v10"); A("v_mov_b32 v190, v11")
    A("s_mov_b32 s40, s55")
    A("s_lshl_b32 s41, s55, 14")
    A("s_mov_b32 s44, 0")
    A("s_waitcnt lgkmcnt(0)")
    A("s_add_u32 s58, s58, 1")
    A("s_and_b32 s46, s58, s59")
    A(f"v_mov_b32 v{TG}, s46")
    A("L_c_loop:")
    A("L_c_wait:")
    A("ds_read_b32 v23, v188")
    A("s_waitcnt lgkmcnt(0)")
    A("v_readfirstlane_b32 s43, v23")
    A("s_and_b32 s46, s43, 0xffff")
    A("s_cmp_gt_u32 s46, s40")
    A("s_cbranch_scc1 L_c_go")
    A("s_lshr_b32 s46, s43, 16")
    A("s_sub_u32 s46, s46, 1")
    A("s_cmp_lt_u32 s46, s40")
    A("s_cbranch_scc1 L_c_tail")
    spin_tail("L_c_wait", sleep=cfg.PSLEEP)
    A("L_c_go:")
    for a in range(4):
        A(f"v_add_u32 v{7+a}, s41, v{2+a}")
    A("v_add_u32 v11, s41, v6")
    for t in range(8):
        A(f"ds_read_b128 v[{64+4*t}:{67+4*t}], v{7 + t % 4} offset:{(t//4)*256}")
    for r in range(4):
        for h in range(2):
            A(f"ds_read_b128 v[{96+8*r+4*h}:{99+8*r+4*h}], v11 offset:{8192 + r*512 + h*256}")
    A("s_lshr_b32 s47, s41, 12")
    A("v_add_u32 v191, s47, v188")
    A("s_add_u32 s42, s40, 1")
    A("v_mov_b32 v192, s42")
    A("s_cmp_eq_u32 s44, 0")
    A("s_cbranch_scc1 L_c_first")
    A("L_c_comp:")
    A("s_waitcnt lgkmcnt(8)")
    if cfg.NOCOMP:
        A("s_waitcnt lgkmcnt(0)"); A("ds_max_u32 v191, v192 offset:64"); A("s_branch L_c_next")
    for t in range(8):
        A(f"v_mfma_f32_16x16x32_bf16 v[128:131], v[{64+4*t}:{67+4*t}], v[{32+4*t}:{35+4*t}], {'0' if t == 0 else 'v[128:131]'}")
    A("s_waitcnt lgkmcnt(0)")
    A("ds_max_u32 v191, v192 offset:64")
    A("s_nop 5")
    A("v_cvt_pk_bf16_f32 v24, v128, v129")
    A("v_cvt_pk_bf16_f32 v25, v130, v131")
    A("v_lshlrev_b32 v26, 16, v24")
    A("v_and_b32 v27, 0xffff0000, v24")
    A("v_lshlrev_b32 v28, 16, v25")
    A("v_and_b32 v29, 0xffff0000, v25")
    A("v_max3_f32 v30, v26, v27, v28")
    A("v_max_f32 v30, v30, v29")
    A("v_cmp_gt_f32 vcc, v30, v20")
    A("s_cbranch_vccnz L_c_resc")
    A("L_c_resc_ret:")
    for k in range(4):
        A(f"v_fma_f32 v{26+k}, v{26+k}, s54, -v21")
    for k in range(4):
        A(f"v_exp_f32 v{26+k}, v{26+k}")
    A("s_nop 0")
    A("v_cvt_pk_bf16_f32 v24, v26, v27")
    A("v_cvt_pk_bf16_f32 v25, v28, v29")
    A("v_add_f32 v30, v26, v27")
    A("v_add_f32 v31, v28, v29")
    for r in range(4):
        src = 24 + r // 2
        sel = 12 + 4 * (r % 2)
        for k in range(4):
            A(f"v_perm_b32 v{140+4*r+k}, v{src}, v{src}, v{sel+k}")
        if r == 0:
            A("v_add_f32 v22, v22, v30")
            A("v_add_f32 v22, v22, v31")
        if r >= 1:
            rr = r - 1
            for h in range(2):
                A(f"v_mfma_f32_16x16x32_bf16 v[{132+4*h}:{135+4*h}], v[{96+8*rr+4*h}:{99+8*rr+4*h}], v[{140+4*rr}:{143+4*rr}], v[{132+4*h}:{135+4*h}]")
    rr = 3
    for h in range(2):
        A(f"v_mfma_f32_16x16x32_bf16 v[{132+4*h}:{135+4*h}], v[{96+8*rr+4*h}:{99+8*rr+4*h}], v[{140+4*rr}:{143+4*rr}], v[{132+4*h}:{135+4*h}]")
    A("L_c_next:")
    A(f"s_add_u32 s40, s40, {C}")
    A(f"s_add_u32 s41, s41, {C*16384}")
    A(f"s_sub_u32 s47, s41, {R*16384}")
    A(f"s_cmp_ge_u32 s41, {R*16384}")
    A("s_cselect_b32 s41, s47, s41")
    A("s_branch L_c_loop")
    A("L_c_resc:")
    A("v_mov_b32 v31, v30")
    A("s_nop 1")
    A("v_permlane16_swap_b32 v30, v31")
    A("v_max_f32 v30, v30, v31")
    A("v_mov_b32 v31, v30")
    A("s_nop 1")
    A("v_permlane32_swap_b32 v30, v31")
    A("v_max3_f32 v20, v30, v31, v20")
    A("v_mul_f32 v30, s54, v20")
    A("v_sub_f32 v31, v21, v30")
    A("v_exp_f32 v31, v31")
    A("v_mov_b32 v21, v30")
    for k in range(8):
        A(f"v_mul_f32 v{132+k}, v{132+k}, v31")
    A("v_mul_f32 v22, v22, v31")
    A("s_branch L_c_resc_ret")
    A("L_c_first:")
    A("s_waitcnt lgkmcnt(0)")
    A("ds_max_u32 v191, v192 offset:64")
    A("L_c_qwait:")
    A("ds_read_b32 v23, v188 offset:4")
    A("s_waitcnt lgkmcnt(0)")
    A("v_readfirstlane_b32 s43, v23")
    A("s_cmp_lg_u32 s43, 0")
    A("s_cbranch_scc1 L_c_qgo")
    spin_tail("L_c_qwait")
    A("L_c_qgo:")
    A("v_lshrrev_b32 v23, 3, v189")
    A("v_lshlrev_b32 v23, 9, v23")
    A("v_lshl_add_u32 v23, v190, 4, v23")
    A(f"v_add_u32 v23, {LD['Q']}, v23")
    for t in range(8):
        A(f"ds_read_b128 v[{32+4*t}:{35+4*t}], v23 offset:{64*t}")
    A("s_mov_b32 s44, 1")
    A("s_waitcnt lgkmcnt(0)")
    stamp(2)
    A("s_branch L_c_comp")
    A("L_c_tail:")
    stamp(3)
    A("v_lshrrev_b32 v23, 3, v189")
    A("v_and_b32 v24, 7, v189")
    A("v_lshlrev_b32 v25, 10, v23")
    A("v_lshl_add_u32 v25, v190, 7, v25")
    A("v_lshl_add_u32 v25, v24, 2, v25")
    A("s_lshl_b32 s47, s55, 11")
    A(f"s_add_u32 s47, s47, {LD['CO']}")
    A("v_add_u32 v25, s47, v25")
    A("s_nop 3")
    for h in range(2):
        for rr in range(4):
            A(f"ds_write_b32 v25, v{132+4*h+rr} offset:{h*512+rr*32}")
    A("v_lshlrev_b32 v26, 3, v23")
    A("v_add_u32 v26, s55, v26")
    A("v_lshlrev_b32 v27, 2, v26")
    A(f"v_add_u32 v27, {LD['CM']}, v27")
    A("v_lshl_add_u32 v28, v26, 2, v190")
    A("v_lshlrev_b32 v28, 2, v28")
    A(f"v_add_u32 v28, {LD['CL']}, v28")
    A("s_mov_b32 exec_lo, 0x01010101"); A("s_mov_b32 exec_hi, 0x01010101")
    A("ds_write_b32 v27, v21")
    A("ds_write_b32 v28, v22")
    A("s_mov_b64 exec, -1")
    A("s_waitcnt lgkmcnt(0)")
    A("s_barrier")
    A("s_cmp_lt_u32 s55, 4")
    A("s_cbranch_scc1 L_p_wave")
    A("s_sub_u32 s56, s55, 4")
    A("s_lshl_b32 s47, s56, 5")
    A(f"s_add_u32 s47, s47, {LD['CM']}")
    A("v_mov_b32 v23, s47")
    A("ds_read_b128 v[64:67], v23")
    A("ds_read_b64 v[68:69], v23 offset:16")
    A("s_lshl_b32 s47, s56, 7")
    A(f"s_add_u32 s47, s47, {LD['CL']}")
    A("v_mov_b32 v24, s47")
    A("s_lshl_b32 s47, s56, 10")
    A(f"s_add_u32 s47, s47, {LD['CO']}")
    A("v_lshl_add_u32 v25, v1, 4, s47")
    for w in range(6):
        A(f"ds_read_b128 v[{96+4*w}:{99+4*w}], v25 offset:{w*2048}")
    for w in range(6):
        A(f"ds_read_b128 v[{72+4*w}:{75+4*w}], v24 offset:{w*16}")
    A("v_lshrrev_b32 v26, 3, v1")
    A("v_lshlrev_b32 v26, 11, v26")
    A("v_and_b32 v27, 7, v1")
    A("v_lshl_add_u32 v26, v27, 4, v26")
    A("s_lshl_b32 s46, s50, 15"); A("s_lshl_b32 s47, s56, 14"); A("s_add_u32 s46, s46, s47")
    A("s_lshl_b32 s47, s51, 7"); A("s_add_u32 s46, s46, s47"); A(f"s_add_u32 s46, s46, {WS_HA}")
    A("s_lshl_b32 s48, s50, 12"); A("s_lshl_b32 s47, s56, 11"); A("s_add_u32 s48, s48, s47")
    A("s_lshl_b32 s47, s51, 7"); A("s_add_u32 s48, s48, s47"); A(f"s_add_u32 s48, s48, {WS_HM}")
    A("s_waitcnt lgkmcnt(12)")
    A("v_max3_f32 v28, v64, v65, v66")
    A("v_max3_f32 v28, v28, v67, v68")
    A("v_max_f32 v28, v28, v69")
    for w in range(6):
        A(f"v_sub_f32 v{64+w}, v{64+w}, v28")
    for w in range(6):
        A(f"v_exp_f32 v{64+w}, v{64+w}")
    A("s_waitcnt lgkmcnt(6)")
    for k in range(4):
        A(f"v_mul_f32 v{120+k}, v64, v{96+k}")
    for w in range(1, 6):
        for k in range(4):
            A(f"v_fmac_f32 v{120+k}, v{64+w}, v{96+4*w+k}")
    for k in range(4):
        tag(120 + k)
    A("buffer_store_dwordx4 v[120:123], v26, s[36:39], s46 offen sc1")
    A("s_waitcnt lgkmcnt(0)")
    for w in range(6):
        A(f"v_add_f32 v{72+4*w}, v{72+4*w}, v{73+4*w}")
        A(f"v_add_f32 v{74+4*w}, v{74+4*w}, v{75+4*w}")
    for w in range(6):
        A(f"v_add_f32 v{72+4*w}, v{72+4*w}, v{74+4*w}")
    A("v_mul_f32 v29, v64, v72")
    for w in range(1, 6):
        A(f"v_fmac_f32 v29, v{64+w}, v{72+4*w}")
    A("v_mov_b32 v30, s58")
    A("v_mov_b32 v31, s58")
    A("v_mov_b32 v27, 0")
    A("s_mov_b64 exec, 1")
    A("buffer_store_dwordx4 v[28:31], v27, s[36:39], s48 offen sc1")
    A("s_mov_b64 exec, -1")
    stamp(4)
    if cfg.BAR3:
        A("s_waitcnt vmcnt(0)")
        A("s_barrier")
        stamp(5)
    A("s_endpgm")
    A("L_p_wave:")
    A("v_lshlrev_b32 v23, 7, v189")
    A("v_lshl_add_u32 v23, v190, 5, v23")
    A("s_lshl_b32 s46, s2, 11"); A(f"s_add_u32 s46, s46, {WS_HA}")
    A("v_lshlrev_b32 v24, 7, v189")
    A("s_lshl_b32 s48, s50, 12"); A("s_lshr_b32 s47, s51, 3"); A("s_lshl_b32 s47, s47, 11"); A("s_add_u32 s48, s48, s47"); A(f"s_add_u32 s48, s48, {WS_HM}")
    if cfg.BAR3:
        A("s_barrier")
    A("L_p_poll:")
    A("buffer_load_dwordx4 v[64:67], v23, s[36:39], s46 offen sc1")
    A("buffer_load_dwordx4 v[68:71], v23, s[36:39], s46 offen offset:16 sc1")
    A("buffer_load_dwordx4 v[72:75], v24, s[36:39], s48 offen sc1")
    A("s_waitcnt vmcnt(0)")
    tagcheck(range(64, 72), 25, full=(74, 75))
    A("s_cbranch_vccz L_p_go")
    spin_tail("L_p_poll", sleep=cfg.HSLEEP)
    A("L_p_go:")
    stamp(5)
    A("v_mov_b32 v26, v72")
    for sh in (8, 4, 2, 1):
        A("s_nop 1")
        A(f"v_max_f32_dpp v26, v26, v26 row_ror:{sh} row_mask:0xf bank_mask:0xf")
    A("v_sub_f32 v26, v72, v26")
    A("v_exp_f32 v26, v26")
    A("s_nop 0")
    A("v_mul_f32 v72, v73, v26")
    for k in range(8):
        A(f"v_mul_f32 v{64+k}, v{64+k}, v26")
    for sh in (8, 4, 2, 1):
        for k in (8, 0, 1, 2, 3, 4, 5, 6, 7):
            A(f"v_add_f32_dpp v{64+k}, v{64+k}, v{64+k} row_ror:{sh} row_mask:0xf bank_mask:0xf")
    A("v_rcp_f32 v72, v72")
    A("s_nop 0")
    for k in range(8):
        A(f"v_mul_f32 v{64+k}, v{64+k}, v72")
    for k in range(4):
        A(f"v_cvt_pk_bf16_f32 v{76+k}, v{64+2*k}, v{65+2*k}")
    for t in range(8):
        src = 76 + t // 2; sel = 12 + 4 * (t % 2)
        for k in range(4):
            A(f"v_perm_b32 v{96+4*t+k}, v{src}, v{src}, v{sel+k}")
    A("s_nop 1")
    for t in range(8):
        A(f"v_mfma_f32_16x16x32_bf16 v[128:131], v[{156+4*t}:{159+4*t}], v[{96+4*t}:{99+4*t}], {'0' if t == 0 else 'v[128:131]'}")
    A("v_lshlrev_b32 v23, 7, v190")
    A("v_lshl_add_u32 v23, v189, 4, v23")
    A("s_lshl_b32 s46, s2, 11"); A("s_lshl_b32 s47, s55, 9"); A("s_add_u32 s46, s46, s47"); A(f"s_add_u32 s46, s46, {WS_HB}")
    A("s_cmp_eq_u32 s55, 3")
    A("s_cselect_b32 s47, 0, 0x00ff00ff")
    A("s_nop 1")
    for k in range(4):
        tag(128 + k)
    A("s_mov_b32 exec_lo, 0x00ff00ff"); A("s_mov_b32 exec_hi, s47")
    A("buffer_store_dwordx4 v[128:131], v23, s[36:39], s46 offen sc1")
    A("s_mov_b64 exec, -1")
    stamp(6)
    A("s_endpgm")

    A("L_helper:")
    srd(28, 4, 1792)
    srd(32, 10, 16 if cfg.NOWQ else 448 * 8192)
    A("v_lshrrev_b32 v20, 5, v1")
    A("v_and_b32 v21, 31, v1")
    A("v_mul_u32_u24 v22, 896, v20")
    A("v_lshl_add_u32 v22, v21, 2, v22")
    for m in range(7):
        A(f"buffer_load_dword v{24+m}, v22, s[28:31], 0 offen offset:{128*m}")
    A("s_and_b32 s56, s51, 3"); A("s_lshr_b32 s57, s51, 2")
    A(f"v_mul_u32_u24 v23, {28*8192}, v11")
    A("v_lshl_add_u32 v23, v10, 4, v23")
    A(f"s_mul_i32 s46, s57, {112*8192}"); A("s_lshl_b32 s47, s53, 10"); A("s_add_u32 s46, s46, s47")
    A("s_lshl_b32 s47, s56, 8"); A("s_add_u32 s46, s46, s47")
    for t in range(28):
        A(f"buffer_load_dwordx4 v[{64+4*t}:{67+4*t}], v23, s[32:35], s46 offen nt")
        if t < 27:
            A("s_add_u32 s46, s46, 8192")
    A(f"s_mul_i32 s46, s50, {PCS}"); A(f"s_add_u32 s46, s46, {WS_PC}")
    A("s_cmp_eq_u32 s51, 0"); A(f"s_cselect_b32 s46, s46, {WS_SIZE}")
    A("v_mov_b32 v186, 0")
    A("s_mov_b64 exec, 1")
    A("buffer_store_dword v186, v186, s[36:39], s46 offen sc1")
    A("s_mov_b64 exec, -1")
    A("s_waitcnt lgkmcnt(0)")
    A("s_add_u32 s58, s58, 1")
    A("s_and_b32 s46, s58, s59")
    A(f"v_mov_b32 v{TG}, s46")
    NAFTER = 28 + 1
    stamp(0)
    ND = 1 if cfg.DIAG else 0
    A(f"s_waitcnt vmcnt({NAFTER + ND})")
    for m in range(7):
        A(f"v_lshlrev_b32 v{32+2*m}, 16, v{24+m}")
        A(f"v_and_b32 v{33+2*m}, 0xffff0000, v{24+m}")
    def red32(v, t):
        for sh in (8, 4, 2, 1):
            A("s_nop 1")
            A(f"v_add_f32_dpp v{v}, v{v}, v{v} row_ror:{sh} row_mask:0xf bank_mask:0xf")
        A(f"v_mov_b32 v{t}, v{v}")
        A("s_nop 1")
        A(f"v_permlane16_swap_b32 v{v}, v{t}")
        A(f"v_add_f32 v{v}, v{v}, v{t}")
    A("v_add_f32 v46, v32, v33")
    for k in range(2, 14):
        A(f"v_add_f32 v46, v46, v{32+k}")
    red32(46, 47)
    A(f"v_mul_f32 v46, {hex(f2u(1.0/448))}, v46")
    A("v_sub_f32 v48, v32, v46")
    A("v_mul_f32 v47, v48, v48")
    for k in range(1, 14):
        A(f"v_sub_f32 v48, v{32+k}, v46")
        A("v_fmac_f32 v47, v48, v48")
    red32(47, 48)
    A(f"v_mul_f32 v47, {hex(f2u(1.0/448))}, v47")
    A("v_cvt_pk_bf16_f32 v48, v46, v47")
    A("v_lshlrev_b32 v46, 16, v48")
    A("v_and_b32 v47, 0xffff0000, v48")
    A(f"v_add_f32 v47, {hex(f2u(1e-5))}, v47")
    A("v_cvt_pk_bf16_f32 v47, v47, v47")
    A("v_lshlrev_b32 v47, 16, v47")
    A("v_sqrt_f32 v47, v47")
    A("s_nop 0")
    A("v_cvt_pk_bf16_f32 v47, v47, v47")
    A("v_lshlrev_b32 v47, 16, v47")
    A("v_rcp_f32 v47, v47")
    for k in range(14):
        A(f"v_sub_f32 v{32+k}, v{32+k}, v46")
    for m in range(7):
        A(f"v_cvt_pk_bf16_f32 v{24+m}, v{32+2*m}, v{33+2*m}")
    for m in range(7):
        A(f"v_lshlrev_b32 v{32+2*m}, 16, v{24+m}")
        A(f"v_and_b32 v{33+2*m}, 0xffff0000, v{24+m}")
    for k in range(14):
        A(f"v_mul_f32 v{32+k}, v{32+k}, v47")
    for m in range(7):
        A(f"v_cvt_pk_bf16_f32 v{24+m}, v{32+2*m}, v{33+2*m}")
    A(f"v_add_u32 v22, {LD['XN']}, v22")
    for m in range(7):
        A(f"ds_write_b32 v22, v{24+m} offset:{128*m}")
    A("s_mul_i32 s46, s52, 896"); A("s_mul_i32 s47, s57, 224"); A("s_add_u32 s46, s46, s47"); A(f"s_add_u32 s46, s46, {LD['XN']}")
    A("v_mul_u32_u24 v22, 56, v11")
    A("v_add_u32 v22, s46, v22")
    A("s_waitcnt lgkmcnt(0)")
    for m in range(7):
        A(f"ds_read_b64 v[{32+2*m}:{33+2*m}], v22 offset:{8*m}")
    A("s_waitcnt lgkmcnt(0)")
    for t in range(28):
        src = 32 + t // 2; sel = 12 + 4 * (t % 2); bb = 48 + 4 * (t % 2)
        for k in range(4):
            A(f"v_perm_b32 v{bb+k}, v{src}, v{src}, v{sel+k}")
        A(f"s_waitcnt vmcnt({27 - t + 1 + ND})")
        A("s_nop 0")
        A(f"v_mfma_f32_16x16x32_bf16 v[56:59], v[{64+4*t}:{67+4*t}], v[{bb}:{bb+3}], {'0' if t == 0 else 'v[56:59]'}")
    A("v_lshlrev_b32 v23, 7, v11")
    A("v_lshl_add_u32 v23, v10, 4, v23")
    A("s_lshl_b32 s46, s50, 13"); A("s_lshl_b32 s47, s56, 11"); A("s_add_u32 s46, s46, s47")
    A("s_lshl_b32 s47, s57, 9"); A("s_add_u32 s46, s46, s47"); A(f"s_add_u32 s46, s46, {WS_QP}")
    A("s_waitcnt vmcnt(0)")
    for k in range(4):
        tag(56 + k)
    A("s_mov_b32 exec_lo, 0x00ff00ff"); A("s_mov_b32 exec_hi, 0x00ff00ff")
    A("buffer_store_dwordx4 v[56:59], v23, s[36:39], s46 offen sc1")
    A("s_mov_b64 exec, -1")
    stamp(1)
    A("v_lshlrev_b32 v25, 7, v1")
    A("s_lshl_b32 s46, s50, 13"); A(f"s_add_u32 s46, s46, {WS_QP}")
    A("s_add_u32 s47, s46, 4096")
    A("v_lshlrev_b32 v22, 11, v20")
    A("v_lshl_add_u32 v22, v21, 4, v22")
    A("L_h_qpoll:")
    A("buffer_load_dword v26, v25, s[36:39], s46 offen sc1")
    A("s_waitcnt vmcnt(0)")
    tagcheck([26], 27)
    A("s_cbranch_vccz L_h_qgo")
    A("L_h_qretry:")
    spin_tail("L_h_qpoll", sleep=cfg.QSLEEP)
    A("L_h_qgo:")
    for z in range(2):
        for rs in range(4):
            A(f"buffer_load_dwordx4 v[{64+16*z+4*rs}:{67+16*z+4*rs}], v22, s[36:39], s{46+z} offen offset:{rs*512} sc1")
    A("s_waitcnt vmcnt(0)")
    tagcheck(range(64, 96), 27)
    A("s_cbranch_vccnz L_h_qretry")
    A("v_lshrrev_b32 v23, 3, v21")
    A("v_lshlrev_b32 v23, 6, v23")
    A("v_lshl_add_u32 v23, v20, 8, v23")
    A("v_lshl_add_u32 v23, v3, 1, v23")
    A(f"v_add_u32 v23, {LD['Q']}, v23")
    for z in range(2):
        b0 = 64 + 16 * z
        for k in range(4):
            A(f"v_add_f32 v{b0+k}, v{b0+k}, v{b0+4+k}")
            A(f"v_add_f32 v{b0+8+k}, v{b0+8+k}, v{b0+12+k}")
        for k in range(4):
            A(f"v_add_f32 v{b0+k}, v{b0+k}, v{b0+8+k}")
        A(f"v_cvt_pk_bf16_f32 v{b0}, v{b0}, v{b0+1}")
        A(f"v_cvt_pk_bf16_f32 v{b0+1}, v{b0+2}, v{b0+3}")
        A(f"ds_write_b16 v23, v{b0} offset:{z*512}")
        A(f"ds_write_b16_d16_hi v23, v{b0} offset:{z*512+16}")
        A(f"ds_write_b16 v23, v{b0+1} offset:{z*512+32}")
        A(f"ds_write_b16_d16_hi v23, v{b0+1} offset:{z*512+48}")
    A(f"v_mov_b32 v24, {LD['FLAGS']}"); A("v_mov_b32 v25, 1")
    A("s_waitcnt lgkmcnt(0)")
    A("ds_write_b32 v24, v25 offset:4")
    stamp(2)
    A("s_mov_b32 s56, s50")
    A("s_cmp_lg_u32 s51, s50")
    A("s_cbranch_scc1 L_h_noffn")
    srd(28, 16, 16 if cfg.NOFFN else 448 * 3584)
    srd(32, 18, 16 if cfg.NOFFN else 448 * 3584)
    A(f"v_mul_u32_u24 v23, {112*3584}, v11")
    A("v_lshl_add_u32 v23, v10, 4, v23")
    A("v_cmp_le_u32 vcc, 14, v10")
    A("v_bfrev_b32 v27, 2")
    A("s_mul_i32 s46, s56, 224")
    A("v_cndmask_b32 v23, v23, v27, vcc")
    A("v_lshrrev_b32 v22, 3, v10")
    A("v_mul_u32_u24 v22, 896, v22")
    A("v_mul_u32_u24 v24, 224, v11")
    A(f"v_add3_u32 v22, v22, v24, 0")
    A(f"v_add_u32 v22, {LD['XN']}, v22")
    for k in range(8):
        A(f"v_mov_b32 v{56+k}, 0")
    def ffn_loads(t):
        A(f"buffer_load_dwordx4 v[{64+8*t}:{67+8*t}], v23, s[28:31], s46 offen nt")
        A(f"buffer_load_dwordx4 v[{68+8*t}:{71+8*t}], v23, s[32:35], s46 offen nt")
        A("s_add_u32 s46, s46, 3584")
    A("s_waitcnt vmcnt(0)")
    for t in range(8):
        ffn_loads(t)
    A("s_mov_b32 s57, 13")
    def ffn_iter(reissue):
        A("ds_read_b128 v[32:35], v22")
        A("v_add_u32 v22, 16, v22")
        A("s_waitcnt lgkmcnt(0)")
        for t in range(8):
            src = 32 + t // 2; sel = 12 + 4 * (t % 2); bb = 48 + 4 * (t % 2)
            for k in range(4):
                A(f"v_perm_b32 v{bb+k}, v{src}, v{src}, v{sel+k}")
            A(f"s_waitcnt vmcnt({14 if reissue else 14 - 2*t})")
            A("s_nop 0")
            A(f"v_mfma_f32_16x16x32_bf16 v[56:59], v[{64+8*t}:{67+8*t}], v[{bb}:{bb+3}], v[56:59]")
            A(f"v_mfma_f32_16x16x32_bf16 v[60:63], v[{68+8*t}:{71+8*t}], v[{bb}:{bb+3}], v[60:63]")
            if reissue:
                ffn_loads(t)
    A("L_h_f1:")
    ffn_iter(True)
    A("s_sub_u32 s57, s57, 1"); A("s_cmp_lg_u32 s57, 0"); A("s_cbranch_scc1 L_h_f1")
    ffn_iter(False)
    srd(28, 20, 16 if cfg.NOFFN else 1792 * 896)
    A(f"v_mul_u32_u24 v23, {28*896}, v11")
    A("v_lshl_add_u32 v23, v10, 4, v23")
    A("v_cmp_le_u32 vcc, 8, v10")
    A(f"s_mul_i32 s46, s56, {112*896}")
    A("s_nop 0")
    A("v_cndmask_b32 v26, v23, v27, vcc")
    def dn_loads(t):
        for nb in range(4):
            A(f"buffer_load_dwordx4 v[{64+16*t+4*nb}:{67+16*t+4*nb}], v{26 if nb == 3 else 23}, s[28:31], s46 offen offset:{nb*256} nt")
        A("s_add_u32 s46, s46, 896")
    A("s_nop 4")
    for t in range(4):
        dn_loads(t)
    A("v_cvt_pk_bf16_f32 v32, v56, v57"); A("v_cvt_pk_bf16_f32 v33, v58, v59")
    A("v_cvt_pk_bf16_f32 v34, v60, v61"); A("v_cvt_pk_bf16_f32 v35, v62, v63")
    for k in range(4):
        A(f"v_lshlrev_b32 v{36+2*k}, 16, v{32+k}")
        A(f"v_and_b32 v{37+2*k}, 0xffff0000, v{32+k}")
    K0 = -2.0 * math.sqrt(2.0 / math.pi) * math.log2(math.e)
    A(f"s_mov_b32 s71, {hex(f2u(0.044715))}")
    for k in range(4):
        A(f"v_mul_f32 v{44+k}, v{36+k}, v{36+k}")
        A(f"v_mul_f32 v{44+k}, v{44+k}, v{36+k}")
        A(f"v_fma_f32 v{44+k}, v{44+k}, s71, v{36+k}")
        A(f"v_mul_f32 v{44+k}, {hex(f2u(K0))}, v{44+k}")
    for k in range(4):
        A(f"v_exp_f32 v{44+k}, v{44+k}")
    A("s_nop 0")
    for k in range(4):
        A(f"v_add_f32 v{44+k}, 1.0, v{44+k}")
    for k in range(4):
        A(f"v_rcp_f32 v{44+k}, v{44+k}")
    A("s_nop 0")
    for k in range(4):
        A(f"v_mul_f32 v{44+k}, v{44+k}, v{36+k}")
    A("v_cvt_pk_bf16_f32 v32, v44, v45"); A("v_cvt_pk_bf16_f32 v33, v46, v47")
    for k in range(2):
        A(f"v_lshlrev_b32 v{44+2*k}, 16, v{32+k}")
        A(f"v_and_b32 v{45+2*k}, 0xffff0000, v{32+k}")
    for k in range(4):
        A(f"v_mul_f32 v{44+k}, v{44+k}, v{40+k}")
    A("v_cvt_pk_bf16_f32 v32, v44, v45"); A("v_cvt_pk_bf16_f32 v33, v46, v47")
    A("v_lshrrev_b32 v22, 3, v10")
    A("v_lshlrev_b32 v22, 8, v22")
    A(f"v_add_u32 v22, {LD['H']}, v22")
    A("v_lshl_add_u32 v24, v11, 6, v22")
    A("v_lshl_add_u32 v24, v3, 1, v24")
    A("v_mul_u32_u24 v25, 56, v11")
    A("v_add_u32 v22, v22, v25")
    A("ds_write_b16 v24, v32")
    A("ds_write_b16_d16_hi v24, v32 offset:16")
    A("ds_write_b16 v24, v33 offset:32")
    A("ds_write_b16_d16_hi v24, v33 offset:48")
    for k in range(16):
        A(f"v_mov_b32 v{128+k}, 0")
    A("s_waitcnt lgkmcnt(0)")
    A("s_mov_b32 s57, 6")
    def dn_iter(reissue):
        A("ds_read_b64 v[32:33], v22")
        A("v_add_u32 v22, 8, v22")
        A("s_waitcnt lgkmcnt(0)")
        for t in range(4):
            src = 32 + t // 2; sel = 12 + 4 * (t % 2); bb = 48 + 4 * (t % 2)
            for k in range(4):
                A(f"v_perm_b32 v{bb+k}, v{src}, v{src}, v{sel+k}")
            A(f"s_waitcnt vmcnt({12 if reissue else 12 - 4*t})")
            A("s_nop 0")
            for nb in range(4):
                A(f"v_mfma_f32_16x16x32_bf16 v[{128+4*nb}:{131+4*nb}], v[{64+16*t+4*nb}:{67+16*t+4*nb}], v[{bb}:{bb+3}], v[{128+4*nb}:{131+4*nb}]")
            if reissue:
                dn_loads(t)
    A("L_h_f2:")
    dn_iter(True)
    A("s_sub_u32 s57, s57, 1"); A("s_cmp_lg_u32 s57, 0"); A("s_cbranch_scc1 L_h_f2")
    dn_iter(False)
    A("v_lshrrev_b32 v22, 3, v10")
    A("v_lshlrev_b32 v22, 11, v22")
    A("v_lshl_add_u32 v22, v11, 7, v22")
    A("v_lshl_add_u32 v22, v3, 4, v22")
    A("s_lshl_b32 s46, s56, 12"); A(f"s_add_u32 s46, s46, {WS_HY}")
    A("s_nop 4")
    for k in range(16):
        tag(128 + k)
    for nb in range(4):
        if nb == 3:
            A("s_mov_b32 exec_hi, 0")
        A(f"buffer_store_dwordx4 v[{128+4*nb}:{131+4*nb}], v22, s[36:39], s46 offen offset:{nb*512} sc1")
    A("s_mov_b64 exec, -1")
    stamp(3)
    A("L_h_noffn:")
    A("s_and_b32 s56, s2, 127")
    A("s_cmp_eq_u32 s2, 255")
    A("s_cbranch_scc1 L_h_epoch")
    A("s_cmp_ge_u32 s56, 28")
    A("s_cbranch_scc1 L_end")
    A("v_lshlrev_b32 v22, 12, v10")
    A("v_lshl_add_u32 v22, v11, 4, v22")
    A("s_lshl_b32 s46, s52, 11"); A("s_lshl_b32 s47, s56, 6"); A("s_add_u32 s46, s46, s47"); A(f"s_add_u32 s46, s46, {WS_HY}")
    A("L_h_ypoll:")
    A("buffer_load_dwordx4 v[64:67], v22, s[36:39], s46 offen sc1")
    A("s_waitcnt vmcnt(0)")
    tagcheck(range(64, 68), 27)
    A("s_cbranch_vccz L_h_ygo")
    spin_tail("L_h_ypoll", sleep=64)
    A("L_h_ygo:")
    A("s_lshr_b32 s47, s56, 1"); A("s_lshl_b32 s47, s47, 5"); A("s_and_b32 s48, s56, 1"); A("s_lshl_b32 s48, s48, 2")
    A("s_add_u32 s47, s47, s48"); A("s_mul_i32 s48, s52, 448"); A("s_add_u32 s47, s47, s48"); A("s_lshl_b32 s57, s47, 1")
    srd(28, 4, 1792)
    srd(32, 22, 1792)
    A("v_lshlrev_b32 v23, 1, v11")
    for rr in range(4):
        A(f"buffer_load_ushort v{72+rr}, v23, s[28:31], s57 offen offset:{16*rr}")
    A("s_waitcnt vmcnt(0)")
    for sh in (8, 4, 2, 1):
        for k in range(4):
            A(f"v_add_f32_dpp v{64+k}, v{64+k}, v{64+k} row_ror:{sh} row_mask:0xf bank_mask:0xf")
    A("v_cvt_pk_bf16_f32 v68, v64, v65"); A("v_cvt_pk_bf16_f32 v69, v66, v67")
    for k in range(2):
        A(f"v_lshlrev_b32 v{64+2*k}, 16, v{68+k}")
        A(f"v_and_b32 v{65+2*k}, 0xffff0000, v{68+k}")
    for k in range(4):
        A(f"v_mul_f32 v{68+k}, {hex(f2u(-math.log2(math.e)))}, v{64+k}")
    for k in range(4):
        A(f"v_exp_f32 v{68+k}, v{68+k}")
    A("s_nop 0")
    for k in range(4):
        A(f"v_add_f32 v{68+k}, 1.0, v{68+k}")
    for k in range(4):
        A(f"v_rcp_f32 v{68+k}, v{68+k}")
    A("s_nop 0")
    for k in range(4):
        A(f"v_mul_f32 v{64+k}, v{64+k}, v{68+k}")
    A("v_cvt_pk_bf16_f32 v68, v64, v65"); A("v_cvt_pk_bf16_f32 v69, v66, v67")
    for k in range(2):
        A(f"v_lshlrev_b32 v{76+2*k}, 16, v{68+k}")
        A(f"v_and_b32 v{77+2*k}, 0xffff0000, v{68+k}")
    for k in range(4):
        A(f"v_lshlrev_b32 v{72+k}, 16, v{72+k}")
    A("v_lshlrev_b32 v22, 11, v10")
    A("v_lshl_add_u32 v22, v11, 4, v22")
    A("s_lshl_b32 s46, s52, 18"); A("s_lshl_b32 s47, s56, 6"); A("s_add_u32 s46, s46, s47"); A(f"s_add_u32 s46, s46, {WS_HB}")
    for k in range(1, 8):
        A(f"s_add_u32 s{63+k}, s46, {k*32768}")
    stamp(4)
    A("s_waitcnt vmcnt(0) lgkmcnt(0)")
    A("s_barrier")
    if cfg.BAR3:
        A("s_barrier")
    A("L_h_bpoll:")
    for k in range(8):
        A(f"buffer_load_dwordx4 v[{96+4*k}:{99+4*k}], v22, s[36:39], s{46 if k == 0 else 63+k} offen sc1")
    A("s_waitcnt vmcnt(0)")
    tagcheck(range(96, 128), 24)
    A("s_cbranch_vccz L_h_bgo")
    spin_tail("L_h_bpoll", sleep=cfg.HSLEEP)
    A("L_h_bgo:")
    stamp(5)
    for step in (16, 8, 4):
        for k in range(step):
            A(f"v_add_f32 v{96+k}, v{96+k}, v{96+step+k}")
    A("s_nop 0")
    for sh in (8, 4, 2, 1):
        for k in range(4):
            A(f"v_add_f32_dpp v{96+k}, v{96+k}, v{96+k} row_ror:{sh} row_mask:0xf bank_mask:0xf")
    A("v_cvt_pk_bf16_f32 v100, v96, v97"); A("v_cvt_pk_bf16_f32 v101, v98, v99")
    for k in range(2):
        A(f"v_lshlrev_b32 v{96+2*k}, 16, v{100+k}")
        A(f"v_and_b32 v{97+2*k}, 0xffff0000, v{100+k}")
    for k in range(4):
        A(f"v_mul_f32 v{96+k}, v{96+k}, v{76+k}")
    A("v_cvt_pk_bf16_f32 v100, v96, v97"); A("v_cvt_pk_bf16_f32 v101, v98, v99")
    for k in range(2):
        A(f"v_lshlrev_b32 v{96+2*k}, 16, v{100+k}")
        A(f"v_and_b32 v{97+2*k}, 0xffff0000, v{100+k}")
    for k in range(4):
        A(f"v_add_f32 v{96+k}, v{96+k}, v{72+k}")
    A("v_cvt_pk_bf16_f32 v100, v96, v97"); A("v_cvt_pk_bf16_f32 v101, v98, v99")
    A("s_mov_b32 exec_lo, 0x00010001"); A("s_mov_b32 exec_hi, 0x00010001")
    A("buffer_store_short v100, v23, s[32:35], s57 offen")
    A("buffer_store_short_d16_hi v100, v23, s[32:35], s57 offen offset:16")
    A("buffer_store_short v101, v23, s[32:35], s57 offen offset:32")
    A("buffer_store_short_d16_hi v101, v23, s[32:35], s57 offen offset:48")
    A("s_mov_b64 exec, -1")
    stamp(6)
    A("L_end:")
    A("s_endpgm")
    A("L_h_epoch:")
    A("v_lshlrev_b32 v22, 12, v11")
    A("v_lshl_add_u32 v22, v10, 7, v22")
    for k in range(4):
        A(f"s_mov_b32 s{64+k}, {WS_HM + k*4*4096}")
    A("s_waitcnt vmcnt(0) lgkmcnt(0)")
    A("s_barrier")
    if cfg.BAR3:
        A("s_barrier")
    A("s_sleep 32")
    A("L_h_epoll:")
    for k in range(4):
        A(f"buffer_load_dwordx2 v[{96+2*k}:{97+2*k}], v22, s[36:39], s{64+k} offen offset:8 sc1")
    A("s_waitcnt vmcnt(0)")
    tagcheck([], 24, full=range(96, 104))
    A("s_cbranch_vccz L_h_ego")
    spin_tail("L_h_epoll", sleep=8)
    A("L_h_ego:")
    A("v_mov_b32 v24, s58"); A("v_mov_b32 v25, 0")
    A("s_mov_b64 exec, 1")
    A(f"buffer_store_dword v24, v25, s[36:39], 0 offen offset:{WS_EP}")
    A("s_endpgm")
    nv = 256 if cfg.DIAG else 200
    A('.section .rodata,"a"'); A(".p2align 6"); A(f".amdhsa_kernel {NAME}")
    A.L.append(f"  .amdhsa_next_free_vgpr {nv}"); A.L.append("  .amdhsa_next_free_sgpr 102"); A.L.append(f"  .amdhsa_accum_offset {nv}")
    A.L.append("  .amdhsa_group_segment_fixed_size 0"); A.L.append("  .amdhsa_kernarg_size 96"); A.L.append("  .amdhsa_user_sgpr_count 2")
    A.L.append("  .amdhsa_user_sgpr_kernarg_segment_ptr 1"); A.L.append("  .amdhsa_system_sgpr_workgroup_id_x 1"); A(".end_amdhsa_kernel")
    FL = {0: "sc1", 1: "sc0 sc1", 2: "sc0 sc1 nt", 3: "sc1 nt"}
    for i, line in enumerate(A.L):
        if line.startswith("buffer_load") and line.endswith(" sc1"):
            A.L[i] = line[:-3] + FL[cfg.PF]
        if line.startswith("buffer_store") and line.endswith(" sc1"):
            A.L[i] = line[:-3] + FL[cfg.SF]
    if cfg.DIAG:
        sys.stderr.write(str(codes) + "\n")
    return "\n".join(A.L) + "\n"

if __name__ == "__main__":
    cfg = Cfg()
    out = sys.argv[1]
    for kv in sys.argv[2:]:
        k, v = kv.split("=")
        setattr(cfg, k, tuple(int(x) for x in v.split("/") if x) if k == "SIZES" else int(v))
    open(out, "w").write(gen(cfg))
```

```python
import sys, math
NAME = "recurrent_scan__gqa_block_cached__glu_gated_geglu__decode_kernel"

class Cfg:
    F = 20
    R = 9
    C = 6
    DIAG = False
    SPIN = 1 << 22
    NOSWZ = 0
    NOCOMP = 0
    NOWO = 0
    NOWQ = 0
    PSLEEP = 1
    QSLEEP = 4
    BAR3 = 1
    BAR4 = 1
    MASKP = 1
    HSLEEP = 1
    PF = 0
    FB = 128
    STAT = 2
    KP = 1
    VP = 1
    WP = 1
    ROT = 5
    GS = 11
    WIN = 1
    SF = 0
    SIZES = (5, 2, 1)
    NOFFN = 0

def lds_layout(R):
    o = R * 16384
    L = {}
    L['FLAGS'] = o; o += 256
    L['Q'] = o; o += 1024
    L['XN'] = o; o += 1792
    L['H'] = o; o += 512
    L['SC'] = o; o += 64 * 128
    L['END'] = o
    return L

WS_EP = 0
WS_PC = 0x1000
PCS = 4352
WS_QP = 0x20000
WS_HA = 0x40000
WS_HM = 0xC0000
WS_HB = 0xD0000
WS_HY = 0x150000
WS_DIAG = 0x200000
WS_SIZE = 0x400000
TAGM = 0xf
POL = {0: "", 1: "nt", 2: "sc1", 3: "sc0 sc1", 4: "sc1 nt", 5: "sc0 sc1 nt", 6: "sc0", 7: "sc0 nt"}
CSC = 0.0625 * math.log2(math.e)

import struct
def f2u(x):
    return struct.unpack('<I', struct.pack('<f', x))[0]

class Asm:
    def __init__(self):
        self.L = []
        self.n = 0
    def __call__(self, s):
        for line in s.strip('\n').split('\n'):
            self.L.append(line.strip() if not line.strip().endswith(':') else line.strip())
    def label(self, base):
        self.n += 1
        return f"L_{base}_{self.n}"

def gen(cfg):
    F, R, C = cfg.F, cfg.R, cfg.C
    LD = lds_layout(R)
    assert LD['END'] <= 163840, LD['END']
    A = Asm()
    NUNITS = 128
    SIZES = tuple(cfg.SIZES)
    S = NUNITS - sum(SIZES)
    NT = 16 * len(SIZES)
    assert len(SIZES) <= 8
    SZP = sum(v << (8 * r) for r, v in enumerate(SIZES))
    STP = sum((S + sum(SIZES[:r])) << (8 * r) for r in range(len(SIZES)))
    def srd(dst, base, size, add=None):
        if add is None:
            A(f"s_mov_b32 s{dst}, s{base}")
            A(f"s_and_b32 s{dst+1}, s{base+1}, 0xffff")
        else:
            A(f"s_add_u32 s{dst}, s{base}, s{add}")
            A(f"s_addc_u32 s{dst+1}, s{base+1}, 0")
            A(f"s_and_b32 s{dst+1}, s{dst+1}, 0xffff")
        A(f"s_mov_b32 s{dst+2}, {size}")
        A(f"s_mov_b32 s{dst+3}, 0x20000")
    def stamp(idx, tmpv=(250, 251, 252)):
        if not cfg.DIAG:
            return
        A(f"s_memrealtime s[96:97]")
        A(f"s_lshl_b32 s98, s2, 3")
        A(f"s_add_u32 s98, s98, s3")
        A(f"s_lshl_b32 s98, s98, 7")
        A(f"s_add_u32 s98, s98, {WS_DIAG + idx*8}")
        A(f"s_waitcnt lgkmcnt(0)")
        A(f"v_mov_b32 v{tmpv[0]}, s96")
        A(f"v_mov_b32 v{tmpv[1]}, s97")
        A(f"v_mov_b32 v{tmpv[2]}, 0")
        A(f"s_mov_b64 s[94:95], exec")
        A(f"s_mov_b64 exec, 1")
        A(f"buffer_store_dwordx2 v[{tmpv[0]}:{tmpv[1]}], v{tmpv[2]}, s[36:39], s98 offen")
        A(f"s_mov_b64 exec, s[94:95]")
    TG = 193
    def tag(v):
        A(f"v_bfi_b32 v{v}, s59, v{TG}, v{v}")
    def tagcheck(regs, acc, full=()):
        regs = list(regs)
        if len(regs) == 0:
            A(f"v_mov_b32 v{acc}, 0")
        elif len(regs) == 1:
            A(f"v_xor_b32 v{acc}, v{regs[0]}, v{TG}")
        else:
            A(f"v_bitop3_b32 v{acc}, v{regs[0]}, v{regs[1]}, v{TG} bitop3:0x7e")
            for r in regs[2:]:
                A(f"v_bitop3_b32 v{acc}, v{acc}, v{r}, v{TG} bitop3:0xf6")
        A(f"v_and_b32 v{acc}, s59, v{acc}")
        for r in full:
            A(f"v_bitop3_b32 v{acc}, v{acc}, v{r}, s58 bitop3:0xf6")
        A(f"v_cmp_ne_u32 vcc, 0, v{acc}")
    def remask():
        if cfg.MASKP:
            A("s_or_b32 s76, vcc_lo, vcc_hi"); A("s_lshr_b32 s77, s76, 16"); A("s_or_b32 s76, s76, s77")
            A("s_pack_ll_b32_b16 s76, s76, s76")
            A("s_mov_b32 exec_lo, s76"); A("s_mov_b32 exec_hi, s76")
    codes = {}
    def die(lbl):
        if cfg.DIAG:
            codes.setdefault(lbl, len(codes) + 1)
            A("s_mov_b64 exec, 1")
            A(f"v_mov_b32 v248, {codes[lbl]}"); A("v_mov_b32 v249, s40"); A("v_mov_b32 v250, s43"); A("v_mov_b32 v251, s73"); A("v_mov_b32 v252, 0")
            A("s_lshl_b32 s98, s2, 3"); A("s_add_u32 s98, s98, s3"); A("s_lshl_b32 s98, s98, 7"); A(f"s_add_u32 s98, s98, {WS_DIAG + 112}")
            A("buffer_store_dwordx4 v[248:251], v252, s[36:39], s98 offen")
        A("s_endpgm")
    def spin_tail(lbl, cnt="s45", sleep=1):
        A(f"s_sleep {sleep}")
        A(f"s_sub_u32 {cnt}, {cnt}, 1")
        A(f"s_cmp_lg_u32 {cnt}, 0")
        A(f"s_cbranch_scc1 {lbl}")
        die(lbl)

    hdr = open('recurrent_scan__gqa_block_cached__glu_gated_geglu__decode.s.ref').read().split('\n')
    for line in hdr:
        if line.startswith('; @launch') or not line.startswith(';'):
            break
        A.L.append(line)
    A(f"; @launch grid=(256,1,1) block=(512,1,1) lds={LD['END']}")
    A('.amdgcn_target "amdgcn-amd-amdhsa--gfx950"')
    A(".text"); A(f".globl {NAME}"); A(".p2align 8"); A(f".type {NAME},@function"); A(f"{NAME}:")
    if cfg.DIAG:
        A("s_memrealtime s[92:93]")
    A(f"""
    s_cmp_ge_u32 s2, 256
    s_cbranch_scc1 L_end
    s_load_dwordx8 s[4:11], s[0:1], 0
    s_load_dwordx8 s[12:19], s[0:1], 32
    s_load_dwordx8 s[20:27], s[0:1], 64
    v_and_b32 v1, 63, v0
    v_lshrrev_b32 v2, 6, v0
    v_lshlrev_b32 v3, 2, v1
    v_add_u32 v3, {LD['FLAGS']}, v3
    v_mov_b32 v4, 0
    ds_write_b32 v3, v4
    v_readfirstlane_b32 s3, v2
    s_mov_b32 s45, {cfg.SPIN}
    s_mov_b32 s40, 0
    s_mov_b32 s43, 0
    s_mov_b32 s73, 0
    """)
    A("v_lshrrev_b32 v5, 5, v1")
    A("v_and_b32 v6, 31, v1")
    A("v_xor_b32 v6, v6, v5")
    A("v_lshlrev_b32 v5, 9, v5")
    for j in range(8):
        A(f"v_xor_b32 v7, {2*j}, v6")
        A(f"v_lshl_add_u32 v{8+j}, v7, 4, v5")
    A("v_lshlrev_b32 v16, 4, v1")
    A(f"v_mov_b32 v17, {LD['FLAGS']}")
    A("s_lshr_b32 s46, s2, 4")
    A("s_lshl_b32 s46, s46, 24")
    A("s_waitcnt lgkmcnt(0)")
    A("s_barrier")
    A("s_cmp_lg_u32 s3, 0")
    A("s_cbranch_scc1 L_notloader")
    A("s_setprio 3")
    srd(28, 6, 1 << 24, add=46)
    srd(32, 8, 1 << 24, add=46)
    if cfg.DIAG:
        srd(36, 26, WS_SIZE)
    stamp(0)
    if cfg.DIAG:
        A("v_mov_b32 v250, s92"); A("v_mov_b32 v251, s93"); A("s_mov_b64 exec, 1")
        A("buffer_store_dwordx2 v[250:251], v252, s[36:39], s98 offen offset:56")
        A("s_mov_b64 exec, -1")
    a_, jp = divmod(F - 1, 16)
    assert S % 2 == 0
    NFB = 1792 // cfg.FB
    A("s_mov_b32 s90, 0")
    A("s_mov_b32 s41, 0"); A("s_and_b32 s66, s2, 15"); A("s_mov_b32 s67, 0"); A("s_mov_b32 s44, 0")
    A("s_lshr_b32 s70, s2, 4"); A(f"s_mul_i32 s68, s70, {cfg.GS}")
    def ld_addr(dst, dt):
        A(f"s_add_u32 s69, s67, {dt}")
        A(f"s_add_u32 {dst}, s69, s68"); A(f"s_and_b32 {dst}, {dst}, 127"); A(f"s_lshl_b32 {dst}, {dst}, 17")
        A(f"s_mul_i32 s69, s69, {cfg.ROT}"); A("s_add_u32 s69, s69, s66"); A("s_and_b32 s69, s69, 15"); A("s_lshl_b32 s69, s69, 13")
        A(f"s_or_b32 {dst}, {dst}, s69")
    def ld_body(kinds, first=False):
        for j in range(16):
            if not first:
                A(f"s_waitcnt vmcnt({F-1})")
            if j == jp and not first:
                A(f"s_sub_i32 s49, s40, {a_}")
                A("s_max_i32 s43, s43, s49")
                A("v_mov_b32 v18, s43")
                A("ds_write_b32 v17, v18")
            if j % 4 == 0:
                A(f"s_add_u32 m0, s41, {j*1024}")
                A(f"s_add_u32 s47, {'s42' if j < 8 else 's75'}, {(j % 8)*1024}")
            if j == 8:
                A("s_add_u32 s44, s44, 4"); A(f"s_cmp_ge_u32 s44, {R*4}"); A("s_cselect_b32 s44, 0, s44")
                A("v_add_u32 v19, s44, v17")
                A("ds_read_b32 v20, v19 offset:64")
            if kinds[j // 8] == 'K':
                A(f"buffer_load_dwordx4 v{8 + j % 8}, s[28:31], s47 offen offset:{(j%4)*1024} {POL[cfg.KP]} lds")
            else:
                A(f"buffer_load_dwordx4 v16, s[32:35], s47 offen offset:{(j%4)*1024} {POL[cfg.VP]} lds")
            if first and j == 7:
                ld_addr("s75", 1)
        A("s_add_u32 s40, s40, 1")
        A("s_add_u32 s41, s41, 16384"); A(f"s_cmp_ge_u32 s41, {R*16384}"); A("s_cselect_b32 s41, 0, s41")
        A("s_sub_u32 s53, s53, 1")
    def ld_ring(lbl):
        if cfg.DIAG:
            n = A.label("nops")
            A("s_and_b32 s91, s40, 15"); A("s_cmp_lg_u32 s91, 0"); A(f"s_cbranch_scc1 {n}")
            A("s_cmp_gt_u32 s40, 80"); A(f"s_cbranch_scc1 {n}")
            A("s_memrealtime s[96:97]")
            A("s_lshl_b32 s98, s2, 10"); A("s_lshr_b32 s91, s40, 1"); A("s_add_u32 s98, s98, s91"); A(f"s_add_u32 s98, s98, {WS_DIAG + 64}")
            A("s_waitcnt lgkmcnt(0)")
            A("v_mov_b32 v250, s96"); A("v_mov_b32 v251, s97"); A("v_mov_b32 v252, 0")
            A("s_mov_b64 exec, 1")
            A("buffer_store_dwordx2 v[250:251], v252, s[36:39], s98 offen")
            A("s_mov_b64 exec, -1")
            A(f"{n}:")
        A(f"s_sub_i32 s48, s40, {R-1}")
        A("v_readfirstlane_b32 s47, v20")
        A("s_cmp_ge_i32 s47, s48")
        A(f"s_cbranch_scc1 {lbl}")
        if cfg.DIAG:
            n = A.label("nost")
            A("s_cmp_lg_u32 s90, 0"); A(f"s_cbranch_scc1 {n}"); A("s_mov_b32 s90, 1")
            stamp(2)
            A(f"{n}:")
            stamp(3)
        A("s_waitcnt vmcnt(0)")
        A("s_mov_b32 s43, s40")
        A("v_mov_b32 v18, s43")
        A("ds_write_b32 v17, v18")
        sp = lbl + "_spin"
        A(f"{sp}:")
        A("ds_read_b32 v20, v19 offset:64")
        A("s_waitcnt lgkmcnt(0)")
        A("v_readfirstlane_b32 s47, v20")
        A("s_cmp_ge_i32 s47, s48")
        A(f"s_cbranch_scc1 {lbl}")
        spin_tail(sp)
    def ld_ticket_req():
        n = A.label("noat")
        A("s_add_u32 s74, s53, s71")
        A("s_cmp_lg_u32 s74, 1")
        A(f"s_cbranch_scc1 {n}")
        A("s_mov_b32 s54, 1")
        if NT:
            A("s_atomic_add s54, s[56:57], 0x0 glc")
        A(f"{n}:")
    ld_addr("s42", 0)
    A("s_mov_b32 s53, 0")
    ld_body("KK", first=True)
    A(f"s_mul_i32 s50, s70, {PCS}"); A(f"s_add_u32 s50, s50, {WS_PC}")
    A("s_add_u32 s56, s26, s50"); A("s_addc_u32 s57, s27, 0")
    A(f"s_mov_b32 s60, {hex(SZP & 0xffffffff)}"); A(f"s_mov_b32 s61, {hex(SZP >> 32)}")
    A(f"s_mov_b32 s62, {hex(STP & 0xffffffff)}"); A(f"s_mov_b32 s63, {hex(STP >> 32)}")
    A("s_mov_b32 s54, 0")
    A(f"s_cmp_lt_u32 s70, {NFB}"); A("s_cselect_b32 s71, 1, 0")
    A(f"s_add_u32 s72, s66, {S - 16}")
    A("s_cmp_eq_u32 s66, s70"); A("s_cselect_b32 s78, s71, 0"); A("s_lshl_b32 s78, s78, 3"); A(f"s_sub_u32 s78, {S // 2}, s78")
    A("s_sub_u32 s53, s78, 1")
    A("s_branch L_ld_kbot")
    A("L_ld_k:")
    ld_body("KK")
    A("L_ld_kbot:")
    A("s_add_u32 s67, s67, 2")
    A("s_cmp_lg_u32 s53, 0")
    A("s_cbranch_scc1 L_ld_kc")
    A("s_mov_b32 s67, 0"); A("s_mov_b32 s53, s78")
    A("s_branch L_ld_vc")
    A("L_ld_kc:")
    ld_addr("s42", 0); ld_addr("s75", 1)
    A("s_waitcnt lgkmcnt(0)")
    ld_ring("L_ld_k")
    A("L_ld_v:")
    ld_ticket_req()
    ld_body("VV")
    A("s_add_u32 s67, s67, 2")
    A("s_cmp_eq_u32 s53, 0")
    A("s_cbranch_scc1 L_ld_next")
    A("L_ld_vc:")
    ld_addr("s42", 0); ld_addr("s75", 1)
    A("s_waitcnt lgkmcnt(0)")
    ld_ring("L_ld_v")
    A("L_ld_c:")
    ld_ticket_req()
    ld_body("KV")
    A("s_add_u32 s67, s67, 1")
    A("s_cmp_lg_u32 s53, 0")
    A("s_cbranch_scc1 L_ld_cc")
    A("L_ld_next:")
    A("s_cmp_eq_u32 s71, 0"); A("s_cbranch_scc1 L_ld_tick")
    A("s_mov_b32 s71, 0"); A("s_mov_b32 s53, 1"); A("s_mov_b32 s66, s70"); A("s_mov_b32 s67, s72")
    A("s_branch L_ld_cc")
    A("L_ld_tick:")
    A("s_waitcnt lgkmcnt(0)")
    A(f"s_cmp_ge_u32 s54, {NT}")
    A("s_cbranch_scc1 L_ld_done")
    A("s_lshr_b32 s51, s54, 4"); A("s_lshl_b32 s51, s51, 3")
    A("s_lshr_b64 s[64:65], s[60:61], s51"); A("s_and_b32 s53, s64, 0xff")
    A("s_lshr_b64 s[64:65], s[62:63], s51"); A("s_and_b32 s67, s64, 0xff")
    A("s_and_b32 s66, s54, 15")
    A("L_ld_cc:")
    ld_addr("s42", 0)
    A("s_mov_b32 s75, s42")
    A("s_waitcnt lgkmcnt(0)")
    ld_ring("L_ld_c")
    A("L_ld_done:")
    A("s_lshl_b32 s50, s40, 16")
    A("s_or_b32 s51, s50, s43")
    A("v_mov_b32 v18, s51")
    A("ds_write_b32 v17, v18")
    for k in range(a_ + 1, -1, -1):
        if 16 * k < F:
            A(f"s_sub_u32 s51, s40, {k}")
            A("s_max_u32 s51, s51, s43")
            A("s_or_b32 s51, s51, s50")
            A(f"s_waitcnt vmcnt({16*k})")
            A(f"v_mov_b32 v18, s51")
            A("ds_write_b32 v17, v18")
    if cfg.DIAG:
        A("v_mov_b32 v250, s40"); A("v_mov_b32 v251, 0"); A("v_mov_b32 v252, 0")
        A("s_lshl_b32 s98, s2, 10"); A(f"s_add_u32 s98, s98, {WS_DIAG + 8*8}")
        A("s_mov_b64 exec, 1")
        A("buffer_store_dwordx2 v[250:251], v252, s[36:39], s98 offen")
        A("s_mov_b64 exec, -1")
        A("s_nop 1")
    stamp(1)
    A("s_endpgm")

    A("L_notloader:")
    A(f"s_load_dword s58, s[26:27], {WS_EP}")
    A(f"s_mov_b32 s59, {TAGM}")
    A("v_and_b32 v3, 7, v1")
    A("v_lshrrev_b32 v4, 1, v3")
    A("v_and_b32 v5, 1, v3")
    A("v_mov_b32 v6, 0x0c0c0100")
    A("v_mov_b32 v7, 0x01000c0c")
    A("v_cmp_eq_u32 vcc, 1, v5")
    A("v_mov_b32 v8, 0x0c0c0302")
    A("v_mov_b32 v9, 0x03020c0c")
    A("v_cndmask_b32 v6, v6, v7, vcc")
    A("v_cndmask_b32 v8, v8, v9, vcc")
    A("v_mov_b32 v7, 0x0c0c0c0c")
    for k in range(4):
        A(f"v_cmp_eq_u32 vcc, {k}, v4")
        A("s_nop 1")
        A(f"v_cndmask_b32 v{12+k}, v7, v6, vcc")
        A(f"v_cndmask_b32 v{16+k}, v7, v8, vcc")
    A("v_and_b32 v10, 15, v1")
    A("v_lshrrev_b32 v11, 4, v1")
    A("s_lshr_b32 s50, s2, 4")
    A("s_and_b32 s51, s2, 15")
    A("s_lshr_b32 s52, s2, 7")
    A("s_and_b32 s53, s50, 7")
    A(f"s_mov_b32 s54, {hex(f2u(CSC))}")
    srd(36, 26, WS_SIZE)
    A("s_cmp_eq_u32 s3, 4")
    A("s_cbranch_scc1 L_helper")

    A("s_sub_u32 s55, s3, 1")
    A("s_cmp_gt_u32 s3, 4")
    A("s_cselect_b32 s47, 1, 0")
    A("s_sub_u32 s55, s55, s47")
    A(f"s_cmp_ge_u32 s55, {0 if cfg.NOWO else 4}")
    A("s_cbranch_scc1 L_c_nowo")
    srd(28, 12, 4096 * 896)
    A("s_lshl_b32 s46, s53, 9"); A("s_lshl_b32 s47, s51, 5"); A("s_add_u32 s46, s46, s47")
    A("s_mul_i32 s46, s46, 896"); A("s_lshl_b32 s47, s55, 8"); A("s_add_u32 s46, s46, s47")
    A(f"v_mul_u32_u24 v23, 896, v11")
    A("v_lshl_add_u32 v23, v10, 4, v23")
    A("s_cmp_eq_u32 s55, 3")
    A("s_cselect_b32 s47, 8, 16")
    A("v_cmp_le_u32 vcc, s47, v10")
    A("v_bfrev_b32 v24, 2")
    A("s_nop 0")
    A("v_cndmask_b32 v23, v23, v24, vcc")
    for rr in range(4):
        for hi in range(2):
            t = 4 * hi + rr
            A(f"buffer_load_dwordx4 v[{156+4*t}:{159+4*t}], v23, s[28:31], s46 offen offset:{hi*4*896} nt")
        if rr < 3:
            A(f"s_add_u32 s46, s46, {8*896}")
    A("L_c_nowo:")
    A("v_xor_b32 v23, v10, v11")
    A("v_lshlrev_b32 v24, 9, v10")
    for a in range(4):
        A(f"v_xor_b32 v25, {4*a}, v23")
        A(f"v_lshl_add_u32 v{2+a}, v25, 4, v24")
    A("v_lshlrev_b32 v24, 11, v11")
    A("v_lshl_add_u32 v6, v10, 4, v24")
    A(f"v_mov_b32 v188, {LD['FLAGS']}")
    A(f"v_mov_b32 v20, {hex(f2u(-3.0e38))}")
    A("v_mul_f32 v21, s54, v20")
    A("v_mov_b32 v22, 0")
    for k in range(8):
        A(f"v_mov_b32 v{132+k}, 0")
    A("v_mov_b32 v189, v10"); A("v_mov_b32 v190, v11")
    A("v_lshrrev_b32 v23, 3, v10"); A("v_lshlrev_b32 v23, 6, v23"); A("v_lshl_add_u32 v23, v11, 4, v23")
    A(f"v_add_u32 v202, {LD['SC']}, v23")
    A(f"s_cmp_lt_u32 s50, {NFB}"); A("s_cselect_b32 s78, 8, 0")
    A("s_cmp_eq_u32 s51, s50"); A("s_cselect_b32 s78, s78, 0"); A(f"s_sub_u32 s78, {S // 2}, s78")
    A("s_lshl_b32 s79, s78, 1")
    A("s_mov_b32 s40, s55")
    A("s_lshl_b32 s41, s55, 14")
    A("s_mov_b32 s44, 0")
    A("s_waitcnt lgkmcnt(0)")
    A("s_add_u32 s58, s58, 1")
    A("s_and_b32 s46, s58, s59")
    A(f"v_mov_b32 v{TG}, s46")
    def c_wait(lbl, can_end):
        A(f"{lbl}:")
        A("ds_read_b32 v23, v188")
        A("s_lshr_b32 s47, s41, 12")
        A("v_add_u32 v191, s47, v188")
        A("s_add_u32 s42, s40, 1")
        A("v_mov_b32 v192, s42")
        A("s_waitcnt lgkmcnt(0)")
        A("v_readfirstlane_b32 s43, v23")
        A("s_and_b32 s46, s43, 0xffff")
        A("s_cmp_gt_u32 s46, s40")
        A(f"s_cbranch_scc1 {lbl}_go")
        if can_end:
            A("s_lshr_b32 s46, s43, 16")
            A("s_sub_u32 s46, s46, 1")
            A("s_cmp_lt_u32 s46, s40")
            A("s_cbranch_scc1 L_c_tail")
        spin_tail(lbl, sleep=cfg.PSLEEP)
        A(f"{lbl}_go:")
    def c_adv():
        A(f"s_add_u32 s40, s40, {C}")
        A(f"s_add_u32 s41, s41, {C*16384}")
        A(f"s_sub_u32 s47, s41, {R*16384}")
        A(f"s_cmp_ge_u32 s41, {R*16384}")
        A("s_cselect_b32 s41, s47, s41")
    def k_reads(base, off):
        for t in range(8):
            A(f"ds_read_b128 v[{base+4*t}:{base+3+4*t}], v{7 + t % 4} offset:{off + (t//4)*256}")
    def v_reads(base, off, rs=range(4)):
        for r in rs:
            for h in range(2):
                A(f"ds_read_b128 v[{base+8*r+4*h}:{base+3+8*r+4*h}], v11 offset:{off + r*512 + h*256}")
    def resc(lbl):
        A(f"{lbl}:")
        A("v_mov_b32 v31, v30")
        A("s_nop 1")
        A("v_permlane16_swap_b32 v30, v31")
        A("v_max_f32 v30, v30, v31")
        A("v_mov_b32 v31, v30")
        A("s_nop 1")
        A("v_permlane32_swap_b32 v30, v31")
        A("v_max3_f32 v20, v30, v31, v20")
        A("v_mul_f32 v30, s54, v20")
        A("v_sub_f32 v31, v21, v30")
        A("v_exp_f32 v31, v31")
        A("v_mov_b32 v21, v30")
        for k in range(8):
            A(f"v_mul_f32 v{132+k}, v{132+k}, v31")
        A("v_mul_f32 v22, v22, v31")
        A(f"s_branch {lbl}_ret")
    def pv(tiles):
        steps = [(pb + r // 2, 12 + 4 * (r % 2), vb + 8 * r) for (pb, vb) in tiles for r in range(4)]
        def mm(n):
            bb = 140 + 4 * (n % 4); vb = steps[n][2]
            for h in range(2):
                A(f"v_mfma_f32_16x16x32_bf16 v[{132+4*h}:{135+4*h}], v[{vb+4*h}:{vb+3+4*h}], v[{bb}:{bb+3}], v[{132+4*h}:{135+4*h}]")
        for n, (src, sel, vb) in enumerate(steps):
            for k in range(4):
                A(f"v_perm_b32 v{140+4*(n%4)+k}, v{src}, v{src}, v{sel+k}")
            if n >= 1:
                mm(n - 1)
        mm(len(steps) - 1)
    c_wait("L_ck", False)
    for a in range(4):
        A(f"v_add_u32 v{7+a}, s41, v{2+a}")
    k_reads(64, 0); k_reads(96, 8192)
    A("s_lshl_b32 s47, s40, 7")
    A("v_add_u32 v203, s47, v202")
    A("s_waitcnt lgkmcnt(0)")
    A("ds_write_b32 v191, v192 offset:64")
    A("s_cmp_eq_u32 s44, 0")
    A("s_cbranch_scc1 L_c_first")
    A("L_ck_comp:")
    for t in range(8):
        A(f"v_mfma_f32_16x16x32_bf16 v[128:131], v[{64+4*t}:{67+4*t}], v[{32+4*t}:{35+4*t}], {'0' if t == 0 else 'v[128:131]'}")
        A(f"v_mfma_f32_16x16x32_bf16 v[140:143], v[{96+4*t}:{99+4*t}], v[{32+4*t}:{35+4*t}], {'0' if t == 0 else 'v[140:143]'}")
    c_adv()
    A("s_nop 2")
    A("v_cvt_pk_bf16_f32 v24, v128, v129")
    A("v_cvt_pk_bf16_f32 v25, v130, v131")
    A("v_cvt_pk_bf16_f32 v26, v140, v141")
    A("v_cvt_pk_bf16_f32 v27, v142, v143")
    A("s_mov_b32 exec_lo, 0x01010101"); A("s_mov_b32 exec_hi, 0x01010101")
    A("ds_write_b128 v203, v[24:27]")
    A("s_mov_b64 exec, -1")
    A("s_cmp_lt_u32 s40, s78")
    A("s_cbranch_scc1 L_ck")
    c_wait("L_cv", False)
    A("s_sub_u32 s47, s40, s78"); A("s_lshl_b32 s47, s47, 7")
    A("v_add_u32 v203, s47, v202")
    A("v_add_u32 v11, s41, v6")
    A("ds_read_b128 v[24:27], v203")
    v_reads(64, 0); v_reads(96, 8192, range(3))
    A("s_waitcnt lgkmcnt(14)")
    v_reads(96, 8192, [3])
    for k in range(4):
        A(f"v_lshlrev_b32 v{194+2*k}, 16, v{24+k}")
        A(f"v_and_b32 v{195+2*k}, 0xffff0000, v{24+k}")
    A("v_max3_f32 v30, v194, v195, v196")
    A("v_max3_f32 v31, v197, v198, v199")
    A("v_max3_f32 v30, v30, v200, v201")
    A("v_max_f32 v30, v30, v31")
    A("v_cmp_gt_f32 vcc, v30, v20")
    A("s_cbranch_vccnz L_cv_resc")
    A("L_cv_resc_ret:")
    for k in range(8):
        A(f"v_fma_f32 v{194+k}, v{194+k}, s54, -v21")
    for k in range(8):
        A(f"v_exp_f32 v{194+k}, v{194+k}")
    A("s_nop 0")
    for k in range(4):
        A(f"v_cvt_pk_bf16_f32 v{24+k}, v{194+2*k}, v{195+2*k}")
    for k in range(4):
        A(f"v_add_f32 v{194+2*k}, v{194+2*k}, v{195+2*k}")
    A("v_add_f32 v194, v194, v196"); A("v_add_f32 v198, v198, v200")
    A("v_add_f32 v22, v22, v194"); A("v_add_f32 v22, v22, v198")
    A("s_waitcnt lgkmcnt(0)")
    A("ds_write_b32 v191, v192 offset:64")
    pv([(24, 64), (26, 96)])
    c_adv()
    A("s_cmp_lt_u32 s40, s79")
    A("s_cbranch_scc1 L_cv")
    c_wait("L_cc", True)
    for a in range(4):
        A(f"v_add_u32 v{7+a}, s41, v{2+a}")
    A("v_add_u32 v11, s41, v6")
    k_reads(64, 0); v_reads(96, 8192)
    A("s_waitcnt lgkmcnt(8)")
    for t in range(8):
        A(f"v_mfma_f32_16x16x32_bf16 v[128:131], v[{64+4*t}:{67+4*t}], v[{32+4*t}:{35+4*t}], {'0' if t == 0 else 'v[128:131]'}")
    A("s_waitcnt lgkmcnt(0)")
    A("ds_write_b32 v191, v192 offset:64")
    c_adv()
    A("s_nop 0")
    A("v_cvt_pk_bf16_f32 v24, v128, v129")
    A("v_cvt_pk_bf16_f32 v25, v130, v131")
    A("v_lshlrev_b32 v26, 16, v24")
    A("v_and_b32 v27, 0xffff0000, v24")
    A("v_lshlrev_b32 v28, 16, v25")
    A("v_and_b32 v29, 0xffff0000, v25")
    A("v_max3_f32 v30, v26, v27, v28")
    A("v_max_f32 v30, v30, v29")
    A("v_cmp_gt_f32 vcc, v30, v20")
    A("s_cbranch_vccnz L_cc_resc")
    A("L_cc_resc_ret:")
    for k in range(4):
        A(f"v_fma_f32 v{26+k}, v{26+k}, s54, -v21")
    for k in range(4):
        A(f"v_exp_f32 v{26+k}, v{26+k}")
    A("s_nop 0")
    A("v_cvt_pk_bf16_f32 v24, v26, v27")
    A("v_cvt_pk_bf16_f32 v25, v28, v29")
    A("v_add_f32 v30, v26, v27")
    A("v_add_f32 v31, v28, v29")
    A("v_add_f32 v22, v22, v30")
    A("v_add_f32 v22, v22, v31")
    pv([(24, 96)])
    A("s_lshr_b32 s46, s43, 16")
    A("s_sub_u32 s46, s46, 1")
    A("s_cmp_ge_u32 s46, s40")
    A("s_cbranch_scc1 L_cc")
    A("L_c_tail:")
    stamp(3)
    A(f"s_add_u32 s47, s41, {(R - C)*16384}")
    A(f"s_sub_u32 s48, s47, {R*16384}")
    A(f"s_cmp_ge_u32 s47, {R*16384}")
    A("s_cselect_b32 s47, s48, s47")
    A("v_lshl_add_u32 v25, v1, 4, s47")
    A("v_lshl_add_u32 v26, v1, 3, s47")
    A("v_mov_b32 v28, v21"); A("v_mov_b32 v29, v22")
    A("ds_write_b64 v26, v[28:29] offset:2048")
    A("ds_write_b128 v25, v[132:135]")
    A("ds_write_b128 v25, v[136:139] offset:1024")
    A("s_cmp_lt_u32 s55, 4")
    A("s_cbranch_scc1 L_p_wave")
    A("s_sub_u32 s56, s55, 4")
    A("s_lshr_b32 s46, s43, 16")
    A("s_sub_u32 s46, s40, s46")
    A("s_lshl_b32 s46, s46, 14")
    A("s_sub_i32 s46, s41, s46")
    for j in range(6):
        A("s_sub_i32 s46, s46, 16384")
        A(f"s_add_i32 s47, s46, {R*16384}")
        A("s_cmp_lt_i32 s46, 0")
        A("s_cselect_b32 s46, s47, s46")
        A(f"v_lshl_add_u32 v{70+j}, v1, 3, s46")
    A("s_lshl_b32 s47, s56, 10")
    A("v_lshl_add_u32 v27, v1, 3, s47")
    for j in range(6):
        A(f"v_add_u32 v{76+j}, v{70+j}, v27")
    A("v_lshrrev_b32 v26, 3, v189"); A("v_lshlrev_b32 v26, 14, v26"); A("v_lshl_add_u32 v26, v190, 11, v26")
    A("v_and_b32 v27, 7, v189"); A("v_lshl_add_u32 v26, v27, 4, v26")
    A("s_lshl_b32 s46, s50, 15"); A("s_lshl_b32 s47, s56, 13"); A("s_add_u32 s46, s46, s47")
    A("s_lshl_b32 s47, s51, 7"); A("s_add_u32 s46, s46, s47"); A(f"s_add_u32 s46, s46, {WS_HA}")
    A("s_waitcnt lgkmcnt(0)")
    A("s_barrier")
    for j in range(6):
        A(f"ds_read_b64 v[{84+2*j}:{85+2*j}], v{70+j} offset:2048")
    for j in range(6):
        A(f"ds_read_b128 v[{96+4*j}:{99+4*j}], v{76+j}")
    A("s_waitcnt lgkmcnt(6)")
    A("v_max3_f32 v28, v84, v86, v88")
    A("v_max3_f32 v28, v28, v90, v92")
    A("v_max_f32 v28, v28, v94")
    for j in range(6):
        A(f"v_sub_f32 v{84+2*j}, v{84+2*j}, v28")
    for j in range(6):
        A(f"v_exp_f32 v{84+2*j}, v{84+2*j}")
    A("s_waitcnt lgkmcnt(0)")
    for k in range(4):
        A(f"v_mul_f32 v{120+k}, v84, v{96+k}")
    for j in range(1, 6):
        for k in range(4):
            A(f"v_fmac_f32 v{120+k}, v{84+2*j}, v{96+4*j+k}")
    for k in range(4):
        tag(120 + k)
    A("buffer_store_dwordx4 v[120:123], v26, s[36:39], s46 offen sc1")
    A("s_cmp_eq_u32 s56, 0")
    A("s_cbranch_scc1 L_x0")
    A("v_mul_f32 v29, v84, v85")
    for j in range(1, 6):
        A(f"v_fmac_f32 v29, v{84+2*j}, v{85+2*j}")
    A("v_lshlrev_b32 v27, 8, v189")
    A("v_mov_b32 v24, v29")
    A("s_lshl_b32 s48, s50, 12"); A("s_lshl_b32 s47, s51, 7")
    A("v_permlane16_swap_b32 v29, v24")
    A("v_add_f32 v29, v29, v24")
    A("v_mov_b32 v24, v29")
    A("s_add_u32 s48, s48, s47"); A(f"s_add_u32 s48, s48, {WS_HM}")
    A("v_permlane32_swap_b32 v29, v24")
    A("v_add_f32 v29, v29, v24")
    A("v_mov_b32 v30, s58")
    A("v_mov_b32 v31, s58")
    A("s_mov_b64 exec, 0x101")
    A("buffer_store_dwordx4 v[28:31], v27, s[36:39], s48 offen sc1")
    A("s_mov_b64 exec, -1")
    stamp(4)
    A("s_endpgm")
    A("L_x0:")
    stamp(4)
    A("v_lshlrev_b32 v24, 7, v189")
    A("v_lshl_add_u32 v23, v190, 4, v24")
    A("s_lshl_b32 s46, s2, 11"); A(f"s_add_u32 s46, s46, {WS_HA}")
    A("s_lshl_b32 s48, s50, 12"); A("s_lshr_b32 s47, s51, 3"); A("s_lshl_b32 s47, s47, 11"); A("s_add_u32 s48, s48, s47"); A(f"s_add_u32 s48, s48, {WS_HM}")
    A("v_lshl_add_u32 v27, v190, 4, v188")
    if cfg.BAR3:
        A("s_waitcnt vmcnt(0)")
    stamp(5)
    A("L_p_poll:")
    A("buffer_load_dwordx4 v[64:67], v23, s[36:39], s46 offen sc1")
    A("buffer_load_dwordx4 v[68:71], v23, s[36:39], s46 offen offset:64 sc1")
    A("buffer_load_dwordx4 v[72:75], v24, s[36:39], s48 offen sc1")
    A("s_waitcnt vmcnt(0)")
    tagcheck(range(64, 72), 25, full=(74, 75))
    A("s_cbranch_vccz L_p_go")
    remask()
    spin_tail("L_p_poll", sleep=cfg.HSLEEP)
    A("L_p_go:")
    A("s_mov_b64 exec, -1")
    stamp(6)
    A("v_mov_b32 v26, v72")
    for sh in (8, 4, 2, 1):
        A("s_nop 1")
        A(f"v_max_f32_dpp v26, v26, v26 row_ror:{sh} row_mask:0xf bank_mask:0xf")
    A("v_sub_f32 v26, v72, v26")
    A("v_exp_f32 v26, v26")
    A("s_nop 0")
    A("v_mul_f32 v72, v73, v26")
    for k in range(8):
        A(f"v_mul_f32 v{64+k}, v{64+k}, v26")
    for sh in (8, 4, 2, 1):
        for k in (8, 0, 1, 2, 3, 4, 5, 6, 7):
            A(f"v_add_f32_dpp v{64+k}, v{64+k}, v{64+k} row_ror:{sh} row_mask:0xf bank_mask:0xf")
            if sh == 1 and k == 2:
                A("v_rcp_f32 v72, v72")
    for k in range(8):
        A(f"v_mul_f32 v{64+k}, v{64+k}, v72")
    for k in range(4):
        A(f"v_cvt_pk_bf16_f32 v{76+k}, v{64+2*k}, v{65+2*k}")
    A("s_mov_b32 exec_lo, 0x00010001"); A("s_mov_b32 exec_hi, 0x00010001")
    A("ds_write_b128 v27, v[76:79] offset:160")
    A("s_waitcnt lgkmcnt(0)")
    A("s_barrier")
    A("s_endpgm")
    A("L_p_wave:")
    A("v_lshl_add_u32 v27, v190, 4, v188")
    A("v_lshlrev_b32 v23, 7, v190")
    A("v_lshl_add_u32 v23, v189, 4, v23")
    A("s_lshl_b32 s46, s2, 11"); A("s_lshl_b32 s47, s55, 9"); A("s_add_u32 s46, s46, s47"); A(f"s_add_u32 s46, s46, {WS_HB}")
    A("s_cmp_eq_u32 s55, 3")
    A("s_cselect_b32 s47, 0, 0x00ff00ff")
    A("s_waitcnt vmcnt(0) lgkmcnt(0)")
    A("s_barrier")
    A("s_barrier")
    A("ds_read_b128 v[76:79], v27 offset:160")
    stamp(5)
    A("s_waitcnt lgkmcnt(0)")
    for t in range(9):
        if t < 8:
            src = 76 + t // 2; sel = 12 + 4 * (t % 2)
            for k in range(4):
                A(f"v_perm_b32 v{96+4*t+k}, v{src}, v{src}, v{sel+k}")
        else:
            A("s_nop 0")
        if t >= 1:
            u = t - 1
            A(f"v_mfma_f32_16x16x32_bf16 v[128:131], v[{156+4*u}:{159+4*u}], v[{96+4*u}:{99+4*u}], {'0' if u == 0 else 'v[128:131]'}")
    A("s_mov_b32 exec_lo, 0x00ff00ff"); A("s_mov_b32 exec_hi, s47")
    A("s_nop 5")
    for k in range(4):
        tag(128 + k)
    A("buffer_store_dwordx4 v[128:131], v23, s[36:39], s46 offen sc1")
    A("s_mov_b64 exec, -1")
    stamp(6)
    A("s_waitcnt vmcnt(0)")
    A("s_endpgm")
    resc("L_cv_resc")
    resc("L_cc_resc")
    A("L_c_first:")
    A("L_c_qwait:")
    A("ds_read_b32 v23, v188 offset:4")
    A("s_waitcnt lgkmcnt(0)")
    A("v_readfirstlane_b32 s46, v23")
    A("s_cmp_lg_u32 s46, 0")
    A("s_cbranch_scc1 L_c_qgo")
    spin_tail("L_c_qwait")
    A("L_c_qgo:")
    A("v_lshrrev_b32 v23, 3, v189")
    A("v_lshlrev_b32 v23, 9, v23")
    A("v_lshl_add_u32 v23, v190, 4, v23")
    A(f"v_add_u32 v23, {LD['Q']}, v23")
    for t in range(8):
        A(f"ds_read_b128 v[{32+4*t}:{35+4*t}], v23 offset:{64*t}")
    A("s_mov_b32 s44, 1")
    A("s_waitcnt lgkmcnt(0)")
    stamp(2)
    A("s_branch L_ck_comp")

    A("L_helper:")
    srd(28, 4, 1792)
    srd(32, 10, 16 if cfg.NOWQ else 448 * 8192)
    A("v_lshrrev_b32 v20, 5, v1")
    A("v_and_b32 v21, 31, v1")
    A("v_mul_u32_u24 v22, 896, v20")
    A("v_lshl_add_u32 v22, v21, 2, v22")
    for m in range(7):
        A(f"buffer_load_dword v{24+m}, v22, s[28:31], 0 offen offset:{128*m}")
    A("s_and_b32 s56, s51, 3"); A("s_lshr_b32 s57, s51, 2")
    A(f"v_mul_u32_u24 v23, {28*8192}, v11")
    A("v_lshl_add_u32 v23, v10, 4, v23")
    A(f"s_mul_i32 s46, s57, {112*8192}"); A("s_lshl_b32 s47, s53, 10"); A("s_add_u32 s46, s46, s47")
    A("s_lshl_b32 s47, s56, 8"); A("s_add_u32 s46, s46, s47")
    for t in range(28):
        A(f"buffer_load_dwordx4 v[{64+4*t}:{67+4*t}], v23, s[32:35], s46 offen nt")
        if t < 27:
            A("s_add_u32 s46, s46, 8192")
    A(f"s_mul_i32 s46, s50, {PCS}"); A(f"s_add_u32 s46, s46, {WS_PC}")
    A("s_cmp_eq_u32 s51, 0"); A(f"s_cselect_b32 s46, s46, {WS_SIZE}")
    A("v_mov_b32 v186, 0")
    A("s_mov_b64 exec, 1")
    A("buffer_store_dword v186, v186, s[36:39], s46 offen sc1")
    A("s_mov_b64 exec, -1")
    A("s_waitcnt lgkmcnt(0)")
    A("s_add_u32 s58, s58, 1")
    A("s_and_b32 s46, s58, s59")
    A(f"v_mov_b32 v{TG}, s46")
    NAFTER = 28 + 1
    stamp(0)
    ND = 1 if cfg.DIAG else 0
    A(f"s_waitcnt vmcnt({NAFTER + ND})")
    for m in range(7):
        A(f"v_lshlrev_b32 v{32+2*m}, 16, v{24+m}")
        A(f"v_and_b32 v{33+2*m}, 0xffff0000, v{24+m}")
    def red32(v, t):
        for sh in (8, 4, 2, 1):
            A("s_nop 1")
            A(f"v_add_f32_dpp v{v}, v{v}, v{v} row_ror:{sh} row_mask:0xf bank_mask:0xf")
        A(f"v_mov_b32 v{t}, v{v}")
        A("s_nop 1")
        A(f"v_permlane16_swap_b32 v{v}, v{t}")
        A(f"v_add_f32 v{v}, v{v}, v{t}")
    A("v_add_f32 v46, v32, v33")
    for k in range(2, 14):
        A(f"v_add_f32 v46, v46, v{32+k}")
    red32(46, 47)
    A(f"v_mul_f32 v46, {hex(f2u(1.0/448))}, v46")
    A("v_sub_f32 v48, v32, v46")
    A("v_mul_f32 v47, v48, v48")
    for k in range(1, 14):
        A(f"v_sub_f32 v48, v{32+k}, v46")
        A("v_fmac_f32 v47, v48, v48")
    red32(47, 48)
    A(f"v_mul_f32 v47, {hex(f2u(1.0/448))}, v47")
    A("v_cvt_pk_bf16_f32 v48, v46, v47")
    A("v_lshlrev_b32 v46, 16, v48")
    A("v_and_b32 v47, 0xffff0000, v48")
    A(f"v_add_f32 v47, {hex(f2u(1e-5))}, v47")
    A("v_cvt_pk_bf16_f32 v47, v47, v47")
    A("v_lshlrev_b32 v47, 16, v47")
    A("v_sqrt_f32 v47, v47")
    A("s_nop 0")
    A("v_cvt_pk_bf16_f32 v47, v47, v47")
    A("v_lshlrev_b32 v47, 16, v47")
    A("v_rcp_f32 v47, v47")
    for k in range(14):
        A(f"v_sub_f32 v{32+k}, v{32+k}, v46")
    for m in range(7):
        A(f"v_cvt_pk_bf16_f32 v{24+m}, v{32+2*m}, v{33+2*m}")
    for m in range(7):
        A(f"v_lshlrev_b32 v{32+2*m}, 16, v{24+m}")
        A(f"v_and_b32 v{33+2*m}, 0xffff0000, v{24+m}")
    for k in range(14):
        A(f"v_mul_f32 v{32+k}, v{32+k}, v47")
    for m in range(7):
        A(f"v_cvt_pk_bf16_f32 v{24+m}, v{32+2*m}, v{33+2*m}")
    A(f"v_add_u32 v22, {LD['XN']}, v22")
    for m in range(7):
        A(f"ds_write_b32 v22, v{24+m} offset:{128*m}")
    A("s_mul_i32 s46, s52, 896"); A("s_mul_i32 s47, s57, 224"); A("s_add_u32 s46, s46, s47"); A(f"s_add_u32 s46, s46, {LD['XN']}")
    A("v_mul_u32_u24 v22, 56, v11")
    A("v_add_u32 v22, s46, v22")
    A("s_waitcnt lgkmcnt(0)")
    for m in range(7):
        A(f"ds_read_b64 v[{32+2*m}:{33+2*m}], v22 offset:{8*m}")
    A("s_waitcnt lgkmcnt(0)")
    for t in range(28):
        src = 32 + t // 2; sel = 12 + 4 * (t % 2); bb = 48 + 4 * (t % 2)
        for k in range(4):
            A(f"v_perm_b32 v{bb+k}, v{src}, v{src}, v{sel+k}")
        A(f"s_waitcnt vmcnt({27 - t + 1 + ND})")
        A("s_nop 0")
        A(f"v_mfma_f32_16x16x32_bf16 v[56:59], v[{64+4*t}:{67+4*t}], v[{bb}:{bb+3}], {'0' if t == 0 else 'v[56:59]'}")
    A("v_lshlrev_b32 v23, 7, v11")
    A("v_lshl_add_u32 v23, v10, 4, v23")
    A("s_lshl_b32 s46, s50, 13"); A("s_lshl_b32 s47, s56, 11"); A("s_add_u32 s46, s46, s47")
    A("s_lshl_b32 s47, s57, 9"); A("s_add_u32 s46, s46, s47"); A(f"s_add_u32 s46, s46, {WS_QP}")
    A("s_waitcnt vmcnt(0)")
    for k in range(4):
        tag(56 + k)
    A("s_mov_b32 exec_lo, 0x00ff00ff"); A("s_mov_b32 exec_hi, 0x00ff00ff")
    A("buffer_store_dwordx4 v[56:59], v23, s[36:39], s46 offen sc1")
    A("s_mov_b64 exec, -1")
    stamp(1)
    A("v_lshlrev_b32 v25, 7, v1")
    A("s_lshl_b32 s46, s50, 13"); A(f"s_add_u32 s46, s46, {WS_QP}")
    A("s_add_u32 s47, s46, 4096")
    A("v_lshlrev_b32 v22, 11, v20")
    A("v_lshl_add_u32 v22, v21, 4, v22")
    A("L_h_qpoll:")
    A("buffer_load_dword v26, v25, s[36:39], s46 offen sc1")
    A("s_waitcnt vmcnt(0)")
    tagcheck([26], 27)
    A("s_cbranch_vccz L_h_qgo")
    A("L_h_qretry:")
    spin_tail("L_h_qpoll", sleep=cfg.QSLEEP)
    A("L_h_qgo:")
    for z in range(2):
        for rs in range(4):
            A(f"buffer_load_dwordx4 v[{64+16*z+4*rs}:{67+16*z+4*rs}], v22, s[36:39], s{46+z} offen offset:{rs*512} sc1")
    A("s_waitcnt vmcnt(0)")
    tagcheck(range(64, 96), 27)
    A("s_cbranch_vccnz L_h_qretry")
    A("v_lshrrev_b32 v23, 3, v21")
    A("v_lshlrev_b32 v23, 6, v23")
    A("v_lshl_add_u32 v23, v20, 8, v23")
    A("v_lshl_add_u32 v23, v3, 1, v23")
    A(f"v_add_u32 v23, {LD['Q']}, v23")
    for z in range(2):
        b0 = 64 + 16 * z
        for k in range(4):
            A(f"v_add_f32 v{b0+k}, v{b0+k}, v{b0+4+k}")
            A(f"v_add_f32 v{b0+8+k}, v{b0+8+k}, v{b0+12+k}")
        for k in range(4):
            A(f"v_add_f32 v{b0+k}, v{b0+k}, v{b0+8+k}")
        A(f"v_cvt_pk_bf16_f32 v{b0}, v{b0}, v{b0+1}")
        A(f"v_cvt_pk_bf16_f32 v{b0+1}, v{b0+2}, v{b0+3}")
        A(f"ds_write_b16 v23, v{b0} offset:{z*512}")
        A(f"ds_write_b16_d16_hi v23, v{b0} offset:{z*512+16}")
        A(f"ds_write_b16 v23, v{b0+1} offset:{z*512+32}")
        A(f"ds_write_b16_d16_hi v23, v{b0+1} offset:{z*512+48}")
    A(f"v_mov_b32 v24, {LD['FLAGS']}"); A("v_mov_b32 v25, 1")
    A("s_waitcnt lgkmcnt(0)")
    A("ds_write_b32 v24, v25 offset:4")
    stamp(2)
    A("s_mov_b32 s56, s50")
    A("s_cmp_lg_u32 s51, s50")
    A("s_cbranch_scc1 L_h_noffn")
    FB = cfg.FB; NFB = 1792 // FB; RS = FB // 4
    if NFB < 16:
        A(f"s_cmp_ge_u32 s50, {NFB}")
        A("s_cbranch_scc1 L_h_noffn")
    srd(28, 16, 16 if cfg.NOFFN in (1, 3) else 448 * 3584)
    srd(32, 18, 16 if cfg.NOFFN in (1, 3) else 448 * 3584)
    A(f"v_mul_u32_u24 v23, {112*3584}, v11")
    A("v_lshl_add_u32 v23, v10, 4, v23")
    A(f"v_cmp_le_u32 vcc, {FB // 8}, v10")
    A("v_bfrev_b32 v27, 2")
    A(f"s_mul_i32 s46, s56, {FB * 2}")
    A("v_cndmask_b32 v23, v23, v27, vcc")
    A("v_lshrrev_b32 v22, 3, v10")
    A("v_mul_u32_u24 v22, 896, v22")
    A("v_mul_u32_u24 v24, 224, v11")
    A(f"v_add3_u32 v22, v22, v24, 0")
    A(f"v_add_u32 v22, {LD['XN']}, v22")
    for k in range(8):
        A(f"v_mov_b32 v{56+k}, 0")
    def ffn_loads(t):
        A(f"buffer_load_dwordx4 v[{64+8*t}:{67+8*t}], v23, s[28:31], s46 offen nt")
        A(f"buffer_load_dwordx4 v[{68+8*t}:{71+8*t}], v23, s[32:35], s46 offen nt")
        A("s_add_u32 s46, s46, 3584")
    A("s_waitcnt vmcnt(0)")
    for t in range(8):
        ffn_loads(t)
    A("s_mov_b32 s57, 13")
    def ffn_iter(reissue):
        A("ds_read_b128 v[32:35], v22")
        A("v_add_u32 v22, 16, v22")
        A("s_waitcnt lgkmcnt(0)")
        for t in range(8):
            src = 32 + t // 2; sel = 12 + 4 * (t % 2); bb = 48 + 4 * (t % 2)
            for k in range(4):
                A(f"v_perm_b32 v{bb+k}, v{src}, v{src}, v{sel+k}")
            A(f"s_waitcnt vmcnt({14 if reissue else 14 - 2*t})")
            A("s_nop 0")
            A(f"v_mfma_f32_16x16x32_bf16 v[56:59], v[{64+8*t}:{67+8*t}], v[{bb}:{bb+3}], v[56:59]")
            A(f"v_mfma_f32_16x16x32_bf16 v[60:63], v[{68+8*t}:{71+8*t}], v[{bb}:{bb+3}], v[60:63]")
            if reissue:
                ffn_loads(t)
    A("L_h_f1:")
    ffn_iter(True)
    A("s_sub_u32 s57, s57, 1"); A("s_cmp_lg_u32 s57, 0"); A("s_cbranch_scc1 L_h_f1")
    ffn_iter(False)
    srd(28, 20, 16 if cfg.NOFFN in (1, 2) else 1792 * 896)
    A(f"v_mul_u32_u24 v23, {RS*896}, v11")
    A("v_lshl_add_u32 v23, v10, 4, v23")
    A("v_cmp_le_u32 vcc, 8, v10")
    A(f"s_mul_i32 s46, s56, {FB*896}")
    A("s_nop 0")
    A("v_cndmask_b32 v26, v23, v27, vcc")
    def dn_loads(t):
        for nb in range(4):
            A(f"buffer_load_dwordx4 v[{64+16*t+4*nb}:{67+16*t+4*nb}], v{26 if nb == 3 else 23}, s[28:31], s46 offen offset:{nb*256} nt")
        A("s_add_u32 s46, s46, 896")
    A("s_nop 4")
    for t in range(4):
        dn_loads(t)
    A("v_cvt_pk_bf16_f32 v32, v56, v57"); A("v_cvt_pk_bf16_f32 v33, v58, v59")
    A("v_cvt_pk_bf16_f32 v34, v60, v61"); A("v_cvt_pk_bf16_f32 v35, v62, v63")
    for k in range(4):
        A(f"v_lshlrev_b32 v{36+2*k}, 16, v{32+k}")
        A(f"v_and_b32 v{37+2*k}, 0xffff0000, v{32+k}")
    K0 = -2.0 * math.sqrt(2.0 / math.pi) * math.log2(math.e)
    A(f"s_mov_b32 s71, {hex(f2u(0.044715))}")
    for k in range(4):
        A(f"v_mul_f32 v{44+k}, v{36+k}, v{36+k}")
        A(f"v_mul_f32 v{44+k}, v{44+k}, v{36+k}")
        A(f"v_fma_f32 v{44+k}, v{44+k}, s71, v{36+k}")
        A(f"v_mul_f32 v{44+k}, {hex(f2u(K0))}, v{44+k}")
    for k in range(4):
        A(f"v_exp_f32 v{44+k}, v{44+k}")
    A("s_nop 0")
    for k in range(4):
        A(f"v_add_f32 v{44+k}, 1.0, v{44+k}")
    for k in range(4):
        A(f"v_rcp_f32 v{44+k}, v{44+k}")
    A("s_nop 0")
    for k in range(4):
        A(f"v_mul_f32 v{44+k}, v{44+k}, v{36+k}")
    A("v_cvt_pk_bf16_f32 v32, v44, v45"); A("v_cvt_pk_bf16_f32 v33, v46, v47")
    for k in range(2):
        A(f"v_lshlrev_b32 v{44+2*k}, 16, v{32+k}")
        A(f"v_and_b32 v{45+2*k}, 0xffff0000, v{32+k}")
    for k in range(4):
        A(f"v_mul_f32 v{44+k}, v{44+k}, v{40+k}")
    A("v_cvt_pk_bf16_f32 v32, v44, v45"); A("v_cvt_pk_bf16_f32 v33, v46, v47")
    A("v_lshrrev_b32 v22, 3, v10")
    A("v_lshlrev_b32 v22, 8, v22")
    A(f"v_add_u32 v22, {LD['H']}, v22")
    A("v_lshl_add_u32 v24, v11, 6, v22")
    A("v_lshl_add_u32 v24, v3, 1, v24")
    A(f"v_mul_u32_u24 v25, {RS*2}, v11")
    A("v_add_u32 v22, v22, v25")
    A("ds_write_b16 v24, v32")
    A("ds_write_b16_d16_hi v24, v32 offset:16")
    A("ds_write_b16 v24, v33 offset:32")
    A("ds_write_b16_d16_hi v24, v33 offset:48")
    for k in range(16):
        A(f"v_mov_b32 v{128+k}, 0")
    A("s_waitcnt lgkmcnt(0)")
    A(f"s_mov_b32 s57, {RS // 4 - 1}")
    def dn_iter(reissue):
        A("ds_read_b64 v[32:33], v22")
        A("v_add_u32 v22, 8, v22")
        A("s_waitcnt lgkmcnt(0)")
        for t in range(4):
            src = 32 + t // 2; sel = 12 + 4 * (t % 2); bb = 48 + 4 * (t % 2)
            for k in range(4):
                A(f"v_perm_b32 v{bb+k}, v{src}, v{src}, v{sel+k}")
            A(f"s_waitcnt vmcnt({12 if reissue else 12 - 4*t})")
            A("s_nop 0")
            for nb in range(4):
                A(f"v_mfma_f32_16x16x32_bf16 v[{128+4*nb}:{131+4*nb}], v[{64+16*t+4*nb}:{67+16*t+4*nb}], v[{bb}:{bb+3}], v[{128+4*nb}:{131+4*nb}]")
            if reissue:
                dn_loads(t)
    A("L_h_f2:")
    dn_iter(True)
    A("s_sub_u32 s57, s57, 1"); A("s_cmp_lg_u32 s57, 0"); A("s_cbranch_scc1 L_h_f2")
    dn_iter(False)
    A("v_lshrrev_b32 v22, 3, v10")
    A("v_lshlrev_b32 v22, 11, v22")
    A("v_lshl_add_u32 v22, v11, 7, v22")
    A("v_lshl_add_u32 v22, v3, 4, v22")
    A("s_lshl_b32 s46, s56, 12"); A(f"s_add_u32 s46, s46, {WS_HY}")
    A("s_nop 4")
    for k in range(16):
        tag(128 + k)
    for nb in range(4):
        if nb == 3:
            A("s_mov_b32 exec_hi, 0")
        A(f"buffer_store_dwordx4 v[{128+4*nb}:{131+4*nb}], v22, s[36:39], s46 offen offset:{nb*512} sc1")
    A("s_mov_b64 exec, -1")
    stamp(3)
    A("L_h_noffn:")
    A("s_and_b32 s56, s2, 127")
    A("s_cmp_eq_u32 s2, 255")
    A("s_cbranch_scc1 L_h_epoch")
    A("s_cmp_ge_u32 s56, 28")
    A("s_cbranch_scc1 L_end")
    A("v_lshlrev_b32 v22, 12, v10")
    A("v_lshl_add_u32 v22, v11, 4, v22")
    A("s_lshl_b32 s46, s52, 11"); A("s_lshl_b32 s47, s56, 6"); A("s_add_u32 s46, s46, s47"); A(f"s_add_u32 s46, s46, {WS_HY}")
    for k in range(4):
        A(f"v_mov_b32 v{64+k}, 0")
    ym = ((1 << NFB) - 1) * 0x10001
    A(f"s_mov_b32 exec_lo, {hex(ym)}"); A(f"s_mov_b32 exec_hi, {hex(ym)}")
    A("L_h_ypoll:")
    A("buffer_load_dwordx4 v[64:67], v22, s[36:39], s46 offen sc1")
    A("s_waitcnt vmcnt(0)")
    tagcheck(range(64, 68), 27)
    A("s_cbranch_vccz L_h_ygo")
    spin_tail("L_h_ypoll", sleep=64)
    A("L_h_ygo:")
    A("s_mov_b64 exec, -1")
    A("s_lshr_b32 s47, s56, 1"); A("s_lshl_b32 s47, s47, 5"); A("s_and_b32 s48, s56, 1"); A("s_lshl_b32 s48, s48, 2")
    A("s_add_u32 s47, s47, s48"); A("s_mul_i32 s48, s52, 448"); A("s_add_u32 s47, s47, s48"); A("s_lshl_b32 s57, s47, 1")
    srd(28, 4, 1792)
    srd(32, 22, 1792)
    A("v_lshlrev_b32 v23, 1, v11")
    for rr in range(4):
        A(f"buffer_load_ushort v{72+rr}, v23, s[28:31], s57 offen offset:{16*rr}")
    A("s_waitcnt vmcnt(0)")
    for sh in (8, 4, 2, 1):
        for k in range(4):
            A(f"v_add_f32_dpp v{64+k}, v{64+k}, v{64+k} row_ror:{sh} row_mask:0xf bank_mask:0xf")
    A("v_cvt_pk_bf16_f32 v68, v64, v65"); A("v_cvt_pk_bf16_f32 v69, v66, v67")
    for k in range(2):
        A(f"v_lshlrev_b32 v{64+2*k}, 16, v{68+k}")
        A(f"v_and_b32 v{65+2*k}, 0xffff0000, v{68+k}")
    for k in range(4):
        A(f"v_mul_f32 v{68+k}, {hex(f2u(-math.log2(math.e)))}, v{64+k}")
    for k in range(4):
        A(f"v_exp_f32 v{68+k}, v{68+k}")
    A("s_nop 0")
    for k in range(4):
        A(f"v_add_f32 v{68+k}, 1.0, v{68+k}")
    for k in range(4):
        A(f"v_rcp_f32 v{68+k}, v{68+k}")
    A("s_nop 0")
    for k in range(4):
        A(f"v_mul_f32 v{64+k}, v{64+k}, v{68+k}")
    A("v_cvt_pk_bf16_f32 v68, v64, v65"); A("v_cvt_pk_bf16_f32 v69, v66, v67")
    for k in range(2):
        A(f"v_lshlrev_b32 v{76+2*k}, 16, v{68+k}")
        A(f"v_and_b32 v{77+2*k}, 0xffff0000, v{68+k}")
    for k in range(4):
        A(f"v_lshlrev_b32 v{72+k}, 16, v{72+k}")
    A("v_lshlrev_b32 v22, 11, v10")
    A("v_lshl_add_u32 v22, v11, 4, v22")
    A("s_lshl_b32 s46, s52, 18"); A("s_lshl_b32 s47, s56, 6"); A("s_add_u32 s46, s46, s47"); A(f"s_add_u32 s46, s46, {WS_HB}")
    for k in range(1, 8):
        A(f"s_add_u32 s{63+k}, s46, {k*32768}")
    stamp(4)
    A("s_waitcnt vmcnt(0) lgkmcnt(0)")
    A("s_barrier")
    A("s_barrier")
    if cfg.BAR4:
        A("s_barrier")
    A("L_h_bpoll:")
    for k in range(8):
        A(f"buffer_load_dwordx4 v[{96+4*k}:{99+4*k}], v22, s[36:39], s{46 if k == 0 else 63+k} offen sc1")
    A("s_waitcnt vmcnt(0)")
    tagcheck(range(96, 128), 24)
    A("s_cbranch_vccz L_h_bgo")
    remask()
    spin_tail("L_h_bpoll", sleep=cfg.HSLEEP)
    A("L_h_bgo:")
    A("s_mov_b64 exec, -1")
    stamp(5)
    for step in (16, 8, 4):
        for k in range(step):
            A(f"v_add_f32 v{96+k}, v{96+k}, v{96+step+k}")
    A("s_nop 0")
    for sh in (8, 4, 2, 1):
        for k in range(4):
            A(f"v_add_f32_dpp v{96+k}, v{96+k}, v{96+k} row_ror:{sh} row_mask:0xf bank_mask:0xf")
    A("v_cvt_pk_bf16_f32 v100, v96, v97"); A("v_cvt_pk_bf16_f32 v101, v98, v99")
    for k in range(2):
        A(f"v_lshlrev_b32 v{96+2*k}, 16, v{100+k}")
        A(f"v_and_b32 v{97+2*k}, 0xffff0000, v{100+k}")
    for k in range(4):
        A(f"v_mul_f32 v{96+k}, v{96+k}, v{76+k}")
    A("v_cvt_pk_bf16_f32 v100, v96, v97"); A("v_cvt_pk_bf16_f32 v101, v98, v99")
    for k in range(2):
        A(f"v_lshlrev_b32 v{96+2*k}, 16, v{100+k}")
        A(f"v_and_b32 v{97+2*k}, 0xffff0000, v{100+k}")
    for k in range(4):
        A(f"v_add_f32 v{96+k}, v{96+k}, v{72+k}")
    A("v_cvt_pk_bf16_f32 v100, v96, v97"); A("v_cvt_pk_bf16_f32 v101, v98, v99")
    A("s_mov_b32 exec_lo, 0x00010001"); A("s_mov_b32 exec_hi, 0x00010001")
    A("buffer_store_short v100, v23, s[32:35], s57 offen")
    A("buffer_store_short_d16_hi v100, v23, s[32:35], s57 offen offset:16")
    A("buffer_store_short v101, v23, s[32:35], s57 offen offset:32")
    A("buffer_store_short_d16_hi v101, v23, s[32:35], s57 offen offset:48")
    A("s_mov_b64 exec, -1")
    stamp(6)
    A("L_end:")
    A("s_endpgm")
    A("L_h_epoch:")
    A("v_lshlrev_b32 v22, 12, v11")
    A("v_lshl_add_u32 v22, v10, 7, v22")
    for k in range(4):
        A(f"s_mov_b32 s{64+k}, {WS_HM + k*4*4096}")
    A("s_waitcnt vmcnt(0) lgkmcnt(0)")
    A("s_barrier")
    A("s_barrier")
    if cfg.BAR4:
        A("s_barrier")
    A("L_h_epoll:")
    for k in range(4):
        A(f"buffer_load_dwordx2 v[{96+2*k}:{97+2*k}], v22, s[36:39], s{64+k} offen offset:8 sc1")
    A("s_waitcnt vmcnt(0)")
    tagcheck([], 24, full=range(96, 104))
    A("s_cbranch_vccz L_h_ego")
    spin_tail("L_h_epoll", sleep=8)
    A("L_h_ego:")
    A("v_mov_b32 v24, s58"); A("v_mov_b32 v25, 0")
    A("s_mov_b64 exec, 1")
    A(f"buffer_store_dword v24, v25, s[36:39], 0 offen offset:{WS_EP}")
    A("s_endpgm")
    nv = 256 if cfg.DIAG else 208
    A('.section .rodata,"a"'); A(".p2align 6"); A(f".amdhsa_kernel {NAME}")
    A.L.append(f"  .amdhsa_next_free_vgpr {nv}"); A.L.append("  .amdhsa_next_free_sgpr 102"); A.L.append(f"  .amdhsa_accum_offset {nv}")
    A.L.append("  .amdhsa_group_segment_fixed_size 0"); A.L.append("  .amdhsa_kernarg_size 96"); A.L.append("  .amdhsa_user_sgpr_count 2")
    A.L.append("  .amdhsa_user_sgpr_kernarg_segment_ptr 1"); A.L.append("  .amdhsa_system_sgpr_workgroup_id_x 1"); A(".end_amdhsa_kernel")
    FL = {0: "sc1", 1: "sc0 sc1", 2: "sc0 sc1 nt", 3: "sc1 nt"}
    for i, line in enumerate(A.L):
        if line.startswith("buffer_load") and line.endswith(" sc1"):
            A.L[i] = line[:-3] + FL[cfg.PF]
        if line.startswith("buffer_load") and line.endswith(" nt"):
            A.L[i] = line[:-2] + POL[cfg.WP]
        if line.startswith("buffer_store") and line.endswith(" sc1"):
            A.L[i] = line[:-3] + FL[cfg.SF]
    if cfg.DIAG:
        sys.stderr.write(str(codes) + "\n")
    return "\n".join(A.L) + "\n"

if __name__ == "__main__":
    cfg = Cfg()
    out = sys.argv[1]
    for kv in sys.argv[2:]:
        k, v = kv.split("=")
        setattr(cfg, k, tuple(int(x) for x in v.split("/") if x) if k == "SIZES" else int(v))
    open(out, "w").write(gen(cfg))
```

```python
import sys, math
NAME = "recurrent_scan__gqa_block_cached__glu_gated_geglu__decode_kernel"

class Cfg:
    F = 20
    R = 9
    C = 6
    DIAG = False
    SPIN = 1 << 22
    NOSWZ = 0
    NOCOMP = 0
    NOWO = 0
    NOWQ = 0
    PSLEEP = 1
    QSLEEP = 4
    BAR3 = 1
    BAR4 = 1
    MASKP = 1
    DBGT = 0
    HSLEEP = 1
    PF = 0
    FB = 128
    STAT = 2
    KP = 1
    VP = 1
    WP = 1
    ROT = 5
    GS = 11
    WIN = 1
    SF = 0
    SIZES = (5, 2, 1)
    NOFFN = 0

def lds_layout(R):
    o = R * 16384
    L = {}
    L['FLAGS'] = o; o += 256
    L['Q'] = o; o += 1024
    L['XN'] = o; o += 1792
    L['H'] = o; o += 512
    L['SC'] = o; o += 64 * 128
    L['END'] = o
    return L

WS_EP = 0
WS_PC = 0x1000
PCS = 4352
WS_QP = 0x20000
WS_HA = 0x40000
WS_HM = 0xC0000
WS_HB = 0xD0000
WS_HY = 0x150000
WS_DIAG = 0x200000
WS_SIZE = 0x400000
TAGM = 0xf
POL = {0: "", 1: "nt", 2: "sc1", 3: "sc0 sc1", 4: "sc1 nt", 5: "sc0 sc1 nt", 6: "sc0", 7: "sc0 nt"}
CSC = 0.0625 * math.log2(math.e)

import struct
def f2u(x):
    return struct.unpack('<I', struct.pack('<f', x))[0]

class Asm:
    def __init__(self):
        self.L = []
        self.n = 0
    def __call__(self, s):
        for line in s.strip('\n').split('\n'):
            self.L.append(line.strip() if not line.strip().endswith(':') else line.strip())
    def label(self, base):
        self.n += 1
        return f"L_{base}_{self.n}"

def gen(cfg):
    F, R, C = cfg.F, cfg.R, cfg.C
    LD = lds_layout(R)
    assert LD['END'] <= 163840, LD['END']
    A = Asm()
    NUNITS = 128
    SIZES = tuple(cfg.SIZES)
    S = NUNITS - sum(SIZES)
    NT = 16 * len(SIZES)
    assert len(SIZES) <= 8
    SZP = sum(v << (8 * r) for r, v in enumerate(SIZES))
    STP = sum((S + sum(SIZES[:r])) << (8 * r) for r in range(len(SIZES)))
    def srd(dst, base, size, add=None):
        if add is None:
            A(f"s_mov_b32 s{dst}, s{base}")
            A(f"s_and_b32 s{dst+1}, s{base+1}, 0xffff")
        else:
            A(f"s_add_u32 s{dst}, s{base}, s{add}")
            A(f"s_addc_u32 s{dst+1}, s{base+1}, 0")
            A(f"s_and_b32 s{dst+1}, s{dst+1}, 0xffff")
        A(f"s_mov_b32 s{dst+2}, {size}")
        A(f"s_mov_b32 s{dst+3}, 0x20000")
    def stamp(idx, tmpv=(250, 251, 252)):
        if not cfg.DIAG:
            return
        A(f"s_memrealtime s[96:97]")
        A(f"s_lshl_b32 s98, s2, 3")
        A(f"s_add_u32 s98, s98, s3")
        A(f"s_lshl_b32 s98, s98, 7")
        A(f"s_add_u32 s98, s98, {WS_DIAG + idx*8}")
        A(f"s_waitcnt lgkmcnt(0)")
        A(f"v_mov_b32 v{tmpv[0]}, s96")
        A(f"v_mov_b32 v{tmpv[1]}, s97")
        A(f"v_mov_b32 v{tmpv[2]}, 0")
        A(f"s_mov_b64 s[94:95], exec")
        A(f"s_mov_b64 exec, 1")
        A(f"buffer_store_dwordx2 v[{tmpv[0]}:{tmpv[1]}], v{tmpv[2]}, s[36:39], s98 offen")
        A(f"s_mov_b64 exec, s[94:95]")
    TG = 193
    def tag(v):
        A(f"v_bfi_b32 v{v}, s59, v{TG}, v{v}")
    def tagcheck(regs, acc, full=()):
        regs = list(regs)
        if len(regs) == 0:
            A(f"v_mov_b32 v{acc}, 0")
        elif len(regs) == 1:
            A(f"v_xor_b32 v{acc}, v{regs[0]}, v{TG}")
        else:
            A(f"v_bitop3_b32 v{acc}, v{regs[0]}, v{regs[1]}, v{TG} bitop3:0x7e")
            for r in regs[2:]:
                A(f"v_bitop3_b32 v{acc}, v{acc}, v{r}, v{TG} bitop3:0xf6")
        A(f"v_and_b32 v{acc}, s59, v{acc}")
        for r in full:
            A(f"v_bitop3_b32 v{acc}, v{acc}, v{r}, s58 bitop3:0xf6")
        A(f"v_cmp_ne_u32 vcc, 0, v{acc}")
    def remask():
        if cfg.MASKP:
            A("s_or_b32 s76, vcc_lo, vcc_hi"); A("s_lshr_b32 s77, s76, 16"); A("s_or_b32 s76, s76, s77")
            A("s_pack_ll_b32_b16 s76, s76, s76")
            A("s_mov_b32 exec_lo, s76"); A("s_mov_b32 exec_hi, s76")
    codes = {}
    def die(lbl):
        if cfg.DIAG:
            codes.setdefault(lbl, len(codes) + 1)
            A("s_mov_b64 exec, 1")
            A(f"v_mov_b32 v248, {codes[lbl]}"); A("v_mov_b32 v249, s40"); A("v_mov_b32 v250, s43"); A("v_mov_b32 v251, s73"); A("v_mov_b32 v252, 0")
            A("s_lshl_b32 s98, s2, 3"); A("s_add_u32 s98, s98, s3"); A("s_lshl_b32 s98, s98, 7"); A(f"s_add_u32 s98, s98, {WS_DIAG + 112}")
            A("buffer_store_dwordx4 v[248:251], v252, s[36:39], s98 offen")
        A("s_endpgm")
    def spin_tail(lbl, cnt="s45", sleep=1):
        A(f"s_sleep {sleep}")
        A(f"s_sub_u32 {cnt}, {cnt}, 1")
        A(f"s_cmp_lg_u32 {cnt}, 0")
        A(f"s_cbranch_scc1 {lbl}")
        die(lbl)

    hdr = open('recurrent_scan__gqa_block_cached__glu_gated_geglu__decode.s.ref').read().split('\n')
    for line in hdr:
        if line.startswith('; @launch') or not line.startswith(';'):
            break
        A.L.append(line)
    A(f"; @launch grid=(256,1,1) block=(512,1,1) lds={LD['END']}")
    A('.amdgcn_target "amdgcn-amd-amdhsa--gfx950"')
    A(".text"); A(f".globl {NAME}"); A(".p2align 8"); A(f".type {NAME},@function"); A(f"{NAME}:")
    if cfg.DIAG or cfg.DBGT:
        A("s_memrealtime s[92:93]")
    A(f"""
    s_cmp_ge_u32 s2, 256
    s_cbranch_scc1 L_end
    s_load_dwordx8 s[4:11], s[0:1], 0
    s_load_dwordx8 s[12:19], s[0:1], 32
    s_load_dwordx8 s[20:27], s[0:1], 64
    v_and_b32 v1, 63, v0
    v_lshrrev_b32 v2, 6, v0
    v_lshlrev_b32 v3, 2, v1
    v_add_u32 v3, {LD['FLAGS']}, v3
    v_mov_b32 v4, 0
    ds_write_b32 v3, v4
    v_readfirstlane_b32 s3, v2
    s_mov_b32 s45, {cfg.SPIN}
    s_mov_b32 s40, 0
    s_mov_b32 s43, 0
    s_mov_b32 s73, 0
    """)
    A("v_lshrrev_b32 v5, 5, v1")
    A("v_and_b32 v6, 31, v1")
    A("v_xor_b32 v6, v6, v5")
    A("v_lshlrev_b32 v5, 9, v5")
    for j in range(8):
        A(f"v_xor_b32 v7, {2*j}, v6")
        A(f"v_lshl_add_u32 v{8+j}, v7, 4, v5")
    A("v_lshlrev_b32 v16, 4, v1")
    A(f"v_mov_b32 v17, {LD['FLAGS']}")
    A("s_lshr_b32 s46, s2, 4")
    A("s_lshl_b32 s46, s46, 24")
    A("s_waitcnt lgkmcnt(0)")
    A("s_barrier")
    A("s_cmp_lg_u32 s3, 0")
    A("s_cbranch_scc1 L_notloader")
    A("s_setprio 3")
    srd(28, 6, 1 << 24, add=46)
    srd(32, 8, 1 << 24, add=46)
    if cfg.DIAG:
        srd(36, 26, WS_SIZE)
    stamp(0)
    if cfg.DIAG:
        A("v_mov_b32 v250, s92"); A("v_mov_b32 v251, s93"); A("s_mov_b64 exec, 1")
        A("buffer_store_dwordx2 v[250:251], v252, s[36:39], s98 offen offset:56")
        A("s_mov_b64 exec, -1")
    a_, jp = divmod(F - 1, 16)
    assert S % 2 == 0
    NFB = 1792 // cfg.FB
    A("s_mov_b32 s90, 0")
    A("s_mov_b32 s41, 0"); A("s_and_b32 s66, s2, 15"); A("s_mov_b32 s67, 0"); A("s_mov_b32 s44, 0")
    A("s_lshr_b32 s70, s2, 4"); A(f"s_mul_i32 s68, s70, {cfg.GS}")
    def ld_addr(dst, dt):
        A(f"s_add_u32 s69, s67, {dt}")
        A(f"s_add_u32 {dst}, s69, s68"); A(f"s_and_b32 {dst}, {dst}, 127"); A(f"s_lshl_b32 {dst}, {dst}, 17")
        A(f"s_mul_i32 s69, s69, {cfg.ROT}"); A("s_add_u32 s69, s69, s66"); A("s_and_b32 s69, s69, 15"); A("s_lshl_b32 s69, s69, 13")
        A(f"s_or_b32 {dst}, {dst}, s69")
    def ld_body(kinds, first=False):
        for j in range(16):
            if not first:
                A(f"s_waitcnt vmcnt({F-1})")
            if j == jp and not first:
                A(f"s_sub_i32 s49, s40, {a_}")
                A("s_max_i32 s43, s43, s49")
                A("v_mov_b32 v18, s43")
                A("ds_write_b32 v17, v18")
            if j % 4 == 0:
                A(f"s_add_u32 m0, s41, {j*1024}")
                A(f"s_add_u32 s47, {'s42' if j < 8 else 's75'}, {(j % 8)*1024}")
            if j == 8:
                A("s_add_u32 s44, s44, 4"); A(f"s_cmp_ge_u32 s44, {R*4}"); A("s_cselect_b32 s44, 0, s44")
                A("v_add_u32 v19, s44, v17")
                A("ds_read_b32 v20, v19 offset:64")
            if kinds[j // 8] == 'K':
                A(f"buffer_load_dwordx4 v{8 + j % 8}, s[28:31], s47 offen offset:{(j%4)*1024} {POL[cfg.KP]} lds")
            else:
                A(f"buffer_load_dwordx4 v16, s[32:35], s47 offen offset:{(j%4)*1024} {POL[cfg.VP]} lds")
            if first and j == 7:
                ld_addr("s75", 1)
        A("s_add_u32 s40, s40, 1")
        A("s_add_u32 s41, s41, 16384"); A(f"s_cmp_ge_u32 s41, {R*16384}"); A("s_cselect_b32 s41, 0, s41")
        A("s_sub_u32 s53, s53, 1")
    def ld_ring(lbl):
        if cfg.DIAG:
            n = A.label("nops")
            A("s_and_b32 s91, s40, 15"); A("s_cmp_lg_u32 s91, 0"); A(f"s_cbranch_scc1 {n}")
            A("s_cmp_gt_u32 s40, 80"); A(f"s_cbranch_scc1 {n}")
            A("s_memrealtime s[96:97]")
            A("s_lshl_b32 s98, s2, 10"); A("s_lshr_b32 s91, s40, 1"); A("s_add_u32 s98, s98, s91"); A(f"s_add_u32 s98, s98, {WS_DIAG + 64}")
            A("s_waitcnt lgkmcnt(0)")
            A("v_mov_b32 v250, s96"); A("v_mov_b32 v251, s97"); A("v_mov_b32 v252, 0")
            A("s_mov_b64 exec, 1")
            A("buffer_store_dwordx2 v[250:251], v252, s[36:39], s98 offen")
            A("s_mov_b64 exec, -1")
            A(f"{n}:")
        A(f"s_sub_i32 s48, s40, {R-1}")
        A("v_readfirstlane_b32 s47, v20")
        A("s_cmp_ge_i32 s47, s48")
        A(f"s_cbranch_scc1 {lbl}")
        if cfg.DIAG:
            n = A.label("nost")
            A("s_cmp_lg_u32 s90, 0"); A(f"s_cbranch_scc1 {n}"); A("s_mov_b32 s90, 1")
            stamp(2)
            A(f"{n}:")
            stamp(3)
        A("s_waitcnt vmcnt(0)")
        A("s_mov_b32 s43, s40")
        A("v_mov_b32 v18, s43")
        A("ds_write_b32 v17, v18")
        sp = lbl + "_spin"
        A(f"{sp}:")
        A("ds_read_b32 v20, v19 offset:64")
        A("s_waitcnt lgkmcnt(0)")
        A("v_readfirstlane_b32 s47, v20")
        A("s_cmp_ge_i32 s47, s48")
        A(f"s_cbranch_scc1 {lbl}")
        spin_tail(sp)
    def ld_ticket_req():
        n = A.label("noat")
        A("s_add_u32 s74, s53, s71")
        A("s_cmp_lg_u32 s74, 1")
        A(f"s_cbranch_scc1 {n}")
        A("s_mov_b32 s54, 1")
        if NT:
            A("s_atomic_add s54, s[56:57], 0x0 glc")
        A(f"{n}:")
    ld_addr("s42", 0)
    A("s_mov_b32 s53, 0")
    ld_body("KK", first=True)
    A(f"s_mul_i32 s50, s70, {PCS}"); A(f"s_add_u32 s50, s50, {WS_PC}")
    A("s_add_u32 s56, s26, s50"); A("s_addc_u32 s57, s27, 0")
    A(f"s_mov_b32 s60, {hex(SZP & 0xffffffff)}"); A(f"s_mov_b32 s61, {hex(SZP >> 32)}")
    A(f"s_mov_b32 s62, {hex(STP & 0xffffffff)}"); A(f"s_mov_b32 s63, {hex(STP >> 32)}")
    A("s_mov_b32 s54, 0")
    A(f"s_cmp_lt_u32 s70, {NFB}"); A("s_cselect_b32 s71, 1, 0")
    A(f"s_add_u32 s72, s66, {S - 16}")
    A("s_cmp_eq_u32 s66, s70"); A("s_cselect_b32 s78, s71, 0"); A("s_lshl_b32 s78, s78, 3"); A(f"s_sub_u32 s78, {S // 2}, s78")
    A("s_sub_u32 s53, s78, 1")
    A("s_branch L_ld_kbot")
    A("L_ld_k:")
    ld_body("KK")
    A("L_ld_kbot:")
    A("s_add_u32 s67, s67, 2")
    A("s_cmp_lg_u32 s53, 0")
    A("s_cbranch_scc1 L_ld_kc")
    A("s_mov_b32 s67, 0"); A("s_mov_b32 s53, s78")
    A("s_branch L_ld_vc")
    A("L_ld_kc:")
    ld_addr("s42", 0); ld_addr("s75", 1)
    A("s_waitcnt lgkmcnt(0)")
    ld_ring("L_ld_k")
    A("L_ld_v:")
    ld_ticket_req()
    ld_body("VV")
    A("s_add_u32 s67, s67, 2")
    A("s_cmp_eq_u32 s53, 0")
    A("s_cbranch_scc1 L_ld_next")
    A("L_ld_vc:")
    ld_addr("s42", 0); ld_addr("s75", 1)
    A("s_waitcnt lgkmcnt(0)")
    ld_ring("L_ld_v")
    A("L_ld_c:")
    ld_ticket_req()
    ld_body("KV")
    A("s_add_u32 s67, s67, 1")
    A("s_cmp_lg_u32 s53, 0")
    A("s_cbranch_scc1 L_ld_cc")
    A("L_ld_next:")
    A("s_cmp_eq_u32 s71, 0"); A("s_cbranch_scc1 L_ld_tick")
    A("s_mov_b32 s71, 0"); A("s_mov_b32 s53, 1"); A("s_mov_b32 s66, s70"); A("s_mov_b32 s67, s72")
    A("s_branch L_ld_cc")
    A("L_ld_tick:")
    A("s_waitcnt lgkmcnt(0)")
    A(f"s_cmp_ge_u32 s54, {NT}")
    A("s_cbranch_scc1 L_ld_done")
    A("s_lshr_b32 s51, s54, 4"); A("s_lshl_b32 s51, s51, 3")
    A("s_lshr_b64 s[64:65], s[60:61], s51"); A("s_and_b32 s53, s64, 0xff")
    A("s_lshr_b64 s[64:65], s[62:63], s51"); A("s_and_b32 s67, s64, 0xff")
    A("s_and_b32 s66, s54, 15")
    A("L_ld_cc:")
    ld_addr("s42", 0)
    A("s_mov_b32 s75, s42")
    A("s_waitcnt lgkmcnt(0)")
    ld_ring("L_ld_c")
    A("L_ld_done:")
    A("s_lshl_b32 s50, s40, 16")
    A("s_or_b32 s51, s50, s43")
    A("v_mov_b32 v18, s51")
    A("ds_write_b32 v17, v18")
    for k in range(a_ + 1, -1, -1):
        if 16 * k < F:
            A(f"s_sub_u32 s51, s40, {k}")
            A("s_max_u32 s51, s51, s43")
            A("s_or_b32 s51, s51, s50")
            A(f"s_waitcnt vmcnt({16*k})")
            A(f"v_mov_b32 v18, s51")
            A("ds_write_b32 v17, v18")
    if cfg.DIAG:
        A("v_mov_b32 v250, s40"); A("v_mov_b32 v251, 0"); A("v_mov_b32 v252, 0")
        A("s_lshl_b32 s98, s2, 10"); A(f"s_add_u32 s98, s98, {WS_DIAG + 8*8}")
        A("s_mov_b64 exec, 1")
        A("buffer_store_dwordx2 v[250:251], v252, s[36:39], s98 offen")
        A("s_mov_b64 exec, -1")
        A("s_nop 1")
    stamp(1)
    A("s_endpgm")

    A("L_notloader:")
    A(f"s_load_dword s58, s[26:27], {WS_EP}")
    A(f"s_mov_b32 s59, {TAGM}")
    A("v_and_b32 v3, 7, v1")
    A("v_lshrrev_b32 v4, 1, v3")
    A("v_and_b32 v5, 1, v3")
    A("v_mov_b32 v6, 0x0c0c0100")
    A("v_mov_b32 v7, 0x01000c0c")
    A("v_cmp_eq_u32 vcc, 1, v5")
    A("v_mov_b32 v8, 0x0c0c0302")
    A("v_mov_b32 v9, 0x03020c0c")
    A("v_cndmask_b32 v6, v6, v7, vcc")
    A("v_cndmask_b32 v8, v8, v9, vcc")
    A("v_mov_b32 v7, 0x0c0c0c0c")
    for k in range(4):
        A(f"v_cmp_eq_u32 vcc, {k}, v4")
        A("s_nop 1")
        A(f"v_cndmask_b32 v{12+k}, v7, v6, vcc")
        A(f"v_cndmask_b32 v{16+k}, v7, v8, vcc")
    A("v_and_b32 v10, 15, v1")
    A("v_lshrrev_b32 v11, 4, v1")
    A("s_lshr_b32 s50, s2, 4")
    A("s_and_b32 s51, s2, 15")
    A("s_lshr_b32 s52, s2, 7")
    A("s_and_b32 s53, s50, 7")
    A(f"s_mov_b32 s54, {hex(f2u(CSC))}")
    srd(36, 26, WS_SIZE)
    A("s_cmp_eq_u32 s3, 4")
    A("s_cbranch_scc1 L_helper")

    A("s_sub_u32 s55, s3, 1")
    A("s_cmp_gt_u32 s3, 4")
    A("s_cselect_b32 s47, 1, 0")
    A("s_sub_u32 s55, s55, s47")
    A(f"s_cmp_ge_u32 s55, {0 if cfg.NOWO else 4}")
    A("s_cbranch_scc1 L_c_nowo")
    srd(28, 12, 4096 * 896)
    A("s_lshl_b32 s46, s53, 9"); A("s_lshl_b32 s47, s51, 5"); A("s_add_u32 s46, s46, s47")
    A("s_mul_i32 s46, s46, 896"); A("s_lshl_b32 s47, s55, 8"); A("s_add_u32 s46, s46, s47")
    A(f"v_mul_u32_u24 v23, 896, v11")
    A("v_lshl_add_u32 v23, v10, 4, v23")
    A("s_cmp_eq_u32 s55, 3")
    A("s_cselect_b32 s47, 8, 16")
    A("v_cmp_le_u32 vcc, s47, v10")
    A("v_bfrev_b32 v24, 2")
    A("s_nop 0")
    A("v_cndmask_b32 v23, v23, v24, vcc")
    for rr in range(4):
        for hi in range(2):
            t = 4 * hi + rr
            A(f"buffer_load_dwordx4 v[{156+4*t}:{159+4*t}], v23, s[28:31], s46 offen offset:{hi*4*896} nt")
        if rr < 3:
            A(f"s_add_u32 s46, s46, {8*896}")
    A("L_c_nowo:")
    A("v_xor_b32 v23, v10, v11")
    A("v_lshlrev_b32 v24, 9, v10")
    for a in range(4):
        A(f"v_xor_b32 v25, {4*a}, v23")
        A(f"v_lshl_add_u32 v{2+a}, v25, 4, v24")
    A("v_lshlrev_b32 v24, 11, v11")
    A("v_lshl_add_u32 v6, v10, 4, v24")
    A(f"v_mov_b32 v188, {LD['FLAGS']}")
    A(f"v_mov_b32 v20, {hex(f2u(-3.0e38))}")
    A("v_mul_f32 v21, s54, v20")
    A("v_mov_b32 v22, 0")
    for k in range(8):
        A(f"v_mov_b32 v{132+k}, 0")
    A("v_mov_b32 v189, v10"); A("v_mov_b32 v190, v11")
    A("v_lshrrev_b32 v23, 3, v10"); A("v_lshlrev_b32 v23, 6, v23"); A("v_lshl_add_u32 v23, v11, 4, v23")
    A(f"v_add_u32 v202, {LD['SC']}, v23")
    A(f"s_cmp_lt_u32 s50, {NFB}"); A("s_cselect_b32 s78, 8, 0")
    A("s_cmp_eq_u32 s51, s50"); A("s_cselect_b32 s78, s78, 0"); A(f"s_sub_u32 s78, {S // 2}, s78")
    A("s_lshl_b32 s79, s78, 1")
    A("s_mov_b32 s40, s55")
    A("s_lshl_b32 s41, s55, 14")
    A("s_mov_b32 s44, 0")
    A("s_waitcnt lgkmcnt(0)")
    A("s_add_u32 s58, s58, 1")
    A("s_and_b32 s46, s58, s59")
    A(f"v_mov_b32 v{TG}, s46")
    def c_wait(lbl, can_end):
        A(f"{lbl}:")
        A("ds_read_b32 v23, v188")
        A("s_lshr_b32 s47, s41, 12")
        A("v_add_u32 v191, s47, v188")
        A("s_add_u32 s42, s40, 1")
        A("v_mov_b32 v192, s42")
        A("s_waitcnt lgkmcnt(0)")
        A("v_readfirstlane_b32 s43, v23")
        A("s_and_b32 s46, s43, 0xffff")
        A("s_cmp_gt_u32 s46, s40")
        A(f"s_cbranch_scc1 {lbl}_go")
        if can_end:
            A("s_lshr_b32 s46, s43, 16")
            A("s_sub_u32 s46, s46, 1")
            A("s_cmp_lt_u32 s46, s40")
            A("s_cbranch_scc1 L_c_tail")
        spin_tail(lbl, sleep=cfg.PSLEEP)
        A(f"{lbl}_go:")
    def c_adv():
        A(f"s_add_u32 s40, s40, {C}")
        A(f"s_add_u32 s41, s41, {C*16384}")
        A(f"s_sub_u32 s47, s41, {R*16384}")
        A(f"s_cmp_ge_u32 s41, {R*16384}")
        A("s_cselect_b32 s41, s47, s41")
    def k_reads(base, off):
        for t in range(8):
            A(f"ds_read_b128 v[{base+4*t}:{base+3+4*t}], v{7 + t % 4} offset:{off + (t//4)*256}")
    def v_reads(base, off, rs=range(4)):
        for r in rs:
            for h in range(2):
                A(f"ds_read_b128 v[{base+8*r+4*h}:{base+3+8*r+4*h}], v11 offset:{off + r*512 + h*256}")
    def resc(lbl):
        A(f"{lbl}:")
        A("v_mov_b32 v31, v30")
        A("s_nop 1")
        A("v_permlane16_swap_b32 v30, v31")
        A("v_max_f32 v30, v30, v31")
        A("v_mov_b32 v31, v30")
        A("s_nop 1")
        A("v_permlane32_swap_b32 v30, v31")
        A("v_max3_f32 v20, v30, v31, v20")
        A("v_mul_f32 v30, s54, v20")
        A("v_sub_f32 v31, v21, v30")
        A("v_exp_f32 v31, v31")
        A("v_mov_b32 v21, v30")
        for k in range(8):
            A(f"v_mul_f32 v{132+k}, v{132+k}, v31")
        A("v_mul_f32 v22, v22, v31")
        A(f"s_branch {lbl}_ret")
    def pv(tiles):
        steps = [(pb + r // 2, 12 + 4 * (r % 2), vb + 8 * r) for (pb, vb) in tiles for r in range(4)]
        def mm(n):
            bb = 140 + 4 * (n % 4); vb = steps[n][2]
            for h in range(2):
                A(f"v_mfma_f32_16x16x32_bf16 v[{132+4*h}:{135+4*h}], v[{vb+4*h}:{vb+3+4*h}], v[{bb}:{bb+3}], v[{132+4*h}:{135+4*h}]")
        for n, (src, sel, vb) in enumerate(steps):
            for k in range(4):
                A(f"v_perm_b32 v{140+4*(n%4)+k}, v{src}, v{src}, v{sel+k}")
            if n >= 1:
                mm(n - 1)
        mm(len(steps) - 1)
    c_wait("L_ck", False)
    for a in range(4):
        A(f"v_add_u32 v{7+a}, s41, v{2+a}")
    k_reads(64, 0); k_reads(96, 8192)
    A("s_lshl_b32 s47, s40, 7")
    A("v_add_u32 v203, s47, v202")
    A("s_waitcnt lgkmcnt(0)")
    A("ds_write_b32 v191, v192 offset:64")
    A("s_cmp_eq_u32 s44, 0")
    A("s_cbranch_scc1 L_c_first")
    A("L_ck_comp:")
    for t in range(8):
        A(f"v_mfma_f32_16x16x32_bf16 v[128:131], v[{64+4*t}:{67+4*t}], v[{32+4*t}:{35+4*t}], {'0' if t == 0 else 'v[128:131]'}")
        A(f"v_mfma_f32_16x16x32_bf16 v[140:143], v[{96+4*t}:{99+4*t}], v[{32+4*t}:{35+4*t}], {'0' if t == 0 else 'v[140:143]'}")
    c_adv()
    A("s_nop 2")
    A("v_cvt_pk_bf16_f32 v24, v128, v129")
    A("v_cvt_pk_bf16_f32 v25, v130, v131")
    A("v_cvt_pk_bf16_f32 v26, v140, v141")
    A("v_cvt_pk_bf16_f32 v27, v142, v143")
    A("s_mov_b32 exec_lo, 0x01010101"); A("s_mov_b32 exec_hi, 0x01010101")
    A("ds_write_b128 v203, v[24:27]")
    A("s_mov_b64 exec, -1")
    A("s_cmp_lt_u32 s40, s78")
    A("s_cbranch_scc1 L_ck")
    c_wait("L_cv", False)
    A("s_sub_u32 s47, s40, s78"); A("s_lshl_b32 s47, s47, 7")
    A("v_add_u32 v203, s47, v202")
    A("v_add_u32 v11, s41, v6")
    A("ds_read_b128 v[24:27], v203")
    v_reads(64, 0); v_reads(96, 8192, range(3))
    A("s_waitcnt lgkmcnt(14)")
    v_reads(96, 8192, [3])
    for k in range(4):
        A(f"v_lshlrev_b32 v{194+2*k}, 16, v{24+k}")
        A(f"v_and_b32 v{195+2*k}, 0xffff0000, v{24+k}")
    A("v_max3_f32 v30, v194, v195, v196")
    A("v_max3_f32 v31, v197, v198, v199")
    A("v_max3_f32 v30, v30, v200, v201")
    A("v_max_f32 v30, v30, v31")
    A("v_cmp_gt_f32 vcc, v30, v20")
    A("s_cbranch_vccnz L_cv_resc")
    A("L_cv_resc_ret:")
    for k in range(8):
        A(f"v_fma_f32 v{194+k}, v{194+k}, s54, -v21")
    for k in range(8):
        A(f"v_exp_f32 v{194+k}, v{194+k}")
    A("s_nop 0")
    for k in range(4):
        A(f"v_cvt_pk_bf16_f32 v{24+k}, v{194+2*k}, v{195+2*k}")
    for k in range(4):
        A(f"v_add_f32 v{194+2*k}, v{194+2*k}, v{195+2*k}")
    A("v_add_f32 v194, v194, v196"); A("v_add_f32 v198, v198, v200")
    A("v_add_f32 v22, v22, v194"); A("v_add_f32 v22, v22, v198")
    A("s_waitcnt lgkmcnt(0)")
    A("ds_write_b32 v191, v192 offset:64")
    pv([(24, 64), (26, 96)])
    c_adv()
    A("s_cmp_lt_u32 s40, s79")
    A("s_cbranch_scc1 L_cv")
    c_wait("L_cc", True)
    for a in range(4):
        A(f"v_add_u32 v{7+a}, s41, v{2+a}")
    A("v_add_u32 v11, s41, v6")
    k_reads(64, 0); v_reads(96, 8192)
    A("s_waitcnt lgkmcnt(8)")
    for t in range(8):
        A(f"v_mfma_f32_16x16x32_bf16 v[128:131], v[{64+4*t}:{67+4*t}], v[{32+4*t}:{35+4*t}], {'0' if t == 0 else 'v[128:131]'}")
    A("s_waitcnt lgkmcnt(0)")
    A("ds_write_b32 v191, v192 offset:64")
    c_adv()
    A("s_nop 0")
    A("v_cvt_pk_bf16_f32 v24, v128, v129")
    A("v_cvt_pk_bf16_f32 v25, v130, v131")
    A("v_lshlrev_b32 v26, 16, v24")
    A("v_and_b32 v27, 0xffff0000, v24")
    A("v_lshlrev_b32 v28, 16, v25")
    A("v_and_b32 v29, 0xffff0000, v25")
    A("v_max3_f32 v30, v26, v27, v28")
    A("v_max_f32 v30, v30, v29")
    A("v_cmp_gt_f32 vcc, v30, v20")
    A("s_cbranch_vccnz L_cc_resc")
    A("L_cc_resc_ret:")
    for k in range(4):
        A(f"v_fma_f32 v{26+k}, v{26+k}, s54, -v21")
    for k in range(4):
        A(f"v_exp_f32 v{26+k}, v{26+k}")
    A("s_nop 0")
    A("v_cvt_pk_bf16_f32 v24, v26, v27")
    A("v_cvt_pk_bf16_f32 v25, v28, v29")
    A("v_add_f32 v30, v26, v27")
    A("v_add_f32 v31, v28, v29")
    A("v_add_f32 v22, v22, v30")
    A("v_add_f32 v22, v22, v31")
    pv([(24, 96)])
    A("s_lshr_b32 s46, s43, 16")
    A("s_sub_u32 s46, s46, 1")
    A("s_cmp_ge_u32 s46, s40")
    A("s_cbranch_scc1 L_cc")
    A("L_c_tail:")
    stamp(3)
    A(f"s_add_u32 s47, s41, {(R - C)*16384}")
    A(f"s_sub_u32 s48, s47, {R*16384}")
    A(f"s_cmp_ge_u32 s47, {R*16384}")
    A("s_cselect_b32 s47, s48, s47")
    A("v_lshl_add_u32 v25, v1, 4, s47")
    A("v_lshl_add_u32 v26, v1, 3, s47")
    A("v_mov_b32 v28, v21"); A("v_mov_b32 v29, v22")
    A("ds_write_b64 v26, v[28:29] offset:2048")
    A("ds_write_b128 v25, v[132:135]")
    A("ds_write_b128 v25, v[136:139] offset:1024")
    A("s_cmp_lt_u32 s55, 4")
    A("s_cbranch_scc1 L_p_wave")
    A("s_sub_u32 s56, s55, 4")
    A("s_lshr_b32 s46, s43, 16")
    A("s_sub_u32 s46, s40, s46")
    A("s_lshl_b32 s46, s46, 14")
    A("s_sub_i32 s46, s41, s46")
    for j in range(6):
        A("s_sub_i32 s46, s46, 16384")
        A(f"s_add_i32 s47, s46, {R*16384}")
        A("s_cmp_lt_i32 s46, 0")
        A("s_cselect_b32 s46, s47, s46")
        A(f"v_lshl_add_u32 v{70+j}, v1, 3, s46")
    A("s_lshl_b32 s47, s56, 10")
    A("v_lshl_add_u32 v27, v1, 3, s47")
    for j in range(6):
        A(f"v_add_u32 v{76+j}, v{70+j}, v27")
    A("v_lshrrev_b32 v26, 3, v189"); A("v_lshlrev_b32 v26, 14, v26"); A("v_lshl_add_u32 v26, v190, 11, v26")
    A("v_and_b32 v27, 7, v189"); A("v_lshl_add_u32 v26, v27, 4, v26")
    A("s_lshl_b32 s46, s50, 15"); A("s_lshl_b32 s47, s56, 13"); A("s_add_u32 s46, s46, s47")
    A("s_lshl_b32 s47, s51, 7"); A("s_add_u32 s46, s46, s47"); A(f"s_add_u32 s46, s46, {WS_HA}")
    A("s_waitcnt lgkmcnt(0)")
    A("s_barrier")
    for j in range(6):
        A(f"ds_read_b64 v[{84+2*j}:{85+2*j}], v{70+j} offset:2048")
    for j in range(6):
        A(f"ds_read_b128 v[{96+4*j}:{99+4*j}], v{76+j}")
    A("s_waitcnt lgkmcnt(6)")
    A("v_max3_f32 v28, v84, v86, v88")
    A("v_max3_f32 v28, v28, v90, v92")
    A("v_max_f32 v28, v28, v94")
    for j in range(6):
        A(f"v_sub_f32 v{84+2*j}, v{84+2*j}, v28")
    for j in range(6):
        A(f"v_exp_f32 v{84+2*j}, v{84+2*j}")
    A("s_waitcnt lgkmcnt(0)")
    for k in range(4):
        A(f"v_mul_f32 v{120+k}, v84, v{96+k}")
    for j in range(1, 6):
        for k in range(4):
            A(f"v_fmac_f32 v{120+k}, v{84+2*j}, v{96+4*j+k}")
    for k in range(4):
        tag(120 + k)
    A("buffer_store_dwordx4 v[120:123], v26, s[36:39], s46 offen sc1")
    A("s_cmp_eq_u32 s56, 0")
    A("s_cbranch_scc1 L_x0")
    A("v_mul_f32 v29, v84, v85")
    for j in range(1, 6):
        A(f"v_fmac_f32 v29, v{84+2*j}, v{85+2*j}")
    A("v_lshlrev_b32 v27, 8, v189")
    A("v_mov_b32 v24, v29")
    A("s_lshl_b32 s48, s50, 12"); A("s_lshl_b32 s47, s51, 7")
    A("v_permlane16_swap_b32 v29, v24")
    A("v_add_f32 v29, v29, v24")
    A("v_mov_b32 v24, v29")
    A("s_add_u32 s48, s48, s47"); A(f"s_add_u32 s48, s48, {WS_HM}")
    A("v_permlane32_swap_b32 v29, v24")
    A("v_add_f32 v29, v29, v24")
    A("v_mov_b32 v30, s58")
    A("v_mov_b32 v31, s58")
    A("s_mov_b64 exec, 0x101")
    A("buffer_store_dwordx4 v[28:31], v27, s[36:39], s48 offen sc1")
    A("s_mov_b64 exec, -1")
    stamp(4)
    A("s_endpgm")
    A("L_x0:")
    stamp(4)
    A("v_lshlrev_b32 v24, 7, v189")
    A("v_lshl_add_u32 v23, v190, 4, v24")
    A("s_lshl_b32 s46, s2, 11"); A(f"s_add_u32 s46, s46, {WS_HA}")
    A("s_lshl_b32 s48, s50, 12"); A("s_lshr_b32 s47, s51, 3"); A("s_lshl_b32 s47, s47, 11"); A("s_add_u32 s48, s48, s47"); A(f"s_add_u32 s48, s48, {WS_HM}")
    A("v_lshl_add_u32 v27, v190, 4, v188")
    if cfg.BAR3:
        A("s_waitcnt vmcnt(0)")
    stamp(5)
    A("L_p_poll:")
    A("buffer_load_dwordx4 v[64:67], v23, s[36:39], s46 offen sc1")
    A("buffer_load_dwordx4 v[68:71], v23, s[36:39], s46 offen offset:64 sc1")
    A("buffer_load_dwordx4 v[72:75], v24, s[36:39], s48 offen sc1")
    A("s_waitcnt vmcnt(0)")
    tagcheck(range(64, 72), 25, full=(74, 75))
    A("s_cbranch_vccz L_p_go")
    remask()
    spin_tail("L_p_poll", sleep=cfg.HSLEEP)
    A("L_p_go:")
    A("s_mov_b64 exec, -1")
    stamp(6)
    A("v_mov_b32 v26, v72")
    for sh in (8, 4, 2, 1):
        A("s_nop 1")
        A(f"v_max_f32_dpp v26, v26, v26 row_ror:{sh} row_mask:0xf bank_mask:0xf")
    A("v_sub_f32 v26, v72, v26")
    A("v_exp_f32 v26, v26")
    A("s_nop 0")
    A("v_mul_f32 v72, v73, v26")
    for k in range(8):
        A(f"v_mul_f32 v{64+k}, v{64+k}, v26")
    for sh in (8, 4, 2, 1):
        for k in (8, 0, 1, 2, 3, 4, 5, 6, 7):
            A(f"v_add_f32_dpp v{64+k}, v{64+k}, v{64+k} row_ror:{sh} row_mask:0xf bank_mask:0xf")
            if sh == 1 and k == 2:
                A("v_rcp_f32 v72, v72")
    for k in range(8):
        A(f"v_mul_f32 v{64+k}, v{64+k}, v72")
    for k in range(4):
        A(f"v_cvt_pk_bf16_f32 v{76+k}, v{64+2*k}, v{65+2*k}")
    A("s_mov_b32 exec_lo, 0x00010001"); A("s_mov_b32 exec_hi, 0x00010001")
    A("ds_write_b128 v27, v[76:79] offset:160")
    A("s_waitcnt lgkmcnt(0)")
    A("s_barrier")
    A("s_endpgm")
    A("L_p_wave:")
    A("v_lshl_add_u32 v27, v190, 4, v188")
    A("v_lshlrev_b32 v23, 7, v190")
    A("v_lshl_add_u32 v23, v189, 4, v23")
    A("s_lshl_b32 s46, s2, 11"); A("s_lshl_b32 s47, s55, 9"); A("s_add_u32 s46, s46, s47"); A(f"s_add_u32 s46, s46, {WS_HB}")
    A("s_cmp_eq_u32 s55, 3")
    A("s_cselect_b32 s47, 0, 0x00ff00ff")
    A("s_waitcnt vmcnt(0) lgkmcnt(0)")
    A("s_barrier")
    A("s_barrier")
    A("ds_read_b128 v[76:79], v27 offset:160")
    stamp(5)
    A("s_waitcnt lgkmcnt(0)")
    for t in range(9):
        if t < 8:
            src = 76 + t // 2; sel = 12 + 4 * (t % 2)
            for k in range(4):
                A(f"v_perm_b32 v{96+4*t+k}, v{src}, v{src}, v{sel+k}")
        else:
            A("s_nop 0")
        if t >= 1:
            u = t - 1
            A(f"v_mfma_f32_16x16x32_bf16 v[128:131], v[{156+4*u}:{159+4*u}], v[{96+4*u}:{99+4*u}], {'0' if u == 0 else 'v[128:131]'}")
    A("s_mov_b32 exec_lo, 0x00ff00ff"); A("s_mov_b32 exec_hi, s47")
    A("s_nop 5")
    for k in range(4):
        tag(128 + k)
    A("buffer_store_dwordx4 v[128:131], v23, s[36:39], s46 offen sc1")
    A("s_mov_b64 exec, -1")
    stamp(6)
    A("s_waitcnt vmcnt(0)")
    A("s_endpgm")
    resc("L_cv_resc")
    resc("L_cc_resc")
    A("L_c_first:")
    A("L_c_qwait:")
    A("ds_read_b32 v23, v188 offset:4")
    A("s_waitcnt lgkmcnt(0)")
    A("v_readfirstlane_b32 s46, v23")
    A("s_cmp_lg_u32 s46, 0")
    A("s_cbranch_scc1 L_c_qgo")
    spin_tail("L_c_qwait")
    A("L_c_qgo:")
    A("v_lshrrev_b32 v23, 3, v189")
    A("v_lshlrev_b32 v23, 9, v23")
    A("v_lshl_add_u32 v23, v190, 4, v23")
    A(f"v_add_u32 v23, {LD['Q']}, v23")
    for t in range(8):
        A(f"ds_read_b128 v[{32+4*t}:{35+4*t}], v23 offset:{64*t}")
    A("s_mov_b32 s44, 1")
    A("s_waitcnt lgkmcnt(0)")
    stamp(2)
    A("s_branch L_ck_comp")

    A("L_helper:")
    srd(28, 4, 1792)
    srd(32, 10, 16 if cfg.NOWQ else 448 * 8192)
    A("v_lshrrev_b32 v20, 5, v1")
    A("v_and_b32 v21, 31, v1")
    A("v_mul_u32_u24 v22, 896, v20")
    A("v_lshl_add_u32 v22, v21, 2, v22")
    for m in range(7):
        A(f"buffer_load_dword v{24+m}, v22, s[28:31], 0 offen offset:{128*m}")
    A("s_and_b32 s56, s51, 3"); A("s_lshr_b32 s57, s51, 2")
    A(f"v_mul_u32_u24 v23, {28*8192}, v11")
    A("v_lshl_add_u32 v23, v10, 4, v23")
    A(f"s_mul_i32 s46, s57, {112*8192}"); A("s_lshl_b32 s47, s53, 10"); A("s_add_u32 s46, s46, s47")
    A("s_lshl_b32 s47, s56, 8"); A("s_add_u32 s46, s46, s47")
    for t in range(28):
        A(f"buffer_load_dwordx4 v[{64+4*t}:{67+4*t}], v23, s[32:35], s46 offen nt")
        if t < 27:
            A("s_add_u32 s46, s46, 8192")
    A(f"s_mul_i32 s46, s50, {PCS}"); A(f"s_add_u32 s46, s46, {WS_PC}")
    A("s_cmp_eq_u32 s51, 0"); A(f"s_cselect_b32 s46, s46, {WS_SIZE}")
    A("v_mov_b32 v186, 0")
    A("s_mov_b64 exec, 1")
    A("buffer_store_dword v186, v186, s[36:39], s46 offen sc1")
    A("s_mov_b64 exec, -1")
    A("s_waitcnt lgkmcnt(0)")
    A("s_add_u32 s58, s58, 1")
    A("s_and_b32 s46, s58, s59")
    A(f"v_mov_b32 v{TG}, s46")
    NAFTER = 28 + 1
    stamp(0)
    ND = 1 if cfg.DIAG else 0
    A(f"s_waitcnt vmcnt({NAFTER + ND})")
    for m in range(7):
        A(f"v_lshlrev_b32 v{32+2*m}, 16, v{24+m}")
        A(f"v_and_b32 v{33+2*m}, 0xffff0000, v{24+m}")
    def red32(v, t):
        for sh in (8, 4, 2, 1):
            A("s_nop 1")
            A(f"v_add_f32_dpp v{v}, v{v}, v{v} row_ror:{sh} row_mask:0xf bank_mask:0xf")
        A(f"v_mov_b32 v{t}, v{v}")
        A("s_nop 1")
        A(f"v_permlane16_swap_b32 v{v}, v{t}")
        A(f"v_add_f32 v{v}, v{v}, v{t}")
    A("v_add_f32 v46, v32, v33")
    for k in range(2, 14):
        A(f"v_add_f32 v46, v46, v{32+k}")
    red32(46, 47)
    A(f"v_mul_f32 v46, {hex(f2u(1.0/448))}, v46")
    A("v_sub_f32 v48, v32, v46")
    A("v_mul_f32 v47, v48, v48")
    for k in range(1, 14):
        A(f"v_sub_f32 v48, v{32+k}, v46")
        A("v_fmac_f32 v47, v48, v48")
    red32(47, 48)
    A(f"v_mul_f32 v47, {hex(f2u(1.0/448))}, v47")
    A("v_cvt_pk_bf16_f32 v48, v46, v47")
    A("v_lshlrev_b32 v46, 16, v48")
    A("v_and_b32 v47, 0xffff0000, v48")
    A(f"v_add_f32 v47, {hex(f2u(1e-5))}, v47")
    A("v_cvt_pk_bf16_f32 v47, v47, v47")
    A("v_lshlrev_b32 v47, 16, v47")
    A("v_sqrt_f32 v47, v47")
    A("s_nop 0")
    A("v_cvt_pk_bf16_f32 v47, v47, v47")
    A("v_lshlrev_b32 v47, 16, v47")
    A("v_rcp_f32 v47, v47")
    for k in range(14):
        A(f"v_sub_f32 v{32+k}, v{32+k}, v46")
    for m in range(7):
        A(f"v_cvt_pk_bf16_f32 v{24+m}, v{32+2*m}, v{33+2*m}")
    for m in range(7):
        A(f"v_lshlrev_b32 v{32+2*m}, 16, v{24+m}")
        A(f"v_and_b32 v{33+2*m}, 0xffff0000, v{24+m}")
    for k in range(14):
        A(f"v_mul_f32 v{32+k}, v{32+k}, v47")
    for m in range(7):
        A(f"v_cvt_pk_bf16_f32 v{24+m}, v{32+2*m}, v{33+2*m}")
    A(f"v_add_u32 v22, {LD['XN']}, v22")
    for m in range(7):
        A(f"ds_write_b32 v22, v{24+m} offset:{128*m}")
    A("s_mul_i32 s46, s52, 896"); A("s_mul_i32 s47, s57, 224"); A("s_add_u32 s46, s46, s47"); A(f"s_add_u32 s46, s46, {LD['XN']}")
    A("v_mul_u32_u24 v22, 56, v11")
    A("v_add_u32 v22, s46, v22")
    A("s_waitcnt lgkmcnt(0)")
    for m in range(7):
        A(f"ds_read_b64 v[{32+2*m}:{33+2*m}], v22 offset:{8*m}")
    A("s_waitcnt lgkmcnt(0)")
    for t in range(28):
        src = 32 + t // 2; sel = 12 + 4 * (t % 2); bb = 48 + 4 * (t % 2)
        for k in range(4):
            A(f"v_perm_b32 v{bb+k}, v{src}, v{src}, v{sel+k}")
        A(f"s_waitcnt vmcnt({27 - t + 1 + ND})")
        A("s_nop 0")
        A(f"v_mfma_f32_16x16x32_bf16 v[56:59], v[{64+4*t}:{67+4*t}], v[{bb}:{bb+3}], {'0' if t == 0 else 'v[56:59]'}")
    A("v_lshlrev_b32 v23, 7, v11")
    A("v_lshl_add_u32 v23, v10, 4, v23")
    A("s_lshl_b32 s46, s50, 13"); A("s_lshl_b32 s47, s56, 11"); A("s_add_u32 s46, s46, s47")
    A("s_lshl_b32 s47, s57, 9"); A("s_add_u32 s46, s46, s47"); A(f"s_add_u32 s46, s46, {WS_QP}")
    A("s_waitcnt vmcnt(0)")
    for k in range(4):
        tag(56 + k)
    A("s_mov_b32 exec_lo, 0x00ff00ff"); A("s_mov_b32 exec_hi, 0x00ff00ff")
    A("buffer_store_dwordx4 v[56:59], v23, s[36:39], s46 offen sc1")
    A("s_mov_b64 exec, -1")
    stamp(1)
    A("v_lshlrev_b32 v25, 7, v1")
    A("s_lshl_b32 s46, s50, 13"); A(f"s_add_u32 s46, s46, {WS_QP}")
    A("s_add_u32 s47, s46, 4096")
    A("v_lshlrev_b32 v22, 11, v20")
    A("v_lshl_add_u32 v22, v21, 4, v22")
    A("L_h_qpoll:")
    A("buffer_load_dword v26, v25, s[36:39], s46 offen sc1")
    A("s_waitcnt vmcnt(0)")
    tagcheck([26], 27)
    A("s_cbranch_vccz L_h_qgo")
    A("L_h_qretry:")
    spin_tail("L_h_qpoll", sleep=cfg.QSLEEP)
    A("L_h_qgo:")
    for z in range(2):
        for rs in range(4):
            A(f"buffer_load_dwordx4 v[{64+16*z+4*rs}:{67+16*z+4*rs}], v22, s[36:39], s{46+z} offen offset:{rs*512} sc1")
    A("s_waitcnt vmcnt(0)")
    tagcheck(range(64, 96), 27)
    A("s_cbranch_vccnz L_h_qretry")
    A("v_lshrrev_b32 v23, 3, v21")
    A("v_lshlrev_b32 v23, 6, v23")
    A("v_lshl_add_u32 v23, v20, 8, v23")
    A("v_lshl_add_u32 v23, v3, 1, v23")
    A(f"v_add_u32 v23, {LD['Q']}, v23")
    for z in range(2):
        b0 = 64 + 16 * z
        for k in range(4):
            A(f"v_add_f32 v{b0+k}, v{b0+k}, v{b0+4+k}")
            A(f"v_add_f32 v{b0+8+k}, v{b0+8+k}, v{b0+12+k}")
        for k in range(4):
            A(f"v_add_f32 v{b0+k}, v{b0+k}, v{b0+8+k}")
        A(f"v_cvt_pk_bf16_f32 v{b0}, v{b0}, v{b0+1}")
        A(f"v_cvt_pk_bf16_f32 v{b0+1}, v{b0+2}, v{b0+3}")
        A(f"ds_write_b16 v23, v{b0} offset:{z*512}")
        A(f"ds_write_b16_d16_hi v23, v{b0} offset:{z*512+16}")
        A(f"ds_write_b16 v23, v{b0+1} offset:{z*512+32}")
        A(f"ds_write_b16_d16_hi v23, v{b0+1} offset:{z*512+48}")
    A(f"v_mov_b32 v24, {LD['FLAGS']}"); A("v_mov_b32 v25, 1")
    A("s_waitcnt lgkmcnt(0)")
    A("ds_write_b32 v24, v25 offset:4")
    stamp(2)
    A("s_mov_b32 s56, s50")
    A("s_cmp_lg_u32 s51, s50")
    A("s_cbranch_scc1 L_h_noffn")
    FB = cfg.FB; NFB = 1792 // FB; RS = FB // 4
    if NFB < 16:
        A(f"s_cmp_ge_u32 s50, {NFB}")
        A("s_cbranch_scc1 L_h_noffn")
    srd(28, 16, 16 if cfg.NOFFN in (1, 3) else 448 * 3584)
    srd(32, 18, 16 if cfg.NOFFN in (1, 3) else 448 * 3584)
    A(f"v_mul_u32_u24 v23, {112*3584}, v11")
    A("v_lshl_add_u32 v23, v10, 4, v23")
    A(f"v_cmp_le_u32 vcc, {FB // 8}, v10")
    A("v_bfrev_b32 v27, 2")
    A(f"s_mul_i32 s46, s56, {FB * 2}")
    A("v_cndmask_b32 v23, v23, v27, vcc")
    A("v_lshrrev_b32 v22, 3, v10")
    A("v_mul_u32_u24 v22, 896, v22")
    A("v_mul_u32_u24 v24, 224, v11")
    A(f"v_add3_u32 v22, v22, v24, 0")
    A(f"v_add_u32 v22, {LD['XN']}, v22")
    for k in range(8):
        A(f"v_mov_b32 v{56+k}, 0")
    def ffn_loads(t):
        A(f"buffer_load_dwordx4 v[{64+8*t}:{67+8*t}], v23, s[28:31], s46 offen nt")
        A(f"buffer_load_dwordx4 v[{68+8*t}:{71+8*t}], v23, s[32:35], s46 offen nt")
        A("s_add_u32 s46, s46, 3584")
    A("s_waitcnt vmcnt(0)")
    for t in range(8):
        ffn_loads(t)
    A("s_mov_b32 s57, 13")
    def ffn_iter(reissue):
        A("ds_read_b128 v[32:35], v22")
        A("v_add_u32 v22, 16, v22")
        A("s_waitcnt lgkmcnt(0)")
        for t in range(8):
            src = 32 + t // 2; sel = 12 + 4 * (t % 2); bb = 48 + 4 * (t % 2)
            for k in range(4):
                A(f"v_perm_b32 v{bb+k}, v{src}, v{src}, v{sel+k}")
            A(f"s_waitcnt vmcnt({14 if reissue else 14 - 2*t})")
            A("s_nop 0")
            A(f"v_mfma_f32_16x16x32_bf16 v[56:59], v[{64+8*t}:{67+8*t}], v[{bb}:{bb+3}], v[56:59]")
            A(f"v_mfma_f32_16x16x32_bf16 v[60:63], v[{68+8*t}:{71+8*t}], v[{bb}:{bb+3}], v[60:63]")
            if reissue:
                ffn_loads(t)
    A("L_h_f1:")
    ffn_iter(True)
    A("s_sub_u32 s57, s57, 1"); A("s_cmp_lg_u32 s57, 0"); A("s_cbranch_scc1 L_h_f1")
    ffn_iter(False)
    srd(28, 20, 16 if cfg.NOFFN in (1, 2) else 1792 * 896)
    A(f"v_mul_u32_u24 v23, {RS*896}, v11")
    A("v_lshl_add_u32 v23, v10, 4, v23")
    A("v_cmp_le_u32 vcc, 8, v10")
    A(f"s_mul_i32 s46, s56, {FB*896}")
    A("s_nop 0")
    A("v_cndmask_b32 v26, v23, v27, vcc")
    def dn_loads(t):
        for nb in range(4):
            A(f"buffer_load_dwordx4 v[{64+16*t+4*nb}:{67+16*t+4*nb}], v{26 if nb == 3 else 23}, s[28:31], s46 offen offset:{nb*256} nt")
        A("s_add_u32 s46, s46, 896")
    A("s_nop 4")
    for t in range(4):
        dn_loads(t)
    A("v_cvt_pk_bf16_f32 v32, v56, v57"); A("v_cvt_pk_bf16_f32 v33, v58, v59")
    A("v_cvt_pk_bf16_f32 v34, v60, v61"); A("v_cvt_pk_bf16_f32 v35, v62, v63")
    for k in range(4):
        A(f"v_lshlrev_b32 v{36+2*k}, 16, v{32+k}")
        A(f"v_and_b32 v{37+2*k}, 0xffff0000, v{32+k}")
    K0 = -2.0 * math.sqrt(2.0 / math.pi) * math.log2(math.e)
    A(f"s_mov_b32 s71, {hex(f2u(0.044715))}")
    for k in range(4):
        A(f"v_mul_f32 v{44+k}, v{36+k}, v{36+k}")
        A(f"v_mul_f32 v{44+k}, v{44+k}, v{36+k}")
        A(f"v_fma_f32 v{44+k}, v{44+k}, s71, v{36+k}")
        A(f"v_mul_f32 v{44+k}, {hex(f2u(K0))}, v{44+k}")
    for k in range(4):
        A(f"v_exp_f32 v{44+k}, v{44+k}")
    A("s_nop 0")
    for k in range(4):
        A(f"v_add_f32 v{44+k}, 1.0, v{44+k}")
    for k in range(4):
        A(f"v_rcp_f32 v{44+k}, v{44+k}")
    A("s_nop 0")
    for k in range(4):
        A(f"v_mul_f32 v{44+k}, v{44+k}, v{36+k}")
    A("v_cvt_pk_bf16_f32 v32, v44, v45"); A("v_cvt_pk_bf16_f32 v33, v46, v47")
    for k in range(2):
        A(f"v_lshlrev_b32 v{44+2*k}, 16, v{32+k}")
        A(f"v_and_b32 v{45+2*k}, 0xffff0000, v{32+k}")
    for k in range(4):
        A(f"v_mul_f32 v{44+k}, v{44+k}, v{40+k}")
    A("v_cvt_pk_bf16_f32 v32, v44, v45"); A("v_cvt_pk_bf16_f32 v33, v46, v47")
    A("v_lshrrev_b32 v22, 3, v10")
    A("v_lshlrev_b32 v22, 8, v22")
    A(f"v_add_u32 v22, {LD['H']}, v22")
    A("v_lshl_add_u32 v24, v11, 6, v22")
    A("v_lshl_add_u32 v24, v3, 1, v24")
    A(f"v_mul_u32_u24 v25, {RS*2}, v11")
    A("v_add_u32 v22, v22, v25")
    A("ds_write_b16 v24, v32")
    A("ds_write_b16_d16_hi v24, v32 offset:16")
    A("ds_write_b16 v24, v33 offset:32")
    A("ds_write_b16_d16_hi v24, v33 offset:48")
    for k in range(16):
        A(f"v_mov_b32 v{128+k}, 0")
    A("s_waitcnt lgkmcnt(0)")
    A(f"s_mov_b32 s57, {RS // 4 - 1}")
    def dn_iter(reissue):
        A("ds_read_b64 v[32:33], v22")
        A("v_add_u32 v22, 8, v22")
        A("s_waitcnt lgkmcnt(0)")
        for t in range(4):
            src = 32 + t // 2; sel = 12 + 4 * (t % 2); bb = 48 + 4 * (t % 2)
            for k in range(4):
                A(f"v_perm_b32 v{bb+k}, v{src}, v{src}, v{sel+k}")
            A(f"s_waitcnt vmcnt({12 if reissue else 12 - 4*t})")
            A("s_nop 0")
            for nb in range(4):
                A(f"v_mfma_f32_16x16x32_bf16 v[{128+4*nb}:{131+4*nb}], v[{64+16*t+4*nb}:{67+16*t+4*nb}], v[{bb}:{bb+3}], v[{128+4*nb}:{131+4*nb}]")
            if reissue:
                dn_loads(t)
    A("L_h_f2:")
    dn_iter(True)
    A("s_sub_u32 s57, s57, 1"); A("s_cmp_lg_u32 s57, 0"); A("s_cbranch_scc1 L_h_f2")
    dn_iter(False)
    A("v_lshrrev_b32 v22, 3, v10")
    A("v_lshlrev_b32 v22, 11, v22")
    A("v_lshl_add_u32 v22, v11, 7, v22")
    A("v_lshl_add_u32 v22, v3, 4, v22")
    A("s_lshl_b32 s46, s56, 12"); A(f"s_add_u32 s46, s46, {WS_HY}")
    A("s_nop 4")
    for k in range(16):
        tag(128 + k)
    for nb in range(4):
        if nb == 3:
            A("s_mov_b32 exec_hi, 0")
        A(f"buffer_store_dwordx4 v[{128+4*nb}:{131+4*nb}], v22, s[36:39], s46 offen offset:{nb*512} sc1")
    A("s_mov_b64 exec, -1")
    stamp(3)
    A("L_h_noffn:")
    A("s_and_b32 s56, s2, 127")
    A("s_cmp_eq_u32 s2, 255")
    A("s_cbranch_scc1 L_h_epoch")
    A("s_cmp_ge_u32 s56, 28")
    A("s_cbranch_scc1 L_end")
    A("v_lshlrev_b32 v22, 12, v10")
    A("v_lshl_add_u32 v22, v11, 4, v22")
    A("s_lshl_b32 s46, s52, 11"); A("s_lshl_b32 s47, s56, 6"); A("s_add_u32 s46, s46, s47"); A(f"s_add_u32 s46, s46, {WS_HY}")
    for k in range(4):
        A(f"v_mov_b32 v{64+k}, 0")
    ym = ((1 << NFB) - 1) * 0x10001
    A(f"s_mov_b32 exec_lo, {hex(ym)}"); A(f"s_mov_b32 exec_hi, {hex(ym)}")
    A("L_h_ypoll:")
    A("buffer_load_dwordx4 v[64:67], v22, s[36:39], s46 offen sc1")
    A("s_waitcnt vmcnt(0)")
    tagcheck(range(64, 68), 27)
    A("s_cbranch_vccz L_h_ygo")
    spin_tail("L_h_ypoll", sleep=64)
    A("L_h_ygo:")
    A("s_mov_b64 exec, -1")
    A("s_lshr_b32 s47, s56, 1"); A("s_lshl_b32 s47, s47, 5"); A("s_and_b32 s48, s56, 1"); A("s_lshl_b32 s48, s48, 2")
    A("s_add_u32 s47, s47, s48"); A("s_mul_i32 s48, s52, 448"); A("s_add_u32 s47, s47, s48"); A("s_lshl_b32 s57, s47, 1")
    srd(28, 4, 1792)
    srd(32, 22, 1792)
    A("v_lshlrev_b32 v23, 1, v11")
    for rr in range(4):
        A(f"buffer_load_ushort v{72+rr}, v23, s[28:31], s57 offen offset:{16*rr}")
    A("s_waitcnt vmcnt(0)")
    for sh in (8, 4, 2, 1):
        for k in range(4):
            A(f"v_add_f32_dpp v{64+k}, v{64+k}, v{64+k} row_ror:{sh} row_mask:0xf bank_mask:0xf")
    A("v_cvt_pk_bf16_f32 v68, v64, v65"); A("v_cvt_pk_bf16_f32 v69, v66, v67")
    for k in range(2):
        A(f"v_lshlrev_b32 v{64+2*k}, 16, v{68+k}")
        A(f"v_and_b32 v{65+2*k}, 0xffff0000, v{68+k}")
    for k in range(4):
        A(f"v_mul_f32 v{68+k}, {hex(f2u(-math.log2(math.e)))}, v{64+k}")
    for k in range(4):
        A(f"v_exp_f32 v{68+k}, v{68+k}")
    A("s_nop 0")
    for k in range(4):
        A(f"v_add_f32 v{68+k}, 1.0, v{68+k}")
    for k in range(4):
        A(f"v_rcp_f32 v{68+k}, v{68+k}")
    A("s_nop 0")
    for k in range(4):
        A(f"v_mul_f32 v{64+k}, v{64+k}, v{68+k}")
    A("v_cvt_pk_bf16_f32 v68, v64, v65"); A("v_cvt_pk_bf16_f32 v69, v66, v67")
    for k in range(2):
        A(f"v_lshlrev_b32 v{76+2*k}, 16, v{68+k}")
        A(f"v_and_b32 v{77+2*k}, 0xffff0000, v{68+k}")
    for k in range(4):
        A(f"v_lshlrev_b32 v{72+k}, 16, v{72+k}")
    A("v_lshlrev_b32 v22, 11, v10")
    A("v_lshl_add_u32 v22, v11, 4, v22")
    A("s_lshl_b32 s46, s52, 18"); A("s_lshl_b32 s47, s56, 6"); A("s_add_u32 s46, s46, s47"); A(f"s_add_u32 s46, s46, {WS_HB}")
    for k in range(1, 8):
        A(f"s_add_u32 s{63+k}, s46, {k*32768}")
    stamp(4)
    A("s_waitcnt vmcnt(0) lgkmcnt(0)")
    A("s_barrier")
    A("s_barrier")
    if cfg.BAR4:
        A("s_barrier")
    A("L_h_bpoll:")
    for k in range(8):
        A(f"buffer_load_dwordx4 v[{96+4*k}:{99+4*k}], v22, s[36:39], s{46 if k == 0 else 63+k} offen sc1")
    A("s_waitcnt vmcnt(0)")
    tagcheck(range(96, 128), 24)
    A("s_cbranch_vccz L_h_bgo")
    remask()
    spin_tail("L_h_bpoll", sleep=cfg.HSLEEP)
    A("L_h_bgo:")
    A("s_mov_b64 exec, -1")
    stamp(5)
    for step in (16, 8, 4):
        for k in range(step):
            A(f"v_add_f32 v{96+k}, v{96+k}, v{96+step+k}")
    A("s_nop 0")
    for sh in (8, 4, 2, 1):
        for k in range(4):
            A(f"v_add_f32_dpp v{96+k}, v{96+k}, v{96+k} row_ror:{sh} row_mask:0xf bank_mask:0xf")
    A("v_cvt_pk_bf16_f32 v100, v96, v97"); A("v_cvt_pk_bf16_f32 v101, v98, v99")
    for k in range(2):
        A(f"v_lshlrev_b32 v{96+2*k}, 16, v{100+k}")
        A(f"v_and_b32 v{97+2*k}, 0xffff0000, v{100+k}")
    for k in range(4):
        A(f"v_mul_f32 v{96+k}, v{96+k}, v{76+k}")
    A("v_cvt_pk_bf16_f32 v100, v96, v97"); A("v_cvt_pk_bf16_f32 v101, v98, v99")
    for k in range(2):
        A(f"v_lshlrev_b32 v{96+2*k}, 16, v{100+k}")
        A(f"v_and_b32 v{97+2*k}, 0xffff0000, v{100+k}")
    for k in range(4):
        A(f"v_add_f32 v{96+k}, v{96+k}, v{72+k}")
    A("v_cvt_pk_bf16_f32 v100, v96, v97"); A("v_cvt_pk_bf16_f32 v101, v98, v99")
    A("s_mov_b32 exec_lo, 0x00010001"); A("s_mov_b32 exec_hi, 0x00010001")
    A("buffer_store_short v100, v23, s[32:35], s57 offen")
    A("buffer_store_short_d16_hi v100, v23, s[32:35], s57 offen offset:16")
    A("buffer_store_short v101, v23, s[32:35], s57 offen offset:32")
    A("buffer_store_short_d16_hi v101, v23, s[32:35], s57 offen offset:48")
    A("s_mov_b64 exec, -1")
    stamp(6)
    if cfg.DBGT:
        A("s_memrealtime s[94:95]")
        srd(28, 24, 256)
        A("s_waitcnt lgkmcnt(0)")
        A("s_not_b32 s92, s92")
        A("v_mov_b32 v24, s92"); A("v_mov_b32 v25, s94"); A("v_mov_b32 v26, 0")
        A("s_mov_b64 exec, 1")
        A("buffer_atomic_umax v24, v26, s[28:31], 0 offen sc1")
        A("buffer_atomic_umax v25, v26, s[28:31], 0 offen offset:4 sc1")
    A("L_end:")
    A("s_endpgm")
    A("L_h_epoch:")
    A("v_lshlrev_b32 v22, 12, v11")
    A("v_lshl_add_u32 v22, v10, 7, v22")
    for k in range(4):
        A(f"s_mov_b32 s{64+k}, {WS_HM + k*4*4096}")
    A("s_waitcnt vmcnt(0) lgkmcnt(0)")
    A("s_barrier")
    A("s_barrier")
    if cfg.BAR4:
        A("s_barrier")
    A("L_h_epoll:")
    for k in range(4):
        A(f"buffer_load_dwordx2 v[{96+2*k}:{97+2*k}], v22, s[36:39], s{64+k} offen offset:8 sc1")
    A("s_waitcnt vmcnt(0)")
    tagcheck([], 24, full=range(96, 104))
    A("s_cbranch_vccz L_h_ego")
    spin_tail("L_h_epoll", sleep=8)
    A("L_h_ego:")
    A("v_mov_b32 v24, s58"); A("v_mov_b32 v25, 0")
    A("s_mov_b64 exec, 1")
    A(f"buffer_store_dword v24, v25, s[36:39], 0 offen offset:{WS_EP}")
    A("s_endpgm")
    nv = 256 if cfg.DIAG else 208
    A('.section .rodata,"a"'); A(".p2align 6"); A(f".amdhsa_kernel {NAME}")
    A.L.append(f"  .amdhsa_next_free_vgpr {nv}"); A.L.append("  .amdhsa_next_free_sgpr 102"); A.L.append(f"  .amdhsa_accum_offset {nv}")
    A.L.append("  .amdhsa_group_segment_fixed_size 0"); A.L.append("  .amdhsa_kernarg_size 96"); A.L.append("  .amdhsa_user_sgpr_count 2")
    A.L.append("  .amdhsa_user_sgpr_kernarg_segment_ptr 1"); A.L.append("  .amdhsa_system_sgpr_workgroup_id_x 1"); A(".end_amdhsa_kernel")
    FL = {0: "sc1", 1: "sc0 sc1", 2: "sc0 sc1 nt", 3: "sc1 nt"}
    for i, line in enumerate(A.L):
        if line.startswith("buffer_load") and line.endswith(" sc1"):
            A.L[i] = line[:-3] + FL[cfg.PF]
        if line.startswith("buffer_load") and line.endswith(" nt"):
            A.L[i] = line[:-2] + POL[cfg.WP]
        if line.startswith("buffer_store") and line.endswith(" sc1"):
            A.L[i] = line[:-3] + FL[cfg.SF]
    if cfg.DIAG:
        sys.stderr.write(str(codes) + "\n")
    return "\n".join(A.L) + "\n"

if __name__ == "__main__":
    cfg = Cfg()
    out = sys.argv[1]
    for kv in sys.argv[2:]:
        k, v = kv.split("=")
        setattr(cfg, k, tuple(int(x) for x in v.split("/") if x) if k == "SIZES" else int(v))
    open(out, "w").write(gen(cfg))
```

```python
import sys, math
NAME = "recurrent_scan__gqa_block_cached__glu_gated_geglu__decode_kernel"

class Cfg:
    F = 20
    R = 9
    C = 6
    DIAG = False
    SPIN = 1 << 22
    NOSWZ = 0
    NOCOMP = 0
    NOWO = 0
    NOWQ = 0
    PSLEEP = 1
    QSLEEP = 4
    BAR3 = 1
    BAR4 = 1
    MASKP = 1
    DBGT = 0
    F3 = 0
    LBAR = 0
    FD = 8
    ET = 2
    PIPE = 0
    QV = 2
    HAL = 0
    EARLYK = 1
    PGAP = 4
    EZ = 5
    HSLEEP = 1
    PF = 0
    FB = 128
    STAT = 2
    KP = 1
    VP = 1
    WP = 1
    ROT = 5
    GS = 11
    WIN = 1
    SF = 0
    SIZES = (5, 2, 1)
    NOFFN = 0

def lds_layout(R):
    o = R * 16384
    L = {}
    L['FLAGS'] = o; o += 256
    L['Q'] = o; o += 1024
    L['XN'] = o; o += 1792
    L['H'] = o; o += 512
    L['SC'] = o; o += 64 * 128
    L['END'] = o
    return L

WS_EP = 0
WS_PC = 0x1000
PCS = 4352
WS_QP = 0x20000
WS_HA = 0x40000
WS_HA2 = 0x280000
HBS = 2304
WS_HM = 0xC0000
WS_HB = 0xD0000
WS_HY = 0x150000
WS_DIAG = 0x200000
WS_SIZE = 0x400000
TAGM = 0xf
POL = {0: "", 1: "nt", 2: "sc1", 3: "sc0 sc1", 4: "sc1 nt", 5: "sc0 sc1 nt", 6: "sc0", 7: "sc0 nt"}
CSC = 0.0625 * math.log2(math.e)

import struct
def f2u(x):
    return struct.unpack('<I', struct.pack('<f', x))[0]

class Asm:
    def __init__(self):
        self.L = []
        self.n = 0
    def __call__(self, s):
        for line in s.strip('\n').split('\n'):
            self.L.append(line.strip() if not line.strip().endswith(':') else line.strip())
    def label(self, base):
        self.n += 1
        return f"L_{base}_{self.n}"

def gen(cfg):
    F, R, C = cfg.F, cfg.R, cfg.C
    LD = lds_layout(R)
    assert LD['END'] <= 163840, LD['END']
    A = Asm()
    NUNITS = 128
    SIZES = tuple(cfg.SIZES)
    S = NUNITS - sum(SIZES)
    NT = 16 * len(SIZES)
    assert len(SIZES) <= 8
    SZP = sum(v << (8 * r) for r, v in enumerate(SIZES))
    STP = sum((S + sum(SIZES[:r])) << (8 * r) for r in range(len(SIZES)))
    def srd(dst, base, size, add=None):
        if add is None:
            A(f"s_mov_b32 s{dst}, s{base}")
            A(f"s_and_b32 s{dst+1}, s{base+1}, 0xffff")
        else:
            A(f"s_add_u32 s{dst}, s{base}, s{add}")
            A(f"s_addc_u32 s{dst+1}, s{base+1}, 0")
            A(f"s_and_b32 s{dst+1}, s{dst+1}, 0xffff")
        A(f"s_mov_b32 s{dst+2}, {size}")
        A(f"s_mov_b32 s{dst+3}, 0x20000")
    def stamp(idx, tmpv=(250, 251, 252)):
        if not cfg.DIAG:
            return
        A(f"s_memrealtime s[96:97]")
        A(f"s_lshl_b32 s98, s2, 3")
        A(f"s_add_u32 s98, s98, s3")
        A(f"s_lshl_b32 s98, s98, 7")
        A(f"s_add_u32 s98, s98, {WS_DIAG + idx*8}")
        A(f"s_waitcnt lgkmcnt(0)")
        A(f"v_mov_b32 v{tmpv[0]}, s96")
        A(f"v_mov_b32 v{tmpv[1]}, s97")
        A(f"v_mov_b32 v{tmpv[2]}, 0")
        A(f"s_mov_b64 s[94:95], exec")
        A(f"s_mov_b64 exec, 1")
        A(f"buffer_store_dwordx2 v[{tmpv[0]}:{tmpv[1]}], v{tmpv[2]}, s[36:39], s98 offen")
        A(f"s_mov_b64 exec, s[94:95]")
    TG = 193
    def tag(v):
        A(f"v_bfi_b32 v{v}, s59, v{TG}, v{v}")
    def tagcheck(regs, acc, full=()):
        regs = list(regs)
        if len(regs) == 0:
            A(f"v_mov_b32 v{acc}, 0")
        elif len(regs) == 1:
            A(f"v_xor_b32 v{acc}, v{regs[0]}, v{TG}")
        else:
            A(f"v_bitop3_b32 v{acc}, v{regs[0]}, v{regs[1]}, v{TG} bitop3:0x7e")
            for r in regs[2:]:
                A(f"v_bitop3_b32 v{acc}, v{acc}, v{r}, v{TG} bitop3:0xf6")
        A(f"v_and_b32 v{acc}, s59, v{acc}")
        for r in full:
            A(f"v_bitop3_b32 v{acc}, v{acc}, v{r}, s58 bitop3:0xf6")
        A(f"v_cmp_ne_u32 vcc, 0, v{acc}")
    def remask():
        if cfg.MASKP:
            A("s_or_b32 s76, vcc_lo, vcc_hi"); A("s_lshr_b32 s77, s76, 16"); A("s_or_b32 s76, s76, s77")
            A("s_pack_ll_b32_b16 s76, s76, s76")
            A("s_mov_b32 exec_lo, s76"); A("s_mov_b32 exec_hi, s76")
    def poll(lbl, issue, n, check, go):
        if not cfg.PIPE:
            A(f"{lbl}:")
            issue()
            A("s_waitcnt vmcnt(0)")
            check()
            A(f"s_cbranch_vccz {go}")
            remask()
            spin_tail(lbl, sleep=cfg.HSLEEP)
        else:
            issue()
            A("s_waitcnt vmcnt(0)")
            check()
            A(f"s_cbranch_vccz {go}")
            remask()
            for d in range(cfg.PIPE):
                issue()
                A(f"s_sleep {cfg.PGAP}")
            A(f"{lbl}:")
            issue()
            A(f"s_waitcnt vmcnt({n * cfg.PIPE})")
            check()
            A(f"s_cbranch_vccz {go}")
            remask()
            spin_tail(lbl, sleep=0)
    codes = {}
    def die(lbl):
        if cfg.DIAG:
            codes.setdefault(lbl, len(codes) + 1)
            A("s_mov_b64 exec, 1")
            A(f"v_mov_b32 v248, {codes[lbl]}"); A("v_mov_b32 v249, s40"); A("v_mov_b32 v250, s43"); A("v_mov_b32 v251, s73"); A("v_mov_b32 v252, 0")
            A("s_lshl_b32 s98, s2, 3"); A("s_add_u32 s98, s98, s3"); A("s_lshl_b32 s98, s98, 7"); A(f"s_add_u32 s98, s98, {WS_DIAG + 112}")
            A("buffer_store_dwordx4 v[248:251], v252, s[36:39], s98 offen")
        A("s_endpgm")
    def spin_tail(lbl, cnt="s45", sleep=1):
        A(f"s_sleep {sleep}")
        A(f"s_sub_u32 {cnt}, {cnt}, 1")
        A(f"s_cmp_lg_u32 {cnt}, 0")
        A(f"s_cbranch_scc1 {lbl}")
        die(lbl)

    hdr = open('recurrent_scan__gqa_block_cached__glu_gated_geglu__decode.s.ref').read().split('\n')
    for line in hdr:
        if line.startswith('; @launch') or not line.startswith(';'):
            break
        A.L.append(line)
    A(f"; @launch grid=(256,1,1) block=(512,1,1) lds={LD['END']}")
    A('.amdgcn_target "amdgcn-amd-amdhsa--gfx950"')
    A(".text"); A(f".globl {NAME}"); A(".p2align 8"); A(f".type {NAME},@function"); A(f"{NAME}:")
    if cfg.DIAG or cfg.DBGT:
        A("s_memrealtime s[92:93]")
    A(f"""
    s_cmp_ge_u32 s2, 256
    s_cbranch_scc1 L_end
    s_load_dwordx8 s[4:11], s[0:1], 0
    s_load_dwordx8 s[12:19], s[0:1], 32
    s_load_dwordx8 s[20:27], s[0:1], 64
    v_and_b32 v1, 63, v0
    v_lshrrev_b32 v2, 6, v0
    v_lshlrev_b32 v3, 2, v1
    v_add_u32 v3, {LD['FLAGS']}, v3
    v_mov_b32 v4, 0
    ds_write_b32 v3, v4
    v_readfirstlane_b32 s3, v2
    s_mov_b32 s45, {cfg.SPIN}
    s_mov_b32 s40, 0
    s_mov_b32 s43, 0
    s_mov_b32 s73, 0
    """)
    A("v_lshrrev_b32 v5, 5, v1")
    A("v_and_b32 v6, 31, v1")
    A("v_xor_b32 v6, v6, v5")
    A("v_lshlrev_b32 v5, 9, v5")
    for j in range(8):
        A(f"v_xor_b32 v7, {2*j}, v6")
        A(f"v_lshl_add_u32 v{8+j}, v7, 4, v5")
    A("v_lshlrev_b32 v16, 4, v1")
    A(f"v_mov_b32 v17, {LD['FLAGS']}")
    A("s_lshr_b32 s46, s2, 4")
    A("s_lshl_b32 s46, s46, 24")
    A("s_waitcnt lgkmcnt(0)")
    if cfg.LBAR:
        A("s_cmp_eq_u32 s3, 0")
        A("s_cbranch_scc1 L_loader")
        A("s_barrier")
        A("s_branch L_notloader")
        A("L_loader:")
    else:
        A("s_barrier")
        A("s_cmp_lg_u32 s3, 0")
        A("s_cbranch_scc1 L_notloader")
    A("s_setprio 3")
    srd(28, 6, 1 << 24, add=46)
    srd(32, 8, 1 << 24, add=46)
    if cfg.DIAG:
        srd(36, 26, WS_SIZE)
    stamp(0)
    if cfg.DIAG:
        A("v_mov_b32 v250, s92"); A("v_mov_b32 v251, s93"); A("s_mov_b64 exec, 1")
        A("buffer_store_dwordx2 v[250:251], v252, s[36:39], s98 offen offset:56")
        A("s_mov_b64 exec, -1")
    a_, jp = divmod(F - 1, 16)
    assert S % 2 == 0
    NFB = 1792 // cfg.FB
    assert (cfg.ET * cfg.EZ) % 2 == 0
    FC = 8 + cfg.ET * cfg.EZ // 2
    A("s_mov_b32 s90, 0")
    if cfg.DIAG:
        A("s_mov_b32 s88, 0")
    A("s_mov_b32 s41, 0"); A("s_and_b32 s66, s2, 15"); A("s_mov_b32 s67, 0"); A("s_mov_b32 s44, 0")
    A("s_lshr_b32 s70, s2, 4"); A(f"s_mul_i32 s68, s70, {cfg.GS}")
    def ld_addr(dst, dt):
        A(f"s_add_u32 s69, s67, {dt}")
        A(f"s_add_u32 {dst}, s69, s68"); A(f"s_and_b32 {dst}, {dst}, 127"); A(f"s_lshl_b32 {dst}, {dst}, 17")
        A(f"s_mul_i32 s69, s69, {cfg.ROT}"); A("s_add_u32 s69, s69, s66"); A("s_and_b32 s69, s69, 15"); A("s_lshl_b32 s69, s69, 13")
        A(f"s_or_b32 {dst}, {dst}, s69")
    def ld_body(kinds, first=False, F=F):
        a_, jp = divmod(F - 1, 16)
        for j in range(16):
            if not first:
                A(f"s_waitcnt vmcnt({F-1})")
            if j == jp and not first:
                A(f"s_sub_i32 s49, s40, {a_}")
                A("s_max_i32 s43, s43, s49")
                A("v_mov_b32 v18, s43")
                A("ds_write_b32 v17, v18")
            if j % 4 == 0:
                A(f"s_add_u32 m0, s41, {j*1024}")
                A(f"s_add_u32 s47, {'s42' if j < 8 else 's75'}, {(j % 8)*1024}")
            if j == 8:
                A("s_add_u32 s44, s44, 4"); A(f"s_cmp_ge_u32 s44, {R*4}"); A("s_cselect_b32 s44, 0, s44")
                A("v_add_u32 v19, s44, v17")
                A("ds_read_b32 v20, v19 offset:64")
            if kinds[j // 8] == 'K':
                A(f"buffer_load_dwordx4 v{8 + j % 8}, s[28:31], s47 offen offset:{(j%4)*1024} {POL[cfg.KP]} lds")
            else:
                A(f"buffer_load_dwordx4 v16, s[32:35], s47 offen offset:{(j%4)*1024} {POL[cfg.VP]} lds")
            if first and j == 7:
                ld_addr("s75", 1)
        A("s_add_u32 s40, s40, 1")
        A("s_add_u32 s41, s41, 16384"); A(f"s_cmp_ge_u32 s41, {R*16384}"); A("s_cselect_b32 s41, 0, s41")
        A("s_sub_u32 s53, s53, 1")
    def ld_ring(lbl):
        if cfg.DIAG:
            n = A.label("nops")
            A("s_and_b32 s91, s40, 15"); A("s_cmp_lg_u32 s91, 0"); A(f"s_cbranch_scc1 {n}")
            A("s_cmp_gt_u32 s40, 80"); A(f"s_cbranch_scc1 {n}")
            A("s_memrealtime s[96:97]")
            A("s_lshl_b32 s98, s2, 10"); A("s_lshr_b32 s91, s40, 1"); A("s_add_u32 s98, s98, s91"); A(f"s_add_u32 s98, s98, {WS_DIAG + 64}")
            A("s_waitcnt lgkmcnt(0)")
            A("v_mov_b32 v250, s96"); A("v_mov_b32 v251, s97"); A("v_mov_b32 v252, 0")
            A("s_mov_b64 exec, 1")
            A("buffer_store_dwordx2 v[250:251], v252, s[36:39], s98 offen")
            A("s_mov_b64 exec, -1")
            A(f"{n}:")
        A(f"s_sub_i32 s48, s40, {R-1}")
        A("v_readfirstlane_b32 s47, v20")
        A("s_cmp_ge_i32 s47, s48")
        A(f"s_cbranch_scc1 {lbl}")
        if cfg.DIAG:
            n = A.label("nost")
            A("s_cmp_lg_u32 s90, 0"); A(f"s_cbranch_scc1 {n}"); A("s_mov_b32 s90, 1")
            stamp(2)
            A(f"{n}:")
            stamp(3)
        A("s_waitcnt vmcnt(0)")
        A("s_mov_b32 s43, s40")
        A("v_mov_b32 v18, s43")
        A("ds_write_b32 v17, v18")
        sp = lbl + "_spin"
        A(f"{sp}:")
        A("ds_read_b32 v20, v19 offset:64")
        A("s_waitcnt lgkmcnt(0)")
        A("v_readfirstlane_b32 s47, v20")
        A("s_cmp_ge_i32 s47, s48")
        A(f"s_cbranch_scc1 {lbl}")
        spin_tail(sp)
    def ld_ticket_req():
        n = A.label("noat")
        A("s_add_u32 s74, s53, s71")
        A("s_cmp_lg_u32 s74, 1")
        A(f"s_cbranch_scc1 {n}")
        A("s_mov_b32 s54, 1")
        if NT:
            A("s_atomic_add s54, s[56:57], 0x0 glc")
        A(f"{n}:")
    ld_addr("s42", 0)
    A("s_mov_b32 s53, 0")
    ld_body("KK", first=True)
    if cfg.LBAR:
        A("s_barrier")
    A(f"s_mul_i32 s50, s70, {PCS}"); A(f"s_add_u32 s50, s50, {WS_PC}")
    A("s_add_u32 s56, s26, s50"); A("s_addc_u32 s57, s27, 0")
    A(f"s_mov_b32 s60, {hex(SZP & 0xffffffff)}"); A(f"s_mov_b32 s61, {hex(SZP >> 32)}")
    A(f"s_mov_b32 s62, {hex(STP & 0xffffffff)}"); A(f"s_mov_b32 s63, {hex(STP >> 32)}")
    A("s_mov_b32 s54, 0")
    A(f"s_cmp_lt_u32 s70, {NFB}"); A("s_cselect_b32 s71, 1, 0")
    A(f"s_add_u32 s72, s66, {S - 16}")
    A("s_cmp_eq_u32 s66, s70"); A("s_cselect_b32 s78, s71, 0"); A(f"s_mul_i32 s78, s78, {FC}"); A(f"s_sub_u32 s78, {S // 2}, s78")
    A(f"s_mul_i32 s80, s71, {cfg.ET}")
    A("s_sub_u32 s53, s78, 1")
    A("s_branch L_ld_kbot")
    A("L_ld_k:")
    ld_body("KK")
    A("L_ld_kbot:")
    A("s_add_u32 s67, s67, 2")
    A("s_cmp_lg_u32 s53, 0")
    A("s_cbranch_scc1 L_ld_kc")
    A("s_mov_b32 s67, 0"); A("s_mov_b32 s53, s78")
    A("s_branch L_ld_vc")
    A("L_ld_kc:")
    ld_addr("s42", 0); ld_addr("s75", 1)
    A("s_waitcnt lgkmcnt(0)")
    ld_ring("L_ld_k")
    A("L_ld_v:")
    ld_ticket_req()
    ld_body("VV")
    A("s_add_u32 s67, s67, 2")
    A("s_cmp_eq_u32 s53, 0")
    A("s_cbranch_scc1 L_ld_next")
    A("L_ld_vc:")
    ld_addr("s42", 0); ld_addr("s75", 1)
    A("s_waitcnt lgkmcnt(0)")
    ld_ring("L_ld_v")
    A("L_ld_c:")
    ld_ticket_req()
    F3 = cfg.F3 or F
    ld_body("KV", F=F3)
    A("s_add_u32 s67, s67, 1")
    A("s_cmp_lg_u32 s53, 0")
    A("s_cbranch_scc1 L_ld_cc")
    A("L_ld_next:")
    A("s_cmp_eq_u32 s71, 0"); A("s_cbranch_scc1 L_ld_tick")
    A("s_mov_b32 s71, 0"); A("s_mov_b32 s53, 1"); A("s_mov_b32 s66, s70"); A("s_mov_b32 s67, s72")
    A("s_branch L_ld_cc")
    A("L_ld_tick:")
    if cfg.DIAG:
        A("s_memrealtime s[84:85]")
    A("s_waitcnt lgkmcnt(0)")
    if cfg.DIAG:
        A("s_memrealtime s[86:87]"); A("s_waitcnt lgkmcnt(0)")
        A("s_sub_u32 s86, s86, s84"); A("s_lshl_b32 s88, s88, 8"); A("s_min_u32 s86, s86, 255"); A("s_or_b32 s88, s88, s86")
    if cfg.ET:
        A("s_cmp_ge_u32 s54, s80"); A("s_cbranch_scc1 L_ld_tick2")
        A(f"s_mov_b32 s53, {cfg.EZ}"); A("s_mov_b32 s66, s70")
        A(f"s_mul_i32 s67, s54, {cfg.EZ}"); A(f"s_add_u32 s67, s67, {S - 2 * FC}")
        A("s_branch L_ld_cc")
        A("L_ld_tick2:")
        A("s_sub_u32 s54, s54, s80")
    A(f"s_cmp_ge_u32 s54, {NT}")
    A("s_cbranch_scc1 L_ld_done")
    A("s_lshr_b32 s51, s54, 4"); A("s_lshl_b32 s51, s51, 3")
    A("s_lshr_b64 s[64:65], s[60:61], s51"); A("s_and_b32 s53, s64, 0xff")
    A("s_lshr_b64 s[64:65], s[62:63], s51"); A("s_and_b32 s67, s64, 0xff")
    A("s_and_b32 s66, s54, 15")
    A("L_ld_cc:")
    ld_addr("s42", 0)
    A("s_mov_b32 s75, s42")
    A("s_waitcnt lgkmcnt(0)")
    ld_ring("L_ld_c")
    A("L_ld_done:")
    A("s_lshl_b32 s50, s40, 16")
    A("s_or_b32 s51, s50, s43")
    A("v_mov_b32 v18, s51")
    A("ds_write_b32 v17, v18")
    for k in range(3, -1, -1):
        if 16 * k < max(F, F3):
            A(f"s_sub_u32 s51, s40, {k}")
            A("s_max_u32 s51, s51, s43")
            A("s_or_b32 s51, s51, s50")
            A(f"s_waitcnt vmcnt({16*k})")
            A(f"v_mov_b32 v18, s51")
            A("ds_write_b32 v17, v18")
            if k == 1 and cfg.EARLYK:
                A("s_or_b32 s51, s51, 0x8000")
                A("s_waitcnt vmcnt(8)")
                A(f"v_mov_b32 v18, s51")
                A("ds_write_b32 v17, v18")
    if cfg.DIAG:
        A("v_mov_b32 v250, s40"); A("v_mov_b32 v251, s88"); A("v_mov_b32 v252, 0")
        A("s_lshl_b32 s98, s2, 10"); A(f"s_add_u32 s98, s98, {WS_DIAG + 8*8}")
        A("s_mov_b64 exec, 1")
        A("buffer_store_dwordx2 v[250:251], v252, s[36:39], s98 offen")
        A("s_mov_b64 exec, -1")
        A("s_nop 1")
    stamp(1)
    A("s_endpgm")

    A("L_notloader:")
    A(f"s_load_dword s58, s[26:27], {WS_EP}")
    A(f"s_mov_b32 s59, {TAGM}")
    A("v_and_b32 v3, 7, v1")
    A("v_lshrrev_b32 v4, 1, v3")
    A("v_and_b32 v5, 1, v3")
    A("v_mov_b32 v6, 0x0c0c0100")
    A("v_mov_b32 v7, 0x01000c0c")
    A("v_cmp_eq_u32 vcc, 1, v5")
    A("v_mov_b32 v8, 0x0c0c0302")
    A("v_mov_b32 v9, 0x03020c0c")
    A("v_cndmask_b32 v6, v6, v7, vcc")
    A("v_cndmask_b32 v8, v8, v9, vcc")
    A("v_mov_b32 v7, 0x0c0c0c0c")
    for k in range(4):
        A(f"v_cmp_eq_u32 vcc, {k}, v4")
        A("s_nop 1")
        A(f"v_cndmask_b32 v{12+k}, v7, v6, vcc")
        A(f"v_cndmask_b32 v{16+k}, v7, v8, vcc")
    A("v_and_b32 v10, 15, v1")
    A("v_lshrrev_b32 v11, 4, v1")
    A("s_lshr_b32 s50, s2, 4")
    A("s_and_b32 s51, s2, 15")
    A("s_lshr_b32 s52, s2, 7")
    A("s_and_b32 s53, s50, 7")
    A(f"s_mov_b32 s54, {hex(f2u(CSC))}")
    srd(36, 26, WS_SIZE)
    A("s_cmp_eq_u32 s3, 4")
    A("s_cbranch_scc1 L_helper")

    A("s_sub_u32 s55, s3, 1")
    A("s_cmp_gt_u32 s3, 4")
    A("s_cselect_b32 s47, 1, 0")
    A("s_sub_u32 s55, s55, s47")
    A(f"s_cmp_ge_u32 s55, {0 if cfg.NOWO else 4}")
    A("s_cbranch_scc1 L_c_nowo")
    srd(28, 12, 4096 * 896)
    A("s_lshl_b32 s46, s53, 9"); A("s_lshl_b32 s47, s51, 5"); A("s_add_u32 s46, s46, s47")
    A("s_mul_i32 s46, s46, 896"); A("s_lshl_b32 s47, s55, 8"); A("s_add_u32 s46, s46, s47")
    A(f"v_mul_u32_u24 v23, 896, v11")
    A("v_lshl_add_u32 v23, v10, 4, v23")
    A("s_cmp_eq_u32 s55, 3")
    A("s_cselect_b32 s47, 8, 16")
    A("v_cmp_le_u32 vcc, s47, v10")
    A("v_bfrev_b32 v24, 2")
    A("s_nop 0")
    A("v_cndmask_b32 v23, v23, v24, vcc")
    for rr in range(4):
        for hi in range(2):
            t = 4 * hi + rr
            A(f"buffer_load_dwordx4 v[{156+4*t}:{159+4*t}], v23, s[28:31], s46 offen offset:{hi*4*896} nt")
        if rr < 3:
            A(f"s_add_u32 s46, s46, {8*896}")
    A("L_c_nowo:")
    A("v_xor_b32 v23, v10, v11")
    A("v_lshlrev_b32 v24, 9, v10")
    for a in range(4):
        A(f"v_xor_b32 v25, {4*a}, v23")
        A(f"v_lshl_add_u32 v{2+a}, v25, 4, v24")
    A("v_lshlrev_b32 v24, 11, v11")
    A("v_lshl_add_u32 v6, v10, 4, v24")
    A(f"v_mov_b32 v188, {LD['FLAGS']}")
    A(f"v_mov_b32 v20, {hex(f2u(-3.0e38))}")
    A("v_mul_f32 v21, s54, v20")
    A("v_mov_b32 v22, 0")
    for k in range(8):
        A(f"v_mov_b32 v{132+k}, 0")
    A("v_mov_b32 v189, v10"); A("v_mov_b32 v190, v11")
    A("v_lshrrev_b32 v23, 3, v10"); A("v_lshlrev_b32 v23, 6, v23"); A("v_lshl_add_u32 v23, v11, 4, v23")
    A(f"v_add_u32 v202, {LD['SC']}, v23")
    A(f"s_cmp_lt_u32 s50, {NFB}"); A(f"s_cselect_b32 s78, {FC}, 0")
    A("s_cmp_eq_u32 s51, s50"); A("s_cselect_b32 s78, s78, 0"); A(f"s_sub_u32 s78, {S // 2}, s78")
    A("s_lshl_b32 s79, s78, 1")
    A("s_mov_b32 s40, s55")
    A("s_lshl_b32 s41, s55, 14")
    A("s_mov_b32 s44, 0")
    A("s_waitcnt lgkmcnt(0)")
    A("s_add_u32 s58, s58, 1")
    A("s_and_b32 s46, s58, s59")
    A(f"v_mov_b32 v{TG}, s46")
    def c_wait(lbl, can_end):
        A(f"{lbl}:")
        A("ds_read_b32 v23, v188")
        A("s_lshr_b32 s47, s41, 12")
        A("v_add_u32 v191, s47, v188")
        A("s_add_u32 s42, s40, 1")
        A("v_mov_b32 v192, s42")
        A("s_waitcnt lgkmcnt(0)")
        A("v_readfirstlane_b32 s43, v23")
        A("s_and_b32 s46, s43, 0x7fff")
        if can_end and cfg.EARLYK:
            A("s_bfe_u32 s47, s43, 0x1000f")
            A("s_add_u32 s46, s46, s47")
        A("s_cmp_gt_u32 s46, s40")
        A(f"s_cbranch_scc1 {lbl}_go")
        if can_end:
            A("s_lshr_b32 s46, s43, 16")
            A("s_sub_u32 s46, s46, 1")
            A("s_cmp_lt_u32 s46, s40")
            A("s_cbranch_scc1 L_c_tail")
        spin_tail(lbl, sleep=cfg.PSLEEP)
        A(f"{lbl}_go:")
    def c_adv():
        A(f"s_add_u32 s40, s40, {C}")
        A(f"s_add_u32 s41, s41, {C*16384}")
        A(f"s_sub_u32 s47, s41, {R*16384}")
        A(f"s_cmp_ge_u32 s41, {R*16384}")
        A("s_cselect_b32 s41, s47, s41")
    def k_reads(base, off):
        for t in range(8):
            A(f"ds_read_b128 v[{base+4*t}:{base+3+4*t}], v{7 + t % 4} offset:{off + (t//4)*256}")
    def v_reads(base, off, rs=range(4)):
        for r in rs:
            for h in range(2):
                A(f"ds_read_b128 v[{base+8*r+4*h}:{base+3+8*r+4*h}], v11 offset:{off + r*512 + h*256}")
    def resc(lbl):
        A(f"{lbl}:")
        A("v_mov_b32 v31, v30")
        A("s_nop 1")
        A("v_permlane16_swap_b32 v30, v31")
        A("v_max_f32 v30, v30, v31")
        A("v_mov_b32 v31, v30")
        A("s_nop 1")
        A("v_permlane32_swap_b32 v30, v31")
        A("v_max3_f32 v20, v30, v31, v20")
        A("v_mul_f32 v30, s54, v20")
        A("v_sub_f32 v31, v21, v30")
        A("v_exp_f32 v31, v31")
        A("v_mov_b32 v21, v30")
        for k in range(8):
            A(f"v_mul_f32 v{132+k}, v{132+k}, v31")
        A("v_mul_f32 v22, v22, v31")
        A(f"s_branch {lbl}_ret")
    def pv(tiles):
        steps = [(pb + r // 2, 12 + 4 * (r % 2), vb + 8 * r) for (pb, vb) in tiles for r in range(4)]
        def mm(n):
            bb = 140 + 4 * (n % 4); vb = steps[n][2]
            for h in range(2):
                A(f"v_mfma_f32_16x16x32_bf16 v[{132+4*h}:{135+4*h}], v[{vb+4*h}:{vb+3+4*h}], v[{bb}:{bb+3}], v[{132+4*h}:{135+4*h}]")
        for n, (src, sel, vb) in enumerate(steps):
            for k in range(4):
                A(f"v_perm_b32 v{140+4*(n%4)+k}, v{src}, v{src}, v{sel+k}")
            if n >= 1:
                mm(n - 1)
        mm(len(steps) - 1)
    c_wait("L_ck", False)
    for a in range(4):
        A(f"v_add_u32 v{7+a}, s41, v{2+a}")
    k_reads(64, 0); k_reads(96, 8192)
    A("s_lshl_b32 s47, s40, 7")
    A("v_add_u32 v203, s47, v202")
    A("s_waitcnt lgkmcnt(0)")
    A("ds_write_b32 v191, v192 offset:64")
    A("s_cmp_eq_u32 s44, 0")
    A("s_cbranch_scc1 L_c_first")
    A("L_ck_comp:")
    for t in range(8):
        A(f"v_mfma_f32_16x16x32_bf16 v[128:131], v[{64+4*t}:{67+4*t}], v[{32+4*t}:{35+4*t}], {'0' if t == 0 else 'v[128:131]'}")
        A(f"v_mfma_f32_16x16x32_bf16 v[140:143], v[{96+4*t}:{99+4*t}], v[{32+4*t}:{35+4*t}], {'0' if t == 0 else 'v[140:143]'}")
    c_adv()
    A("s_nop 2")
    A("v_cvt_pk_bf16_f32 v24, v128, v129")
    A("v_cvt_pk_bf16_f32 v25, v130, v131")
    A("v_cvt_pk_bf16_f32 v26, v140, v141")
    A("v_cvt_pk_bf16_f32 v27, v142, v143")
    A("s_mov_b32 exec_lo, 0x01010101"); A("s_mov_b32 exec_hi, 0x01010101")
    A("ds_write_b128 v203, v[24:27]")
    A("s_mov_b64 exec, -1")
    A("s_cmp_lt_u32 s40, s78")
    A("s_cbranch_scc1 L_ck")
    c_wait("L_cv", False)
    A("s_sub_u32 s47, s40, s78"); A("s_lshl_b32 s47, s47, 7")
    A("v_add_u32 v203, s47, v202")
    A("v_add_u32 v11, s41, v6")
    A("ds_read_b128 v[24:27], v203")
    v_reads(64, 0); v_reads(96, 8192, range(3))
    A("s_waitcnt lgkmcnt(14)")
    v_reads(96, 8192, [3])
    for k in range(4):
        A(f"v_lshlrev_b32 v{194+2*k}, 16, v{24+k}")
        A(f"v_and_b32 v{195+2*k}, 0xffff0000, v{24+k}")
    A("v_max3_f32 v30, v194, v195, v196")
    A("v_max3_f32 v31, v197, v198, v199")
    A("v_max3_f32 v30, v30, v200, v201")
    A("v_max_f32 v30, v30, v31")
    A("v_cmp_gt_f32 vcc, v30, v20")
    A("s_cbranch_vccnz L_cv_resc")
    A("L_cv_resc_ret:")
    for k in range(8):
        A(f"v_fma_f32 v{194+k}, v{194+k}, s54, -v21")
    for k in range(8):
        A(f"v_exp_f32 v{194+k}, v{194+k}")
    A("s_nop 0")
    for k in range(4):
        A(f"v_cvt_pk_bf16_f32 v{24+k}, v{194+2*k}, v{195+2*k}")
    for k in range(4):
        A(f"v_add_f32 v{194+2*k}, v{194+2*k}, v{195+2*k}")
    A("v_add_f32 v194, v194, v196"); A("v_add_f32 v198, v198, v200")
    A("v_add_f32 v22, v22, v194"); A("v_add_f32 v22, v22, v198")
    A("s_waitcnt lgkmcnt(0)")
    A("ds_write_b32 v191, v192 offset:64")
    pv([(24, 64), (26, 96)])
    c_adv()
    A("s_cmp_lt_u32 s40, s79")
    A("s_cbranch_scc1 L_cv")
    c_wait("L_cc", True)
    for a in range(4):
        A(f"v_add_u32 v{7+a}, s41, v{2+a}")
    A("v_add_u32 v11, s41, v6")
    if cfg.EARLYK:
        k_reads(64, 0)
        for t in range(8):
            A(f"s_waitcnt lgkmcnt({7 - t})")
            A(f"v_mfma_f32_16x16x32_bf16 v[128:131], v[{64+4*t}:{67+4*t}], v[{32+4*t}:{35+4*t}], {'0' if t == 0 else 'v[128:131]'}")
        A("s_nop 7")
    else:
        k_reads(64, 0); v_reads(96, 8192)
        A("s_waitcnt lgkmcnt(8)")
        for t in range(8):
            A(f"v_mfma_f32_16x16x32_bf16 v[128:131], v[{64+4*t}:{67+4*t}], v[{32+4*t}:{35+4*t}], {'0' if t == 0 else 'v[128:131]'}")
        A("s_waitcnt lgkmcnt(0)")
        A("ds_write_b32 v191, v192 offset:64")
        c_adv()
        A("s_nop 0")
    A("v_cvt_pk_bf16_f32 v24, v128, v129")
    A("v_cvt_pk_bf16_f32 v25, v130, v131")
    A("v_lshlrev_b32 v26, 16, v24")
    A("v_and_b32 v27, 0xffff0000, v24")
    A("v_lshlrev_b32 v28, 16, v25")
    A("v_and_b32 v29, 0xffff0000, v25")
    A("v_max3_f32 v30, v26, v27, v28")
    A("v_max_f32 v30, v30, v29")
    A("v_cmp_gt_f32 vcc, v30, v20")
    A("s_cbranch_vccnz L_cc_resc")
    A("L_cc_resc_ret:")
    for k in range(4):
        A(f"v_fma_f32 v{26+k}, v{26+k}, s54, -v21")
    for k in range(4):
        A(f"v_exp_f32 v{26+k}, v{26+k}")
    A("s_nop 0")
    A("v_cvt_pk_bf16_f32 v24, v26, v27")
    A("v_cvt_pk_bf16_f32 v25, v28, v29")
    A("v_add_f32 v30, v26, v27")
    A("v_add_f32 v31, v28, v29")
    A("v_add_f32 v22, v22, v30")
    A("v_add_f32 v22, v22, v31")
    if cfg.EARLYK:
        A("L_cc_w2:")
        A("s_and_b32 s46, s43, 0x7fff")
        A("s_cmp_gt_u32 s46, s40")
        A("s_cbranch_scc1 L_cc_w2go")
        A("ds_read_b32 v23, v188")
        A("s_waitcnt lgkmcnt(0)")
        A("v_readfirstlane_b32 s43, v23")
        spin_tail("L_cc_w2", sleep=0)
        A("L_cc_w2go:")
        v_reads(96, 8192)
        for n in range(4):
            for k in range(4):
                A(f"v_perm_b32 v{140+4*n+k}, v{24 + n // 2}, v{24 + n // 2}, v{12 + 4 * (n % 2) + k}")
        c_adv()
        for n in range(4):
            for h in range(2):
                A(f"s_waitcnt lgkmcnt({7 - 2*n - h})")
                A(f"v_mfma_f32_16x16x32_bf16 v[{132+4*h}:{135+4*h}], v[{96+8*n+4*h}:{99+8*n+4*h}], v[{140+4*n}:{143+4*n}], v[{132+4*h}:{135+4*h}]")
        A("ds_write_b32 v191, v192 offset:64")
    else:
        pv([(24, 96)])
    A("s_lshr_b32 s46, s43, 16")
    A("s_sub_u32 s46, s46, 1")
    A("s_cmp_ge_u32 s46, s40")
    A("s_cbranch_scc1 L_cc")
    A("L_c_tail:")
    stamp(3)
    A(f"s_add_u32 s47, s41, {(R - C)*16384}")
    A(f"s_sub_u32 s48, s47, {R*16384}")
    A(f"s_cmp_ge_u32 s47, {R*16384}")
    A("s_cselect_b32 s47, s48, s47")
    A("v_lshl_add_u32 v25, v1, 4, s47")
    A("v_lshl_add_u32 v26, v1, 3, s47")
    A("v_mov_b32 v28, v21"); A("v_mov_b32 v29, v22")
    A("ds_write_b64 v26, v[28:29] offset:2048")
    A("ds_write_b128 v25, v[132:135]")
    A("ds_write_b128 v25, v[136:139] offset:1024")
    A("s_cmp_lt_u32 s55, 4")
    A("s_cbranch_scc1 L_p_wave")
    A("s_sub_u32 s56, s55, 4")
    A("s_lshr_b32 s46, s43, 16")
    A("s_sub_u32 s46, s40, s46")
    A("s_lshl_b32 s46, s46, 14")
    A("s_sub_i32 s46, s41, s46")
    for j in range(6):
        A("s_sub_i32 s46, s46, 16384")
        A(f"s_add_i32 s47, s46, {R*16384}")
        A("s_cmp_lt_i32 s46, 0")
        A("s_cselect_b32 s46, s47, s46")
        A(f"v_lshl_add_u32 v{70+j}, v1, 3, s46")
    A("s_lshl_b32 s47, s56, 10")
    A("v_lshl_add_u32 v27, v1, 3, s47")
    for j in range(6):
        A(f"v_add_u32 v{76+j}, v{70+j}, v27")
    if not cfg.HAL:
        A("v_lshrrev_b32 v26, 3, v189"); A("v_lshlrev_b32 v26, 14, v26"); A("v_lshl_add_u32 v26, v190, 11, v26")
        A("v_and_b32 v27, 7, v189"); A("v_lshl_add_u32 v26, v27, 4, v26")
        A("s_lshl_b32 s46, s50, 15"); A("s_lshl_b32 s47, s56, 13"); A("s_add_u32 s46, s46, s47")
        A("s_lshl_b32 s47, s51, 7"); A("s_add_u32 s46, s46, s47"); A(f"s_add_u32 s46, s46, {WS_HA}")
    else:
        A("v_lshrrev_b32 v26, 3, v189"); A("v_lshlrev_b32 v26, 9, v26"); A("v_lshl_add_u32 v26, v190, 7, v26")
        A("v_and_b32 v27, 7, v189"); A("v_lshl_add_u32 v26, v27, 4, v26")
        A(f"s_mul_i32 s46, s2, {HBS}"); A(f"s_add_u32 s49, s46, {WS_HA2 + 2048}")
        A("s_lshl_b32 s47, s56, 10"); A("s_add_u32 s46, s46, s47"); A(f"s_add_u32 s46, s46, {WS_HA2}")
    A("s_waitcnt lgkmcnt(0)")
    A("s_barrier")
    for j in range(6):
        A(f"ds_read_b64 v[{84+2*j}:{85+2*j}], v{70+j} offset:2048")
    for j in range(6):
        A(f"ds_read_b128 v[{96+4*j}:{99+4*j}], v{76+j}")
    A("s_waitcnt lgkmcnt(6)")
    A("v_max3_f32 v28, v84, v86, v88")
    A("v_max3_f32 v28, v28, v90, v92")
    A("v_max_f32 v28, v28, v94")
    for j in range(6):
        A(f"v_sub_f32 v{84+2*j}, v{84+2*j}, v28")
    for j in range(6):
        A(f"v_exp_f32 v{84+2*j}, v{84+2*j}")
    A("s_waitcnt lgkmcnt(0)")
    for k in range(4):
        A(f"v_mul_f32 v{120+k}, v84, v{96+k}")
    for j in range(1, 6):
        for k in range(4):
            A(f"v_fmac_f32 v{120+k}, v{84+2*j}, v{96+4*j+k}")
    for k in range(4):
        tag(120 + k)
    A("buffer_store_dwordx4 v[120:123], v26, s[36:39], s46 offen sc1")
    A("s_cmp_eq_u32 s56, 0")
    A("s_cbranch_scc1 L_x0")
    A("v_mul_f32 v29, v84, v85")
    for j in range(1, 6):
        A(f"v_fmac_f32 v29, v{84+2*j}, v{85+2*j}")
    A(f"v_lshlrev_b32 v27, {1 if cfg.HAL else 8}, v189")
    A("v_mov_b32 v24, v29")
    A("s_lshl_b32 s48, s50, 12"); A("s_lshl_b32 s47, s51, 7")
    A("v_permlane16_swap_b32 v29, v24")
    A("v_add_f32 v29, v29, v24")
    A("v_mov_b32 v24, v29")
    A("s_add_u32 s48, s48, s47"); A(f"s_add_u32 s48, s48, {WS_HM}")
    A("v_permlane32_swap_b32 v29, v24")
    A("v_add_f32 v29, v29, v24")
    A("v_mov_b32 v30, s58")
    A("v_mov_b32 v31, s58")
    A("s_mov_b64 exec, 0x101")
    A(f"buffer_store_dwordx4 v[28:31], v27, s[36:39], {'s49' if cfg.HAL else 's48'} offen sc1")
    A("s_mov_b64 exec, -1")
    stamp(4)
    A("s_endpgm")
    A("L_x0:")
    stamp(4)
    if not cfg.HAL:
        A("v_lshlrev_b32 v24, 7, v189")
        A("v_lshl_add_u32 v23, v190, 4, v24")
        A("s_lshl_b32 s46, s2, 11"); A(f"s_add_u32 s46, s46, {WS_HA}")
        A("s_lshl_b32 s48, s50, 12"); A("s_lshr_b32 s47, s51, 3"); A("s_lshl_b32 s47, s47, 11"); A("s_add_u32 s48, s48, s47"); A(f"s_add_u32 s48, s48, {WS_HM}")
    else:
        A(f"v_mul_u32_u24 v24, {HBS}, v189")
        A("v_lshl_add_u32 v23, v190, 4, v24")
        A(f"s_mul_i32 s48, s50, {16 * HBS}"); A(f"s_add_u32 s48, s48, {WS_HA2}")
        A("s_and_b32 s46, s51, 3"); A("s_lshl_b32 s46, s46, 7"); A("s_add_u32 s46, s46, s48")
        A("s_and_b32 s47, s51, 4"); A("s_lshl_b32 s47, s47, 8"); A("s_add_u32 s46, s46, s47")
        A("s_and_b32 s47, s51, 8"); A("s_lshl_b32 s49, s47, 6"); A("s_add_u32 s46, s46, s49")
        A("s_lshl_b32 s47, s47, 1"); A("s_add_u32 s48, s48, s47"); A("s_add_u32 s48, s48, 2048")
    A("v_lshl_add_u32 v27, v190, 4, v188")
    if cfg.BAR3:
        A("s_waitcnt vmcnt(0)")
    stamp(5)
    def issA():
        A("buffer_load_dwordx4 v[64:67], v23, s[36:39], s46 offen sc1")
        A("buffer_load_dwordx4 v[68:71], v23, s[36:39], s46 offen offset:64 sc1")
        A("buffer_load_dwordx4 v[72:75], v24, s[36:39], s48 offen sc1")
    poll("L_p_poll", issA, 3, lambda: tagcheck(range(64, 72), 25, full=(74, 75)), "L_p_go")
    A("L_p_go:")
    A("s_mov_b64 exec, -1")
    stamp(6)
    A("v_mov_b32 v26, v72")
    for sh in (8, 4, 2, 1):
        A("s_nop 1")
        A(f"v_max_f32_dpp v26, v26, v26 row_ror:{sh} row_mask:0xf bank_mask:0xf")
    A("v_sub_f32 v26, v72, v26")
    A("v_exp_f32 v26, v26")
    A("s_nop 0")
    A("v_mul_f32 v88, v73, v26")
    for k in range(8):
        A(f"v_mul_f32 v{80+k}, v{64+k}, v26")
    for sh in (8, 4, 2, 1):
        for k in (8, 0, 1, 2, 3, 4, 5, 6, 7):
            A(f"v_add_f32_dpp v{80+k}, v{80+k}, v{80+k} row_ror:{sh} row_mask:0xf bank_mask:0xf")
            if sh == 1 and k == 2:
                A("v_rcp_f32 v88, v88")
    for k in range(8):
        A(f"v_mul_f32 v{80+k}, v{80+k}, v88")
    for k in range(4):
        A(f"v_cvt_pk_bf16_f32 v{76+k}, v{80+2*k}, v{81+2*k}")
    A("s_mov_b32 exec_lo, 0x00010001"); A("s_mov_b32 exec_hi, 0x00010001")
    A("ds_write_b128 v27, v[76:79] offset:160")
    A("s_waitcnt lgkmcnt(0)")
    A("s_barrier")
    A("s_endpgm")
    A("L_p_wave:")
    A("v_lshl_add_u32 v27, v190, 4, v188")
    A("v_lshlrev_b32 v23, 7, v190")
    A("v_lshl_add_u32 v23, v189, 4, v23")
    A("s_lshl_b32 s46, s2, 11"); A("s_lshl_b32 s47, s55, 9"); A("s_add_u32 s46, s46, s47"); A(f"s_add_u32 s46, s46, {WS_HB}")
    A("s_cmp_eq_u32 s55, 3")
    A("s_cselect_b32 s47, 0, 0x00ff00ff")
    A("s_waitcnt vmcnt(0) lgkmcnt(0)")
    A("s_barrier")
    A("s_barrier")
    A("ds_read_b128 v[76:79], v27 offset:160")
    stamp(5)
    A("s_waitcnt lgkmcnt(0)")
    for t in range(9):
        if t < 8:
            src = 76 + t // 2; sel = 12 + 4 * (t % 2)
            for k in range(4):
                A(f"v_perm_b32 v{96+4*t+k}, v{src}, v{src}, v{sel+k}")
        else:
            A("s_nop 0")
        if t >= 1:
            u = t - 1
            A(f"v_mfma_f32_16x16x32_bf16 v[128:131], v[{156+4*u}:{159+4*u}], v[{96+4*u}:{99+4*u}], {'0' if u == 0 else 'v[128:131]'}")
    A("s_mov_b32 exec_lo, 0x00ff00ff"); A("s_mov_b32 exec_hi, s47")
    A("s_nop 5")
    for k in range(4):
        tag(128 + k)
    A("buffer_store_dwordx4 v[128:131], v23, s[36:39], s46 offen sc1")
    A("s_mov_b64 exec, -1")
    stamp(6)
    A("s_waitcnt vmcnt(0)")
    A("s_endpgm")
    resc("L_cv_resc")
    resc("L_cc_resc")
    A("L_c_first:")
    A("L_c_qwait:")
    A("ds_read_b32 v23, v188 offset:4")
    A("s_waitcnt lgkmcnt(0)")
    A("v_readfirstlane_b32 s46, v23")
    A("s_cmp_lg_u32 s46, 0")
    A("s_cbranch_scc1 L_c_qgo")
    spin_tail("L_c_qwait")
    A("L_c_qgo:")
    A("v_lshrrev_b32 v23, 3, v189")
    A("v_lshlrev_b32 v23, 9, v23")
    A("v_lshl_add_u32 v23, v190, 4, v23")
    A(f"v_add_u32 v23, {LD['Q']}, v23")
    for t in range(8):
        A(f"ds_read_b128 v[{32+4*t}:{35+4*t}], v23 offset:{64*t}")
    A("s_mov_b32 s44, 1")
    A("s_waitcnt lgkmcnt(0)")
    stamp(2)
    A("s_branch L_ck_comp")

    A("L_helper:")
    srd(28, 4, 1792)
    srd(32, 10, 16 if cfg.NOWQ else 448 * 8192)
    A("v_lshrrev_b32 v20, 5, v1")
    A("v_and_b32 v21, 31, v1")
    A("v_mul_u32_u24 v22, 896, v20")
    A("v_lshl_add_u32 v22, v21, 2, v22")
    for m in range(7):
        A(f"buffer_load_dword v{24+m}, v22, s[28:31], 0 offen offset:{128*m}")
    if cfg.QV == 1:
        A("s_and_b32 s56, s51, 3"); A("s_lshr_b32 s57, s51, 2")
        A(f"v_mul_u32_u24 v23, {28*8192}, v11")
        A("v_lshl_add_u32 v23, v10, 4, v23")
        A(f"s_mul_i32 s46, s57, {112*8192}"); A("s_lshl_b32 s47, s53, 10"); A("s_add_u32 s46, s46, s47")
        A("s_lshl_b32 s47, s56, 8"); A("s_add_u32 s46, s46, s47")
    else:
        A("s_and_b32 s56, s51, 7"); A("s_lshl_b32 s56, s56, 1"); A("s_lshr_b32 s57, s51, 3"); A("s_add_u32 s56, s56, s57")
        A("v_lshrrev_b32 v23, 2, v1"); A(f"v_mul_u32_u24 v23, {28*8192}, v23")
        A("v_and_b32 v31, 3, v1"); A("v_lshl_add_u32 v23, v31, 4, v23")
        A("s_lshl_b32 s46, s53, 10"); A("s_lshl_b32 s47, s56, 6"); A("s_add_u32 s46, s46, s47")
    for t in range(28):
        A(f"buffer_load_dwordx4 v[{64+4*t}:{67+4*t}], v23, s[32:35], s46 offen nt")
        if t < 27:
            A("s_add_u32 s46, s46, 8192")
    A(f"s_mul_i32 s46, s50, {PCS}"); A(f"s_add_u32 s46, s46, {WS_PC}")
    A("s_cmp_eq_u32 s51, 0"); A(f"s_cselect_b32 s46, s46, {WS_SIZE}")
    A("v_mov_b32 v186, 0")
    A("s_mov_b64 exec, 1")
    A("buffer_store_dword v186, v186, s[36:39], s46 offen sc1")
    A("s_mov_b64 exec, -1")
    A("s_waitcnt lgkmcnt(0)")
    A("s_add_u32 s58, s58, 1")
    A("s_and_b32 s46, s58, s59")
    A(f"v_mov_b32 v{TG}, s46")
    NAFTER = 28 + 1
    stamp(0)
    ND = 1 if cfg.DIAG else 0
    A(f"s_waitcnt vmcnt({NAFTER + ND})")
    for m in range(7):
        A(f"v_lshlrev_b32 v{32+2*m}, 16, v{24+m}")
        A(f"v_and_b32 v{33+2*m}, 0xffff0000, v{24+m}")
    def red32(v, t):
        for sh in (8, 4, 2, 1):
            A("s_nop 1")
            A(f"v_add_f32_dpp v{v}, v{v}, v{v} row_ror:{sh} row_mask:0xf bank_mask:0xf")
        A(f"v_mov_b32 v{t}, v{v}")
        A("s_nop 1")
        A(f"v_permlane16_swap_b32 v{v}, v{t}")
        A(f"v_add_f32 v{v}, v{v}, v{t}")
    A("v_add_f32 v46, v32, v33")
    for k in range(2, 14):
        A(f"v_add_f32 v46, v46, v{32+k}")
    red32(46, 47)
    A(f"v_mul_f32 v46, {hex(f2u(1.0/448))}, v46")
    A("v_sub_f32 v48, v32, v46")
    A("v_mul_f32 v47, v48, v48")
    for k in range(1, 14):
        A(f"v_sub_f32 v48, v{32+k}, v46")
        A("v_fmac_f32 v47, v48, v48")
    red32(47, 48)
    A(f"v_mul_f32 v47, {hex(f2u(1.0/448))}, v47")
    A("v_cvt_pk_bf16_f32 v48, v46, v47")
    A("v_lshlrev_b32 v46, 16, v48")
    A("v_and_b32 v47, 0xffff0000, v48")
    A(f"v_add_f32 v47, {hex(f2u(1e-5))}, v47")
    A("v_cvt_pk_bf16_f32 v47, v47, v47")
    A("v_lshlrev_b32 v47, 16, v47")
    A("v_sqrt_f32 v47, v47")
    A("s_nop 0")
    A("v_cvt_pk_bf16_f32 v47, v47, v47")
    A("v_lshlrev_b32 v47, 16, v47")
    A("v_rcp_f32 v47, v47")
    for k in range(14):
        A(f"v_sub_f32 v{32+k}, v{32+k}, v46")
    for m in range(7):
        A(f"v_cvt_pk_bf16_f32 v{24+m}, v{32+2*m}, v{33+2*m}")
    for m in range(7):
        A(f"v_lshlrev_b32 v{32+2*m}, 16, v{24+m}")
        A(f"v_and_b32 v{33+2*m}, 0xffff0000, v{24+m}")
    for k in range(14):
        A(f"v_mul_f32 v{32+k}, v{32+k}, v47")
    for m in range(7):
        A(f"v_cvt_pk_bf16_f32 v{24+m}, v{32+2*m}, v{33+2*m}")
    A(f"v_add_u32 v22, {LD['XN']}, v22")
    for m in range(7):
        A(f"ds_write_b32 v22, v{24+m} offset:{128*m}")
    if cfg.QV == 1:
        A("s_mul_i32 s46, s52, 896"); A("s_mul_i32 s47, s57, 224"); A("s_add_u32 s46, s46, s47"); A(f"s_add_u32 s46, s46, {LD['XN']}")
        A("v_mul_u32_u24 v22, 56, v11")
        A("v_add_u32 v22, s46, v22")
        A("s_waitcnt lgkmcnt(0)")
        for m in range(7):
            A(f"ds_read_b64 v[{32+2*m}:{33+2*m}], v22 offset:{8*m}")
        A("s_waitcnt lgkmcnt(0)")
        for t in range(28):
            src = 32 + t // 2; sel = 12 + 4 * (t % 2); bb = 48 + 4 * (t % 2)
            for k in range(4):
                A(f"v_perm_b32 v{bb+k}, v{src}, v{src}, v{sel+k}")
            A(f"s_waitcnt vmcnt({27 - t + 1 + ND})")
            A("s_nop 0")
            A(f"v_mfma_f32_16x16x32_bf16 v[56:59], v[{64+4*t}:{67+4*t}], v[{bb}:{bb+3}], {'0' if t == 0 else 'v[56:59]'}")
        A("v_lshlrev_b32 v23, 7, v11")
        A("v_lshl_add_u32 v23, v10, 4, v23")
        A("s_lshl_b32 s46, s50, 13"); A("s_lshl_b32 s47, s56, 11"); A("s_add_u32 s46, s46, s47")
        A("s_lshl_b32 s47, s57, 9"); A("s_add_u32 s46, s46, s47"); A(f"s_add_u32 s46, s46, {WS_QP}")
        A("s_waitcnt vmcnt(0)")
        for k in range(4):
            tag(56 + k)
        A("s_mov_b32 exec_lo, 0x00ff00ff"); A("s_mov_b32 exec_hi, 0x00ff00ff")
        A("buffer_store_dwordx4 v[56:59], v23, s[36:39], s46 offen sc1")
        A("s_mov_b64 exec, -1")
        stamp(1)
        A("v_lshlrev_b32 v25, 7, v1")
        A("s_lshl_b32 s46, s50, 13"); A(f"s_add_u32 s46, s46, {WS_QP}")
        A("s_add_u32 s47, s46, 4096")
        A("v_lshlrev_b32 v22, 11, v20")
        A("v_lshl_add_u32 v22, v21, 4, v22")
        A("L_h_qpoll:")
        A("buffer_load_dword v26, v25, s[36:39], s46 offen sc1")
        A("s_waitcnt vmcnt(0)")
        tagcheck([26], 27)
        A("s_cbranch_vccz L_h_qgo")
        A("L_h_qretry:")
        spin_tail("L_h_qpoll", sleep=cfg.QSLEEP)
        A("L_h_qgo:")
        for z in range(2):
            for rs in range(4):
                A(f"buffer_load_dwordx4 v[{64+16*z+4*rs}:{67+16*z+4*rs}], v22, s[36:39], s{46+z} offen offset:{rs*512} sc1")
        A("s_waitcnt vmcnt(0)")
        tagcheck(range(64, 96), 27)
        A("s_cbranch_vccnz L_h_qretry")
        A("v_lshrrev_b32 v23, 3, v21")
        A("v_lshlrev_b32 v23, 6, v23")
        A("v_lshl_add_u32 v23, v20, 8, v23")
        A("v_lshl_add_u32 v23, v3, 1, v23")
        A(f"v_add_u32 v23, {LD['Q']}, v23")
        for z in range(2):
            b0 = 64 + 16 * z
            for k in range(4):
                A(f"v_add_f32 v{b0+k}, v{b0+k}, v{b0+4+k}")
                A(f"v_add_f32 v{b0+8+k}, v{b0+8+k}, v{b0+12+k}")
            for k in range(4):
                A(f"v_add_f32 v{b0+k}, v{b0+k}, v{b0+8+k}")
            A(f"v_cvt_pk_bf16_f32 v{b0}, v{b0}, v{b0+1}")
            A(f"v_cvt_pk_bf16_f32 v{b0+1}, v{b0+2}, v{b0+3}")
            A(f"ds_write_b16 v23, v{b0} offset:{z*512}")
            A(f"ds_write_b16_d16_hi v23, v{b0} offset:{z*512+16}")
            A(f"ds_write_b16 v23, v{b0+1} offset:{z*512+32}")
            A(f"ds_write_b16_d16_hi v23, v{b0+1} offset:{z*512+48}")
    else:
        A("s_mul_i32 s46, s52, 896"); A(f"s_add_u32 s46, s46, {LD['XN']}")
        A("v_lshrrev_b32 v22, 3, v10"); A("v_lshl_add_u32 v22, v11, 2, v22"); A("v_mul_u32_u24 v22, 56, v22")
        A("v_add_u32 v22, s46, v22")
        A("s_waitcnt lgkmcnt(0)")
        for m in range(7):
            A(f"ds_read_b64 v[{32+2*m}:{33+2*m}], v22 offset:{8*m}")
        for m in range(7):
            A(f"ds_read_b64 v[{176+2*m}:{177+2*m}], v22 offset:{112+8*m}")
        A("s_waitcnt lgkmcnt(0)")
        for t in range(28):
            sel = 12 + 4 * (t % 2)
            for k in range(4):
                A(f"v_perm_b32 v{48+k}, v{32+t//2}, v{32+t//2}, v{sel+k}")
            for k in range(4):
                A(f"v_perm_b32 v{52+k}, v{176+t//2}, v{176+t//2}, v{sel+k}")
            A(f"s_waitcnt vmcnt({27 - t + 1 + ND})")
            A(f"v_mfma_f32_16x16x32_bf16 v[56:59], v[{64+4*t}:{67+4*t}], v[48:51], {'0' if t == 0 else 'v[56:59]'}")
            A(f"v_mfma_f32_16x16x32_bf16 v[60:63], v[{64+4*t}:{67+4*t}], v[52:55], {'0' if t == 0 else 'v[60:63]'}")
        A("v_lshlrev_b32 v23, 4, v1")
        A("s_lshl_b32 s46, s50, 11"); A(f"s_add_u32 s46, s46, {WS_QP}")
        A("s_lshl_b32 s47, s56, 7"); A("s_add_u32 s47, s47, s46")
        A("s_mov_b32 exec_lo, 0")
        A("s_nop 2")
        for k in range(4):
            A(f"v_mov_b32 v{56+k}, v{60+k}")
        A("s_mov_b32 exec_lo, 0x00ffff00"); A("s_mov_b32 exec_hi, 0x00ffff00")
        for k in range(4):
            A(f"v_mov_b32 v{56+k}, 0")
        A("s_mov_b64 exec, -1")
        for k in range(4):
            A(f"v_add_f32_dpp v{56+k}, v{56+k}, v{56+k} row_ror:8 row_mask:0xf bank_mask:0xf")
        for sw in ("16", "32"):
            for k in range(4):
                A(f"v_mov_b32 v{60+k}, v{56+k}")
            A("s_nop 0")
            for k in range(4):
                A(f"v_permlane{sw}_swap_b32 v{56+k}, v{60+k}")
            for k in range(4):
                A(f"v_add_f32 v{56+k}, v{56+k}, v{60+k}")
        for k in range(4):
            A(f"v_cvt_pk_bf16_f32 v{56+k}, 0, v{56+k}")
        for k in range(4):
            A(f"v_or_b32 v{56+k}, v{56+k}, v{TG}")
        A("s_waitcnt vmcnt(0)")
        A("s_mov_b64 exec, 0xff")
        A("buffer_store_dwordx4 v[56:59], v23, s[36:39], s47 offen sc1")
        A("s_mov_b64 exec, -1")
        stamp(1)
        A("v_lshrrev_b32 v22, 3, v1"); A("v_lshlrev_b32 v22, 6, v22"); A("v_lshl_add_u32 v22, v3, 1, v22")
        A(f"v_add_u32 v22, {LD['Q']}, v22")
        A("s_waitcnt vmcnt(0)")
        A("L_h_qpoll:")
        A("buffer_load_dwordx4 v[64:67], v23, s[36:39], s46 offen sc1")
        A("buffer_load_dwordx4 v[68:71], v23, s[36:39], s46 offen offset:1024 sc1")
        A("s_waitcnt vmcnt(0)")
        tagcheck(range(64, 72), 27)
        A("s_cbranch_vccz L_h_qgo")
        spin_tail("L_h_qpoll", sleep=cfg.QSLEEP)
        A("L_h_qgo:")
        for z in range(2):
            for r in range(4):
                A(f"ds_write_b16_d16_hi v22, v{64+4*z+r} offset:{z*512+16*r}")
    A(f"v_mov_b32 v24, {LD['FLAGS']}"); A("v_mov_b32 v25, 1")
    A("s_waitcnt lgkmcnt(0)")
    A("ds_write_b32 v24, v25 offset:4")
    stamp(2)
    A("s_mov_b32 s56, s50")
    A("s_cmp_lg_u32 s51, s50")
    A("s_cbranch_scc1 L_h_noffn")
    FB = cfg.FB; NFB = 1792 // FB; RS = FB // 4
    if NFB < 16:
        A(f"s_cmp_ge_u32 s50, {NFB}")
        A("s_cbranch_scc1 L_h_noffn")
    srd(28, 16, 16 if cfg.NOFFN in (1, 3) else 448 * 3584)
    srd(32, 18, 16 if cfg.NOFFN in (1, 3) else 448 * 3584)
    A(f"v_mul_u32_u24 v23, {112*3584}, v11")
    A("v_lshl_add_u32 v23, v10, 4, v23")
    A(f"v_cmp_le_u32 vcc, {FB // 8}, v10")
    A("v_bfrev_b32 v27, 2")
    A(f"s_mul_i32 s46, s56, {FB * 2}")
    A("v_cndmask_b32 v23, v23, v27, vcc")
    A("v_lshrrev_b32 v22, 3, v10")
    A("v_mul_u32_u24 v22, 896, v22")
    A("v_mul_u32_u24 v24, 224, v11")
    A(f"v_add3_u32 v22, v22, v24, 0")
    A(f"v_add_u32 v22, {LD['XN']}, v22")
    for k in range(8):
        A(f"v_mov_b32 v{56+k}, 0")
    def ffn_loads(t):
        A(f"buffer_load_dwordx4 v[{64+8*t}:{67+8*t}], v23, s[28:31], s46 offen nt")
        A(f"buffer_load_dwordx4 v[{68+8*t}:{71+8*t}], v23, s[32:35], s46 offen nt")
        A("s_add_u32 s46, s46, 3584")
    A("s_waitcnt vmcnt(0)")
    FD = cfg.FD; DD = FD // 2; YA = 196
    for t in range(FD):
        ffn_loads(t)
    A(f"s_mov_b32 s57, {112 // FD - 1}")
    def ffn_iter(reissue):
        for z in range(FD // 8):
            A(f"ds_read_b128 v[{32+4*z}:{35+4*z}], v22 offset:{16*z}")
        A(f"v_add_u32 v22, {2*FD}, v22")
        A("s_waitcnt lgkmcnt(0)")
        for t in range(FD):
            src = 32 + t // 2; sel = 12 + 4 * (t % 2); bb = 48 + 4 * (t % 2)
            for k in range(4):
                A(f"v_perm_b32 v{bb+k}, v{src}, v{src}, v{sel+k}")
            A(f"s_waitcnt vmcnt({2*FD-2 if reissue else 2*FD-2 - 2*t})")
            A("s_nop 0")
            A(f"v_mfma_f32_16x16x32_bf16 v[56:59], v[{64+8*t}:{67+8*t}], v[{bb}:{bb+3}], v[56:59]")
            A(f"v_mfma_f32_16x16x32_bf16 v[60:63], v[{68+8*t}:{71+8*t}], v[{bb}:{bb+3}], v[60:63]")
            if reissue:
                ffn_loads(t)
    A("L_h_f1:")
    ffn_iter(True)
    A("s_sub_u32 s57, s57, 1"); A("s_cmp_lg_u32 s57, 0"); A("s_cbranch_scc1 L_h_f1")
    ffn_iter(False)
    srd(28, 20, 16 if cfg.NOFFN in (1, 2) else 1792 * 896)
    A(f"v_mul_u32_u24 v23, {RS*896}, v11")
    A("v_lshl_add_u32 v23, v10, 4, v23")
    A("v_cmp_le_u32 vcc, 8, v10")
    A(f"s_mul_i32 s46, s56, {FB*896}")
    A("s_nop 0")
    A("v_cndmask_b32 v26, v23, v27, vcc")
    def dn_loads(t):
        for nb in range(4):
            A(f"buffer_load_dwordx4 v[{64+16*t+4*nb}:{67+16*t+4*nb}], v{26 if nb == 3 else 23}, s[28:31], s46 offen offset:{nb*256} nt")
        A("s_add_u32 s46, s46, 896")
    A("s_nop 4")
    for t in range(DD):
        dn_loads(t)
    A("v_cvt_pk_bf16_f32 v32, v56, v57"); A("v_cvt_pk_bf16_f32 v33, v58, v59")
    A("v_cvt_pk_bf16_f32 v34, v60, v61"); A("v_cvt_pk_bf16_f32 v35, v62, v63")
    for k in range(4):
        A(f"v_lshlrev_b32 v{36+2*k}, 16, v{32+k}")
        A(f"v_and_b32 v{37+2*k}, 0xffff0000, v{32+k}")
    K0 = -2.0 * math.sqrt(2.0 / math.pi) * math.log2(math.e)
    A(f"s_mov_b32 s71, {hex(f2u(0.044715))}")
    for k in range(4):
        A(f"v_mul_f32 v{44+k}, v{36+k}, v{36+k}")
        A(f"v_mul_f32 v{44+k}, v{44+k}, v{36+k}")
        A(f"v_fma_f32 v{44+k}, v{44+k}, s71, v{36+k}")
        A(f"v_mul_f32 v{44+k}, {hex(f2u(K0))}, v{44+k}")
    for k in range(4):
        A(f"v_exp_f32 v{44+k}, v{44+k}")
    A("s_nop 0")
    for k in range(4):
        A(f"v_add_f32 v{44+k}, 1.0, v{44+k}")
    for k in range(4):
        A(f"v_rcp_f32 v{44+k}, v{44+k}")
    A("s_nop 0")
    for k in range(4):
        A(f"v_mul_f32 v{44+k}, v{44+k}, v{36+k}")
    A("v_cvt_pk_bf16_f32 v32, v44, v45"); A("v_cvt_pk_bf16_f32 v33, v46, v47")
    for k in range(2):
        A(f"v_lshlrev_b32 v{44+2*k}, 16, v{32+k}")
        A(f"v_and_b32 v{45+2*k}, 0xffff0000, v{32+k}")
    for k in range(4):
        A(f"v_mul_f32 v{44+k}, v{44+k}, v{40+k}")
    A("v_cvt_pk_bf16_f32 v32, v44, v45"); A("v_cvt_pk_bf16_f32 v33, v46, v47")
    A("v_lshrrev_b32 v22, 3, v10")
    A("v_lshlrev_b32 v22, 8, v22")
    A(f"v_add_u32 v22, {LD['H']}, v22")
    A("v_lshl_add_u32 v24, v11, 6, v22")
    A("v_lshl_add_u32 v24, v3, 1, v24")
    A(f"v_mul_u32_u24 v25, {RS*2}, v11")
    A("v_add_u32 v22, v22, v25")
    A("ds_write_b16 v24, v32")
    A("ds_write_b16_d16_hi v24, v32 offset:16")
    A("ds_write_b16 v24, v33 offset:32")
    A("ds_write_b16_d16_hi v24, v33 offset:48")
    for k in range(16):
        A(f"v_mov_b32 v{YA+k}, 0")
    A("s_waitcnt lgkmcnt(0)")
    A(f"s_mov_b32 s57, {RS // DD - 1}")
    def dn_iter(reissue):
        for z in range(DD // 4):
            A(f"ds_read_b64 v[{32+2*z}:{33+2*z}], v22 offset:{8*z}")
        A(f"v_add_u32 v22, {2*DD}, v22")
        A("s_waitcnt lgkmcnt(0)")
        for t in range(DD):
            src = 32 + t // 2; sel = 12 + 4 * (t % 2); bb = 48 + 4 * (t % 2)
            for k in range(4):
                A(f"v_perm_b32 v{bb+k}, v{src}, v{src}, v{sel+k}")
            A(f"s_waitcnt vmcnt({4*DD-4 if reissue else 4*DD-4 - 4*t})")
            A("s_nop 0")
            for nb in range(4):
                A(f"v_mfma_f32_16x16x32_bf16 v[{YA+4*nb}:{YA+3+4*nb}], v[{64+16*t+4*nb}:{67+16*t+4*nb}], v[{bb}:{bb+3}], v[{YA+4*nb}:{YA+3+4*nb}]")
            if reissue:
                dn_loads(t)
    A("L_h_f2:")
    dn_iter(True)
    A("s_sub_u32 s57, s57, 1"); A("s_cmp_lg_u32 s57, 0"); A("s_cbranch_scc1 L_h_f2")
    dn_iter(False)
    A("v_lshrrev_b32 v22, 3, v10")
    A("v_lshlrev_b32 v22, 11, v22")
    A("v_lshl_add_u32 v22, v11, 7, v22")
    A("v_lshl_add_u32 v22, v3, 4, v22")
    A("s_lshl_b32 s46, s56, 12"); A(f"s_add_u32 s46, s46, {WS_HY}")
    A("s_nop 4")
    for k in range(16):
        tag(YA + k)
    for nb in range(4):
        if nb == 3:
            A("s_mov_b32 exec_hi, 0")
        A(f"buffer_store_dwordx4 v[{YA+4*nb}:{YA+3+4*nb}], v22, s[36:39], s46 offen offset:{nb*512} sc1")
    A("s_mov_b64 exec, -1")
    stamp(3)
    A("L_h_noffn:")
    A("s_and_b32 s56, s2, 127")
    A("s_cmp_eq_u32 s2, 255")
    A("s_cbranch_scc1 L_h_epoch")
    A("s_cmp_ge_u32 s56, 28")
    A("s_cbranch_scc1 L_end")
    A("v_lshlrev_b32 v22, 12, v10")
    A("v_lshl_add_u32 v22, v11, 4, v22")
    A("s_lshl_b32 s46, s52, 11"); A("s_lshl_b32 s47, s56, 6"); A("s_add_u32 s46, s46, s47"); A(f"s_add_u32 s46, s46, {WS_HY}")
    for k in range(4):
        A(f"v_mov_b32 v{64+k}, 0")
    ym = ((1 << NFB) - 1) * 0x10001
    A(f"s_mov_b32 exec_lo, {hex(ym)}"); A(f"s_mov_b32 exec_hi, {hex(ym)}")
    A("L_h_ypoll:")
    A("buffer_load_dwordx4 v[64:67], v22, s[36:39], s46 offen sc1")
    A("s_waitcnt vmcnt(0)")
    tagcheck(range(64, 68), 27)
    A("s_cbranch_vccz L_h_ygo")
    spin_tail("L_h_ypoll", sleep=64)
    A("L_h_ygo:")
    A("s_mov_b64 exec, -1")
    A("s_lshr_b32 s47, s56, 1"); A("s_lshl_b32 s47, s47, 5"); A("s_and_b32 s48, s56, 1"); A("s_lshl_b32 s48, s48, 2")
    A("s_add_u32 s47, s47, s48"); A("s_mul_i32 s48, s52, 448"); A("s_add_u32 s47, s47, s48"); A("s_lshl_b32 s57, s47, 1")
    srd(28, 4, 1792)
    srd(32, 22, 1792)
    A("v_lshlrev_b32 v23, 1, v11")
    for rr in range(4):
        A(f"buffer_load_ushort v{72+rr}, v23, s[28:31], s57 offen offset:{16*rr}")
    A("s_waitcnt vmcnt(0)")
    for sh in (8, 4, 2, 1):
        for k in range(4):
            A(f"v_add_f32_dpp v{64+k}, v{64+k}, v{64+k} row_ror:{sh} row_mask:0xf bank_mask:0xf")
    A("v_cvt_pk_bf16_f32 v68, v64, v65"); A("v_cvt_pk_bf16_f32 v69, v66, v67")
    for k in range(2):
        A(f"v_lshlrev_b32 v{64+2*k}, 16, v{68+k}")
        A(f"v_and_b32 v{65+2*k}, 0xffff0000, v{68+k}")
    for k in range(4):
        A(f"v_mul_f32 v{68+k}, {hex(f2u(-math.log2(math.e)))}, v{64+k}")
    for k in range(4):
        A(f"v_exp_f32 v{68+k}, v{68+k}")
    A("s_nop 0")
    for k in range(4):
        A(f"v_add_f32 v{68+k}, 1.0, v{68+k}")
    for k in range(4):
        A(f"v_rcp_f32 v{68+k}, v{68+k}")
    A("s_nop 0")
    for k in range(4):
        A(f"v_mul_f32 v{64+k}, v{64+k}, v{68+k}")
    A("v_cvt_pk_bf16_f32 v68, v64, v65"); A("v_cvt_pk_bf16_f32 v69, v66, v67")
    for k in range(2):
        A(f"v_lshlrev_b32 v{76+2*k}, 16, v{68+k}")
        A(f"v_and_b32 v{77+2*k}, 0xffff0000, v{68+k}")
    for k in range(4):
        A(f"v_lshlrev_b32 v{72+k}, 16, v{72+k}")
    A("v_lshlrev_b32 v22, 11, v10")
    A("v_lshl_add_u32 v22, v11, 4, v22")
    A("s_lshl_b32 s46, s52, 18"); A("s_lshl_b32 s47, s56, 6"); A("s_add_u32 s46, s46, s47"); A(f"s_add_u32 s46, s46, {WS_HB}")
    for k in range(1, 8):
        A(f"s_add_u32 s{63+k}, s46, {k*32768}")
    stamp(4)
    A("s_waitcnt vmcnt(0) lgkmcnt(0)")
    A("s_barrier")
    A("s_barrier")
    if cfg.BAR4:
        A("s_barrier")
    def issB():
        for k in range(8):
            A(f"buffer_load_dwordx4 v[{96+4*k}:{99+4*k}], v22, s[36:39], s{46 if k == 0 else 63+k} offen sc1")
    poll("L_h_bpoll", issB, 8, lambda: tagcheck(range(96, 128), 24), "L_h_bgo")
    A("L_h_bgo:")
    A("s_mov_b64 exec, -1")
    stamp(5)
    for k in range(16):
        A(f"v_add_f32 v{128+k}, v{96+k}, v{112+k}")
    for step in (8, 4):
        for k in range(step):
            A(f"v_add_f32 v{128+k}, v{128+k}, v{128+step+k}")
    A("s_nop 0")
    for sh in (8, 4, 2, 1):
        for k in range(4):
            A(f"v_add_f32_dpp v{128+k}, v{128+k}, v{128+k} row_ror:{sh} row_mask:0xf bank_mask:0xf")
    A("v_cvt_pk_bf16_f32 v132, v128, v129"); A("v_cvt_pk_bf16_f32 v133, v130, v131")
    for k in range(2):
        A(f"v_lshlrev_b32 v{128+2*k}, 16, v{132+k}")
        A(f"v_and_b32 v{129+2*k}, 0xffff0000, v{132+k}")
    for k in range(4):
        A(f"v_mul_f32 v{128+k}, v{128+k}, v{76+k}")
    A("v_cvt_pk_bf16_f32 v132, v128, v129"); A("v_cvt_pk_bf16_f32 v133, v130, v131")
    for k in range(2):
        A(f"v_lshlrev_b32 v{128+2*k}, 16, v{132+k}")
        A(f"v_and_b32 v{129+2*k}, 0xffff0000, v{132+k}")
    for k in range(4):
        A(f"v_add_f32 v{128+k}, v{128+k}, v{72+k}")
    A("v_cvt_pk_bf16_f32 v132, v128, v129"); A("v_cvt_pk_bf16_f32 v133, v130, v131")
    A("s_mov_b32 exec_lo, 0x00010001"); A("s_mov_b32 exec_hi, 0x00010001")
    A("buffer_store_short v132, v23, s[32:35], s57 offen")
    A("buffer_store_short_d16_hi v132, v23, s[32:35], s57 offen offset:16")
    A("buffer_store_short v133, v23, s[32:35], s57 offen offset:32")
    A("buffer_store_short_d16_hi v133, v23, s[32:35], s57 offen offset:48")
    A("s_mov_b64 exec, -1")
    stamp(6)
    if cfg.DBGT:
        A("s_memrealtime s[94:95]")
        srd(28, 24, 256)
        A("s_waitcnt lgkmcnt(0)")
        A("s_not_b32 s92, s92")
        A("v_mov_b32 v24, s92"); A("v_mov_b32 v25, s94"); A("v_mov_b32 v26, 0")
        A("s_mov_b64 exec, 1")
        A("buffer_atomic_umax v24, v26, s[28:31], 0 offen sc1")
        A("buffer_atomic_umax v25, v26, s[28:31], 0 offen offset:4 sc1")
    A("L_end:")
    A("s_endpgm")
    A("L_h_epoch:")
    if cfg.HAL:
        A(f"v_mul_u32_u24 v22, {HBS}, v1")
        for k in range(4):
            A(f"s_mov_b32 s{64+k}, {WS_HA2 + 2048 + k*64*HBS}")
    else:
        A("v_lshlrev_b32 v22, 12, v11")
        A("v_lshl_add_u32 v22, v10, 7, v22")
        for k in range(4):
            A(f"s_mov_b32 s{64+k}, {WS_HM + k*4*4096}")
    A("s_waitcnt vmcnt(0) lgkmcnt(0)")
    A("s_barrier")
    A("s_barrier")
    if cfg.BAR4:
        A("s_barrier")
    A("L_h_epoll:")
    for k in range(4):
        A(f"buffer_load_dwordx2 v[{96+2*k}:{97+2*k}], v22, s[36:39], s{64+k} offen offset:8 sc1")
    A("s_waitcnt vmcnt(0)")
    tagcheck([], 24, full=range(96, 104))
    A("s_cbranch_vccz L_h_ego")
    spin_tail("L_h_epoll", sleep=8)
    A("L_h_ego:")
    A("v_mov_b32 v24, s58"); A("v_mov_b32 v25, 0")
    A("s_mov_b64 exec, 1")
    A(f"buffer_store_dword v24, v25, s[36:39], 0 offen offset:{WS_EP}")
    A("s_endpgm")
    nv = 256 if cfg.DIAG else 216
    A('.section .rodata,"a"'); A(".p2align 6"); A(f".amdhsa_kernel {NAME}")
    A.L.append(f"  .amdhsa_next_free_vgpr {nv}"); A.L.append("  .amdhsa_next_free_sgpr 102"); A.L.append(f"  .amdhsa_accum_offset {nv}")
    A.L.append("  .amdhsa_group_segment_fixed_size 0"); A.L.append("  .amdhsa_kernarg_size 96"); A.L.append("  .amdhsa_user_sgpr_count 2")
    A.L.append("  .amdhsa_user_sgpr_kernarg_segment_ptr 1"); A.L.append("  .amdhsa_system_sgpr_workgroup_id_x 1"); A(".end_amdhsa_kernel")
    FL = {0: "sc1", 1: "sc0 sc1", 2: "sc0 sc1 nt", 3: "sc1 nt"}
    for i, line in enumerate(A.L):
        if line.startswith("buffer_load") and line.endswith(" sc1"):
            A.L[i] = line[:-3] + FL[cfg.PF]
        if line.startswith("buffer_load") and line.endswith(" nt"):
            A.L[i] = line[:-2] + POL[cfg.WP]
        if line.startswith("buffer_store") and line.endswith(" sc1"):
            A.L[i] = line[:-3] + FL[cfg.SF]
    if cfg.DIAG:
        sys.stderr.write(str(codes) + "\n")
    return "\n".join(A.L) + "\n"

if __name__ == "__main__":
    cfg = Cfg()
    out = sys.argv[1]
    for kv in sys.argv[2:]:
        k, v = kv.split("=")
        setattr(cfg, k, tuple(int(x) for x in v.split("/") if x) if k == "SIZES" else int(v))
    open(out, "w").write(gen(cfg))
```

```python
import sys, math
NAME = "recurrent_scan__gqa_block_cached__glu_gated_geglu__decode_kernel"

class Cfg:
    F = 20
    R = 9
    C = 6
    DIAG = False
    SPIN = 1 << 22
    NOSWZ = 0
    NOCOMP = 0
    NOWO = 0
    NOWQ = 0
    PSLEEP = 1
    QSLEEP = 4
    BAR3 = 1
    BAR4 = 1
    MASKP = 1
    DBGT = 0
    F3 = 0
    LBAR = 0
    FD = 8
    ET = 2
    PIPE = 0
    QV = 2
    HAL = 0
    EARLYK = 1
    WOLATE = 4
    PGAP = 4
    EZ = 5
    HSLEEP = 1
    PF = 0
    FB = 128
    STAT = 2
    KP = 1
    VP = 1
    WP = 1
    ROT = 5
    GS = 11
    WIN = 1
    SF = 0
    SIZES = (5, 2, 1)
    NOFFN = 0

def lds_layout(R):
    o = R * 16384
    L = {}
    L['FLAGS'] = o; o += 256
    L['Q'] = o; o += 1024
    L['XN'] = o; o += 1792
    L['H'] = o; o += 512
    L['SC'] = o; o += 64 * 128
    L['END'] = o
    return L

WS_EP = 0
WS_PC = 0x1000
PCS = 4352
WS_QP = 0x20000
WS_HA = 0x40000
WS_HA2 = 0x280000
HBS = 2304
WS_HM = 0xC0000
WS_HB = 0xD0000
WS_HY = 0x150000
WS_DIAG = 0x200000
WS_SIZE = 0x400000
TAGM = 0xf
POL = {0: "", 1: "nt", 2: "sc1", 3: "sc0 sc1", 4: "sc1 nt", 5: "sc0 sc1 nt", 6: "sc0", 7: "sc0 nt"}
CSC = 0.0625 * math.log2(math.e)

import struct
def f2u(x):
    return struct.unpack('<I', struct.pack('<f', x))[0]

class Asm:
    def __init__(self):
        self.L = []
        self.n = 0
    def __call__(self, s):
        for line in s.strip('\n').split('\n'):
            self.L.append(line.strip() if not line.strip().endswith(':') else line.strip())
    def label(self, base):
        self.n += 1
        return f"L_{base}_{self.n}"

def gen(cfg):
    F, R, C = cfg.F, cfg.R, cfg.C
    LD = lds_layout(R)
    assert LD['END'] <= 163840, LD['END']
    A = Asm()
    NUNITS = 128
    SIZES = tuple(cfg.SIZES)
    S = NUNITS - sum(SIZES)
    NT = 16 * len(SIZES)
    assert len(SIZES) <= 8
    SZP = sum(v << (8 * r) for r, v in enumerate(SIZES))
    STP = sum((S + sum(SIZES[:r])) << (8 * r) for r in range(len(SIZES)))
    def srd(dst, base, size, add=None):
        if add is None:
            A(f"s_mov_b32 s{dst}, s{base}")
            A(f"s_and_b32 s{dst+1}, s{base+1}, 0xffff")
        else:
            A(f"s_add_u32 s{dst}, s{base}, s{add}")
            A(f"s_addc_u32 s{dst+1}, s{base+1}, 0")
            A(f"s_and_b32 s{dst+1}, s{dst+1}, 0xffff")
        A(f"s_mov_b32 s{dst+2}, {size}")
        A(f"s_mov_b32 s{dst+3}, 0x20000")
    def stamp(idx, tmpv=(250, 251, 252)):
        if not cfg.DIAG:
            return
        A(f"s_memrealtime s[96:97]")
        A(f"s_lshl_b32 s98, s2, 3")
        A(f"s_add_u32 s98, s98, s3")
        A(f"s_lshl_b32 s98, s98, 7")
        A(f"s_add_u32 s98, s98, {WS_DIAG + idx*8}")
        A(f"s_waitcnt lgkmcnt(0)")
        A(f"v_mov_b32 v{tmpv[0]}, s96")
        A(f"v_mov_b32 v{tmpv[1]}, s97")
        A(f"v_mov_b32 v{tmpv[2]}, 0")
        A(f"s_mov_b64 s[94:95], exec")
        A(f"s_mov_b64 exec, 1")
        A(f"buffer_store_dwordx2 v[{tmpv[0]}:{tmpv[1]}], v{tmpv[2]}, s[36:39], s98 offen")
        A(f"s_mov_b64 exec, s[94:95]")
    TG = 193
    def tag(v):
        A(f"v_bfi_b32 v{v}, s59, v{TG}, v{v}")
    def tagcheck(regs, acc, full=()):
        regs = list(regs)
        if len(regs) == 0:
            A(f"v_mov_b32 v{acc}, 0")
        elif len(regs) == 1:
            A(f"v_xor_b32 v{acc}, v{regs[0]}, v{TG}")
        else:
            A(f"v_bitop3_b32 v{acc}, v{regs[0]}, v{regs[1]}, v{TG} bitop3:0x7e")
            for r in regs[2:]:
                A(f"v_bitop3_b32 v{acc}, v{acc}, v{r}, v{TG} bitop3:0xf6")
        A(f"v_and_b32 v{acc}, s59, v{acc}")
        for r in full:
            A(f"v_bitop3_b32 v{acc}, v{acc}, v{r}, s58 bitop3:0xf6")
        A(f"v_cmp_ne_u32 vcc, 0, v{acc}")
    def remask():
        if cfg.MASKP:
            A("s_or_b32 s76, vcc_lo, vcc_hi"); A("s_lshr_b32 s77, s76, 16"); A("s_or_b32 s76, s76, s77")
            A("s_pack_ll_b32_b16 s76, s76, s76")
            A("s_mov_b32 exec_lo, s76"); A("s_mov_b32 exec_hi, s76")
    def poll(lbl, issue, n, check, go):
        if not cfg.PIPE:
            A(f"{lbl}:")
            issue()
            A("s_waitcnt vmcnt(0)")
            check()
            A(f"s_cbranch_vccz {go}")
            remask()
            spin_tail(lbl, sleep=cfg.HSLEEP)
        else:
            issue()
            A("s_waitcnt vmcnt(0)")
            check()
            A(f"s_cbranch_vccz {go}")
            remask()
            for d in range(cfg.PIPE):
                issue()
                A(f"s_sleep {cfg.PGAP}")
            A(f"{lbl}:")
            issue()
            A(f"s_waitcnt vmcnt({n * cfg.PIPE})")
            check()
            A(f"s_cbranch_vccz {go}")
            remask()
            spin_tail(lbl, sleep=0)
    codes = {}
    def die(lbl):
        if cfg.DIAG:
            codes.setdefault(lbl, len(codes) + 1)
            A("s_mov_b64 exec, 1")
            A(f"v_mov_b32 v248, {codes[lbl]}"); A("v_mov_b32 v249, s40"); A("v_mov_b32 v250, s43"); A("v_mov_b32 v251, s73"); A("v_mov_b32 v252, 0")
            A("s_lshl_b32 s98, s2, 3"); A("s_add_u32 s98, s98, s3"); A("s_lshl_b32 s98, s98, 7"); A(f"s_add_u32 s98, s98, {WS_DIAG + 112}")
            A("buffer_store_dwordx4 v[248:251], v252, s[36:39], s98 offen")
        A("s_endpgm")
    def spin_tail(lbl, cnt="s45", sleep=1):
        A(f"s_sleep {sleep}")
        A(f"s_sub_u32 {cnt}, {cnt}, 1")
        A(f"s_cmp_lg_u32 {cnt}, 0")
        A(f"s_cbranch_scc1 {lbl}")
        die(lbl)

    hdr = open('recurrent_scan__gqa_block_cached__glu_gated_geglu__decode.s.ref').read().split('\n')
    for line in hdr:
        if line.startswith('; @launch') or not line.startswith(';'):
            break
        A.L.append(line)
    A(f"; @launch grid=(256,1,1) block=(512,1,1) lds={LD['END']}")
    A('.amdgcn_target "amdgcn-amd-amdhsa--gfx950"')
    A(".text"); A(f".globl {NAME}"); A(".p2align 8"); A(f".type {NAME},@function"); A(f"{NAME}:")
    if cfg.DIAG or cfg.DBGT:
        A("s_memrealtime s[92:93]")
    A(f"""
    s_cmp_ge_u32 s2, 256
    s_cbranch_scc1 L_end
    s_load_dwordx8 s[4:11], s[0:1], 0
    s_load_dwordx8 s[12:19], s[0:1], 32
    s_load_dwordx8 s[20:27], s[0:1], 64
    v_and_b32 v1, 63, v0
    v_lshrrev_b32 v2, 6, v0
    v_lshlrev_b32 v3, 2, v1
    v_add_u32 v3, {LD['FLAGS']}, v3
    v_mov_b32 v4, 0
    ds_write_b32 v3, v4
    v_readfirstlane_b32 s3, v2
    s_mov_b32 s45, {cfg.SPIN}
    s_mov_b32 s40, 0
    s_mov_b32 s43, 0
    s_mov_b32 s73, 0
    """)
    A("v_lshrrev_b32 v5, 5, v1")
    A("v_and_b32 v6, 31, v1")
    A("v_xor_b32 v6, v6, v5")
    A("v_lshlrev_b32 v5, 9, v5")
    for j in range(8):
        A(f"v_xor_b32 v7, {2*j}, v6")
        A(f"v_lshl_add_u32 v{8+j}, v7, 4, v5")
    A("v_lshlrev_b32 v16, 4, v1")
    A(f"v_mov_b32 v17, {LD['FLAGS']}")
    A("s_lshr_b32 s46, s2, 4")
    A("s_lshl_b32 s46, s46, 24")
    A("s_waitcnt lgkmcnt(0)")
    if cfg.LBAR:
        A("s_cmp_eq_u32 s3, 0")
        A("s_cbranch_scc1 L_loader")
        A("s_barrier")
        A("s_branch L_notloader")
        A("L_loader:")
    else:
        A("s_barrier")
        A("s_cmp_lg_u32 s3, 0")
        A("s_cbranch_scc1 L_notloader")
    A("s_setprio 3")
    srd(28, 6, 1 << 24, add=46)
    srd(32, 8, 1 << 24, add=46)
    if cfg.DIAG:
        srd(36, 26, WS_SIZE)
    stamp(0)
    if cfg.DIAG:
        A("v_mov_b32 v250, s92"); A("v_mov_b32 v251, s93"); A("s_mov_b64 exec, 1")
        A("buffer_store_dwordx2 v[250:251], v252, s[36:39], s98 offen offset:56")
        A("s_mov_b64 exec, -1")
    a_, jp = divmod(F - 1, 16)
    assert S % 2 == 0
    NFB = 1792 // cfg.FB
    assert (cfg.ET * cfg.EZ) % 2 == 0
    FC = 8 + cfg.ET * cfg.EZ // 2
    A("s_mov_b32 s90, 0")
    if cfg.DIAG:
        A("s_mov_b32 s88, 0")
    A("s_mov_b32 s41, 0"); A("s_and_b32 s66, s2, 15"); A("s_mov_b32 s67, 0"); A("s_mov_b32 s44, 0")
    A("s_lshr_b32 s70, s2, 4"); A(f"s_mul_i32 s68, s70, {cfg.GS}")
    def ld_addr(dst, dt):
        A(f"s_add_u32 s69, s67, {dt}")
        A(f"s_add_u32 {dst}, s69, s68"); A(f"s_and_b32 {dst}, {dst}, 127"); A(f"s_lshl_b32 {dst}, {dst}, 17")
        A(f"s_mul_i32 s69, s69, {cfg.ROT}"); A("s_add_u32 s69, s69, s66"); A("s_and_b32 s69, s69, 15"); A("s_lshl_b32 s69, s69, 13")
        A(f"s_or_b32 {dst}, {dst}, s69")
    def ld_body(kinds, first=False, F=F):
        a_, jp = divmod(F - 1, 16)
        for j in range(16):
            if not first:
                A(f"s_waitcnt vmcnt({F-1})")
            if j == jp and not first:
                A(f"s_sub_i32 s49, s40, {a_}")
                A("s_max_i32 s43, s43, s49")
                A("v_mov_b32 v18, s43")
                A("ds_write_b32 v17, v18")
            if j % 4 == 0:
                A(f"s_add_u32 m0, s41, {j*1024}")
                A(f"s_add_u32 s47, {'s42' if j < 8 else 's75'}, {(j % 8)*1024}")
            if j == 8:
                A("s_add_u32 s44, s44, 4"); A(f"s_cmp_ge_u32 s44, {R*4}"); A("s_cselect_b32 s44, 0, s44")
                A("v_add_u32 v19, s44, v17")
                A("ds_read_b32 v20, v19 offset:64")
            if kinds[j // 8] == 'K':
                A(f"buffer_load_dwordx4 v{8 + j % 8}, s[28:31], s47 offen offset:{(j%4)*1024} {POL[cfg.KP]} lds")
            else:
                A(f"buffer_load_dwordx4 v16, s[32:35], s47 offen offset:{(j%4)*1024} {POL[cfg.VP]} lds")
            if first and j == 7:
                ld_addr("s75", 1)
        A("s_add_u32 s40, s40, 1")
        A("s_add_u32 s41, s41, 16384"); A(f"s_cmp_ge_u32 s41, {R*16384}"); A("s_cselect_b32 s41, 0, s41")
        A("s_sub_u32 s53, s53, 1")
    def ld_ring(lbl):
        if cfg.DIAG:
            n = A.label("nops")
            A("s_and_b32 s91, s40, 15"); A("s_cmp_lg_u32 s91, 0"); A(f"s_cbranch_scc1 {n}")
            A("s_cmp_gt_u32 s40, 80"); A(f"s_cbranch_scc1 {n}")
            A("s_memrealtime s[96:97]")
            A("s_lshl_b32 s98, s2, 10"); A("s_lshr_b32 s91, s40, 1"); A("s_add_u32 s98, s98, s91"); A(f"s_add_u32 s98, s98, {WS_DIAG + 64}")
            A("s_waitcnt lgkmcnt(0)")
            A("v_mov_b32 v250, s96"); A("v_mov_b32 v251, s97"); A("v_mov_b32 v252, 0")
            A("s_mov_b64 exec, 1")
            A("buffer_store_dwordx2 v[250:251], v252, s[36:39], s98 offen")
            A("s_mov_b64 exec, -1")
            A(f"{n}:")
        A(f"s_sub_i32 s48, s40, {R-1}")
        A("v_readfirstlane_b32 s47, v20")
        A("s_cmp_ge_i32 s47, s48")
        A(f"s_cbranch_scc1 {lbl}")
        if cfg.DIAG:
            n = A.label("nost")
            A("s_cmp_lg_u32 s90, 0"); A(f"s_cbranch_scc1 {n}"); A("s_mov_b32 s90, 1")
            stamp(2)
            A(f"{n}:")
            stamp(3)
        A("s_waitcnt vmcnt(0)")
        A("s_mov_b32 s43, s40")
        A("v_mov_b32 v18, s43")
        A("ds_write_b32 v17, v18")
        sp = lbl + "_spin"
        A(f"{sp}:")
        A("ds_read_b32 v20, v19 offset:64")
        A("s_waitcnt lgkmcnt(0)")
        A("v_readfirstlane_b32 s47, v20")
        A("s_cmp_ge_i32 s47, s48")
        A(f"s_cbranch_scc1 {lbl}")
        spin_tail(sp)
    def ld_ticket_req():
        n = A.label("noat")
        A("s_add_u32 s74, s53, s71")
        A("s_cmp_lg_u32 s74, 1")
        A(f"s_cbranch_scc1 {n}")
        A("s_mov_b32 s54, 1")
        if NT:
            A("s_atomic_add s54, s[56:57], 0x0 glc")
        A(f"{n}:")
    ld_addr("s42", 0)
    A("s_mov_b32 s53, 0")
    ld_body("KK", first=True)
    if cfg.LBAR:
        A("s_barrier")
    A(f"s_mul_i32 s50, s70, {PCS}"); A(f"s_add_u32 s50, s50, {WS_PC}")
    A("s_add_u32 s56, s26, s50"); A("s_addc_u32 s57, s27, 0")
    A(f"s_mov_b32 s60, {hex(SZP & 0xffffffff)}"); A(f"s_mov_b32 s61, {hex(SZP >> 32)}")
    A(f"s_mov_b32 s62, {hex(STP & 0xffffffff)}"); A(f"s_mov_b32 s63, {hex(STP >> 32)}")
    A("s_mov_b32 s54, 0")
    A(f"s_cmp_lt_u32 s70, {NFB}"); A("s_cselect_b32 s71, 1, 0")
    A(f"s_add_u32 s72, s66, {S - 16}")
    A("s_cmp_eq_u32 s66, s70"); A("s_cselect_b32 s78, s71, 0"); A(f"s_mul_i32 s78, s78, {FC}"); A(f"s_sub_u32 s78, {S // 2}, s78")
    A(f"s_mul_i32 s80, s71, {cfg.ET}")
    A("s_sub_u32 s53, s78, 1")
    A("s_branch L_ld_kbot")
    A("L_ld_k:")
    ld_body("KK")
    A("L_ld_kbot:")
    A("s_add_u32 s67, s67, 2")
    A("s_cmp_lg_u32 s53, 0")
    A("s_cbranch_scc1 L_ld_kc")
    A("s_mov_b32 s67, 0"); A("s_mov_b32 s53, s78")
    A("s_branch L_ld_vc")
    A("L_ld_kc:")
    ld_addr("s42", 0); ld_addr("s75", 1)
    A("s_waitcnt lgkmcnt(0)")
    ld_ring("L_ld_k")
    A("L_ld_v:")
    ld_ticket_req()
    ld_body("VV")
    A("s_add_u32 s67, s67, 2")
    A("s_cmp_eq_u32 s53, 0")
    A("s_cbranch_scc1 L_ld_next")
    A("L_ld_vc:")
    ld_addr("s42", 0); ld_addr("s75", 1)
    A("s_waitcnt lgkmcnt(0)")
    ld_ring("L_ld_v")
    A("L_ld_c:")
    ld_ticket_req()
    F3 = cfg.F3 or F
    ld_body("KV", F=F3)
    A("s_add_u32 s67, s67, 1")
    A("s_cmp_lg_u32 s53, 0")
    A("s_cbranch_scc1 L_ld_cc")
    A("L_ld_next:")
    A("s_cmp_eq_u32 s71, 0"); A("s_cbranch_scc1 L_ld_tick")
    A("s_mov_b32 s71, 0"); A("s_mov_b32 s53, 1"); A("s_mov_b32 s66, s70"); A("s_mov_b32 s67, s72")
    A("s_branch L_ld_cc")
    A("L_ld_tick:")
    if cfg.DIAG:
        A("s_memrealtime s[84:85]")
    A("s_waitcnt lgkmcnt(0)")
    if cfg.DIAG:
        A("s_memrealtime s[86:87]"); A("s_waitcnt lgkmcnt(0)")
        A("s_sub_u32 s86, s86, s84"); A("s_lshl_b32 s88, s88, 8"); A("s_min_u32 s86, s86, 255"); A("s_or_b32 s88, s88, s86")
    if cfg.ET:
        A("s_cmp_ge_u32 s54, s80"); A("s_cbranch_scc1 L_ld_tick2")
        A(f"s_mov_b32 s53, {cfg.EZ}"); A("s_mov_b32 s66, s70")
        A(f"s_mul_i32 s67, s54, {cfg.EZ}"); A(f"s_add_u32 s67, s67, {S - 2 * FC}")
        A("s_branch L_ld_cc")
        A("L_ld_tick2:")
        A("s_sub_u32 s54, s54, s80")
    A(f"s_cmp_ge_u32 s54, {NT}")
    A("s_cbranch_scc1 L_ld_done")
    A("s_lshr_b32 s51, s54, 4"); A("s_lshl_b32 s51, s51, 3")
    A("s_lshr_b64 s[64:65], s[60:61], s51"); A("s_and_b32 s53, s64, 0xff")
    A("s_lshr_b64 s[64:65], s[62:63], s51"); A("s_and_b32 s67, s64, 0xff")
    A("s_and_b32 s66, s54, 15")
    A("L_ld_cc:")
    ld_addr("s42", 0)
    A("s_mov_b32 s75, s42")
    A("s_waitcnt lgkmcnt(0)")
    ld_ring("L_ld_c")
    A("L_ld_done:")
    A("s_lshl_b32 s50, s40, 16")
    A("s_or_b32 s51, s50, s43")
    A("v_mov_b32 v18, s51")
    A("ds_write_b32 v17, v18")
    for k in range(3, -1, -1):
        if 16 * k < max(F, F3):
            A(f"s_sub_u32 s51, s40, {k}")
            A("s_max_u32 s51, s51, s43")
            A("s_or_b32 s51, s51, s50")
            A(f"s_waitcnt vmcnt({16*k})")
            A(f"v_mov_b32 v18, s51")
            A("ds_write_b32 v17, v18")
            if k == 1 and cfg.EARLYK:
                A("s_or_b32 s51, s51, 0x8000")
                A("s_waitcnt vmcnt(8)")
                A(f"v_mov_b32 v18, s51")
                A("ds_write_b32 v17, v18")
    if cfg.DIAG:
        A("v_mov_b32 v250, s40"); A("v_mov_b32 v251, s88"); A("v_mov_b32 v252, 0")
        A("s_lshl_b32 s98, s2, 10"); A(f"s_add_u32 s98, s98, {WS_DIAG + 8*8}")
        A("s_mov_b64 exec, 1")
        A("buffer_store_dwordx2 v[250:251], v252, s[36:39], s98 offen")
        A("s_mov_b64 exec, -1")
        A("s_nop 1")
    stamp(1)
    A("s_endpgm")

    A("L_notloader:")
    A(f"s_load_dword s58, s[26:27], {WS_EP}")
    A(f"s_mov_b32 s59, {TAGM}")
    A("v_and_b32 v3, 7, v1")
    A("v_lshrrev_b32 v4, 1, v3")
    A("v_and_b32 v5, 1, v3")
    A("v_mov_b32 v6, 0x0c0c0100")
    A("v_mov_b32 v7, 0x01000c0c")
    A("v_cmp_eq_u32 vcc, 1, v5")
    A("v_mov_b32 v8, 0x0c0c0302")
    A("v_mov_b32 v9, 0x03020c0c")
    A("v_cndmask_b32 v6, v6, v7, vcc")
    A("v_cndmask_b32 v8, v8, v9, vcc")
    A("v_mov_b32 v7, 0x0c0c0c0c")
    for k in range(4):
        A(f"v_cmp_eq_u32 vcc, {k}, v4")
        A("s_nop 1")
        A(f"v_cndmask_b32 v{12+k}, v7, v6, vcc")
        A(f"v_cndmask_b32 v{16+k}, v7, v8, vcc")
    A("v_and_b32 v10, 15, v1")
    A("v_lshrrev_b32 v11, 4, v1")
    A("s_lshr_b32 s50, s2, 4")
    A("s_and_b32 s51, s2, 15")
    A("s_lshr_b32 s52, s2, 7")
    A("s_and_b32 s53, s50, 7")
    A(f"s_mov_b32 s54, {hex(f2u(CSC))}")
    srd(36, 26, WS_SIZE)
    A("s_cmp_eq_u32 s3, 4")
    A("s_cbranch_scc1 L_helper")

    A("s_sub_u32 s55, s3, 1")
    A("s_cmp_gt_u32 s3, 4")
    A("s_cselect_b32 s47, 1, 0")
    A("s_sub_u32 s55, s55, s47")
    def wo_loads(i_reg, s_reg, issue=True, prep=True):
        if prep:
            srd(28, 12, 4096 * 896)
            A(f"s_lshl_b32 s82, s53, 9"); A(f"s_lshl_b32 s47, s51, 5"); A(f"s_add_u32 s82, s82, s47")
            A(f"s_mul_i32 s82, s82, 896"); A(f"s_lshl_b32 s47, s55, 8"); A(f"s_add_u32 s82, s82, s47")
            A(f"v_mul_u32_u24 v204, 896, v{s_reg}")
            A(f"v_lshl_add_u32 v204, v{i_reg}, 4, v204")
            A(f"s_cmp_eq_u32 s55, 3")
            A(f"s_cselect_b32 s47, 8, 16")
            A(f"v_cmp_le_u32 vcc, s47, v{i_reg}")
            A(f"v_bfrev_b32 v205, 2")
            A(f"s_nop 0")
            A(f"v_cndmask_b32 v204, v204, v205, vcc")
        if issue:
            for rr in range(4):
                for hi in range(2):
                    t = 4 * hi + rr
                    A(f"buffer_load_dwordx4 v[{156+4*t}:{159+4*t}], v204, s[28:31], s82 offen offset:{hi*4*896} nt")
                if rr < 3:
                    A(f"s_add_u32 s82, s82, {8*896}")
    wo_loads(10, 11, issue=False)
    if not cfg.WOLATE:
        A(f"s_cmp_ge_u32 s55, {0 if cfg.NOWO else 4}")
        A("s_cbranch_scc1 L_c_nowo")
        wo_loads(10, 11, prep=False)
    A("L_c_nowo:")
    A("v_xor_b32 v23, v10, v11")
    A("v_lshlrev_b32 v24, 9, v10")
    for a in range(4):
        A(f"v_xor_b32 v25, {4*a}, v23")
        A(f"v_lshl_add_u32 v{2+a}, v25, 4, v24")
    A("v_lshlrev_b32 v24, 11, v11")
    A("v_lshl_add_u32 v6, v10, 4, v24")
    A(f"v_mov_b32 v188, {LD['FLAGS']}")
    A(f"v_mov_b32 v20, {hex(f2u(-3.0e38))}")
    A("v_mul_f32 v21, s54, v20")
    A("v_mov_b32 v22, 0")
    for k in range(8):
        A(f"v_mov_b32 v{132+k}, 0")
    A("v_mov_b32 v189, v10"); A("v_mov_b32 v190, v11")
    A("v_lshrrev_b32 v23, 3, v10"); A("v_lshlrev_b32 v23, 6, v23"); A("v_lshl_add_u32 v23, v11, 4, v23")
    A(f"v_add_u32 v202, {LD['SC']}, v23")
    A(f"s_cmp_lt_u32 s50, {NFB}"); A(f"s_cselect_b32 s78, {FC}, 0")
    A("s_cmp_eq_u32 s51, s50"); A("s_cselect_b32 s78, s78, 0"); A(f"s_sub_u32 s78, {S // 2}, s78")
    A("s_lshl_b32 s79, s78, 1")
    A("s_mov_b32 s40, s55")
    A("s_lshl_b32 s41, s55, 14")
    A("s_mov_b32 s44, 0")
    A("s_waitcnt lgkmcnt(0)")
    A("s_add_u32 s58, s58, 1")
    A("s_and_b32 s46, s58, s59")
    A(f"v_mov_b32 v{TG}, s46")
    def c_wait(lbl, can_end):
        A(f"{lbl}:")
        A("ds_read_b32 v23, v188")
        A("s_lshr_b32 s47, s41, 12")
        A("v_add_u32 v191, s47, v188")
        A("s_add_u32 s42, s40, 1")
        A("v_mov_b32 v192, s42")
        A("s_waitcnt lgkmcnt(0)")
        A("v_readfirstlane_b32 s43, v23")
        A("s_and_b32 s46, s43, 0x7fff")
        if can_end and cfg.EARLYK:
            A("s_bfe_u32 s47, s43, 0x1000f")
            A("s_add_u32 s46, s46, s47")
        A("s_cmp_gt_u32 s46, s40")
        A(f"s_cbranch_scc1 {lbl}_go")
        if can_end:
            A("s_lshr_b32 s46, s43, 16")
            A("s_sub_u32 s46, s46, 1")
            A("s_cmp_lt_u32 s46, s40")
            A("s_cbranch_scc1 L_c_tail")
        spin_tail(lbl, sleep=cfg.PSLEEP)
        A(f"{lbl}_go:")
    def c_adv():
        A(f"s_add_u32 s40, s40, {C}")
        A(f"s_add_u32 s41, s41, {C*16384}")
        A(f"s_sub_u32 s47, s41, {R*16384}")
        A(f"s_cmp_ge_u32 s41, {R*16384}")
        A("s_cselect_b32 s41, s47, s41")
    def k_reads(base, off):
        for t in range(8):
            A(f"ds_read_b128 v[{base+4*t}:{base+3+4*t}], v{7 + t % 4} offset:{off + (t//4)*256}")
    def v_reads(base, off, rs=range(4)):
        for r in rs:
            for h in range(2):
                A(f"ds_read_b128 v[{base+8*r+4*h}:{base+3+8*r+4*h}], v11 offset:{off + r*512 + h*256}")
    def resc(lbl):
        A(f"{lbl}:")
        A("v_mov_b32 v31, v30")
        A("s_nop 1")
        A("v_permlane16_swap_b32 v30, v31")
        A("v_max_f32 v30, v30, v31")
        A("v_mov_b32 v31, v30")
        A("s_nop 1")
        A("v_permlane32_swap_b32 v30, v31")
        A("v_max3_f32 v20, v30, v31, v20")
        A("v_mul_f32 v30, s54, v20")
        A("v_sub_f32 v31, v21, v30")
        A("v_exp_f32 v31, v31")
        A("v_mov_b32 v21, v30")
        for k in range(8):
            A(f"v_mul_f32 v{132+k}, v{132+k}, v31")
        A("v_mul_f32 v22, v22, v31")
        A(f"s_branch {lbl}_ret")
    def pv(tiles):
        steps = [(pb + r // 2, 12 + 4 * (r % 2), vb + 8 * r) for (pb, vb) in tiles for r in range(4)]
        def mm(n):
            bb = 140 + 4 * (n % 4); vb = steps[n][2]
            for h in range(2):
                A(f"v_mfma_f32_16x16x32_bf16 v[{132+4*h}:{135+4*h}], v[{vb+4*h}:{vb+3+4*h}], v[{bb}:{bb+3}], v[{132+4*h}:{135+4*h}]")
        for n, (src, sel, vb) in enumerate(steps):
            for k in range(4):
                A(f"v_perm_b32 v{140+4*(n%4)+k}, v{src}, v{src}, v{sel+k}")
            if n >= 1:
                mm(n - 1)
        mm(len(steps) - 1)
    c_wait("L_ck", False)
    for a in range(4):
        A(f"v_add_u32 v{7+a}, s41, v{2+a}")
    k_reads(64, 0); k_reads(96, 8192)
    A("s_lshl_b32 s47, s40, 7")
    A("v_add_u32 v203, s47, v202")
    A("s_waitcnt lgkmcnt(0)")
    A("ds_write_b32 v191, v192 offset:64")
    A("s_cmp_eq_u32 s44, 0")
    A("s_cbranch_scc1 L_c_first")
    A("L_ck_comp:")
    for t in range(8):
        A(f"v_mfma_f32_16x16x32_bf16 v[128:131], v[{64+4*t}:{67+4*t}], v[{32+4*t}:{35+4*t}], {'0' if t == 0 else 'v[128:131]'}")
        A(f"v_mfma_f32_16x16x32_bf16 v[140:143], v[{96+4*t}:{99+4*t}], v[{32+4*t}:{35+4*t}], {'0' if t == 0 else 'v[140:143]'}")
    c_adv()
    A("s_nop 2")
    A("v_cvt_pk_bf16_f32 v24, v128, v129")
    A("v_cvt_pk_bf16_f32 v25, v130, v131")
    A("v_cvt_pk_bf16_f32 v26, v140, v141")
    A("v_cvt_pk_bf16_f32 v27, v142, v143")
    A("s_mov_b32 exec_lo, 0x01010101"); A("s_mov_b32 exec_hi, 0x01010101")
    A("ds_write_b128 v203, v[24:27]")
    A("s_mov_b64 exec, -1")
    A("s_cmp_lt_u32 s40, s78")
    A("s_cbranch_scc1 L_ck")
    c_wait("L_cv", False)
    A("s_sub_u32 s47, s40, s78"); A("s_lshl_b32 s47, s47, 7")
    A("v_add_u32 v203, s47, v202")
    A("v_add_u32 v11, s41, v6")
    A("ds_read_b128 v[24:27], v203")
    v_reads(64, 0); v_reads(96, 8192, range(3))
    A("s_waitcnt lgkmcnt(14)")
    v_reads(96, 8192, [3])
    for k in range(4):
        A(f"v_lshlrev_b32 v{194+2*k}, 16, v{24+k}")
        A(f"v_and_b32 v{195+2*k}, 0xffff0000, v{24+k}")
    A("v_max3_f32 v30, v194, v195, v196")
    A("v_max3_f32 v31, v197, v198, v199")
    A("v_max3_f32 v30, v30, v200, v201")
    A("v_max_f32 v30, v30, v31")
    A("v_cmp_gt_f32 vcc, v30, v20")
    A("s_cbranch_vccnz L_cv_resc")
    A("L_cv_resc_ret:")
    for k in range(8):
        A(f"v_fma_f32 v{194+k}, v{194+k}, s54, -v21")
    for k in range(8):
        A(f"v_exp_f32 v{194+k}, v{194+k}")
    A("s_nop 0")
    for k in range(4):
        A(f"v_cvt_pk_bf16_f32 v{24+k}, v{194+2*k}, v{195+2*k}")
    for k in range(4):
        A(f"v_add_f32 v{194+2*k}, v{194+2*k}, v{195+2*k}")
    A("v_add_f32 v194, v194, v196"); A("v_add_f32 v198, v198, v200")
    A("v_add_f32 v22, v22, v194"); A("v_add_f32 v22, v22, v198")
    A("s_waitcnt lgkmcnt(0)")
    A("ds_write_b32 v191, v192 offset:64")
    pv([(24, 64), (26, 96)])
    c_adv()
    A("s_cmp_lt_u32 s40, s79")
    A("s_cbranch_scc1 L_cv")
    c_wait("L_cc", True)
    for a in range(4):
        A(f"v_add_u32 v{7+a}, s41, v{2+a}")
    A("v_add_u32 v11, s41, v6")
    if cfg.EARLYK:
        k_reads(64, 0)
        for t in range(8):
            A(f"s_waitcnt lgkmcnt({7 - t})")
            A(f"v_mfma_f32_16x16x32_bf16 v[128:131], v[{64+4*t}:{67+4*t}], v[{32+4*t}:{35+4*t}], {'0' if t == 0 else 'v[128:131]'}")
        A("s_nop 7")
    else:
        k_reads(64, 0); v_reads(96, 8192)
        A("s_waitcnt lgkmcnt(8)")
        for t in range(8):
            A(f"v_mfma_f32_16x16x32_bf16 v[128:131], v[{64+4*t}:{67+4*t}], v[{32+4*t}:{35+4*t}], {'0' if t == 0 else 'v[128:131]'}")
        A("s_waitcnt lgkmcnt(0)")
        A("ds_write_b32 v191, v192 offset:64")
        c_adv()
        A("s_nop 0")
    A("v_cvt_pk_bf16_f32 v24, v128, v129")
    A("v_cvt_pk_bf16_f32 v25, v130, v131")
    A("v_lshlrev_b32 v26, 16, v24")
    A("v_and_b32 v27, 0xffff0000, v24")
    A("v_lshlrev_b32 v28, 16, v25")
    A("v_and_b32 v29, 0xffff0000, v25")
    A("v_max3_f32 v30, v26, v27, v28")
    A("v_max_f32 v30, v30, v29")
    A("v_cmp_gt_f32 vcc, v30, v20")
    A("s_cbranch_vccnz L_cc_resc")
    A("L_cc_resc_ret:")
    for k in range(4):
        A(f"v_fma_f32 v{26+k}, v{26+k}, s54, -v21")
    for k in range(4):
        A(f"v_exp_f32 v{26+k}, v{26+k}")
    A("s_nop 0")
    A("v_cvt_pk_bf16_f32 v24, v26, v27")
    A("v_cvt_pk_bf16_f32 v25, v28, v29")
    A("v_add_f32 v30, v26, v27")
    A("v_add_f32 v31, v28, v29")
    A("v_add_f32 v22, v22, v30")
    A("v_add_f32 v22, v22, v31")
    if cfg.EARLYK:
        A("L_cc_w2:")
        A("s_and_b32 s46, s43, 0x7fff")
        A("s_cmp_gt_u32 s46, s40")
        A("s_cbranch_scc1 L_cc_w2go")
        A("ds_read_b32 v23, v188")
        A("s_waitcnt lgkmcnt(0)")
        A("v_readfirstlane_b32 s43, v23")
        spin_tail("L_cc_w2", sleep=0)
        A("L_cc_w2go:")
        v_reads(96, 8192)
        for n in range(4):
            for k in range(4):
                A(f"v_perm_b32 v{140+4*n+k}, v{24 + n // 2}, v{24 + n // 2}, v{12 + 4 * (n % 2) + k}")
        c_adv()
        for n in range(4):
            for h in range(2):
                A(f"s_waitcnt lgkmcnt({7 - 2*n - h})")
                A(f"v_mfma_f32_16x16x32_bf16 v[{132+4*h}:{135+4*h}], v[{96+8*n+4*h}:{99+8*n+4*h}], v[{140+4*n}:{143+4*n}], v[{132+4*h}:{135+4*h}]")
        A("ds_write_b32 v191, v192 offset:64")
    else:
        pv([(24, 96)])
    A("s_lshr_b32 s46, s43, 16")
    A("s_sub_u32 s46, s46, 1")
    A("s_cmp_ge_u32 s46, s40")
    A("s_cbranch_scc1 L_cc")
    A("L_c_tail:")
    stamp(3)
    A(f"s_add_u32 s47, s41, {(R - C)*16384}")
    A(f"s_sub_u32 s48, s47, {R*16384}")
    A(f"s_cmp_ge_u32 s47, {R*16384}")
    A("s_cselect_b32 s47, s48, s47")
    A("v_lshl_add_u32 v25, v1, 4, s47")
    A("v_lshl_add_u32 v26, v1, 3, s47")
    A("v_mov_b32 v28, v21"); A("v_mov_b32 v29, v22")
    A("ds_write_b64 v26, v[28:29] offset:2048")
    A("ds_write_b128 v25, v[132:135]")
    A("ds_write_b128 v25, v[136:139] offset:1024")
    A("s_cmp_lt_u32 s55, 4")
    A("s_cbranch_scc1 L_p_wave")
    A("s_sub_u32 s56, s55, 4")
    A("s_lshr_b32 s46, s43, 16")
    A("s_sub_u32 s46, s40, s46")
    A("s_lshl_b32 s46, s46, 14")
    A("s_sub_i32 s46, s41, s46")
    for j in range(6):
        A("s_sub_i32 s46, s46, 16384")
        A(f"s_add_i32 s47, s46, {R*16384}")
        A("s_cmp_lt_i32 s46, 0")
        A("s_cselect_b32 s46, s47, s46")
        A(f"v_lshl_add_u32 v{70+j}, v1, 3, s46")
    A("s_lshl_b32 s47, s56, 10")
    A("v_lshl_add_u32 v27, v1, 3, s47")
    for j in range(6):
        A(f"v_add_u32 v{76+j}, v{70+j}, v27")
    if not cfg.HAL:
        A("v_lshrrev_b32 v26, 3, v189"); A("v_lshlrev_b32 v26, 14, v26"); A("v_lshl_add_u32 v26, v190, 11, v26")
        A("v_and_b32 v27, 7, v189"); A("v_lshl_add_u32 v26, v27, 4, v26")
        A("s_lshl_b32 s46, s50, 15"); A("s_lshl_b32 s47, s56, 13"); A("s_add_u32 s46, s46, s47")
        A("s_lshl_b32 s47, s51, 7"); A("s_add_u32 s46, s46, s47"); A(f"s_add_u32 s46, s46, {WS_HA}")
    else:
        A("v_lshrrev_b32 v26, 3, v189"); A("v_lshlrev_b32 v26, 9, v26"); A("v_lshl_add_u32 v26, v190, 7, v26")
        A("v_and_b32 v27, 7, v189"); A("v_lshl_add_u32 v26, v27, 4, v26")
        A(f"s_mul_i32 s46, s2, {HBS}"); A(f"s_add_u32 s49, s46, {WS_HA2 + 2048}")
        A("s_lshl_b32 s47, s56, 10"); A("s_add_u32 s46, s46, s47"); A(f"s_add_u32 s46, s46, {WS_HA2}")
    A("s_waitcnt lgkmcnt(0)")
    A("s_barrier")
    for j in range(6):
        A(f"ds_read_b64 v[{84+2*j}:{85+2*j}], v{70+j} offset:2048")
    for j in range(6):
        A(f"ds_read_b128 v[{96+4*j}:{99+4*j}], v{76+j}")
    A("s_waitcnt lgkmcnt(6)")
    A("v_max3_f32 v28, v84, v86, v88")
    A("v_max3_f32 v28, v28, v90, v92")
    A("v_max_f32 v28, v28, v94")
    for j in range(6):
        A(f"v_sub_f32 v{84+2*j}, v{84+2*j}, v28")
    for j in range(6):
        A(f"v_exp_f32 v{84+2*j}, v{84+2*j}")
    A("s_waitcnt lgkmcnt(0)")
    for k in range(4):
        A(f"v_mul_f32 v{120+k}, v84, v{96+k}")
    for j in range(1, 6):
        for k in range(4):
            A(f"v_fmac_f32 v{120+k}, v{84+2*j}, v{96+4*j+k}")
    for k in range(4):
        tag(120 + k)
    A("buffer_store_dwordx4 v[120:123], v26, s[36:39], s46 offen sc1")
    A("s_cmp_eq_u32 s56, 0")
    A("s_cbranch_scc1 L_x0")
    A("v_mul_f32 v29, v84, v85")
    for j in range(1, 6):
        A(f"v_fmac_f32 v29, v{84+2*j}, v{85+2*j}")
    A(f"v_lshlrev_b32 v27, {1 if cfg.HAL else 8}, v189")
    A("v_mov_b32 v24, v29")
    A("s_lshl_b32 s48, s50, 12"); A("s_lshl_b32 s47, s51, 7")
    A("v_permlane16_swap_b32 v29, v24")
    A("v_add_f32 v29, v29, v24")
    A("v_mov_b32 v24, v29")
    A("s_add_u32 s48, s48, s47"); A(f"s_add_u32 s48, s48, {WS_HM}")
    A("v_permlane32_swap_b32 v29, v24")
    A("v_add_f32 v29, v29, v24")
    A("v_mov_b32 v30, s58")
    A("v_mov_b32 v31, s58")
    A("s_mov_b64 exec, 0x101")
    A(f"buffer_store_dwordx4 v[28:31], v27, s[36:39], {'s49' if cfg.HAL else 's48'} offen sc1")
    A("s_mov_b64 exec, -1")
    if cfg.WOLATE == 4:
        A("s_barrier")
    stamp(4)
    A("s_endpgm")
    A("L_x0:")
    if cfg.WOLATE == 4:
        A("s_barrier")
    stamp(4)
    if not cfg.HAL:
        A("v_lshlrev_b32 v24, 7, v189")
        A("v_lshl_add_u32 v23, v190, 4, v24")
        A("s_lshl_b32 s46, s2, 11"); A(f"s_add_u32 s46, s46, {WS_HA}")
        A("s_lshl_b32 s48, s50, 12"); A("s_lshr_b32 s47, s51, 3"); A("s_lshl_b32 s47, s47, 11"); A("s_add_u32 s48, s48, s47"); A(f"s_add_u32 s48, s48, {WS_HM}")
    else:
        A(f"v_mul_u32_u24 v24, {HBS}, v189")
        A("v_lshl_add_u32 v23, v190, 4, v24")
        A(f"s_mul_i32 s48, s50, {16 * HBS}"); A(f"s_add_u32 s48, s48, {WS_HA2}")
        A("s_and_b32 s46, s51, 3"); A("s_lshl_b32 s46, s46, 7"); A("s_add_u32 s46, s46, s48")
        A("s_and_b32 s47, s51, 4"); A("s_lshl_b32 s47, s47, 8"); A("s_add_u32 s46, s46, s47")
        A("s_and_b32 s47, s51, 8"); A("s_lshl_b32 s49, s47, 6"); A("s_add_u32 s46, s46, s49")
        A("s_lshl_b32 s47, s47, 1"); A("s_add_u32 s48, s48, s47"); A("s_add_u32 s48, s48, 2048")
    A("v_lshl_add_u32 v27, v190, 4, v188")
    if cfg.BAR3:
        A("s_waitcnt vmcnt(0)")
    stamp(5)
    def issA():
        A("buffer_load_dwordx4 v[64:67], v23, s[36:39], s46 offen sc1")
        A("buffer_load_dwordx4 v[68:71], v23, s[36:39], s46 offen offset:64 sc1")
        A("buffer_load_dwordx4 v[72:75], v24, s[36:39], s48 offen sc1")
    poll("L_p_poll", issA, 3, lambda: tagcheck(range(64, 72), 25, full=(74, 75)), "L_p_go")
    A("L_p_go:")
    A("s_mov_b64 exec, -1")
    stamp(6)
    A("v_mov_b32 v26, v72")
    for sh in (8, 4, 2, 1):
        A("s_nop 1")
        A(f"v_max_f32_dpp v26, v26, v26 row_ror:{sh} row_mask:0xf bank_mask:0xf")
    A("v_sub_f32 v26, v72, v26")
    A("v_exp_f32 v26, v26")
    A("s_nop 0")
    A("v_mul_f32 v88, v73, v26")
    for k in range(8):
        A(f"v_mul_f32 v{80+k}, v{64+k}, v26")
    for sh in (8, 4, 2, 1):
        for k in (8, 0, 1, 2, 3, 4, 5, 6, 7):
            A(f"v_add_f32_dpp v{80+k}, v{80+k}, v{80+k} row_ror:{sh} row_mask:0xf bank_mask:0xf")
            if sh == 1 and k == 2:
                A("v_rcp_f32 v88, v88")
    for k in range(8):
        A(f"v_mul_f32 v{80+k}, v{80+k}, v88")
    for k in range(4):
        A(f"v_cvt_pk_bf16_f32 v{76+k}, v{80+2*k}, v{81+2*k}")
    A("s_mov_b32 exec_lo, 0x00010001"); A("s_mov_b32 exec_hi, 0x00010001")
    A("ds_write_b128 v27, v[76:79] offset:160")
    A("s_waitcnt lgkmcnt(0)")
    A("s_barrier")
    A("s_endpgm")
    A("L_p_wave:")
    if cfg.WOLATE == 1:
        wo_loads(0, 0, prep=False)
    A("v_lshl_add_u32 v27, v190, 4, v188")
    A("v_lshlrev_b32 v23, 7, v190")
    A("v_lshl_add_u32 v23, v189, 4, v23")
    A("s_lshl_b32 s46, s2, 11"); A("s_lshl_b32 s47, s55, 9"); A("s_add_u32 s46, s46, s47"); A(f"s_add_u32 s46, s46, {WS_HB}")
    A("s_cmp_eq_u32 s55, 3")
    A("s_cselect_b32 s47, 0, 0x00ff00ff")
    if cfg.WOLATE == 3:
        A("s_lshr_b32 s48, s43, 16"); A("s_sub_u32 s48, s40, s48")
        A(f"s_cmp_ge_u32 s48, {5 - (cfg.WOLATE - 3)}")
        A("s_cbranch_scc1 L_p_late")
        wo_loads(0, 0, prep=False)
        A("s_waitcnt lgkmcnt(0)")
        A("s_barrier")
        A("s_branch L_p_join")
        A("L_p_late:")
        A("s_waitcnt lgkmcnt(0)")
        A("s_barrier")
        wo_loads(0, 0, prep=False)
        A("L_p_join:")
    else:
        A("s_waitcnt lgkmcnt(0)")
        A("s_barrier")
    if cfg.WOLATE == 4:
        A("s_barrier")
    if cfg.WOLATE in (2, 4):
        wo_loads(0, 0, prep=False)
    A("s_waitcnt vmcnt(0)")
    A("s_barrier")
    A("ds_read_b128 v[76:79], v27 offset:160")
    stamp(5)
    A("s_waitcnt lgkmcnt(0)")
    for t in range(9):
        if t < 8:
            src = 76 + t // 2; sel = 12 + 4 * (t % 2)
            for k in range(4):
                A(f"v_perm_b32 v{96+4*t+k}, v{src}, v{src}, v{sel+k}")
        else:
            A("s_nop 0")
        if t >= 1:
            u = t - 1
            A(f"v_mfma_f32_16x16x32_bf16 v[128:131], v[{156+4*u}:{159+4*u}], v[{96+4*u}:{99+4*u}], {'0' if u == 0 else 'v[128:131]'}")
    A("s_mov_b32 exec_lo, 0x00ff00ff"); A("s_mov_b32 exec_hi, s47")
    A("s_nop 5")
    for k in range(4):
        tag(128 + k)
    A("buffer_store_dwordx4 v[128:131], v23, s[36:39], s46 offen sc1")
    A("s_mov_b64 exec, -1")
    stamp(6)
    A("s_waitcnt vmcnt(0)")
    A("s_endpgm")
    resc("L_cv_resc")
    resc("L_cc_resc")
    A("L_c_first:")
    A("L_c_qwait:")
    A("ds_read_b32 v23, v188 offset:4")
    A("s_waitcnt lgkmcnt(0)")
    A("v_readfirstlane_b32 s46, v23")
    A("s_cmp_lg_u32 s46, 0")
    A("s_cbranch_scc1 L_c_qgo")
    spin_tail("L_c_qwait")
    A("L_c_qgo:")
    A("v_lshrrev_b32 v23, 3, v189")
    A("v_lshlrev_b32 v23, 9, v23")
    A("v_lshl_add_u32 v23, v190, 4, v23")
    A(f"v_add_u32 v23, {LD['Q']}, v23")
    for t in range(8):
        A(f"ds_read_b128 v[{32+4*t}:{35+4*t}], v23 offset:{64*t}")
    A("s_mov_b32 s44, 1")
    A("s_waitcnt lgkmcnt(0)")
    stamp(2)
    A("s_branch L_ck_comp")

    A("L_helper:")
    srd(28, 4, 1792)
    srd(32, 10, 16 if cfg.NOWQ else 448 * 8192)
    A("v_lshrrev_b32 v20, 5, v1")
    A("v_and_b32 v21, 31, v1")
    A("v_mul_u32_u24 v22, 896, v20")
    A("v_lshl_add_u32 v22, v21, 2, v22")
    for m in range(7):
        A(f"buffer_load_dword v{24+m}, v22, s[28:31], 0 offen offset:{128*m}")
    if cfg.QV == 1:
        A("s_and_b32 s56, s51, 3"); A("s_lshr_b32 s57, s51, 2")
        A(f"v_mul_u32_u24 v23, {28*8192}, v11")
        A("v_lshl_add_u32 v23, v10, 4, v23")
        A(f"s_mul_i32 s46, s57, {112*8192}"); A("s_lshl_b32 s47, s53, 10"); A("s_add_u32 s46, s46, s47")
        A("s_lshl_b32 s47, s56, 8"); A("s_add_u32 s46, s46, s47")
    else:
        A("s_and_b32 s56, s51, 7"); A("s_lshl_b32 s56, s56, 1"); A("s_lshr_b32 s57, s51, 3"); A("s_add_u32 s56, s56, s57")
        A("v_lshrrev_b32 v23, 2, v1"); A(f"v_mul_u32_u24 v23, {28*8192}, v23")
        A("v_and_b32 v31, 3, v1"); A("v_lshl_add_u32 v23, v31, 4, v23")
        A("s_lshl_b32 s46, s53, 10"); A("s_lshl_b32 s47, s56, 6"); A("s_add_u32 s46, s46, s47")
    for t in range(28):
        A(f"buffer_load_dwordx4 v[{64+4*t}:{67+4*t}], v23, s[32:35], s46 offen nt")
        if t < 27:
            A("s_add_u32 s46, s46, 8192")
    A(f"s_mul_i32 s46, s50, {PCS}"); A(f"s_add_u32 s46, s46, {WS_PC}")
    A("s_cmp_eq_u32 s51, 0"); A(f"s_cselect_b32 s46, s46, {WS_SIZE}")
    A("v_mov_b32 v186, 0")
    A("s_mov_b64 exec, 1")
    A("buffer_store_dword v186, v186, s[36:39], s46 offen sc1")
    A("s_mov_b64 exec, -1")
    A("s_waitcnt lgkmcnt(0)")
    A("s_add_u32 s58, s58, 1")
    A("s_and_b32 s46, s58, s59")
    A(f"v_mov_b32 v{TG}, s46")
    NAFTER = 28 + 1
    stamp(0)
    ND = 1 if cfg.DIAG else 0
    A(f"s_waitcnt vmcnt({NAFTER + ND})")
    for m in range(7):
        A(f"v_lshlrev_b32 v{32+2*m}, 16, v{24+m}")
        A(f"v_and_b32 v{33+2*m}, 0xffff0000, v{24+m}")
    def red32(v, t):
        for sh in (8, 4, 2, 1):
            A("s_nop 1")
            A(f"v_add_f32_dpp v{v}, v{v}, v{v} row_ror:{sh} row_mask:0xf bank_mask:0xf")
        A(f"v_mov_b32 v{t}, v{v}")
        A("s_nop 1")
        A(f"v_permlane16_swap_b32 v{v}, v{t}")
        A(f"v_add_f32 v{v}, v{v}, v{t}")
    A("v_add_f32 v46, v32, v33")
    for k in range(2, 14):
        A(f"v_add_f32 v46, v46, v{32+k}")
    red32(46, 47)
    A(f"v_mul_f32 v46, {hex(f2u(1.0/448))}, v46")
    A("v_sub_f32 v48, v32, v46")
    A("v_mul_f32 v47, v48, v48")
    for k in range(1, 14):
        A(f"v_sub_f32 v48, v{32+k}, v46")
        A("v_fmac_f32 v47, v48, v48")
    red32(47, 48)
    A(f"v_mul_f32 v47, {hex(f2u(1.0/448))}, v47")
    A("v_cvt_pk_bf16_f32 v48, v46, v47")
    A("v_lshlrev_b32 v46, 16, v48")
    A("v_and_b32 v47, 0xffff0000, v48")
    A(f"v_add_f32 v47, {hex(f2u(1e-5))}, v47")
    A("v_cvt_pk_bf16_f32 v47, v47, v47")
    A("v_lshlrev_b32 v47, 16, v47")
    A("v_sqrt_f32 v47, v47")
    A("s_nop 0")
    A("v_cvt_pk_bf16_f32 v47, v47, v47")
    A("v_lshlrev_b32 v47, 16, v47")
    A("v_rcp_f32 v47, v47")
    for k in range(14):
        A(f"v_sub_f32 v{32+k}, v{32+k}, v46")
    for m in range(7):
        A(f"v_cvt_pk_bf16_f32 v{24+m}, v{32+2*m}, v{33+2*m}")
    for m in range(7):
        A(f"v_lshlrev_b32 v{32+2*m}, 16, v{24+m}")
        A(f"v_and_b32 v{33+2*m}, 0xffff0000, v{24+m}")
    for k in range(14):
        A(f"v_mul_f32 v{32+k}, v{32+k}, v47")
    for m in range(7):
        A(f"v_cvt_pk_bf16_f32 v{24+m}, v{32+2*m}, v{33+2*m}")
    A(f"v_add_u32 v22, {LD['XN']}, v22")
    for m in range(7):
        A(f"ds_write_b32 v22, v{24+m} offset:{128*m}")
    if cfg.QV == 1:
        A("s_mul_i32 s46, s52, 896"); A("s_mul_i32 s47, s57, 224"); A("s_add_u32 s46, s46, s47"); A(f"s_add_u32 s46, s46, {LD['XN']}")
        A("v_mul_u32_u24 v22, 56, v11")
        A("v_add_u32 v22, s46, v22")
        A("s_waitcnt lgkmcnt(0)")
        for m in range(7):
            A(f"ds_read_b64 v[{32+2*m}:{33+2*m}], v22 offset:{8*m}")
        A("s_waitcnt lgkmcnt(0)")
        for t in range(28):
            src = 32 + t // 2; sel = 12 + 4 * (t % 2); bb = 48 + 4 * (t % 2)
            for k in range(4):
                A(f"v_perm_b32 v{bb+k}, v{src}, v{src}, v{sel+k}")
            A(f"s_waitcnt vmcnt({27 - t + 1 + ND})")
            A("s_nop 0")
            A(f"v_mfma_f32_16x16x32_bf16 v[56:59], v[{64+4*t}:{67+4*t}], v[{bb}:{bb+3}], {'0' if t == 0 else 'v[56:59]'}")
        A("v_lshlrev_b32 v23, 7, v11")
        A("v_lshl_add_u32 v23, v10, 4, v23")
        A("s_lshl_b32 s46, s50, 13"); A("s_lshl_b32 s47, s56, 11"); A("s_add_u32 s46, s46, s47")
        A("s_lshl_b32 s47, s57, 9"); A("s_add_u32 s46, s46, s47"); A(f"s_add_u32 s46, s46, {WS_QP}")
        A("s_waitcnt vmcnt(0)")
        for k in range(4):
            tag(56 + k)
        A("s_mov_b32 exec_lo, 0x00ff00ff"); A("s_mov_b32 exec_hi, 0x00ff00ff")
        A("buffer_store_dwordx4 v[56:59], v23, s[36:39], s46 offen sc1")
        A("s_mov_b64 exec, -1")
        stamp(1)
        A("v_lshlrev_b32 v25, 7, v1")
        A("s_lshl_b32 s46, s50, 13"); A(f"s_add_u32 s46, s46, {WS_QP}")
        A("s_add_u32 s47, s46, 4096")
        A("v_lshlrev_b32 v22, 11, v20")
        A("v_lshl_add_u32 v22, v21, 4, v22")
        A("L_h_qpoll:")
        A("buffer_load_dword v26, v25, s[36:39], s46 offen sc1")
        A("s_waitcnt vmcnt(0)")
        tagcheck([26], 27)
        A("s_cbranch_vccz L_h_qgo")
        A("L_h_qretry:")
        spin_tail("L_h_qpoll", sleep=cfg.QSLEEP)
        A("L_h_qgo:")
        for z in range(2):
            for rs in range(4):
                A(f"buffer_load_dwordx4 v[{64+16*z+4*rs}:{67+16*z+4*rs}], v22, s[36:39], s{46+z} offen offset:{rs*512} sc1")
        A("s_waitcnt vmcnt(0)")
        tagcheck(range(64, 96), 27)
        A("s_cbranch_vccnz L_h_qretry")
        A("v_lshrrev_b32 v23, 3, v21")
        A("v_lshlrev_b32 v23, 6, v23")
        A("v_lshl_add_u32 v23, v20, 8, v23")
        A("v_lshl_add_u32 v23, v3, 1, v23")
        A(f"v_add_u32 v23, {LD['Q']}, v23")
        for z in range(2):
            b0 = 64 + 16 * z
            for k in range(4):
                A(f"v_add_f32 v{b0+k}, v{b0+k}, v{b0+4+k}")
                A(f"v_add_f32 v{b0+8+k}, v{b0+8+k}, v{b0+12+k}")
            for k in range(4):
                A(f"v_add_f32 v{b0+k}, v{b0+k}, v{b0+8+k}")
            A(f"v_cvt_pk_bf16_f32 v{b0}, v{b0}, v{b0+1}")
            A(f"v_cvt_pk_bf16_f32 v{b0+1}, v{b0+2}, v{b0+3}")
            A(f"ds_write_b16 v23, v{b0} offset:{z*512}")
            A(f"ds_write_b16_d16_hi v23, v{b0} offset:{z*512+16}")
            A(f"ds_write_b16 v23, v{b0+1} offset:{z*512+32}")
            A(f"ds_write_b16_d16_hi v23, v{b0+1} offset:{z*512+48}")
    else:
        A("s_mul_i32 s46, s52, 896"); A(f"s_add_u32 s46, s46, {LD['XN']}")
        A("v_lshrrev_b32 v22, 3, v10"); A("v_lshl_add_u32 v22, v11, 2, v22"); A("v_mul_u32_u24 v22, 56, v22")
        A("v_add_u32 v22, s46, v22")
        A("s_waitcnt lgkmcnt(0)")
        for m in range(7):
            A(f"ds_read_b64 v[{32+2*m}:{33+2*m}], v22 offset:{8*m}")
        for m in range(7):
            A(f"ds_read_b64 v[{176+2*m}:{177+2*m}], v22 offset:{112+8*m}")
        A("s_waitcnt lgkmcnt(0)")
        for t in range(28):
            sel = 12 + 4 * (t % 2)
            for k in range(4):
                A(f"v_perm_b32 v{48+k}, v{32+t//2}, v{32+t//2}, v{sel+k}")
            for k in range(4):
                A(f"v_perm_b32 v{52+k}, v{176+t//2}, v{176+t//2}, v{sel+k}")
            A(f"s_waitcnt vmcnt({27 - t + 1 + ND})")
            A(f"v_mfma_f32_16x16x32_bf16 v[56:59], v[{64+4*t}:{67+4*t}], v[48:51], {'0' if t == 0 else 'v[56:59]'}")
            A(f"v_mfma_f32_16x16x32_bf16 v[60:63], v[{64+4*t}:{67+4*t}], v[52:55], {'0' if t == 0 else 'v[60:63]'}")
        A("v_lshlrev_b32 v23, 4, v1")
        A("s_lshl_b32 s46, s50, 11"); A(f"s_add_u32 s46, s46, {WS_QP}")
        A("s_lshl_b32 s47, s56, 7"); A("s_add_u32 s47, s47, s46")
        A("s_mov_b32 exec_lo, 0")
        A("s_nop 2")
        for k in range(4):
            A(f"v_mov_b32 v{56+k}, v{60+k}")
        A("s_mov_b32 exec_lo, 0x00ffff00"); A("s_mov_b32 exec_hi, 0x00ffff00")
        for k in range(4):
            A(f"v_mov_b32 v{56+k}, 0")
        A("s_mov_b64 exec, -1")
        for k in range(4):
            A(f"v_add_f32_dpp v{56+k}, v{56+k}, v{56+k} row_ror:8 row_mask:0xf bank_mask:0xf")
        for sw in ("16", "32"):
            for k in range(4):
                A(f"v_mov_b32 v{60+k}, v{56+k}")
            A("s_nop 0")
            for k in range(4):
                A(f"v_permlane{sw}_swap_b32 v{56+k}, v{60+k}")
            for k in range(4):
                A(f"v_add_f32 v{56+k}, v{56+k}, v{60+k}")
        for k in range(4):
            A(f"v_cvt_pk_bf16_f32 v{56+k}, 0, v{56+k}")
        for k in range(4):
            A(f"v_or_b32 v{56+k}, v{56+k}, v{TG}")
        A("s_waitcnt vmcnt(0)")
        A("s_mov_b64 exec, 0xff")
        A("buffer_store_dwordx4 v[56:59], v23, s[36:39], s47 offen sc1")
        A("s_mov_b64 exec, -1")
        stamp(1)
        A("v_lshrrev_b32 v22, 3, v1"); A("v_lshlrev_b32 v22, 6, v22"); A("v_lshl_add_u32 v22, v3, 1, v22")
        A(f"v_add_u32 v22, {LD['Q']}, v22")
        A("s_waitcnt vmcnt(0)")
        A("L_h_qpoll:")
        A("buffer_load_dwordx4 v[64:67], v23, s[36:39], s46 offen sc1")
        A("buffer_load_dwordx4 v[68:71], v23, s[36:39], s46 offen offset:1024 sc1")
        A("s_waitcnt vmcnt(0)")
        tagcheck(range(64, 72), 27)
        A("s_cbranch_vccz L_h_qgo")
        spin_tail("L_h_qpoll", sleep=cfg.QSLEEP)
        A("L_h_qgo:")
        for z in range(2):
            for r in range(4):
                A(f"ds_write_b16_d16_hi v22, v{64+4*z+r} offset:{z*512+16*r}")
    A(f"v_mov_b32 v24, {LD['FLAGS']}"); A("v_mov_b32 v25, 1")
    A("s_waitcnt lgkmcnt(0)")
    A("ds_write_b32 v24, v25 offset:4")
    stamp(2)
    A("s_mov_b32 s56, s50")
    A("s_cmp_lg_u32 s51, s50")
    A("s_cbranch_scc1 L_h_noffn")
    FB = cfg.FB; NFB = 1792 // FB; RS = FB // 4
    if NFB < 16:
        A(f"s_cmp_ge_u32 s50, {NFB}")
        A("s_cbranch_scc1 L_h_noffn")
    srd(28, 16, 16 if cfg.NOFFN in (1, 3) else 448 * 3584)
    srd(32, 18, 16 if cfg.NOFFN in (1, 3) else 448 * 3584)
    A(f"v_mul_u32_u24 v23, {112*3584}, v11")
    A("v_lshl_add_u32 v23, v10, 4, v23")
    A(f"v_cmp_le_u32 vcc, {FB // 8}, v10")
    A("v_bfrev_b32 v27, 2")
    A(f"s_mul_i32 s46, s56, {FB * 2}")
    A("v_cndmask_b32 v23, v23, v27, vcc")
    A("v_lshrrev_b32 v22, 3, v10")
    A("v_mul_u32_u24 v22, 896, v22")
    A("v_mul_u32_u24 v24, 224, v11")
    A(f"v_add3_u32 v22, v22, v24, 0")
    A(f"v_add_u32 v22, {LD['XN']}, v22")
    for k in range(8):
        A(f"v_mov_b32 v{56+k}, 0")
    def ffn_loads(t):
        A(f"buffer_load_dwordx4 v[{64+8*t}:{67+8*t}], v23, s[28:31], s46 offen nt")
        A(f"buffer_load_dwordx4 v[{68+8*t}:{71+8*t}], v23, s[32:35], s46 offen nt")
        A("s_add_u32 s46, s46, 3584")
    A("s_waitcnt vmcnt(0)")
    FD = cfg.FD; DD = FD // 2; YA = 196
    for t in range(FD):
        ffn_loads(t)
    A(f"s_mov_b32 s57, {112 // FD - 1}")
    def ffn_iter(reissue):
        for z in range(FD // 8):
            A(f"ds_read_b128 v[{32+4*z}:{35+4*z}], v22 offset:{16*z}")
        A(f"v_add_u32 v22, {2*FD}, v22")
        A("s_waitcnt lgkmcnt(0)")
        for t in range(FD):
            src = 32 + t // 2; sel = 12 + 4 * (t % 2); bb = 48 + 4 * (t % 2)
            for k in range(4):
                A(f"v_perm_b32 v{bb+k}, v{src}, v{src}, v{sel+k}")
            A(f"s_waitcnt vmcnt({2*FD-2 if reissue else 2*FD-2 - 2*t})")
            A("s_nop 0")
            A(f"v_mfma_f32_16x16x32_bf16 v[56:59], v[{64+8*t}:{67+8*t}], v[{bb}:{bb+3}], v[56:59]")
            A(f"v_mfma_f32_16x16x32_bf16 v[60:63], v[{68+8*t}:{71+8*t}], v[{bb}:{bb+3}], v[60:63]")
            if reissue:
                ffn_loads(t)
    A("L_h_f1:")
    ffn_iter(True)
    A("s_sub_u32 s57, s57, 1"); A("s_cmp_lg_u32 s57, 0"); A("s_cbranch_scc1 L_h_f1")
    ffn_iter(False)
    srd(28, 20, 16 if cfg.NOFFN in (1, 2) else 1792 * 896)
    A(f"v_mul_u32_u24 v23, {RS*896}, v11")
    A("v_lshl_add_u32 v23, v10, 4, v23")
    A("v_cmp_le_u32 vcc, 8, v10")
    A(f"s_mul_i32 s46, s56, {FB*896}")
    A("s_nop 0")
    A("v_cndmask_b32 v26, v23, v27, vcc")
    def dn_loads(t):
        for nb in range(4):
            A(f"buffer_load_dwordx4 v[{64+16*t+4*nb}:{67+16*t+4*nb}], v{26 if nb == 3 else 23}, s[28:31], s46 offen offset:{nb*256} nt")
        A("s_add_u32 s46, s46, 896")
    A("s_nop 4")
    for t in range(DD):
        dn_loads(t)
    A("v_cvt_pk_bf16_f32 v32, v56, v57"); A("v_cvt_pk_bf16_f32 v33, v58, v59")
    A("v_cvt_pk_bf16_f32 v34, v60, v61"); A("v_cvt_pk_bf16_f32 v35, v62, v63")
    for k in range(4):
        A(f"v_lshlrev_b32 v{36+2*k}, 16, v{32+k}")
        A(f"v_and_b32 v{37+2*k}, 0xffff0000, v{32+k}")
    K0 = -2.0 * math.sqrt(2.0 / math.pi) * math.log2(math.e)
    A(f"s_mov_b32 s71, {hex(f2u(0.044715))}")
    for k in range(4):
        A(f"v_mul_f32 v{44+k}, v{36+k}, v{36+k}")
        A(f"v_mul_f32 v{44+k}, v{44+k}, v{36+k}")
        A(f"v_fma_f32 v{44+k}, v{44+k}, s71, v{36+k}")
        A(f"v_mul_f32 v{44+k}, {hex(f2u(K0))}, v{44+k}")
    for k in range(4):
        A(f"v_exp_f32 v{44+k}, v{44+k}")
    A("s_nop 0")
    for k in range(4):
        A(f"v_add_f32 v{44+k}, 1.0, v{44+k}")
    for k in range(4):
        A(f"v_rcp_f32 v{44+k}, v{44+k}")
    A("s_nop 0")
    for k in range(4):
        A(f"v_mul_f32 v{44+k}, v{44+k}, v{36+k}")
    A("v_cvt_pk_bf16_f32 v32, v44, v45"); A("v_cvt_pk_bf16_f32 v33, v46, v47")
    for k in range(2):
        A(f"v_lshlrev_b32 v{44+2*k}, 16, v{32+k}")
        A(f"v_and_b32 v{45+2*k}, 0xffff0000, v{32+k}")
    for k in range(4):
        A(f"v_mul_f32 v{44+k}, v{44+k}, v{40+k}")
    A("v_cvt_pk_bf16_f32 v32, v44, v45"); A("v_cvt_pk_bf16_f32 v33, v46, v47")
    A("v_lshrrev_b32 v22, 3, v10")
    A("v_lshlrev_b32 v22, 8, v22")
    A(f"v_add_u32 v22, {LD['H']}, v22")
    A("v_lshl_add_u32 v24, v11, 6, v22")
    A("v_lshl_add_u32 v24, v3, 1, v24")
    A(f"v_mul_u32_u24 v25, {RS*2}, v11")
    A("v_add_u32 v22, v22, v25")
    A("ds_write_b16 v24, v32")
    A("ds_write_b16_d16_hi v24, v32 offset:16")
    A("ds_write_b16 v24, v33 offset:32")
    A("ds_write_b16_d16_hi v24, v33 offset:48")
    for k in range(16):
        A(f"v_mov_b32 v{YA+k}, 0")
    A("s_waitcnt lgkmcnt(0)")
    A(f"s_mov_b32 s57, {RS // DD - 1}")
    def dn_iter(reissue):
        for z in range(DD // 4):
            A(f"ds_read_b64 v[{32+2*z}:{33+2*z}], v22 offset:{8*z}")
        A(f"v_add_u32 v22, {2*DD}, v22")
        A("s_waitcnt lgkmcnt(0)")
        for t in range(DD):
            src = 32 + t // 2; sel = 12 + 4 * (t % 2); bb = 48 + 4 * (t % 2)
            for k in range(4):
                A(f"v_perm_b32 v{bb+k}, v{src}, v{src}, v{sel+k}")
            A(f"s_waitcnt vmcnt({4*DD-4 if reissue else 4*DD-4 - 4*t})")
            A("s_nop 0")
            for nb in range(4):
                A(f"v_mfma_f32_16x16x32_bf16 v[{YA+4*nb}:{YA+3+4*nb}], v[{64+16*t+4*nb}:{67+16*t+4*nb}], v[{bb}:{bb+3}], v[{YA+4*nb}:{YA+3+4*nb}]")
            if reissue:
                dn_loads(t)
    A("L_h_f2:")
    dn_iter(True)
    A("s_sub_u32 s57, s57, 1"); A("s_cmp_lg_u32 s57, 0"); A("s_cbranch_scc1 L_h_f2")
    dn_iter(False)
    A("v_lshrrev_b32 v22, 3, v10")
    A("v_lshlrev_b32 v22, 11, v22")
    A("v_lshl_add_u32 v22, v11, 7, v22")
    A("v_lshl_add_u32 v22, v3, 4, v22")
    A("s_lshl_b32 s46, s56, 12"); A(f"s_add_u32 s46, s46, {WS_HY}")
    A("s_nop 4")
    for k in range(16):
        tag(YA + k)
    for nb in range(4):
        if nb == 3:
            A("s_mov_b32 exec_hi, 0")
        A(f"buffer_store_dwordx4 v[{YA+4*nb}:{YA+3+4*nb}], v22, s[36:39], s46 offen offset:{nb*512} sc1")
    A("s_mov_b64 exec, -1")
    stamp(3)
    A("L_h_noffn:")
    A("s_and_b32 s56, s2, 127")
    A("s_cmp_eq_u32 s2, 255")
    A("s_cbranch_scc1 L_h_epoch")
    A("s_cmp_ge_u32 s56, 28")
    A("s_cbranch_scc1 L_end")
    A("v_lshlrev_b32 v22, 12, v10")
    A("v_lshl_add_u32 v22, v11, 4, v22")
    A("s_lshl_b32 s46, s52, 11"); A("s_lshl_b32 s47, s56, 6"); A("s_add_u32 s46, s46, s47"); A(f"s_add_u32 s46, s46, {WS_HY}")
    for k in range(4):
        A(f"v_mov_b32 v{64+k}, 0")
    ym = ((1 << NFB) - 1) * 0x10001
    A(f"s_mov_b32 exec_lo, {hex(ym)}"); A(f"s_mov_b32 exec_hi, {hex(ym)}")
    A("L_h_ypoll:")
    A("buffer_load_dwordx4 v[64:67], v22, s[36:39], s46 offen sc1")
    A("s_waitcnt vmcnt(0)")
    tagcheck(range(64, 68), 27)
    A("s_cbranch_vccz L_h_ygo")
    spin_tail("L_h_ypoll", sleep=64)
    A("L_h_ygo:")
    A("s_mov_b64 exec, -1")
    A("s_lshr_b32 s47, s56, 1"); A("s_lshl_b32 s47, s47, 5"); A("s_and_b32 s48, s56, 1"); A("s_lshl_b32 s48, s48, 2")
    A("s_add_u32 s47, s47, s48"); A("s_mul_i32 s48, s52, 448"); A("s_add_u32 s47, s47, s48"); A("s_lshl_b32 s57, s47, 1")
    srd(28, 4, 1792)
    srd(32, 22, 1792)
    A("v_lshlrev_b32 v23, 1, v11")
    for rr in range(4):
        A(f"buffer_load_ushort v{72+rr}, v23, s[28:31], s57 offen offset:{16*rr}")
    A("s_waitcnt vmcnt(0)")
    for sh in (8, 4, 2, 1):
        for k in range(4):
            A(f"v_add_f32_dpp v{64+k}, v{64+k}, v{64+k} row_ror:{sh} row_mask:0xf bank_mask:0xf")
    A("v_cvt_pk_bf16_f32 v68, v64, v65"); A("v_cvt_pk_bf16_f32 v69, v66, v67")
    for k in range(2):
        A(f"v_lshlrev_b32 v{64+2*k}, 16, v{68+k}")
        A(f"v_and_b32 v{65+2*k}, 0xffff0000, v{68+k}")
    for k in range(4):
        A(f"v_mul_f32 v{68+k}, {hex(f2u(-math.log2(math.e)))}, v{64+k}")
    for k in range(4):
        A(f"v_exp_f32 v{68+k}, v{68+k}")
    A("s_nop 0")
    for k in range(4):
        A(f"v_add_f32 v{68+k}, 1.0, v{68+k}")
    for k in range(4):
        A(f"v_rcp_f32 v{68+k}, v{68+k}")
    A("s_nop 0")
    for k in range(4):
        A(f"v_mul_f32 v{64+k}, v{64+k}, v{68+k}")
    A("v_cvt_pk_bf16_f32 v68, v64, v65"); A("v_cvt_pk_bf16_f32 v69, v66, v67")
    for k in range(2):
        A(f"v_lshlrev_b32 v{76+2*k}, 16, v{68+k}")
        A(f"v_and_b32 v{77+2*k}, 0xffff0000, v{68+k}")
    for k in range(4):
        A(f"v_lshlrev_b32 v{72+k}, 16, v{72+k}")
    A("v_lshlrev_b32 v22, 11, v10")
    A("v_lshl_add_u32 v22, v11, 4, v22")
    A("s_lshl_b32 s46, s52, 18"); A("s_lshl_b32 s47, s56, 6"); A("s_add_u32 s46, s46, s47"); A(f"s_add_u32 s46, s46, {WS_HB}")
    for k in range(1, 8):
        A(f"s_add_u32 s{63+k}, s46, {k*32768}")
    stamp(4)
    A("s_waitcnt vmcnt(0) lgkmcnt(0)")
    A("s_barrier")
    A("s_barrier")
    if cfg.WOLATE == 4:
        A("s_barrier")
    if cfg.BAR4:
        A("s_barrier")
    def issB():
        for k in range(8):
            A(f"buffer_load_dwordx4 v[{96+4*k}:{99+4*k}], v22, s[36:39], s{46 if k == 0 else 63+k} offen sc1")
    poll("L_h_bpoll", issB, 8, lambda: tagcheck(range(96, 128), 24), "L_h_bgo")
    A("L_h_bgo:")
    A("s_mov_b64 exec, -1")
    stamp(5)
    for k in range(16):
        A(f"v_add_f32 v{128+k}, v{96+k}, v{112+k}")
    for step in (8, 4):
        for k in range(step):
            A(f"v_add_f32 v{128+k}, v{128+k}, v{128+step+k}")
    A("s_nop 0")
    for sh in (8, 4, 2, 1):
        for k in range(4):
            A(f"v_add_f32_dpp v{128+k}, v{128+k}, v{128+k} row_ror:{sh} row_mask:0xf bank_mask:0xf")
    A("v_cvt_pk_bf16_f32 v132, v128, v129"); A("v_cvt_pk_bf16_f32 v133, v130, v131")
    for k in range(2):
        A(f"v_lshlrev_b32 v{128+2*k}, 16, v{132+k}")
        A(f"v_and_b32 v{129+2*k}, 0xffff0000, v{132+k}")
    for k in range(4):
        A(f"v_mul_f32 v{128+k}, v{128+k}, v{76+k}")
    A("v_cvt_pk_bf16_f32 v132, v128, v129"); A("v_cvt_pk_bf16_f32 v133, v130, v131")
    for k in range(2):
        A(f"v_lshlrev_b32 v{128+2*k}, 16, v{132+k}")
        A(f"v_and_b32 v{129+2*k}, 0xffff0000, v{132+k}")
    for k in range(4):
        A(f"v_add_f32 v{128+k}, v{128+k}, v{72+k}")
    A("v_cvt_pk_bf16_f32 v132, v128, v129"); A("v_cvt_pk_bf16_f32 v133, v130, v131")
    A("s_mov_b32 exec_lo, 0x00010001"); A("s_mov_b32 exec_hi, 0x00010001")
    A("buffer_store_short v132, v23, s[32:35], s57 offen")
    A("buffer_store_short_d16_hi v132, v23, s[32:35], s57 offen offset:16")
    A("buffer_store_short v133, v23, s[32:35], s57 offen offset:32")
    A("buffer_store_short_d16_hi v133, v23, s[32:35], s57 offen offset:48")
    A("s_mov_b64 exec, -1")
    stamp(6)
    if cfg.DBGT:
        A("s_memrealtime s[94:95]")
        srd(28, 24, 256)
        A("s_waitcnt lgkmcnt(0)")
        A("s_not_b32 s92, s92")
        A("v_mov_b32 v24, s92"); A("v_mov_b32 v25, s94"); A("v_mov_b32 v26, 0")
        A("s_mov_b64 exec, 1")
        A("buffer_atomic_umax v24, v26, s[28:31], 0 offen sc1")
        A("buffer_atomic_umax v25, v26, s[28:31], 0 offen offset:4 sc1")
    A("L_end:")
    A("s_endpgm")
    A("L_h_epoch:")
    if cfg.HAL:
        A(f"v_mul_u32_u24 v22, {HBS}, v1")
        for k in range(4):
            A(f"s_mov_b32 s{64+k}, {WS_HA2 + 2048 + k*64*HBS}")
    else:
        A("v_lshlrev_b32 v22, 12, v11")
        A("v_lshl_add_u32 v22, v10, 7, v22")
        for k in range(4):
            A(f"s_mov_b32 s{64+k}, {WS_HM + k*4*4096}")
    A("s_waitcnt vmcnt(0) lgkmcnt(0)")
    A("s_barrier")
    A("s_barrier")
    if cfg.WOLATE == 4:
        A("s_barrier")
    if cfg.BAR4:
        A("s_barrier")
    A("L_h_epoll:")
    for k in range(4):
        A(f"buffer_load_dwordx2 v[{96+2*k}:{97+2*k}], v22, s[36:39], s{64+k} offen offset:8 sc1")
    A("s_waitcnt vmcnt(0)")
    tagcheck([], 24, full=range(96, 104))
    A("s_cbranch_vccz L_h_ego")
    spin_tail("L_h_epoll", sleep=8)
    A("L_h_ego:")
    A("v_mov_b32 v24, s58"); A("v_mov_b32 v25, 0")
    A("s_mov_b64 exec, 1")
    A(f"buffer_store_dword v24, v25, s[36:39], 0 offen offset:{WS_EP}")
    A("s_endpgm")
    nv = 256 if cfg.DIAG else 216
    A('.section .rodata,"a"'); A(".p2align 6"); A(f".amdhsa_kernel {NAME}")
    A.L.append(f"  .amdhsa_next_free_vgpr {nv}"); A.L.append("  .amdhsa_next_free_sgpr 102"); A.L.append(f"  .amdhsa_accum_offset {nv}")
    A.L.append("  .amdhsa_group_segment_fixed_size 0"); A.L.append("  .amdhsa_kernarg_size 96"); A.L.append("  .amdhsa_user_sgpr_count 2")
    A.L.append("  .amdhsa_user_sgpr_kernarg_segment_ptr 1"); A.L.append("  .amdhsa_system_sgpr_workgroup_id_x 1"); A(".end_amdhsa_kernel")
    FL = {0: "sc1", 1: "sc0 sc1", 2: "sc0 sc1 nt", 3: "sc1 nt"}
    for i, line in enumerate(A.L):
        if line.startswith("buffer_load") and line.endswith(" sc1"):
            A.L[i] = line[:-3] + FL[cfg.PF]
        if line.startswith("buffer_load") and line.endswith(" nt"):
            A.L[i] = line[:-2] + POL[cfg.WP]
        if line.startswith("buffer_store") and line.endswith(" sc1"):
            A.L[i] = line[:-3] + FL[cfg.SF]
    if cfg.DIAG:
        sys.stderr.write(str(codes) + "\n")
    return "\n".join(A.L) + "\n"

if __name__ == "__main__":
    cfg = Cfg()
    out = sys.argv[1]
    for kv in sys.argv[2:]:
        k, v = kv.split("=")
        setattr(cfg, k, tuple(int(x) for x in v.split("/") if x) if k == "SIZES" else int(v))
    open(out, "w").write(gen(cfg))
```

```python
import sys, math
NAME = "recurrent_scan__gqa_block_cached__glu_gated_geglu__decode_kernel"

class Cfg:
    F = 20
    R = 9
    C = 6
    DIAG = False
    SPIN = 1 << 22
    NOSWZ = 0
    NOCOMP = 0
    NOWO = 0
    NOWQ = 0
    PSLEEP = 1
    QSLEEP = 4
    BAR3 = 1
    BAR4 = 1
    MASKP = 1
    DBGT = 0
    F3 = 0
    LBAR = 0
    FD = 8
    ET = 2
    PIPE = 0
    QV = 2
    HAL = 0
    EARLYK = 1
    WOLATE = 4
    NOCF = 0
    SVC = 0
    HBL = 1
    FP1 = 0
    FP2 = 47
    ICHK = 1
    LSLEEP = 16
    PGAP = 4
    EZ = 6
    HSLEEP = 1
    PF = 0
    FB = 128
    STAT = 2
    KP = 1
    VP = 1
    WP = 1
    ROT = 5
    GS = 11
    WIN = 1
    SF = 0
    SIZES = (3, 2, 1)
    NOFFN = 0

def lds_layout(R):
    o = R * 16384
    L = {}
    L['FLAGS'] = o; o += 256
    L['Q'] = o; o += 1024
    L['XN'] = o; o += 1792
    L['H'] = o; o += 512
    L['SC'] = o; o += 72 * 128
    L['END'] = o
    return L

WS_EP = 0
WS_PC = 0x1000
PCS = 4352
WS_QP = 0x20000
WS_HA = 0x40000
WS_HA2 = 0x280000
HBS = 2304
WS_HM = 0xC0000
WS_HB = 0xD0000
WS_HY = 0x150000
WS_DIAG = 0x200000
WS_SIZE = 0x400000
TAGM = 0xf
POL = {0: "", 1: "nt", 2: "sc1", 3: "sc0 sc1", 4: "sc1 nt", 5: "sc0 sc1 nt", 6: "sc0", 7: "sc0 nt"}
CSC = 0.0625 * math.log2(math.e)

import struct
def f2u(x):
    return struct.unpack('<I', struct.pack('<f', x))[0]

class Asm:
    def __init__(self):
        self.L = []
        self.n = 0
    def __call__(self, s):
        for line in s.strip('\n').split('\n'):
            self.L.append(line.strip() if not line.strip().endswith(':') else line.strip())
    def label(self, base):
        self.n += 1
        return f"L_{base}_{self.n}"

def gen(cfg):
    F, R, C = cfg.F, cfg.R, cfg.C
    LD = lds_layout(R)
    assert LD['END'] <= 163840, LD['END']
    A = Asm()
    NUNITS = 128
    SIZES = tuple(cfg.SIZES)
    S = NUNITS - sum(SIZES)
    NT = (15 if cfg.SVC else 16) * len(SIZES)
    assert len(SIZES) <= 8
    SZP = sum(v << (8 * r) for r, v in enumerate(SIZES))
    STP = sum((S + sum(SIZES[:r])) << (8 * r) for r in range(len(SIZES)))
    def srd(dst, base, size, add=None):
        if add is None:
            A(f"s_mov_b32 s{dst}, s{base}")
            A(f"s_and_b32 s{dst+1}, s{base+1}, 0xffff")
        else:
            A(f"s_add_u32 s{dst}, s{base}, s{add}")
            A(f"s_addc_u32 s{dst+1}, s{base+1}, 0")
            A(f"s_and_b32 s{dst+1}, s{dst+1}, 0xffff")
        A(f"s_mov_b32 s{dst+2}, {size}")
        A(f"s_mov_b32 s{dst+3}, 0x20000")
    def stamp(idx, tmpv=(250, 251, 252), light=False):
        if not cfg.DIAG or (cfg.DIAG == 2 and not light):
            return
        A(f"s_memrealtime s[96:97]")
        A(f"s_lshl_b32 s98, s2, 3")
        A(f"s_add_u32 s98, s98, s3")
        A(f"s_lshl_b32 s98, s98, 7")
        A(f"s_add_u32 s98, s98, {WS_DIAG + idx*8}")
        A(f"s_waitcnt lgkmcnt(0)")
        A(f"v_mov_b32 v{tmpv[0]}, s96")
        A(f"v_mov_b32 v{tmpv[1]}, s97")
        A(f"v_mov_b32 v{tmpv[2]}, 0")
        A(f"s_mov_b64 s[94:95], exec")
        A(f"s_mov_b64 exec, 1")
        A(f"buffer_store_dwordx2 v[{tmpv[0]}:{tmpv[1]}], v{tmpv[2]}, s[36:39], s98 offen")
        A(f"s_mov_b64 exec, s[94:95]")
    TG = 193
    def tag(v):
        A(f"v_bfi_b32 v{v}, s59, v{TG}, v{v}")
    def tagcheck(regs, acc, full=()):
        regs = list(regs)
        if len(regs) == 0:
            A(f"v_mov_b32 v{acc}, 0")
        elif len(regs) == 1:
            A(f"v_xor_b32 v{acc}, v{regs[0]}, v{TG}")
        else:
            A(f"v_bitop3_b32 v{acc}, v{regs[0]}, v{regs[1]}, v{TG} bitop3:0x7e")
            for r in regs[2:]:
                A(f"v_bitop3_b32 v{acc}, v{acc}, v{r}, v{TG} bitop3:0xf6")
        A(f"v_and_b32 v{acc}, s59, v{acc}")
        for r in full:
            A(f"v_bitop3_b32 v{acc}, v{acc}, v{r}, s58 bitop3:0xf6")
        A(f"v_cmp_ne_u32 vcc, 0, v{acc}")
    def remask():
        if cfg.MASKP:
            A("s_or_b32 s76, vcc_lo, vcc_hi"); A("s_lshr_b32 s77, s76, 16"); A("s_or_b32 s76, s76, s77")
            A("s_pack_ll_b32_b16 s76, s76, s76")
            A("s_mov_b32 exec_lo, s76"); A("s_mov_b32 exec_hi, s76")
    def poll(lbl, issue, n, check, go):
        if not cfg.PIPE:
            A(f"{lbl}:")
            issue()
            A("s_waitcnt vmcnt(0)")
            check()
            A(f"s_cbranch_vccz {go}")
            remask()
            if cfg.SVC and n == 3:
                q = A.label("awake")
                A("s_bcnt1_i32_b32 s77, s76"); A("s_cmp_lt_u32 s77, 30"); A(f"s_cbranch_scc1 {q}")
                A(f"s_sleep {cfg.LSLEEP}")
                A(f"{q}:")
            spin_tail(lbl, sleep=cfg.HSLEEP)
        else:
            issue()
            A("s_waitcnt vmcnt(0)")
            check()
            A(f"s_cbranch_vccz {go}")
            remask()
            for d in range(cfg.PIPE):
                issue()
                A(f"s_sleep {cfg.PGAP}")
            A(f"{lbl}:")
            issue()
            A(f"s_waitcnt vmcnt({n * cfg.PIPE})")
            check()
            A(f"s_cbranch_vccz {go}")
            remask()
            spin_tail(lbl, sleep=0)
    codes = {}
    def die(lbl):
        if cfg.DIAG:
            codes.setdefault(lbl, len(codes) + 1)
            A("s_mov_b64 exec, 1")
            A(f"v_mov_b32 v248, {codes[lbl]}"); A("v_mov_b32 v249, s40"); A("v_mov_b32 v250, s43"); A("v_mov_b32 v251, s73"); A("v_mov_b32 v252, 0")
            A("s_lshl_b32 s98, s2, 3"); A("s_add_u32 s98, s98, s3"); A("s_lshl_b32 s98, s98, 7"); A(f"s_add_u32 s98, s98, {WS_DIAG + 112}")
            A("buffer_store_dwordx4 v[248:251], v252, s[36:39], s98 offen")
        A("s_endpgm")
    def spin_tail(lbl, cnt="s45", sleep=1):
        A(f"s_sleep {sleep}")
        A(f"s_sub_u32 {cnt}, {cnt}, 1")
        A(f"s_cmp_lg_u32 {cnt}, 0")
        A(f"s_cbranch_scc1 {lbl}")
        die(lbl)

    hdr = open('recurrent_scan__gqa_block_cached__glu_gated_geglu__decode.s.ref').read().split('\n')
    for line in hdr:
        if line.startswith('; @launch') or not line.startswith(';'):
            break
        A.L.append(line)
    A(f"; @launch grid=(256,1,1) block=(512,1,1) lds={LD['END']}")
    A('.amdgcn_target "amdgcn-amd-amdhsa--gfx950"')
    A(".text"); A(f".globl {NAME}"); A(".p2align 8"); A(f".type {NAME},@function"); A(f"{NAME}:")
    if cfg.DIAG or cfg.DBGT:
        A("s_memrealtime s[92:93]")
    A(f"""
    s_cmp_ge_u32 s2, 256
    s_cbranch_scc1 L_end
    s_load_dwordx8 s[4:11], s[0:1], 0
    s_load_dwordx8 s[12:19], s[0:1], 32
    s_load_dwordx8 s[20:27], s[0:1], 64
    v_and_b32 v1, 63, v0
    v_lshrrev_b32 v2, 6, v0
    v_lshlrev_b32 v3, 2, v1
    v_add_u32 v3, {LD['FLAGS']}, v3
    v_mov_b32 v4, 0
    ds_write_b32 v3, v4
    v_readfirstlane_b32 s3, v2
    s_mov_b32 s45, {cfg.SPIN}
    s_mov_b32 s40, 0
    s_mov_b32 s43, 0
    s_mov_b32 s73, 0
    """)
    A("v_lshrrev_b32 v5, 5, v1")
    A("v_and_b32 v6, 31, v1")
    A("v_xor_b32 v6, v6, v5")
    A("v_lshlrev_b32 v5, 9, v5")
    for j in range(8):
        A(f"v_xor_b32 v7, {2*j}, v6")
        A(f"v_lshl_add_u32 v{8+j}, v7, 4, v5")
    A("v_lshlrev_b32 v16, 4, v1")
    A(f"v_mov_b32 v17, {LD['FLAGS']}")
    A("s_lshr_b32 s46, s2, 4")
    A("s_lshl_b32 s46, s46, 24")
    A("s_waitcnt lgkmcnt(0)")
    if cfg.LBAR:
        A("s_cmp_eq_u32 s3, 0")
        A("s_cbranch_scc1 L_loader")
        A("s_barrier")
        A("s_branch L_notloader")
        A("L_loader:")
    else:
        A("s_barrier")
        A("s_cmp_lg_u32 s3, 0")
        A("s_cbranch_scc1 L_notloader")
    A("s_setprio 3")
    srd(28, 6, 1 << 24, add=46)
    srd(32, 8, 1 << 24, add=46)
    if cfg.DIAG:
        srd(36, 26, WS_SIZE)
    stamp(0)
    if cfg.DIAG == 1:
        A("v_mov_b32 v250, s92"); A("v_mov_b32 v251, s93"); A("s_mov_b64 exec, 1")
        A("buffer_store_dwordx2 v[250:251], v252, s[36:39], s98 offen offset:56")
        A("s_mov_b64 exec, -1")
    a_, jp = divmod(F - 1, 16)
    assert S % 2 == 0
    NFB = 1792 // cfg.FB
    assert (cfg.ET * cfg.EZ) % 2 == 0
    FC = 8 + cfg.ET * cfg.EZ // 2
    A("s_mov_b32 s90, 0")
    if cfg.DIAG:
        A("s_mov_b32 s88, 0")
    A("s_mov_b32 s41, 0"); A("s_and_b32 s66, s2, 15"); A("s_mov_b32 s67, 0"); A("s_mov_b32 s44, 0")
    A("s_lshr_b32 s70, s2, 4"); A(f"s_mul_i32 s68, s70, {cfg.GS}")
    def ld_addr(dst, dt):
        A(f"s_add_u32 s69, s67, {dt}")
        A(f"s_add_u32 {dst}, s69, s68"); A(f"s_and_b32 {dst}, {dst}, 127"); A(f"s_lshl_b32 {dst}, {dst}, 17")
        A(f"s_mul_i32 s69, s69, {cfg.ROT}"); A("s_add_u32 s69, s69, s66"); A("s_and_b32 s69, s69, 15"); A("s_lshl_b32 s69, s69, 13")
        A(f"s_or_b32 {dst}, {dst}, s69")
    def ld_body(kinds, first=False, F=F):
        a_, jp = divmod(F - 1, 16)
        for j in range(16):
            if not first:
                A(f"s_waitcnt vmcnt({F-1})")
            if j == jp and not first:
                A(f"s_sub_i32 s49, s40, {a_}")
                A("s_max_i32 s43, s43, s49")
                A("v_mov_b32 v18, s43")
                A("ds_write_b32 v17, v18")
            if j % 4 == 0:
                A(f"s_add_u32 m0, s41, {j*1024}")
                A(f"s_add_u32 s47, {'s42' if j < 8 else 's75'}, {(j % 8)*1024}")
            if j == 8:
                A("s_add_u32 s44, s44, 4"); A(f"s_cmp_ge_u32 s44, {R*4}"); A("s_cselect_b32 s44, 0, s44")
                A("v_add_u32 v19, s44, v17")
                A("ds_read_b32 v20, v19 offset:64")
            if kinds[j // 8] == 'K':
                A(f"buffer_load_dwordx4 v{8 + j % 8}, s[28:31], s47 offen offset:{(j%4)*1024} {POL[cfg.KP]} lds")
            else:
                A(f"buffer_load_dwordx4 v16, s[32:35], s47 offen offset:{(j%4)*1024} {POL[cfg.VP]} lds")
            if first and j == 7:
                ld_addr("s75", 1)
        A("s_add_u32 s40, s40, 1")
        A("s_add_u32 s41, s41, 16384"); A(f"s_cmp_ge_u32 s41, {R*16384}"); A("s_cselect_b32 s41, 0, s41")
        A("s_sub_u32 s53, s53, 1")
    def ld_ring(lbl):
        if cfg.DIAG == 1:
            n = A.label("nops")
            A("s_and_b32 s91, s40, 15"); A("s_cmp_lg_u32 s91, 0"); A(f"s_cbranch_scc1 {n}")
            A("s_cmp_gt_u32 s40, 80"); A(f"s_cbranch_scc1 {n}")
            A("s_memrealtime s[96:97]")
            A("s_lshl_b32 s98, s2, 10"); A("s_lshr_b32 s91, s40, 1"); A("s_add_u32 s98, s98, s91"); A(f"s_add_u32 s98, s98, {WS_DIAG + 64}")
            A("s_waitcnt lgkmcnt(0)")
            A("v_mov_b32 v250, s96"); A("v_mov_b32 v251, s97"); A("v_mov_b32 v252, 0")
            A("s_mov_b64 exec, 1")
            A("buffer_store_dwordx2 v[250:251], v252, s[36:39], s98 offen")
            A("s_mov_b64 exec, -1")
            A(f"{n}:")
        A(f"s_sub_i32 s48, s40, {R-1}")
        A("v_readfirstlane_b32 s47, v20")
        A("s_cmp_ge_i32 s47, s48")
        A(f"s_cbranch_scc1 {lbl}")
        if cfg.DIAG == 1:
            n = A.label("nost")
            A("s_cmp_lg_u32 s90, 0"); A(f"s_cbranch_scc1 {n}"); A("s_mov_b32 s90, 1")
            stamp(2)
            A(f"{n}:")
            stamp(3)
        A("s_waitcnt vmcnt(0)")
        A("s_mov_b32 s43, s40")
        A("v_mov_b32 v18, s43")
        A("ds_write_b32 v17, v18")
        sp = lbl + "_spin"
        A(f"{sp}:")
        A("ds_read_b32 v20, v19 offset:64")
        A("s_waitcnt lgkmcnt(0)")
        A("v_readfirstlane_b32 s47, v20")
        A("s_cmp_ge_i32 s47, s48")
        A(f"s_cbranch_scc1 {lbl}")
        spin_tail(sp)
    def ld_ticket_req():
        n = A.label("noat")
        A("s_add_u32 s74, s53, s71")
        A("s_cmp_lg_u32 s74, 1")
        A(f"s_cbranch_scc1 {n}")
        A("s_mov_b32 s54, 1")
        if NT:
            A("s_atomic_add s54, s[56:57], 0x0 glc")
        A(f"{n}:")
    def ld_adv():
        if not cfg.SVC:
            A("s_add_u32 s67, s67, 2")
            return
        o = A.label("own"); d = A.label("adv")
        A("s_cmp_eq_u32 s66, s70"); A(f"s_cbranch_scc1 {o}")
        A("s_cmp_lg_u32 s67, s83"); A(f"s_cbranch_scc1 {o}")
        A("s_mov_b32 s66, s70"); A("s_add_u32 s83, s83, 30"); A(f"s_branch {d}")
        A(f"{o}:")
        A("s_mov_b32 s66, s81"); A("s_add_u32 s67, s67, 2")
        A(f"{d}:")
    if cfg.SVC:
        assert 120 <= S <= 122 and not cfg.LBAR
        A("s_cmp_eq_u32 s66, s70")
        A("s_cbranch_scc1 L_ld_svc")
    ld_addr("s42", 0)
    A("s_mov_b32 s53, 0")
    ld_body("KK", first=True)
    if cfg.LBAR:
        A("s_barrier")
    A(f"s_mul_i32 s50, s70, {PCS}"); A(f"s_add_u32 s50, s50, {WS_PC}")
    A("s_add_u32 s56, s26, s50"); A("s_addc_u32 s57, s27, 0")
    A(f"s_mov_b32 s60, {hex(SZP & 0xffffffff)}"); A(f"s_mov_b32 s61, {hex(SZP >> 32)}")
    A(f"s_mov_b32 s62, {hex(STP & 0xffffffff)}"); A(f"s_mov_b32 s63, {hex(STP >> 32)}")
    A("s_mov_b32 s54, 0")
    if not cfg.SVC:
        A(f"s_cmp_lt_u32 s70, {0 if cfg.NOCF else NFB}"); A("s_cselect_b32 s71, 1, 0")
        A(f"s_add_u32 s72, s66, {S - 16}")
        A("s_cmp_eq_u32 s66, s70"); A("s_cselect_b32 s78, s71, 0"); A(f"s_mul_i32 s78, s78, {FC}"); A(f"s_sub_u32 s78, {S // 2}, s78")
        A(f"s_mul_i32 s80, s71, {cfg.ET}")
    else:
        A("s_mov_b32 s71, 0"); A(f"s_mov_b32 s78, {S // 2 + 4}"); A("s_mov_b32 s81, s66")
        A("s_cmp_gt_u32 s66, s70"); A("s_cselect_b32 s82, 1, 0"); A("s_sub_u32 s82, s66, s82"); A("s_lshl_b32 s82, s82, 1")
        A("s_mov_b32 s83, s82")
    A("s_sub_u32 s53, s78, 1")
    A("s_branch L_ld_kbot")
    if cfg.SVC:
        A("L_ld_svc:")
        A("s_mov_b32 s53, 8"); A("s_mov_b32 s67, 120"); A("s_mov_b32 s71, 64")
        A("s_mov_b32 s56, s26"); A("s_mov_b32 s57, s27")
        ld_addr("s42", 0)
        A("s_mov_b32 s75, s42")
        A("s_branch L_ld_c")
    A("L_ld_k:")
    ld_body("KK")
    A("L_ld_kbot:")
    ld_adv()
    A("s_cmp_lg_u32 s53, 0")
    A("s_cbranch_scc1 L_ld_kc")
    A("s_mov_b32 s67, 0"); A("s_mov_b32 s53, s78")
    if cfg.SVC:
        A("s_mov_b32 s66, s81"); A("s_mov_b32 s83, s82")
    A("s_branch L_ld_vc")
    A("L_ld_kc:")
    ld_addr("s42", 0); ld_addr("s75", 1)
    A("s_waitcnt lgkmcnt(0)")
    ld_ring("L_ld_k")
    A("L_ld_v:")
    ld_ticket_req()
    ld_body("VV")
    ld_adv()
    A("s_cmp_eq_u32 s53, 0")
    A("s_cbranch_scc1 L_ld_next")
    A("L_ld_vc:")
    ld_addr("s42", 0); ld_addr("s75", 1)
    A("s_waitcnt lgkmcnt(0)")
    ld_ring("L_ld_v")
    A("L_ld_c:")
    ld_ticket_req()
    F3 = cfg.F3 or F
    ld_body("KV", F=F3)
    A("s_add_u32 s67, s67, 1")
    A("s_cmp_lg_u32 s53, 0")
    A("s_cbranch_scc1 L_ld_cc")
    A("L_ld_next:")
    A("s_cmp_eq_u32 s71, 0"); A("s_cbranch_scc1 L_ld_tick")
    if cfg.SVC:
        A("s_branch L_ld_done")
    A("s_mov_b32 s71, 0"); A("s_mov_b32 s53, 1"); A("s_mov_b32 s66, s70"); A("s_mov_b32 s67, s72")
    A("s_branch L_ld_cc")
    A("L_ld_tick:")
    if cfg.DIAG == 1:
        A("s_memrealtime s[84:85]")
    A("s_waitcnt lgkmcnt(0)")
    if cfg.DIAG == 1:
        A("s_memrealtime s[86:87]"); A("s_waitcnt lgkmcnt(0)")
        A("s_sub_u32 s86, s86, s84"); A("s_lshl_b32 s88, s88, 8"); A("s_min_u32 s86, s86, 255"); A("s_or_b32 s88, s88, s86")
    if cfg.ET and not cfg.SVC:
        A("s_cmp_ge_u32 s54, s80"); A("s_cbranch_scc1 L_ld_tick2")
        A(f"s_mov_b32 s53, {cfg.EZ}"); A("s_mov_b32 s66, s70")
        A(f"s_mul_i32 s67, s54, {cfg.EZ}"); A(f"s_add_u32 s67, s67, {S - 2 * FC}")
        A("s_branch L_ld_cc")
        A("L_ld_tick2:")
        A("s_sub_u32 s54, s54, s80")
    A(f"s_cmp_ge_u32 s54, {NT}")
    A("s_cbranch_scc1 L_ld_done")
    if cfg.SVC:
        A("s_mul_i32 s51, s54, 4370"); A("s_lshr_b32 s51, s51, 16")
        A("s_mul_i32 s52, s51, 15"); A("s_sub_u32 s54, s54, s52")
        A("s_cmp_ge_u32 s54, s70"); A("s_addc_u32 s54, s54, 0")
        A("s_lshl_b32 s51, s51, 3")
    else:
        A("s_lshr_b32 s51, s54, 4"); A("s_lshl_b32 s51, s51, 3")
    A("s_lshr_b64 s[64:65], s[60:61], s51"); A("s_and_b32 s53, s64, 0xff")
    A("s_lshr_b64 s[64:65], s[62:63], s51"); A("s_and_b32 s67, s64, 0xff")
    A("s_and_b32 s66, s54, 15")
    A("L_ld_cc:")
    ld_addr("s42", 0)
    A("s_mov_b32 s75, s42")
    A("s_waitcnt lgkmcnt(0)")
    ld_ring("L_ld_c")
    A("L_ld_done:")
    A("s_lshl_b32 s50, s40, 16")
    A("s_or_b32 s51, s50, s43")
    A("v_mov_b32 v18, s51")
    A("ds_write_b32 v17, v18")
    for k in range(3, -1, -1):
        if 16 * k < max(F, F3):
            A(f"s_sub_u32 s51, s40, {k}")
            A("s_max_u32 s51, s51, s43")
            A("s_or_b32 s51, s51, s50")
            A(f"s_waitcnt vmcnt({16*k})")
            A(f"v_mov_b32 v18, s51")
            A("ds_write_b32 v17, v18")
            if k == 1 and cfg.EARLYK:
                A("s_or_b32 s51, s51, 0x8000")
                A("s_waitcnt vmcnt(8)")
                A(f"v_mov_b32 v18, s51")
                A("ds_write_b32 v17, v18")
    if cfg.DIAG:
        A("v_mov_b32 v250, s40"); A("v_mov_b32 v251, s88"); A("v_mov_b32 v252, 0")
        A("s_lshl_b32 s98, s2, 10"); A(f"s_add_u32 s98, s98, {WS_DIAG + 8*8}")
        A("s_mov_b64 exec, 1")
        A("buffer_store_dwordx2 v[250:251], v252, s[36:39], s98 offen")
        A("s_mov_b64 exec, -1")
        A("s_nop 1")
    stamp(1, light=True)
    if cfg.DIAG == 2:
        A("s_nop 1")
        A("v_mov_b32 v250, s92"); A("v_mov_b32 v251, s93"); A("s_mov_b64 exec, 1")
        A("buffer_store_dwordx2 v[250:251], v252, s[36:39], s98 offen offset:48")
    A("s_endpgm")

    A("L_notloader:")
    A(f"s_load_dword s58, s[26:27], {WS_EP}")
    A(f"s_mov_b32 s59, {TAGM}")
    A("v_and_b32 v3, 7, v1")
    A("v_lshrrev_b32 v4, 1, v3")
    A("v_and_b32 v5, 1, v3")
    A("v_mov_b32 v6, 0x0c0c0100")
    A("v_mov_b32 v7, 0x01000c0c")
    A("v_cmp_eq_u32 vcc, 1, v5")
    A("v_mov_b32 v8, 0x0c0c0302")
    A("v_mov_b32 v9, 0x03020c0c")
    A("v_cndmask_b32 v6, v6, v7, vcc")
    A("v_cndmask_b32 v8, v8, v9, vcc")
    A("v_mov_b32 v7, 0x0c0c0c0c")
    for k in range(4):
        A(f"v_cmp_eq_u32 vcc, {k}, v4")
        A("s_nop 1")
        A(f"v_cndmask_b32 v{12+k}, v7, v6, vcc")
        A(f"v_cndmask_b32 v{16+k}, v7, v8, vcc")
    A("v_and_b32 v10, 15, v1")
    A("v_lshrrev_b32 v11, 4, v1")
    A("s_lshr_b32 s50, s2, 4")
    A("s_and_b32 s51, s2, 15")
    A("s_lshr_b32 s52, s2, 7")
    A("s_and_b32 s53, s50, 7")
    A(f"s_mov_b32 s54, {hex(f2u(CSC))}")
    srd(36, 26, WS_SIZE)
    A("s_cmp_eq_u32 s3, 4")
    A("s_cbranch_scc1 L_helper")

    A("s_sub_u32 s55, s3, 1")
    A("s_cmp_gt_u32 s3, 4")
    A("s_cselect_b32 s47, 1, 0")
    A("s_sub_u32 s55, s55, s47")
    def wo_loads(i_reg, s_reg, issue=True, prep=True):
        if prep:
            srd(28, 12, 4096 * 896)
            A(f"s_lshl_b32 s82, s53, 9"); A(f"s_lshl_b32 s47, s51, 5"); A(f"s_add_u32 s82, s82, s47")
            A(f"s_mul_i32 s82, s82, 896"); A(f"s_lshl_b32 s47, s55, 8"); A(f"s_add_u32 s82, s82, s47")
            A(f"v_mul_u32_u24 v204, 896, v{s_reg}")
            A(f"v_lshl_add_u32 v204, v{i_reg}, 4, v204")
            A(f"s_cmp_eq_u32 s55, 3")
            A(f"s_cselect_b32 s47, 8, 16")
            A(f"v_cmp_le_u32 vcc, s47, v{i_reg}")
            A(f"v_bfrev_b32 v205, 2")
            A(f"s_nop 0")
            A(f"v_cndmask_b32 v204, v204, v205, vcc")
        if issue:
            for rr in range(4):
                for hi in range(2):
                    t = 4 * hi + rr
                    A(f"buffer_load_dwordx4 v[{156+4*t}:{159+4*t}], v204, s[28:31], s82 offen offset:{hi*4*896} nt")
                if rr < 3:
                    A(f"s_add_u32 s82, s82, {8*896}")
    wo_loads(10, 11, issue=False)
    if not cfg.WOLATE:
        A(f"s_cmp_ge_u32 s55, {0 if cfg.NOWO else 4}")
        A("s_cbranch_scc1 L_c_nowo")
        wo_loads(10, 11, prep=False)
    A("L_c_nowo:")
    A("v_xor_b32 v23, v10, v11")
    A("v_lshlrev_b32 v24, 9, v10")
    for a in range(4):
        A(f"v_xor_b32 v25, {4*a}, v23")
        A(f"v_lshl_add_u32 v{2+a}, v25, 4, v24")
    A("v_lshlrev_b32 v24, 11, v11")
    A("v_lshl_add_u32 v6, v10, 4, v24")
    A(f"v_mov_b32 v188, {LD['FLAGS']}")
    A(f"v_mov_b32 v20, {hex(f2u(-3.0e38))}")
    A("v_mul_f32 v21, s54, v20")
    A("v_mov_b32 v22, 0")
    for k in range(8):
        A(f"v_mov_b32 v{132+k}, 0")
    A("v_mov_b32 v189, v10"); A("v_mov_b32 v190, v11")
    A("v_lshrrev_b32 v23, 3, v10"); A("v_lshlrev_b32 v23, 6, v23"); A("v_lshl_add_u32 v23, v11, 4, v23")
    A(f"v_add_u32 v202, {LD['SC']}, v23")
    if not cfg.SVC:
        A(f"s_cmp_lt_u32 s50, {0 if cfg.NOCF else NFB}"); A(f"s_cselect_b32 s78, {FC}, 0")
        A("s_cmp_eq_u32 s51, s50"); A("s_cselect_b32 s78, s78, 0"); A(f"s_sub_u32 s78, {S // 2}, s78")
    else:
        A("s_cmp_eq_u32 s51, s50"); A(f"s_cselect_b32 s78, 0, {S // 2 + 4}")
    A("s_lshl_b32 s79, s78, 1")
    A("s_mov_b32 s40, s55")
    A("s_lshl_b32 s41, s55, 14")
    A("s_mov_b32 s44, 0")
    A("s_waitcnt lgkmcnt(0)")
    A("s_add_u32 s58, s58, 1")
    A("s_and_b32 s46, s58, s59")
    A(f"v_mov_b32 v{TG}, s46")
    def c_wait(lbl, can_end):
        A(f"{lbl}:")
        A("ds_read_b32 v23, v188")
        A("s_lshr_b32 s47, s41, 12")
        A("v_add_u32 v191, s47, v188")
        A("s_add_u32 s42, s40, 1")
        A("v_mov_b32 v192, s42")
        A("s_waitcnt lgkmcnt(0)")
        A("v_readfirstlane_b32 s43, v23")
        A("s_and_b32 s46, s43, 0x7fff")
        if can_end and cfg.EARLYK:
            A("s_bfe_u32 s47, s43, 0x1000f")
            A("s_add_u32 s46, s46, s47")
        A("s_cmp_gt_u32 s46, s40")
        A(f"s_cbranch_scc1 {lbl}_go")
        if can_end:
            A("s_lshr_b32 s46, s43, 16")
            A("s_sub_u32 s46, s46, 1")
            A("s_cmp_lt_u32 s46, s40")
            A("s_cbranch_scc1 L_c_tail")
        spin_tail(lbl, sleep=cfg.PSLEEP)
        A(f"{lbl}_go:")
    def c_adv():
        A(f"s_add_u32 s40, s40, {C}")
        A(f"s_add_u32 s41, s41, {C*16384}")
        A(f"s_sub_u32 s47, s41, {R*16384}")
        A(f"s_cmp_ge_u32 s41, {R*16384}")
        A("s_cselect_b32 s41, s47, s41")
    def k_reads(base, off):
        for t in range(8):
            A(f"ds_read_b128 v[{base+4*t}:{base+3+4*t}], v{7 + t % 4} offset:{off + (t//4)*256}")
    def v_reads(base, off, rs=range(4)):
        for r in rs:
            for h in range(2):
                A(f"ds_read_b128 v[{base+8*r+4*h}:{base+3+8*r+4*h}], v11 offset:{off + r*512 + h*256}")
    def resc(lbl):
        A(f"{lbl}:")
        A("v_mov_b32 v31, v30")
        A("s_nop 1")
        A("v_permlane16_swap_b32 v30, v31")
        A("v_max_f32 v30, v30, v31")
        A("v_mov_b32 v31, v30")
        A("s_nop 1")
        A("v_permlane32_swap_b32 v30, v31")
        A("v_max3_f32 v20, v30, v31, v20")
        A("v_mul_f32 v30, s54, v20")
        A("v_sub_f32 v31, v21, v30")
        A("v_exp_f32 v31, v31")
        A("v_mov_b32 v21, v30")
        for k in range(8):
            A(f"v_mul_f32 v{132+k}, v{132+k}, v31")
        A("v_mul_f32 v22, v22, v31")
        A(f"s_branch {lbl}_ret")
    def pv(tiles):
        steps = [(pb + r // 2, 12 + 4 * (r % 2), vb + 8 * r) for (pb, vb) in tiles for r in range(4)]
        def mm(n):
            bb = 140 + 4 * (n % 4); vb = steps[n][2]
            for h in range(2):
                A(f"v_mfma_f32_16x16x32_bf16 v[{132+4*h}:{135+4*h}], v[{vb+4*h}:{vb+3+4*h}], v[{bb}:{bb+3}], v[{132+4*h}:{135+4*h}]")
        for n, (src, sel, vb) in enumerate(steps):
            for k in range(4):
                A(f"v_perm_b32 v{140+4*(n%4)+k}, v{src}, v{src}, v{sel+k}")
            if n >= 1:
                mm(n - 1)
        mm(len(steps) - 1)
    if cfg.SVC:
        A("s_cmp_eq_u32 s78, 0")
        A("s_cbranch_scc1 L_cc")
    c_wait("L_ck", False)
    for a in range(4):
        A(f"v_add_u32 v{7+a}, s41, v{2+a}")
    k_reads(64, 0); k_reads(96, 8192)
    A("s_lshl_b32 s47, s40, 7")
    A("v_add_u32 v203, s47, v202")
    A("s_waitcnt lgkmcnt(0)")
    A("ds_write_b32 v191, v192 offset:64")
    A("s_cmp_eq_u32 s44, 0")
    A("s_cbranch_scc1 L_c_first")
    A("L_ck_comp:")
    for t in range(8):
        A(f"v_mfma_f32_16x16x32_bf16 v[128:131], v[{64+4*t}:{67+4*t}], v[{32+4*t}:{35+4*t}], {'0' if t == 0 else 'v[128:131]'}")
        A(f"v_mfma_f32_16x16x32_bf16 v[140:143], v[{96+4*t}:{99+4*t}], v[{32+4*t}:{35+4*t}], {'0' if t == 0 else 'v[140:143]'}")
    c_adv()
    A("s_nop 2")
    A("v_cvt_pk_bf16_f32 v24, v128, v129")
    A("v_cvt_pk_bf16_f32 v25, v130, v131")
    A("v_cvt_pk_bf16_f32 v26, v140, v141")
    A("v_cvt_pk_bf16_f32 v27, v142, v143")
    A("s_mov_b32 exec_lo, 0x01010101"); A("s_mov_b32 exec_hi, 0x01010101")
    A("ds_write_b128 v203, v[24:27]")
    A("s_mov_b64 exec, -1")
    A("s_cmp_lt_u32 s40, s78")
    A("s_cbranch_scc1 L_ck")
    c_wait("L_cv", False)
    A("s_sub_u32 s47, s40, s78"); A("s_lshl_b32 s47, s47, 7")
    A("v_add_u32 v203, s47, v202")
    A("v_add_u32 v11, s41, v6")
    A("ds_read_b128 v[24:27], v203")
    v_reads(64, 0); v_reads(96, 8192, range(3))
    A("s_waitcnt lgkmcnt(14)")
    v_reads(96, 8192, [3])
    for k in range(4):
        A(f"v_lshlrev_b32 v{194+2*k}, 16, v{24+k}")
        A(f"v_and_b32 v{195+2*k}, 0xffff0000, v{24+k}")
    A("v_max3_f32 v30, v194, v195, v196")
    A("v_max3_f32 v31, v197, v198, v199")
    A("v_max3_f32 v30, v30, v200, v201")
    A("v_max_f32 v30, v30, v31")
    A("v_cmp_gt_f32 vcc, v30, v20")
    A("s_cbranch_vccnz L_cv_resc")
    A("L_cv_resc_ret:")
    for k in range(8):
        A(f"v_fma_f32 v{194+k}, v{194+k}, s54, -v21")
    for k in range(8):
        A(f"v_exp_f32 v{194+k}, v{194+k}")
    A("s_nop 0")
    for k in range(4):
        A(f"v_cvt_pk_bf16_f32 v{24+k}, v{194+2*k}, v{195+2*k}")
    for k in range(4):
        A(f"v_add_f32 v{194+2*k}, v{194+2*k}, v{195+2*k}")
    A("v_add_f32 v194, v194, v196"); A("v_add_f32 v198, v198, v200")
    A("v_add_f32 v22, v22, v194"); A("v_add_f32 v22, v22, v198")
    A("s_waitcnt lgkmcnt(0)")
    A("ds_write_b32 v191, v192 offset:64")
    pv([(24, 64), (26, 96)])
    c_adv()
    A("s_cmp_lt_u32 s40, s79")
    A("s_cbranch_scc1 L_cv")
    c_wait("L_cc", True)
    for a in range(4):
        A(f"v_add_u32 v{7+a}, s41, v{2+a}")
    A("v_add_u32 v11, s41, v6")
    if cfg.EARLYK:
        k_reads(64, 0)
        if cfg.SVC:
            A("s_cmp_eq_u32 s44, 0")
            A("s_cbranch_scc1 L_c_first")
            A("L_cc_comp:")
        for t in range(8):
            A(f"s_waitcnt lgkmcnt({7 - t})")
            A(f"v_mfma_f32_16x16x32_bf16 v[128:131], v[{64+4*t}:{67+4*t}], v[{32+4*t}:{35+4*t}], {'0' if t == 0 else 'v[128:131]'}")
        A("s_nop 7")
    else:
        k_reads(64, 0); v_reads(96, 8192)
        A("s_waitcnt lgkmcnt(8)")
        for t in range(8):
            A(f"v_mfma_f32_16x16x32_bf16 v[128:131], v[{64+4*t}:{67+4*t}], v[{32+4*t}:{35+4*t}], {'0' if t == 0 else 'v[128:131]'}")
        A("s_waitcnt lgkmcnt(0)")
        A("ds_write_b32 v191, v192 offset:64")
        c_adv()
        A("s_nop 0")
    A("v_cvt_pk_bf16_f32 v24, v128, v129")
    A("v_cvt_pk_bf16_f32 v25, v130, v131")
    A("v_lshlrev_b32 v26, 16, v24")
    A("v_and_b32 v27, 0xffff0000, v24")
    A("v_lshlrev_b32 v28, 16, v25")
    A("v_and_b32 v29, 0xffff0000, v25")
    A("v_max3_f32 v30, v26, v27, v28")
    A("v_max_f32 v30, v30, v29")
    A("v_cmp_gt_f32 vcc, v30, v20")
    A("s_cbranch_vccnz L_cc_resc")
    A("L_cc_resc_ret:")
    for k in range(4):
        A(f"v_fma_f32 v{26+k}, v{26+k}, s54, -v21")
    for k in range(4):
        A(f"v_exp_f32 v{26+k}, v{26+k}")
    A("s_nop 0")
    A("v_cvt_pk_bf16_f32 v24, v26, v27")
    A("v_cvt_pk_bf16_f32 v25, v28, v29")
    A("v_add_f32 v30, v26, v27")
    A("v_add_f32 v31, v28, v29")
    A("v_add_f32 v22, v22, v30")
    A("v_add_f32 v22, v22, v31")
    if cfg.EARLYK:
        A("L_cc_w2:")
        A("s_and_b32 s46, s43, 0x7fff")
        A("s_cmp_gt_u32 s46, s40")
        A("s_cbranch_scc1 L_cc_w2go")
        A("ds_read_b32 v23, v188")
        A("s_waitcnt lgkmcnt(0)")
        A("v_readfirstlane_b32 s43, v23")
        spin_tail("L_cc_w2", sleep=0)
        A("L_cc_w2go:")
        v_reads(96, 8192)
        for n in range(4):
            for k in range(4):
                A(f"v_perm_b32 v{140+4*n+k}, v{24 + n // 2}, v{24 + n // 2}, v{12 + 4 * (n % 2) + k}")
        c_adv()
        for n in range(4):
            for h in range(2):
                A(f"s_waitcnt lgkmcnt({7 - 2*n - h})")
                A(f"v_mfma_f32_16x16x32_bf16 v[{132+4*h}:{135+4*h}], v[{96+8*n+4*h}:{99+8*n+4*h}], v[{140+4*n}:{143+4*n}], v[{132+4*h}:{135+4*h}]")
        A("ds_write_b32 v191, v192 offset:64")
    else:
        pv([(24, 96)])
    A("s_lshr_b32 s46, s43, 16")
    A("s_sub_u32 s46, s46, 1")
    A("s_cmp_ge_u32 s46, s40")
    A("s_cbranch_scc1 L_cc")
    A("L_c_tail:")
    stamp(3)
    A(f"s_add_u32 s47, s41, {(R - C)*16384}")
    A(f"s_sub_u32 s48, s47, {R*16384}")
    A(f"s_cmp_ge_u32 s47, {R*16384}")
    A("s_cselect_b32 s47, s48, s47")
    A("v_lshl_add_u32 v25, v1, 4, s47")
    A("v_lshl_add_u32 v26, v1, 3, s47")
    A("v_mov_b32 v28, v21"); A("v_mov_b32 v29, v22")
    A("ds_write_b64 v26, v[28:29] offset:2048")
    A("ds_write_b128 v25, v[132:135]")
    A("ds_write_b128 v25, v[136:139] offset:1024")
    A("s_cmp_lt_u32 s55, 4")
    A("s_cbranch_scc1 L_p_wave")
    A("s_sub_u32 s56, s55, 4")
    A("s_lshr_b32 s46, s43, 16")
    A("s_sub_u32 s46, s40, s46")
    A("s_lshl_b32 s46, s46, 14")
    A("s_sub_i32 s46, s41, s46")
    for j in range(6):
        A("s_sub_i32 s46, s46, 16384")
        A(f"s_add_i32 s47, s46, {R*16384}")
        A("s_cmp_lt_i32 s46, 0")
        A("s_cselect_b32 s46, s47, s46")
        A(f"v_lshl_add_u32 v{70+j}, v1, 3, s46")
    A("s_lshl_b32 s47, s56, 10")
    A("v_lshl_add_u32 v27, v1, 3, s47")
    for j in range(6):
        A(f"v_add_u32 v{76+j}, v{70+j}, v27")
    if not cfg.HAL:
        A("v_lshrrev_b32 v26, 3, v189"); A("v_lshlrev_b32 v26, 14, v26"); A("v_lshl_add_u32 v26, v190, 11, v26")
        A("v_and_b32 v27, 7, v189"); A("v_lshl_add_u32 v26, v27, 4, v26")
        A("s_lshl_b32 s46, s50, 15"); A("s_lshl_b32 s47, s56, 13"); A("s_add_u32 s46, s46, s47")
        A("s_lshl_b32 s47, s51, 7"); A("s_add_u32 s46, s46, s47"); A(f"s_add_u32 s46, s46, {WS_HA}")
    else:
        A("v_lshrrev_b32 v26, 3, v189"); A("v_lshlrev_b32 v26, 9, v26"); A("v_lshl_add_u32 v26, v190, 7, v26")
        A("v_and_b32 v27, 7, v189"); A("v_lshl_add_u32 v26, v27, 4, v26")
        A(f"s_mul_i32 s46, s2, {HBS}"); A(f"s_add_u32 s49, s46, {WS_HA2 + 2048}")
        A("s_lshl_b32 s47, s56, 10"); A("s_add_u32 s46, s46, s47"); A(f"s_add_u32 s46, s46, {WS_HA2}")
    A("s_waitcnt lgkmcnt(0)")
    A("s_barrier")
    for j in range(6):
        A(f"ds_read_b64 v[{84+2*j}:{85+2*j}], v{70+j} offset:2048")
    for j in range(6):
        A(f"ds_read_b128 v[{96+4*j}:{99+4*j}], v{76+j}")
    A("s_waitcnt lgkmcnt(6)")
    A("v_max3_f32 v28, v84, v86, v88")
    A("v_max3_f32 v28, v28, v90, v92")
    A("v_max_f32 v28, v28, v94")
    for j in range(6):
        A(f"v_sub_f32 v{84+2*j}, v{84+2*j}, v28")
    for j in range(6):
        A(f"v_exp_f32 v{84+2*j}, v{84+2*j}")
    A("s_waitcnt lgkmcnt(0)")
    for k in range(4):
        A(f"v_mul_f32 v{120+k}, v84, v{96+k}")
    for j in range(1, 6):
        for k in range(4):
            A(f"v_fmac_f32 v{120+k}, v{84+2*j}, v{96+4*j+k}")
    for k in range(4):
        tag(120 + k)
    A("buffer_store_dwordx4 v[120:123], v26, s[36:39], s46 offen sc1")
    A("s_cmp_eq_u32 s56, 0")
    A("s_cbranch_scc1 L_x0")
    A("v_mul_f32 v29, v84, v85")
    for j in range(1, 6):
        A(f"v_fmac_f32 v29, v{84+2*j}, v{85+2*j}")
    A(f"v_lshlrev_b32 v27, {1 if cfg.HAL else 8}, v189")
    A("v_mov_b32 v24, v29")
    A("s_lshl_b32 s48, s50, 12"); A("s_lshl_b32 s47, s51, 7")
    A("v_permlane16_swap_b32 v29, v24")
    A("v_add_f32 v29, v29, v24")
    A("v_mov_b32 v24, v29")
    A("s_add_u32 s48, s48, s47"); A(f"s_add_u32 s48, s48, {WS_HM}")
    A("v_permlane32_swap_b32 v29, v24")
    A("v_add_f32 v29, v29, v24")
    A("v_mov_b32 v30, s58")
    A("v_mov_b32 v31, s58")
    A("s_mov_b64 exec, 0x101")
    A(f"buffer_store_dwordx4 v[28:31], v27, s[36:39], {'s49' if cfg.HAL else 's48'} offen sc1")
    A("s_mov_b64 exec, -1")
    if cfg.WOLATE == 4:
        A("s_barrier")
    stamp(4)
    A("s_endpgm")
    A("L_x0:")
    if cfg.WOLATE == 4:
        A("s_barrier")
    stamp(4)
    if not cfg.HAL:
        A("v_lshlrev_b32 v24, 7, v189")
        A("v_lshl_add_u32 v23, v190, 4, v24")
        A("s_lshl_b32 s46, s2, 11"); A(f"s_add_u32 s46, s46, {WS_HA}")
        A("s_lshl_b32 s48, s50, 12"); A("s_lshr_b32 s47, s51, 3"); A("s_lshl_b32 s47, s47, 11"); A("s_add_u32 s48, s48, s47"); A(f"s_add_u32 s48, s48, {WS_HM}")
    else:
        A(f"v_mul_u32_u24 v24, {HBS}, v189")
        A("v_lshl_add_u32 v23, v190, 4, v24")
        A(f"s_mul_i32 s48, s50, {16 * HBS}"); A(f"s_add_u32 s48, s48, {WS_HA2}")
        A("s_and_b32 s46, s51, 3"); A("s_lshl_b32 s46, s46, 7"); A("s_add_u32 s46, s46, s48")
        A("s_and_b32 s47, s51, 4"); A("s_lshl_b32 s47, s47, 8"); A("s_add_u32 s46, s46, s47")
        A("s_and_b32 s47, s51, 8"); A("s_lshl_b32 s49, s47, 6"); A("s_add_u32 s46, s46, s49")
        A("s_lshl_b32 s47, s47, 1"); A("s_add_u32 s48, s48, s47"); A("s_add_u32 s48, s48, 2048")
    A("v_lshl_add_u32 v27, v190, 4, v188")
    if cfg.BAR3:
        A("s_waitcnt vmcnt(0)")
    stamp(5)
    def issA():
        A("buffer_load_dwordx4 v[64:67], v23, s[36:39], s46 offen sc1")
        A("buffer_load_dwordx4 v[68:71], v23, s[36:39], s46 offen offset:64 sc1")
        A("buffer_load_dwordx4 v[72:75], v24, s[36:39], s48 offen sc1")
    poll("L_p_poll", issA, 3, lambda: tagcheck(range(64, 72), 25, full=(74, 75)), "L_p_go")
    A("L_p_go:")
    A("s_mov_b64 exec, -1")
    stamp(6)
    A("v_mov_b32 v26, v72")
    for sh in (8, 4, 2, 1):
        A("s_nop 1")
        A(f"v_max_f32_dpp v26, v26, v26 row_ror:{sh} row_mask:0xf bank_mask:0xf")
    A("v_sub_f32 v26, v72, v26")
    A("v_exp_f32 v26, v26")
    A("s_nop 0")
    A("v_mul_f32 v88, v73, v26")
    for k in range(8):
        A(f"v_mul_f32 v{80+k}, v{64+k}, v26")
    for sh in (8, 4, 2, 1):
        for k in (8, 0, 1, 2, 3, 4, 5, 6, 7):
            A(f"v_add_f32_dpp v{80+k}, v{80+k}, v{80+k} row_ror:{sh} row_mask:0xf bank_mask:0xf")
            if sh == 1 and k == 2:
                A("v_rcp_f32 v88, v88")
    for k in range(8):
        A(f"v_mul_f32 v{80+k}, v{80+k}, v88")
    for k in range(4):
        A(f"v_cvt_pk_bf16_f32 v{76+k}, v{80+2*k}, v{81+2*k}")
    A("s_mov_b32 exec_lo, 0x00010001"); A("s_mov_b32 exec_hi, 0x00010001")
    A("ds_write_b128 v27, v[76:79] offset:160")
    A("s_waitcnt lgkmcnt(0)")
    A("s_barrier")
    A("s_endpgm")
    A("L_p_wave:")
    if cfg.WOLATE == 1:
        wo_loads(0, 0, prep=False)
    A("v_lshl_add_u32 v27, v190, 4, v188")
    if cfg.HBL:
        A("v_lshlrev_b32 v23, 14, v190")
        A("v_lshl_add_u32 v23, v189, 4, v23")
        A("s_lshl_b32 s46, s52, 18"); A("s_lshl_b32 s47, s55, 16"); A("s_add_u32 s46, s46, s47")
        A("s_and_b32 s47, s2, 127"); A("s_lshl_b32 s47, s47, 7"); A("s_add_u32 s46, s46, s47"); A(f"s_add_u32 s46, s46, {WS_HB}")
    else:
        A("v_lshlrev_b32 v23, 7, v190")
        A("v_lshl_add_u32 v23, v189, 4, v23")
        A("s_lshl_b32 s46, s2, 11"); A("s_lshl_b32 s47, s55, 9"); A("s_add_u32 s46, s46, s47"); A(f"s_add_u32 s46, s46, {WS_HB}")
    A("s_cmp_eq_u32 s55, 3")
    A("s_cselect_b32 s47, 0, 0x00ff00ff")
    if cfg.WOLATE == 3:
        A("s_lshr_b32 s48, s43, 16"); A("s_sub_u32 s48, s40, s48")
        A(f"s_cmp_ge_u32 s48, {5 - (cfg.WOLATE - 3)}")
        A("s_cbranch_scc1 L_p_late")
        wo_loads(0, 0, prep=False)
        A("s_waitcnt lgkmcnt(0)")
        A("s_barrier")
        A("s_branch L_p_join")
        A("L_p_late:")
        A("s_waitcnt lgkmcnt(0)")
        A("s_barrier")
        wo_loads(0, 0, prep=False)
        A("L_p_join:")
    else:
        A("s_waitcnt lgkmcnt(0)")
        A("s_barrier")
    if cfg.WOLATE == 4:
        A("s_barrier")
    if cfg.WOLATE in (2, 4):
        wo_loads(0, 0, prep=False)
    A("s_waitcnt vmcnt(0)")
    A("s_barrier")
    A("ds_read_b128 v[76:79], v27 offset:160")
    stamp(5)
    A("s_waitcnt lgkmcnt(0)")
    for t in range(9):
        if t < 8:
            src = 76 + t // 2; sel = 12 + 4 * (t % 2)
            for k in range(4):
                A(f"v_perm_b32 v{96+4*t+k}, v{src}, v{src}, v{sel+k}")
        else:
            A("s_nop 0")
        if t >= 1:
            u = t - 1
            A(f"v_mfma_f32_16x16x32_bf16 v[128:131], v[{156+4*u}:{159+4*u}], v[{96+4*u}:{99+4*u}], {'0' if u == 0 else 'v[128:131]'}")
    A("s_mov_b32 exec_lo, 0x00ff00ff"); A("s_mov_b32 exec_hi, s47")
    A("s_nop 5")
    for k in range(4):
        tag(128 + k)
    A("buffer_store_dwordx4 v[128:131], v23, s[36:39], s46 offen sc1")
    A("s_mov_b64 exec, -1")
    stamp(6)
    A("s_waitcnt vmcnt(0)")
    A("s_endpgm")
    resc("L_cv_resc")
    resc("L_cc_resc")
    A("L_c_first:")
    A("L_c_qwait:")
    A("ds_read_b32 v23, v188 offset:4")
    A("s_waitcnt lgkmcnt(0)")
    A("v_readfirstlane_b32 s46, v23")
    A("s_cmp_lg_u32 s46, 0")
    A("s_cbranch_scc1 L_c_qgo")
    spin_tail("L_c_qwait")
    A("L_c_qgo:")
    A("v_lshrrev_b32 v23, 3, v189")
    A("v_lshlrev_b32 v23, 9, v23")
    A("v_lshl_add_u32 v23, v190, 4, v23")
    A(f"v_add_u32 v23, {LD['Q']}, v23")
    for t in range(8):
        A(f"ds_read_b128 v[{32+4*t}:{35+4*t}], v23 offset:{64*t}")
    A("s_mov_b32 s44, 1")
    A("s_waitcnt lgkmcnt(0)")
    stamp(2)
    if cfg.SVC:
        assert cfg.EARLYK
        A("s_cmp_eq_u32 s78, 0")
        A("s_cbranch_scc1 L_cc_comp")
    A("s_branch L_ck_comp")

    A("L_helper:")
    srd(28, 4, 1792)
    srd(32, 10, 16 if cfg.NOWQ else 448 * 8192)
    A("v_lshrrev_b32 v20, 5, v1")
    A("v_and_b32 v21, 31, v1")
    A("v_mul_u32_u24 v22, 896, v20")
    A("v_lshl_add_u32 v22, v21, 2, v22")
    for m in range(7):
        A(f"buffer_load_dword v{24+m}, v22, s[28:31], 0 offen offset:{128*m}")
    if cfg.QV == 1:
        A("s_and_b32 s56, s51, 3"); A("s_lshr_b32 s57, s51, 2")
        A(f"v_mul_u32_u24 v23, {28*8192}, v11")
        A("v_lshl_add_u32 v23, v10, 4, v23")
        A(f"s_mul_i32 s46, s57, {112*8192}"); A("s_lshl_b32 s47, s53, 10"); A("s_add_u32 s46, s46, s47")
        A("s_lshl_b32 s47, s56, 8"); A("s_add_u32 s46, s46, s47")
    else:
        A("s_and_b32 s56, s51, 7"); A("s_lshl_b32 s56, s56, 1"); A("s_lshr_b32 s57, s51, 3"); A("s_add_u32 s56, s56, s57")
        A("v_lshrrev_b32 v23, 2, v1"); A(f"v_mul_u32_u24 v23, {28*8192}, v23")
        A("v_and_b32 v31, 3, v1"); A("v_lshl_add_u32 v23, v31, 4, v23")
        A("s_lshl_b32 s46, s53, 10"); A("s_lshl_b32 s47, s56, 6"); A("s_add_u32 s46, s46, s47")
    for t in range(28):
        A(f"buffer_load_dwordx4 v[{64+4*t}:{67+4*t}], v23, s[32:35], s46 offen nt")
        if t < 27:
            A("s_add_u32 s46, s46, 8192")
    A(f"s_mul_i32 s46, s50, {PCS}"); A(f"s_add_u32 s46, s46, {WS_PC}")
    A("s_cmp_eq_u32 s51, 0"); A(f"s_cselect_b32 s46, s46, {WS_SIZE}")
    A("v_mov_b32 v186, 0")
    A("s_mov_b64 exec, 1")
    A("buffer_store_dword v186, v186, s[36:39], s46 offen sc1")
    A("s_mov_b64 exec, -1")
    A("s_waitcnt lgkmcnt(0)")
    A("s_add_u32 s58, s58, 1")
    A("s_and_b32 s46, s58, s59")
    A(f"v_mov_b32 v{TG}, s46")
    NAFTER = 28 + 1
    stamp(0)
    ND = 1 if cfg.DIAG == 1 else 0
    A(f"s_waitcnt vmcnt({NAFTER + ND})")
    for m in range(7):
        A(f"v_lshlrev_b32 v{32+2*m}, 16, v{24+m}")
        A(f"v_and_b32 v{33+2*m}, 0xffff0000, v{24+m}")
    def red32(v, t):
        for sh in (8, 4, 2, 1):
            A("s_nop 1")
            A(f"v_add_f32_dpp v{v}, v{v}, v{v} row_ror:{sh} row_mask:0xf bank_mask:0xf")
        A(f"v_mov_b32 v{t}, v{v}")
        A("s_nop 1")
        A(f"v_permlane16_swap_b32 v{v}, v{t}")
        A(f"v_add_f32 v{v}, v{v}, v{t}")
    A("v_add_f32 v46, v32, v33")
    for k in range(2, 14):
        A(f"v_add_f32 v46, v46, v{32+k}")
    red32(46, 47)
    A(f"v_mul_f32 v46, {hex(f2u(1.0/448))}, v46")
    A("v_sub_f32 v48, v32, v46")
    A("v_mul_f32 v47, v48, v48")
    for k in range(1, 14):
        A(f"v_sub_f32 v48, v{32+k}, v46")
        A("v_fmac_f32 v47, v48, v48")
    red32(47, 48)
    A(f"v_mul_f32 v47, {hex(f2u(1.0/448))}, v47")
    A("v_cvt_pk_bf16_f32 v48, v46, v47")
    A("v_lshlrev_b32 v46, 16, v48")
    A("v_and_b32 v47, 0xffff0000, v48")
    A(f"v_add_f32 v47, {hex(f2u(1e-5))}, v47")
    A("v_cvt_pk_bf16_f32 v47, v47, v47")
    A("v_lshlrev_b32 v47, 16, v47")
    A("v_sqrt_f32 v47, v47")
    A("s_nop 0")
    A("v_cvt_pk_bf16_f32 v47, v47, v47")
    A("v_lshlrev_b32 v47, 16, v47")
    A("v_rcp_f32 v47, v47")
    for k in range(14):
        A(f"v_sub_f32 v{32+k}, v{32+k}, v46")
    for m in range(7):
        A(f"v_cvt_pk_bf16_f32 v{24+m}, v{32+2*m}, v{33+2*m}")
    for m in range(7):
        A(f"v_lshlrev_b32 v{32+2*m}, 16, v{24+m}")
        A(f"v_and_b32 v{33+2*m}, 0xffff0000, v{24+m}")
    for k in range(14):
        A(f"v_mul_f32 v{32+k}, v{32+k}, v47")
    for m in range(7):
        A(f"v_cvt_pk_bf16_f32 v{24+m}, v{32+2*m}, v{33+2*m}")
    A(f"v_add_u32 v22, {LD['XN']}, v22")
    for m in range(7):
        A(f"ds_write_b32 v22, v{24+m} offset:{128*m}")
    if cfg.QV == 1:
        A("s_mul_i32 s46, s52, 896"); A("s_mul_i32 s47, s57, 224"); A("s_add_u32 s46, s46, s47"); A(f"s_add_u32 s46, s46, {LD['XN']}")
        A("v_mul_u32_u24 v22, 56, v11")
        A("v_add_u32 v22, s46, v22")
        A("s_waitcnt lgkmcnt(0)")
        for m in range(7):
            A(f"ds_read_b64 v[{32+2*m}:{33+2*m}], v22 offset:{8*m}")
        A("s_waitcnt lgkmcnt(0)")
        for t in range(28):
            src = 32 + t // 2; sel = 12 + 4 * (t % 2); bb = 48 + 4 * (t % 2)
            for k in range(4):
                A(f"v_perm_b32 v{bb+k}, v{src}, v{src}, v{sel+k}")
            A(f"s_waitcnt vmcnt({27 - t + 1 + ND})")
            A("s_nop 0")
            A(f"v_mfma_f32_16x16x32_bf16 v[56:59], v[{64+4*t}:{67+4*t}], v[{bb}:{bb+3}], {'0' if t == 0 else 'v[56:59]'}")
        A("v_lshlrev_b32 v23, 7, v11")
        A("v_lshl_add_u32 v23, v10, 4, v23")
        A("s_lshl_b32 s46, s50, 13"); A("s_lshl_b32 s47, s56, 11"); A("s_add_u32 s46, s46, s47")
        A("s_lshl_b32 s47, s57, 9"); A("s_add_u32 s46, s46, s47"); A(f"s_add_u32 s46, s46, {WS_QP}")
        A("s_waitcnt vmcnt(0)")
        for k in range(4):
            tag(56 + k)
        A("s_mov_b32 exec_lo, 0x00ff00ff"); A("s_mov_b32 exec_hi, 0x00ff00ff")
        A("buffer_store_dwordx4 v[56:59], v23, s[36:39], s46 offen sc1")
        A("s_mov_b64 exec, -1")
        stamp(1)
        A("v_lshlrev_b32 v25, 7, v1")
        A("s_lshl_b32 s46, s50, 13"); A(f"s_add_u32 s46, s46, {WS_QP}")
        A("s_add_u32 s47, s46, 4096")
        A("v_lshlrev_b32 v22, 11, v20")
        A("v_lshl_add_u32 v22, v21, 4, v22")
        A("L_h_qpoll:")
        A("buffer_load_dword v26, v25, s[36:39], s46 offen sc1")
        A("s_waitcnt vmcnt(0)")
        tagcheck([26], 27)
        A("s_cbranch_vccz L_h_qgo")
        A("L_h_qretry:")
        spin_tail("L_h_qpoll", sleep=cfg.QSLEEP)
        A("L_h_qgo:")
        for z in range(2):
            for rs in range(4):
                A(f"buffer_load_dwordx4 v[{64+16*z+4*rs}:{67+16*z+4*rs}], v22, s[36:39], s{46+z} offen offset:{rs*512} sc1")
        A("s_waitcnt vmcnt(0)")
        tagcheck(range(64, 96), 27)
        A("s_cbranch_vccnz L_h_qretry")
        A("v_lshrrev_b32 v23, 3, v21")
        A("v_lshlrev_b32 v23, 6, v23")
        A("v_lshl_add_u32 v23, v20, 8, v23")
        A("v_lshl_add_u32 v23, v3, 1, v23")
        A(f"v_add_u32 v23, {LD['Q']}, v23")
        for z in range(2):
            b0 = 64 + 16 * z
            for k in range(4):
                A(f"v_add_f32 v{b0+k}, v{b0+k}, v{b0+4+k}")
                A(f"v_add_f32 v{b0+8+k}, v{b0+8+k}, v{b0+12+k}")
            for k in range(4):
                A(f"v_add_f32 v{b0+k}, v{b0+k}, v{b0+8+k}")
            A(f"v_cvt_pk_bf16_f32 v{b0}, v{b0}, v{b0+1}")
            A(f"v_cvt_pk_bf16_f32 v{b0+1}, v{b0+2}, v{b0+3}")
            A(f"ds_write_b16 v23, v{b0} offset:{z*512}")
            A(f"ds_write_b16_d16_hi v23, v{b0} offset:{z*512+16}")
            A(f"ds_write_b16 v23, v{b0+1} offset:{z*512+32}")
            A(f"ds_write_b16_d16_hi v23, v{b0+1} offset:{z*512+48}")
    else:
        A("s_mul_i32 s46, s52, 896"); A(f"s_add_u32 s46, s46, {LD['XN']}")
        A("v_lshrrev_b32 v22, 3, v10"); A("v_lshl_add_u32 v22, v11, 2, v22"); A("v_mul_u32_u24 v22, 56, v22")
        A("v_add_u32 v22, s46, v22")
        A("s_waitcnt lgkmcnt(0)")
        for m in range(7):
            A(f"ds_read_b64 v[{32+2*m}:{33+2*m}], v22 offset:{8*m}")
        for m in range(7):
            A(f"ds_read_b64 v[{176+2*m}:{177+2*m}], v22 offset:{112+8*m}")
        A("s_waitcnt lgkmcnt(0)")
        for t in range(28):
            sel = 12 + 4 * (t % 2)
            for k in range(4):
                A(f"v_perm_b32 v{48+k}, v{32+t//2}, v{32+t//2}, v{sel+k}")
            for k in range(4):
                A(f"v_perm_b32 v{52+k}, v{176+t//2}, v{176+t//2}, v{sel+k}")
            A(f"s_waitcnt vmcnt({27 - t + 1 + ND})")
            A(f"v_mfma_f32_16x16x32_bf16 v[56:59], v[{64+4*t}:{67+4*t}], v[48:51], {'0' if t == 0 else 'v[56:59]'}")
            A(f"v_mfma_f32_16x16x32_bf16 v[60:63], v[{64+4*t}:{67+4*t}], v[52:55], {'0' if t == 0 else 'v[60:63]'}")
        A("v_lshlrev_b32 v23, 4, v1")
        A("s_lshl_b32 s46, s50, 11"); A(f"s_add_u32 s46, s46, {WS_QP}")
        A("s_lshl_b32 s47, s56, 7"); A("s_add_u32 s47, s47, s46")
        A("s_mov_b32 exec_lo, 0")
        A("s_nop 2")
        for k in range(4):
            A(f"v_mov_b32 v{56+k}, v{60+k}")
        A("s_mov_b32 exec_lo, 0x00ffff00"); A("s_mov_b32 exec_hi, 0x00ffff00")
        for k in range(4):
            A(f"v_mov_b32 v{56+k}, 0")
        A("s_mov_b64 exec, -1")
        for k in range(4):
            A(f"v_add_f32_dpp v{56+k}, v{56+k}, v{56+k} row_ror:8 row_mask:0xf bank_mask:0xf")
        for sw in ("16", "32"):
            for k in range(4):
                A(f"v_mov_b32 v{60+k}, v{56+k}")
            A("s_nop 0")
            for k in range(4):
                A(f"v_permlane{sw}_swap_b32 v{56+k}, v{60+k}")
            for k in range(4):
                A(f"v_add_f32 v{56+k}, v{56+k}, v{60+k}")
        for k in range(4):
            A(f"v_cvt_pk_bf16_f32 v{56+k}, 0, v{56+k}")
        for k in range(4):
            A(f"v_or_b32 v{56+k}, v{56+k}, v{TG}")
        A("s_waitcnt vmcnt(0)")
        A("s_mov_b64 exec, 0xff")
        A("buffer_store_dwordx4 v[56:59], v23, s[36:39], s47 offen sc1")
        A("s_mov_b64 exec, -1")
        stamp(1)
        A("v_lshrrev_b32 v22, 3, v1"); A("v_lshlrev_b32 v22, 6, v22"); A("v_lshl_add_u32 v22, v3, 1, v22")
        A(f"v_add_u32 v22, {LD['Q']}, v22")
        A("s_waitcnt vmcnt(0)")
        A("L_h_qpoll:")
        A("buffer_load_dwordx4 v[64:67], v23, s[36:39], s46 offen sc1")
        A("buffer_load_dwordx4 v[68:71], v23, s[36:39], s46 offen offset:1024 sc1")
        A("s_waitcnt vmcnt(0)")
        tagcheck(range(64, 72), 27)
        A("s_cbranch_vccz L_h_qgo")
        spin_tail("L_h_qpoll", sleep=cfg.QSLEEP)
        A("L_h_qgo:")
        for z in range(2):
            for r in range(4):
                A(f"ds_write_b16_d16_hi v22, v{64+4*z+r} offset:{z*512+16*r}")
    A(f"v_mov_b32 v24, {LD['FLAGS']}"); A("v_mov_b32 v25, 1")
    A("s_waitcnt lgkmcnt(0)")
    A("ds_write_b32 v24, v25 offset:4")
    stamp(2)
    A("s_mov_b32 s56, s50")
    A("s_cmp_lg_u32 s51, s50")
    A("s_cbranch_scc1 L_h_noffn")
    FB = cfg.FB; NFB = 1792 // FB; RS = FB // 4
    if NFB < 16:
        A(f"s_cmp_ge_u32 s50, {NFB}")
        A("s_cbranch_scc1 L_h_noffn")
    srd(28, 16, 16 if cfg.NOFFN in (1, 3) else 448 * 3584)
    srd(32, 18, 16 if cfg.NOFFN in (1, 3) else 448 * 3584)
    A(f"v_mul_u32_u24 v23, {112*3584}, v11")
    A("v_lshl_add_u32 v23, v10, 4, v23")
    A(f"v_cmp_le_u32 vcc, {FB // 8}, v10")
    A("v_bfrev_b32 v27, 2")
    A(f"s_mul_i32 s46, s56, {FB * 2}")
    A("v_cndmask_b32 v23, v23, v27, vcc")
    A("v_lshrrev_b32 v22, 3, v10")
    A("v_mul_u32_u24 v22, 896, v22")
    A("v_mul_u32_u24 v24, 224, v11")
    A(f"v_add3_u32 v22, v22, v24, 0")
    A(f"v_add_u32 v22, {LD['XN']}, v22")
    for k in range(8):
        A(f"v_mov_b32 v{56+k}, 0")
    def ffn_loads(t):
        A(f"buffer_load_dwordx4 v[{64+8*t}:{67+8*t}], v23, s[28:31], s46 offen nt")
        A(f"buffer_load_dwordx4 v[{68+8*t}:{71+8*t}], v23, s[32:35], s46 offen nt")
        A("s_add_u32 s46, s46, 3584")
    A("s_waitcnt vmcnt(0)")
    def fpause(lbl, units):
        if not units:
            return
        A(f"v_mov_b32 v30, {LD['FLAGS']}")
        A(f"{lbl}:")
        A("ds_read_b32 v29, v30")
        A("s_waitcnt lgkmcnt(0)")
        A("v_readfirstlane_b32 s75, v29")
        A("s_and_b32 s75, s75, 0x7fff")
        A(f"s_cmp_ge_u32 s75, {units}")
        A(f"s_cbranch_scc1 {lbl}_go")
        spin_tail(lbl, sleep=8)
        A(f"{lbl}_go:")
    fpause('L_h_fp1', cfg.FP1)
    FD = cfg.FD; DD = FD // 2; YA = 196
    for t in range(FD):
        ffn_loads(t)
    A(f"s_mov_b32 s57, {112 // FD - 1}")
    def ffn_iter(reissue):
        for z in range(FD // 8):
            A(f"ds_read_b128 v[{32+4*z}:{35+4*z}], v22 offset:{16*z}")
        A(f"v_add_u32 v22, {2*FD}, v22")
        A("s_waitcnt lgkmcnt(0)")
        for t in range(FD):
            src = 32 + t // 2; sel = 12 + 4 * (t % 2); bb = 48 + 4 * (t % 2)
            for k in range(4):
                A(f"v_perm_b32 v{bb+k}, v{src}, v{src}, v{sel+k}")
            A(f"s_waitcnt vmcnt({2*FD-2 if reissue else 2*FD-2 - 2*t})")
            A("s_nop 0")
            A(f"v_mfma_f32_16x16x32_bf16 v[56:59], v[{64+8*t}:{67+8*t}], v[{bb}:{bb+3}], v[56:59]")
            A(f"v_mfma_f32_16x16x32_bf16 v[60:63], v[{68+8*t}:{71+8*t}], v[{bb}:{bb+3}], v[60:63]")
            if reissue:
                ffn_loads(t)
    A("L_h_f1:")
    ffn_iter(True)
    A("s_sub_u32 s57, s57, 1"); A("s_cmp_lg_u32 s57, 0"); A("s_cbranch_scc1 L_h_f1")
    ffn_iter(False)
    srd(28, 20, 16 if cfg.NOFFN in (1, 2) else 1792 * 896)
    A(f"v_mul_u32_u24 v23, {RS*896}, v11")
    A("v_lshl_add_u32 v23, v10, 4, v23")
    A("v_cmp_le_u32 vcc, 8, v10")
    A(f"s_mul_i32 s46, s56, {FB*896}")
    A("s_nop 0")
    A("v_cndmask_b32 v26, v23, v27, vcc")
    def dn_loads(t):
        for nb in range(4):
            A(f"buffer_load_dwordx4 v[{64+16*t+4*nb}:{67+16*t+4*nb}], v{26 if nb == 3 else 23}, s[28:31], s46 offen offset:{nb*256} nt")
        A("s_add_u32 s46, s46, 896")
    A("s_nop 4")
    fpause('L_h_fp2', cfg.FP2)
    for t in range(DD):
        dn_loads(t)
    A("v_cvt_pk_bf16_f32 v32, v56, v57"); A("v_cvt_pk_bf16_f32 v33, v58, v59")
    A("v_cvt_pk_bf16_f32 v34, v60, v61"); A("v_cvt_pk_bf16_f32 v35, v62, v63")
    for k in range(4):
        A(f"v_lshlrev_b32 v{36+2*k}, 16, v{32+k}")
        A(f"v_and_b32 v{37+2*k}, 0xffff0000, v{32+k}")
    K0 = -2.0 * math.sqrt(2.0 / math.pi) * math.log2(math.e)
    A(f"s_mov_b32 s71, {hex(f2u(0.044715))}")
    for k in range(4):
        A(f"v_mul_f32 v{44+k}, v{36+k}, v{36+k}")
        A(f"v_mul_f32 v{44+k}, v{44+k}, v{36+k}")
        A(f"v_fma_f32 v{44+k}, v{44+k}, s71, v{36+k}")
        A(f"v_mul_f32 v{44+k}, {hex(f2u(K0))}, v{44+k}")
    for k in range(4):
        A(f"v_exp_f32 v{44+k}, v{44+k}")
    A("s_nop 0")
    for k in range(4):
        A(f"v_add_f32 v{44+k}, 1.0, v{44+k}")
    for k in range(4):
        A(f"v_rcp_f32 v{44+k}, v{44+k}")
    A("s_nop 0")
    for k in range(4):
        A(f"v_mul_f32 v{44+k}, v{44+k}, v{36+k}")
    A("v_cvt_pk_bf16_f32 v32, v44, v45"); A("v_cvt_pk_bf16_f32 v33, v46, v47")
    for k in range(2):
        A(f"v_lshlrev_b32 v{44+2*k}, 16, v{32+k}")
        A(f"v_and_b32 v{45+2*k}, 0xffff0000, v{32+k}")
    for k in range(4):
        A(f"v_mul_f32 v{44+k}, v{44+k}, v{40+k}")
    A("v_cvt_pk_bf16_f32 v32, v44, v45"); A("v_cvt_pk_bf16_f32 v33, v46, v47")
    A("v_lshrrev_b32 v22, 3, v10")
    A("v_lshlrev_b32 v22, 8, v22")
    A(f"v_add_u32 v22, {LD['H']}, v22")
    A("v_lshl_add_u32 v24, v11, 6, v22")
    A("v_lshl_add_u32 v24, v3, 1, v24")
    A(f"v_mul_u32_u24 v25, {RS*2}, v11")
    A("v_add_u32 v22, v22, v25")
    A("ds_write_b16 v24, v32")
    A("ds_write_b16_d16_hi v24, v32 offset:16")
    A("ds_write_b16 v24, v33 offset:32")
    A("ds_write_b16_d16_hi v24, v33 offset:48")
    for k in range(16):
        A(f"v_mov_b32 v{YA+k}, 0")
    A("s_waitcnt lgkmcnt(0)")
    A(f"s_mov_b32 s57, {RS // DD - 1}")
    def dn_iter(reissue):
        for z in range(DD // 4):
            A(f"ds_read_b64 v[{32+2*z}:{33+2*z}], v22 offset:{8*z}")
        A(f"v_add_u32 v22, {2*DD}, v22")
        A("s_waitcnt lgkmcnt(0)")
        for t in range(DD):
            src = 32 + t // 2; sel = 12 + 4 * (t % 2); bb = 48 + 4 * (t % 2)
            for k in range(4):
                A(f"v_perm_b32 v{bb+k}, v{src}, v{src}, v{sel+k}")
            A(f"s_waitcnt vmcnt({4*DD-4 if reissue else 4*DD-4 - 4*t})")
            A("s_nop 0")
            for nb in range(4):
                A(f"v_mfma_f32_16x16x32_bf16 v[{YA+4*nb}:{YA+3+4*nb}], v[{64+16*t+4*nb}:{67+16*t+4*nb}], v[{bb}:{bb+3}], v[{YA+4*nb}:{YA+3+4*nb}]")
            if reissue:
                dn_loads(t)
    A("L_h_f2:")
    dn_iter(True)
    A("s_sub_u32 s57, s57, 1"); A("s_cmp_lg_u32 s57, 0"); A("s_cbranch_scc1 L_h_f2")
    dn_iter(False)
    A("v_lshrrev_b32 v22, 3, v10")
    A("v_lshlrev_b32 v22, 11, v22")
    A("v_lshl_add_u32 v22, v11, 7, v22")
    A("v_lshl_add_u32 v22, v3, 4, v22")
    A("s_lshl_b32 s46, s56, 12"); A(f"s_add_u32 s46, s46, {WS_HY}")
    A("s_nop 4")
    for k in range(16):
        tag(YA + k)
    for nb in range(4):
        if nb == 3:
            A("s_mov_b32 exec_hi, 0")
        A(f"buffer_store_dwordx4 v[{YA+4*nb}:{YA+3+4*nb}], v22, s[36:39], s46 offen offset:{nb*512} sc1")
    A("s_mov_b64 exec, -1")
    stamp(3)
    A("L_h_noffn:")
    A("s_and_b32 s56, s2, 127")
    A("s_cmp_eq_u32 s2, 255")
    A("s_cbranch_scc1 L_h_epoch")
    A("s_cmp_ge_u32 s56, 28")
    A("s_cbranch_scc1 L_end")
    A("v_lshlrev_b32 v22, 12, v10")
    A("v_lshl_add_u32 v22, v11, 4, v22")
    A("s_lshl_b32 s46, s52, 11"); A("s_lshl_b32 s47, s56, 6"); A("s_add_u32 s46, s46, s47"); A(f"s_add_u32 s46, s46, {WS_HY}")
    for k in range(4):
        A(f"v_mov_b32 v{64+k}, 0")
    ym = ((1 << NFB) - 1) * 0x10001
    A(f"s_mov_b32 exec_lo, {hex(ym)}"); A(f"s_mov_b32 exec_hi, {hex(ym)}")
    A("L_h_ypoll:")
    A("buffer_load_dwordx4 v[64:67], v22, s[36:39], s46 offen sc1")
    A("s_waitcnt vmcnt(0)")
    tagcheck(range(64, 68), 27)
    A("s_cbranch_vccz L_h_ygo")
    spin_tail("L_h_ypoll", sleep=64)
    A("L_h_ygo:")
    A("s_mov_b64 exec, -1")
    A("s_lshr_b32 s47, s56, 1"); A("s_lshl_b32 s47, s47, 5"); A("s_and_b32 s48, s56, 1"); A("s_lshl_b32 s48, s48, 2")
    A("s_add_u32 s47, s47, s48"); A("s_mul_i32 s48, s52, 448"); A("s_add_u32 s47, s47, s48"); A("s_lshl_b32 s57, s47, 1")
    srd(28, 4, 1792)
    srd(32, 22, 1792)
    A("v_lshlrev_b32 v23, 1, v11")
    for rr in range(4):
        A(f"buffer_load_ushort v{72+rr}, v23, s[28:31], s57 offen offset:{16*rr}")
    A("s_waitcnt vmcnt(0)")
    for sh in (8, 4, 2, 1):
        for k in range(4):
            A(f"v_add_f32_dpp v{64+k}, v{64+k}, v{64+k} row_ror:{sh} row_mask:0xf bank_mask:0xf")
    A("v_cvt_pk_bf16_f32 v68, v64, v65"); A("v_cvt_pk_bf16_f32 v69, v66, v67")
    for k in range(2):
        A(f"v_lshlrev_b32 v{64+2*k}, 16, v{68+k}")
        A(f"v_and_b32 v{65+2*k}, 0xffff0000, v{68+k}")
    for k in range(4):
        A(f"v_mul_f32 v{68+k}, {hex(f2u(-math.log2(math.e)))}, v{64+k}")
    for k in range(4):
        A(f"v_exp_f32 v{68+k}, v{68+k}")
    A("s_nop 0")
    for k in range(4):
        A(f"v_add_f32 v{68+k}, 1.0, v{68+k}")
    for k in range(4):
        A(f"v_rcp_f32 v{68+k}, v{68+k}")
    A("s_nop 0")
    for k in range(4):
        A(f"v_mul_f32 v{64+k}, v{64+k}, v{68+k}")
    A("v_cvt_pk_bf16_f32 v68, v64, v65"); A("v_cvt_pk_bf16_f32 v69, v66, v67")
    for k in range(2):
        A(f"v_lshlrev_b32 v{76+2*k}, 16, v{68+k}")
        A(f"v_and_b32 v{77+2*k}, 0xffff0000, v{68+k}")
    for k in range(4):
        A(f"v_lshlrev_b32 v{72+k}, 16, v{72+k}")
    if not cfg.HBL:
        A("v_lshlrev_b32 v22, 11, v10")
        A("v_lshl_add_u32 v22, v11, 4, v22")
        A("s_lshl_b32 s46, s52, 18"); A("s_lshl_b32 s47, s56, 6"); A("s_add_u32 s46, s46, s47"); A(f"s_add_u32 s46, s46, {WS_HB}")
        for k in range(1, 8):
            A(f"s_add_u32 s{63+k}, s46, {k*32768}")
    else:
        A("v_lshlrev_b32 v22, 7, v10")
        A("v_lshl_add_u32 v22, v11, 4, v22")
        A("s_lshl_b32 s46, s52, 18"); A("s_lshr_b32 s47, s56, 1"); A("s_lshl_b32 s47, s47, 14"); A("s_add_u32 s46, s46, s47")
        A("s_and_b32 s47, s56, 1"); A("s_lshl_b32 s47, s47, 6"); A("s_add_u32 s46, s46, s47"); A(f"s_add_u32 s46, s46, {WS_HB}")
        for k in range(1, 8):
            A(f"s_add_u32 s{63+k}, s46, {k*2048}")
    stamp(4)
    A("s_waitcnt vmcnt(0) lgkmcnt(0)")
    A("s_barrier")
    A("s_barrier")
    if cfg.WOLATE == 4:
        A("s_barrier")
    if cfg.BAR4:
        A("s_barrier")
    def issB():
        for k in range(8):
            A(f"buffer_load_dwordx4 v[{96+4*k}:{99+4*k}], v22, s[36:39], s{46 if k == 0 else 63+k} offen sc1")
    if cfg.ICHK:
        A("L_h_bpoll:")
        issB()
        for k in range(8):
            A(f"s_waitcnt vmcnt({7-k})")
            r0 = 96 + 4 * k
            if k == 0:
                A(f"v_bitop3_b32 v24, v{r0}, v{r0+1}, v{TG} bitop3:0x7e")
            else:
                A(f"v_bitop3_b32 v25, v{r0}, v{r0+1}, v{TG} bitop3:0x7e")
            A(f"v_bitop3_b32 v26, v{r0+2}, v{r0+3}, v{TG} bitop3:0x7e")
            A("v_or_b32 v24, v24, v26" if k == 0 else "v_or3_b32 v24, v24, v25, v26")
        A("v_and_b32 v24, s59, v24")
        A("v_cmp_ne_u32 vcc, 0, v24")
        A("s_cbranch_vccz L_h_bgo")
        remask()
        spin_tail("L_h_bpoll", sleep=cfg.HSLEEP)
    else:
        poll("L_h_bpoll", issB, 8, lambda: tagcheck(range(96, 128), 24), "L_h_bgo")
    A("L_h_bgo:")
    A("s_mov_b64 exec, -1")
    stamp(5)
    for k in range(16):
        A(f"v_add_f32 v{128+k}, v{96+k}, v{112+k}")
    for step in (8, 4):
        for k in range(step):
            A(f"v_add_f32 v{128+k}, v{128+k}, v{128+step+k}")
    A("s_nop 0")
    for sh in (8, 4, 2, 1):
        for k in range(4):
            A(f"v_add_f32_dpp v{128+k}, v{128+k}, v{128+k} row_ror:{sh} row_mask:0xf bank_mask:0xf")
    A("v_cvt_pk_bf16_f32 v132, v128, v129"); A("v_cvt_pk_bf16_f32 v133, v130, v131")
    for k in range(2):
        A(f"v_lshlrev_b32 v{128+2*k}, 16, v{132+k}")
        A(f"v_and_b32 v{129+2*k}, 0xffff0000, v{132+k}")
    for k in range(4):
        A(f"v_mul_f32 v{128+k}, v{128+k}, v{76+k}")
    A("v_cvt_pk_bf16_f32 v132, v128, v129"); A("v_cvt_pk_bf16_f32 v133, v130, v131")
    for k in range(2):
        A(f"v_lshlrev_b32 v{128+2*k}, 16, v{132+k}")
        A(f"v_and_b32 v{129+2*k}, 0xffff0000, v{132+k}")
    for k in range(4):
        A(f"v_add_f32 v{128+k}, v{128+k}, v{72+k}")
    A("v_cvt_pk_bf16_f32 v132, v128, v129"); A("v_cvt_pk_bf16_f32 v133, v130, v131")
    A("s_mov_b32 exec_lo, 0x00010001"); A("s_mov_b32 exec_hi, 0x00010001")
    A("buffer_store_short v132, v23, s[32:35], s57 offen")
    A("buffer_store_short_d16_hi v132, v23, s[32:35], s57 offen offset:16")
    A("buffer_store_short v133, v23, s[32:35], s57 offen offset:32")
    A("buffer_store_short_d16_hi v133, v23, s[32:35], s57 offen offset:48")
    A("s_mov_b64 exec, -1")
    stamp(6, light=True)
    if cfg.DBGT:
        A("s_memrealtime s[94:95]")
        srd(28, 24, 256)
        A("s_waitcnt lgkmcnt(0)")
        A("s_not_b32 s92, s92")
        A("v_mov_b32 v24, s92"); A("v_mov_b32 v25, s94"); A("v_mov_b32 v26, 0")
        A("s_mov_b64 exec, 1")
        A("buffer_atomic_umax v24, v26, s[28:31], 0 offen sc1")
        A("buffer_atomic_umax v25, v26, s[28:31], 0 offen offset:4 sc1")
    A("L_end:")
    A("s_endpgm")
    A("L_h_epoch:")
    if cfg.HAL:
        A(f"v_mul_u32_u24 v22, {HBS}, v1")
        for k in range(4):
            A(f"s_mov_b32 s{64+k}, {WS_HA2 + 2048 + k*64*HBS}")
    else:
        A("v_lshlrev_b32 v22, 12, v11")
        A("v_lshl_add_u32 v22, v10, 7, v22")
        for k in range(4):
            A(f"s_mov_b32 s{64+k}, {WS_HM + k*4*4096}")
    A("s_waitcnt vmcnt(0) lgkmcnt(0)")
    A("s_barrier")
    A("s_barrier")
    if cfg.WOLATE == 4:
        A("s_barrier")
    if cfg.BAR4:
        A("s_barrier")
    A("L_h_epoll:")
    for k in range(4):
        A(f"buffer_load_dwordx2 v[{96+2*k}:{97+2*k}], v22, s[36:39], s{64+k} offen offset:8 sc1")
    A("s_waitcnt vmcnt(0)")
    tagcheck([], 24, full=range(96, 104))
    A("s_cbranch_vccz L_h_ego")
    spin_tail("L_h_epoll", sleep=8)
    A("L_h_ego:")
    A("v_mov_b32 v24, s58"); A("v_mov_b32 v25, 0")
    A("s_mov_b64 exec, 1")
    A(f"buffer_store_dword v24, v25, s[36:39], 0 offen offset:{WS_EP}")
    A("s_endpgm")
    nv = 256 if cfg.DIAG else 216
    A('.section .rodata,"a"'); A(".p2align 6"); A(f".amdhsa_kernel {NAME}")
    A.L.append(f"  .amdhsa_next_free_vgpr {nv}"); A.L.append("  .amdhsa_next_free_sgpr 102"); A.L.append(f"  .amdhsa_accum_offset {nv}")
    A.L.append("  .amdhsa_group_segment_fixed_size 0"); A.L.append("  .amdhsa_kernarg_size 96"); A.L.append("  .amdhsa_user_sgpr_count 2")
    A.L.append("  .amdhsa_user_sgpr_kernarg_segment_ptr 1"); A.L.append("  .amdhsa_system_sgpr_workgroup_id_x 1"); A(".end_amdhsa_kernel")
    FL = {0: "sc1", 1: "sc0 sc1", 2: "sc0 sc1 nt", 3: "sc1 nt"}
    for i, line in enumerate(A.L):
        if line.startswith("buffer_load") and line.endswith(" sc1"):
            A.L[i] = line[:-3] + FL[cfg.PF]
        if line.startswith("buffer_load") and line.endswith(" nt"):
            A.L[i] = line[:-2] + POL[cfg.WP]
        if line.startswith("buffer_store") and line.endswith(" sc1"):
            A.L[i] = line[:-3] + FL[cfg.SF]
    if cfg.DIAG:
        sys.stderr.write(str(codes) + "\n")
    return "\n".join(A.L) + "\n"

if __name__ == "__main__":
    cfg = Cfg()
    out = sys.argv[1]
    for kv in sys.argv[2:]:
        k, v = kv.split("=")
        setattr(cfg, k, tuple(int(x) for x in v.split("/") if x) if k == "SIZES" else int(v))
    open(out, "w").write(gen(cfg))
```

```python
import sys, math
NAME = "recurrent_scan__gqa_block_cached__glu_gated_geglu__decode_kernel"

class Cfg:
    F = 20
    R = 9
    C = 6
    DIAG = False
    SPIN = 1 << 22
    NOSWZ = 0
    NOCOMP = 0
    NOWO = 0
    NOWQ = 0
    PSLEEP = 1
    QSLEEP = 4
    BAR3 = 1
    BAR4 = 1
    MASKP = 1
    DBGT = 0
    F3 = 32
    LBAR = 0
    FD = 8
    ET = 2
    PIPE = 0
    QV = 2
    HAL = 0
    EARLYK = 1
    WOLATE = 4
    NOCF = 0
    SVC = 0
    HBL = 1
    FP1 = 0
    OSC = 0
    FP2 = 47
    ICHK = 1
    LSLEEP = 16
    PGAP = 4
    EZ = 6
    HSLEEP = 1
    PF = 0
    FB = 128
    STAT = 2
    KP = 1
    VP = 1
    WP = 1
    ROT = 5
    GS = 11
    WIN = 1
    SF = 0
    SIZES = (3, 2, 1)
    NOFFN = 0

def lds_layout(R):
    o = R * 16384
    L = {}
    L['FLAGS'] = o; o += 256
    L['Q'] = o; o += 1024
    L['XN'] = o; o += 1792
    L['H'] = o; o += 512
    L['SC'] = o; o += 72 * 128
    L['END'] = o
    return L

WS_EP = 0
WS_PC = 0x1000
PCS = 4352
WS_QP = 0x20000
WS_HA = 0x40000
WS_HA2 = 0x280000
HBS = 2304
WS_HM = 0xC0000
WS_HB = 0xD0000
WS_HY = 0x150000
WS_DIAG = 0x200000
WS_SIZE = 0x400000
TAGM = 0xf
POL = {0: "", 1: "nt", 2: "sc1", 3: "sc0 sc1", 4: "sc1 nt", 5: "sc0 sc1 nt", 6: "sc0", 7: "sc0 nt"}
CSC = 0.0625 * math.log2(math.e)

import struct
def f2u(x):
    return struct.unpack('<I', struct.pack('<f', x))[0]

class Asm:
    def __init__(self):
        self.L = []
        self.n = 0
    def __call__(self, s):
        for line in s.strip('\n').split('\n'):
            self.L.append(line.strip() if not line.strip().endswith(':') else line.strip())
    def label(self, base):
        self.n += 1
        return f"L_{base}_{self.n}"

def gen(cfg):
    F, R, C = cfg.F, cfg.R, cfg.C
    LD = lds_layout(R)
    assert LD['END'] <= 163840, LD['END']
    A = Asm()
    NUNITS = 128
    SIZES = tuple(cfg.SIZES)
    S = NUNITS - sum(SIZES)
    NT = (15 if cfg.SVC else 16) * len(SIZES)
    assert len(SIZES) <= 8
    SZP = sum(v << (8 * r) for r, v in enumerate(SIZES))
    STP = sum((S + sum(SIZES[:r])) << (8 * r) for r in range(len(SIZES)))
    def srd(dst, base, size, add=None):
        if add is None:
            A(f"s_mov_b32 s{dst}, s{base}")
            A(f"s_and_b32 s{dst+1}, s{base+1}, 0xffff")
        else:
            A(f"s_add_u32 s{dst}, s{base}, s{add}")
            A(f"s_addc_u32 s{dst+1}, s{base+1}, 0")
            A(f"s_and_b32 s{dst+1}, s{dst+1}, 0xffff")
        A(f"s_mov_b32 s{dst+2}, {size}")
        A(f"s_mov_b32 s{dst+3}, 0x20000")
    def stamp(idx, tmpv=(250, 251, 252), light=False):
        if not cfg.DIAG or (cfg.DIAG == 2 and not light):
            return
        A(f"s_memrealtime s[96:97]")
        A(f"s_lshl_b32 s98, s2, 3")
        A(f"s_add_u32 s98, s98, s3")
        A(f"s_lshl_b32 s98, s98, 7")
        A(f"s_add_u32 s98, s98, {WS_DIAG + idx*8}")
        A(f"s_waitcnt lgkmcnt(0)")
        A(f"v_mov_b32 v{tmpv[0]}, s96")
        A(f"v_mov_b32 v{tmpv[1]}, s97")
        A(f"v_mov_b32 v{tmpv[2]}, 0")
        A(f"s_mov_b64 s[94:95], exec")
        A(f"s_mov_b64 exec, 1")
        A(f"buffer_store_dwordx2 v[{tmpv[0]}:{tmpv[1]}], v{tmpv[2]}, s[36:39], s98 offen")
        A(f"s_mov_b64 exec, s[94:95]")
    TG = 193
    def tag(v):
        A(f"v_bfi_b32 v{v}, s59, v{TG}, v{v}")
    def tagcheck(regs, acc, full=()):
        regs = list(regs)
        if len(regs) == 0:
            A(f"v_mov_b32 v{acc}, 0")
        elif len(regs) == 1:
            A(f"v_xor_b32 v{acc}, v{regs[0]}, v{TG}")
        else:
            A(f"v_bitop3_b32 v{acc}, v{regs[0]}, v{regs[1]}, v{TG} bitop3:0x7e")
            for r in regs[2:]:
                A(f"v_bitop3_b32 v{acc}, v{acc}, v{r}, v{TG} bitop3:0xf6")
        A(f"v_and_b32 v{acc}, s59, v{acc}")
        for r in full:
            A(f"v_bitop3_b32 v{acc}, v{acc}, v{r}, s58 bitop3:0xf6")
        A(f"v_cmp_ne_u32 vcc, 0, v{acc}")
    def remask():
        if cfg.MASKP:
            A("s_or_b32 s76, vcc_lo, vcc_hi"); A("s_lshr_b32 s77, s76, 16"); A("s_or_b32 s76, s76, s77")
            A("s_pack_ll_b32_b16 s76, s76, s76")
            A("s_mov_b32 exec_lo, s76"); A("s_mov_b32 exec_hi, s76")
    def poll(lbl, issue, n, check, go):
        if not cfg.PIPE:
            A(f"{lbl}:")
            issue()
            A("s_waitcnt vmcnt(0)")
            check()
            A(f"s_cbranch_vccz {go}")
            remask()
            if cfg.SVC and n == 3:
                q = A.label("awake")
                A("s_bcnt1_i32_b32 s77, s76"); A("s_cmp_lt_u32 s77, 30"); A(f"s_cbranch_scc1 {q}")
                A(f"s_sleep {cfg.LSLEEP}")
                A(f"{q}:")
            spin_tail(lbl, sleep=cfg.HSLEEP)
        else:
            issue()
            A("s_waitcnt vmcnt(0)")
            check()
            A(f"s_cbranch_vccz {go}")
            remask()
            for d in range(cfg.PIPE):
                issue()
                A(f"s_sleep {cfg.PGAP}")
            A(f"{lbl}:")
            issue()
            A(f"s_waitcnt vmcnt({n * cfg.PIPE})")
            check()
            A(f"s_cbranch_vccz {go}")
            remask()
            spin_tail(lbl, sleep=0)
    codes = {}
    def die(lbl):
        if cfg.DIAG:
            codes.setdefault(lbl, len(codes) + 1)
            A("s_mov_b64 exec, 1")
            A(f"v_mov_b32 v248, {codes[lbl]}"); A("v_mov_b32 v249, s40"); A("v_mov_b32 v250, s43"); A("v_mov_b32 v251, s73"); A("v_mov_b32 v252, 0")
            A("s_lshl_b32 s98, s2, 3"); A("s_add_u32 s98, s98, s3"); A("s_lshl_b32 s98, s98, 7"); A(f"s_add_u32 s98, s98, {WS_DIAG + 112}")
            A("buffer_store_dwordx4 v[248:251], v252, s[36:39], s98 offen")
        A("s_endpgm")
    def spin_tail(lbl, cnt="s45", sleep=1):
        A(f"s_sleep {sleep}")
        A(f"s_sub_u32 {cnt}, {cnt}, 1")
        A(f"s_cmp_lg_u32 {cnt}, 0")
        A(f"s_cbranch_scc1 {lbl}")
        die(lbl)

    hdr = open('recurrent_scan__gqa_block_cached__glu_gated_geglu__decode.s.ref').read().split('\n')
    for line in hdr:
        if line.startswith('; @launch') or not line.startswith(';'):
            break
        A.L.append(line)
    A(f"; @launch grid=(256,1,1) block=(512,1,1) lds={LD['END']}")
    A('.amdgcn_target "amdgcn-amd-amdhsa--gfx950"')
    A(".text"); A(f".globl {NAME}"); A(".p2align 8"); A(f".type {NAME},@function"); A(f"{NAME}:")
    if cfg.DIAG or cfg.DBGT:
        A("s_memrealtime s[92:93]")
    A(f"""
    s_cmp_ge_u32 s2, 256
    s_cbranch_scc1 L_end
    s_load_dwordx8 s[4:11], s[0:1], 0
    s_load_dwordx8 s[12:19], s[0:1], 32
    s_load_dwordx8 s[20:27], s[0:1], 64
    v_and_b32 v1, 63, v0
    v_lshrrev_b32 v2, 6, v0
    v_lshlrev_b32 v3, 2, v1
    v_add_u32 v3, {LD['FLAGS']}, v3
    v_mov_b32 v4, 0
    ds_write_b32 v3, v4
    v_readfirstlane_b32 s3, v2
    s_mov_b32 s45, {cfg.SPIN}
    s_mov_b32 s40, 0
    s_mov_b32 s43, 0
    s_mov_b32 s73, 0
    """)
    A("v_lshrrev_b32 v5, 5, v1")
    A("v_and_b32 v6, 31, v1")
    A("v_xor_b32 v6, v6, v5")
    A("v_lshlrev_b32 v5, 9, v5")
    for j in range(8):
        A(f"v_xor_b32 v7, {2*j}, v6")
        A(f"v_lshl_add_u32 v{8+j}, v7, 4, v5")
    A("v_lshlrev_b32 v16, 4, v1")
    A(f"v_mov_b32 v17, {LD['FLAGS']}")
    A("s_lshr_b32 s46, s2, 4")
    A("s_lshl_b32 s46, s46, 24")
    def ld_addr(dst, dt):
        A(f"s_add_u32 s69, s67, {dt}")
        A(f"s_add_u32 {dst}, s69, s68"); A(f"s_and_b32 {dst}, {dst}, 127"); A(f"s_lshl_b32 {dst}, {dst}, 17")
        A(f"s_mul_i32 s69, s69, {cfg.ROT}"); A("s_add_u32 s69, s69, s66"); A("s_and_b32 s69, s69, 15"); A("s_lshl_b32 s69, s69, 13")
        A(f"s_or_b32 {dst}, {dst}, s69")
    A("s_mov_b32 s41, 0"); A("s_and_b32 s66, s2, 15"); A("s_mov_b32 s67, 0"); A("s_mov_b32 s44, 0")
    A("s_lshr_b32 s70, s2, 4"); A(f"s_mul_i32 s68, s70, {cfg.GS}")
    ld_addr("s42", 0); ld_addr("s75", 1)
    A("s_mov_b32 s53, 0")
    A(f"s_mov_b32 s30, {1 << 24}"); A("s_mov_b32 s31, 0x20000"); A(f"s_mov_b32 s34, {1 << 24}"); A("s_mov_b32 s35, 0x20000")
    A("s_waitcnt lgkmcnt(0)")
    A("s_add_u32 s28, s6, s46"); A("s_addc_u32 s29, s7, 0"); A("s_and_b32 s29, s29, 0xffff")
    if cfg.LBAR:
        A("s_cmp_eq_u32 s3, 0")
        A("s_cbranch_scc1 L_loader")
        A("s_barrier")
        A("s_branch L_notloader")
        A("L_loader:")
    else:
        A("s_barrier")
        A("s_cmp_lg_u32 s3, 0")
        A("s_cbranch_scc1 L_notloader")
    A("s_setprio 3")
    if cfg.DIAG:
        srd(36, 26, WS_SIZE)
    stamp(0)
    if cfg.DIAG == 1:
        A("v_mov_b32 v250, s92"); A("v_mov_b32 v251, s93"); A("s_mov_b64 exec, 1")
        A("buffer_store_dwordx2 v[250:251], v252, s[36:39], s98 offen offset:56")
        A("s_mov_b64 exec, -1")
    a_, jp = divmod(F - 1, 16)
    assert S % 2 == 0
    NFB = 1792 // cfg.FB
    assert (cfg.ET * cfg.EZ) % 2 == 0
    FC = 8 + cfg.ET * cfg.EZ // 2
    if cfg.DIAG:
        A("s_mov_b32 s90, 0")
        A("s_mov_b32 s88, 0")
    def ld_body(kinds, first=False, F=F):
        a_, jp = divmod(F - 1, 16)
        for j in range(16):
            if not first:
                A(f"s_waitcnt vmcnt({F-1})")
            if j == jp and not first:
                A(f"s_sub_i32 s49, s40, {a_}")
                A("s_max_i32 s43, s43, s49")
                A("v_mov_b32 v18, s43")
                A("ds_write_b32 v17, v18")
            if j % 4 == 0:
                A(f"s_add_u32 m0, s41, {j*1024}")
                A(f"s_add_u32 s47, {'s42' if j < 8 else 's75'}, {(j % 8)*1024}")
            if j == 8:
                A("s_add_u32 s44, s44, 4"); A(f"s_cmp_ge_u32 s44, {R*4}"); A("s_cselect_b32 s44, 0, s44")
                A("v_add_u32 v19, s44, v17")
                A("ds_read_b32 v20, v19 offset:64")
            if kinds[j // 8] == 'K':
                A(f"buffer_load_dwordx4 v{8 + j % 8}, s[28:31], s47 offen offset:{(j%4)*1024} {POL[cfg.KP]} lds")
            else:
                A(f"buffer_load_dwordx4 v16, s[32:35], s47 offen offset:{(j%4)*1024} {POL[cfg.VP]} lds")
        A("s_add_u32 s40, s40, 1")
        A("s_add_u32 s41, s41, 16384"); A(f"s_cmp_ge_u32 s41, {R*16384}"); A("s_cselect_b32 s41, 0, s41")
        A("s_sub_u32 s53, s53, 1")
    def ld_ring(lbl):
        if cfg.DIAG == 1:
            n = A.label("nops")
            A("s_and_b32 s91, s40, 15"); A("s_cmp_lg_u32 s91, 0"); A(f"s_cbranch_scc1 {n}")
            A("s_cmp_gt_u32 s40, 80"); A(f"s_cbranch_scc1 {n}")
            A("s_memrealtime s[96:97]")
            A("s_lshl_b32 s98, s2, 10"); A("s_lshr_b32 s91, s40, 1"); A("s_add_u32 s98, s98, s91"); A(f"s_add_u32 s98, s98, {WS_DIAG + 64}")
            A("s_waitcnt lgkmcnt(0)")
            A("v_mov_b32 v250, s96"); A("v_mov_b32 v251, s97"); A("v_mov_b32 v252, 0")
            A("s_mov_b64 exec, 1")
            A("buffer_store_dwordx2 v[250:251], v252, s[36:39], s98 offen")
            A("s_mov_b64 exec, -1")
            A(f"{n}:")
        A(f"s_sub_i32 s48, s40, {R-1}")
        A("v_readfirstlane_b32 s47, v20")
        A("s_cmp_ge_i32 s47, s48")
        A(f"s_cbranch_scc1 {lbl}")
        if cfg.DIAG == 1:
            n = A.label("nost")
            A("s_cmp_lg_u32 s90, 0"); A(f"s_cbranch_scc1 {n}"); A("s_mov_b32 s90, 1")
            stamp(2)
            A(f"{n}:")
            stamp(3)
        A("s_waitcnt vmcnt(0)")
        A("s_mov_b32 s43, s40")
        A("v_mov_b32 v18, s43")
        A("ds_write_b32 v17, v18")
        sp = lbl + "_spin"
        A(f"{sp}:")
        A("ds_read_b32 v20, v19 offset:64")
        A("s_waitcnt lgkmcnt(0)")
        A("v_readfirstlane_b32 s47, v20")
        A("s_cmp_ge_i32 s47, s48")
        A(f"s_cbranch_scc1 {lbl}")
        spin_tail(sp)
    def ld_ticket_req():
        n = A.label("noat")
        A("s_add_u32 s74, s53, s71")
        A("s_cmp_lg_u32 s74, 1")
        A(f"s_cbranch_scc1 {n}")
        A("s_mov_b32 s54, 1")
        if NT:
            A("s_atomic_add s54, s[56:57], 0x0 glc")
        A(f"{n}:")
    def ld_adv():
        if not cfg.SVC:
            A("s_add_u32 s67, s67, 2")
            return
        o = A.label("own"); d = A.label("adv")
        A("s_cmp_eq_u32 s66, s70"); A(f"s_cbranch_scc1 {o}")
        A("s_cmp_lg_u32 s67, s83"); A(f"s_cbranch_scc1 {o}")
        A("s_mov_b32 s66, s70"); A("s_add_u32 s83, s83, 30"); A(f"s_branch {d}")
        A(f"{o}:")
        A("s_mov_b32 s66, s81"); A("s_add_u32 s67, s67, 2")
        A(f"{d}:")
    if cfg.SVC:
        assert 120 <= S <= 122 and not cfg.LBAR
        A("s_cmp_eq_u32 s66, s70")
        A("s_cbranch_scc1 L_ld_svc")
    ld_body("KK", first=True)
    A("s_add_u32 s32, s8, s46"); A("s_addc_u32 s33, s9, 0"); A("s_and_b32 s33, s33, 0xffff")
    if cfg.LBAR:
        A("s_barrier")
    A(f"s_mul_i32 s50, s70, {PCS}"); A(f"s_add_u32 s50, s50, {WS_PC}")
    A("s_add_u32 s56, s26, s50"); A("s_addc_u32 s57, s27, 0")
    A(f"s_mov_b32 s60, {hex(SZP & 0xffffffff)}"); A(f"s_mov_b32 s61, {hex(SZP >> 32)}")
    A(f"s_mov_b32 s62, {hex(STP & 0xffffffff)}"); A(f"s_mov_b32 s63, {hex(STP >> 32)}")
    A("s_mov_b32 s54, 0")
    if not cfg.SVC:
        A(f"s_cmp_lt_u32 s70, {0 if cfg.NOCF else NFB}"); A("s_cselect_b32 s71, 1, 0")
        A(f"s_add_u32 s72, s66, {S - 16}")
        A("s_cmp_eq_u32 s66, s70"); A("s_cselect_b32 s78, s71, 0"); A(f"s_mul_i32 s78, s78, {FC}"); A(f"s_sub_u32 s78, {S // 2}, s78")
        A(f"s_mul_i32 s80, s71, {cfg.ET}")
    else:
        A("s_mov_b32 s71, 0"); A(f"s_mov_b32 s78, {S // 2 + 4}"); A("s_mov_b32 s81, s66")
        A("s_cmp_gt_u32 s66, s70"); A("s_cselect_b32 s82, 1, 0"); A("s_sub_u32 s82, s66, s82"); A("s_lshl_b32 s82, s82, 1")
        A("s_mov_b32 s83, s82")
    A("s_sub_u32 s53, s78, 1")
    A("s_branch L_ld_kbot")
    if cfg.SVC:
        A("L_ld_svc:")
        A("s_add_u32 s32, s8, s46"); A("s_addc_u32 s33, s9, 0"); A("s_and_b32 s33, s33, 0xffff")
        A("s_mov_b32 s53, 8"); A("s_mov_b32 s67, 120"); A("s_mov_b32 s71, 64")
        A("s_mov_b32 s56, s26"); A("s_mov_b32 s57, s27")
        ld_addr("s42", 0)
        A("s_mov_b32 s75, s42")
        A("s_branch L_ld_c")
    A("L_ld_k:")
    ld_body("KK")
    A("L_ld_kbot:")
    ld_adv()
    A("s_cmp_lg_u32 s53, 0")
    A("s_cbranch_scc1 L_ld_kc")
    A("s_mov_b32 s67, 0"); A("s_mov_b32 s53, s78")
    if cfg.SVC:
        A("s_mov_b32 s66, s81"); A("s_mov_b32 s83, s82")
    A("s_branch L_ld_vc")
    A("L_ld_kc:")
    ld_addr("s42", 0); ld_addr("s75", 1)
    A("s_waitcnt lgkmcnt(0)")
    ld_ring("L_ld_k")
    A("L_ld_v:")
    ld_ticket_req()
    ld_body("VV")
    ld_adv()
    A("s_cmp_eq_u32 s53, 0")
    A("s_cbranch_scc1 L_ld_next")
    A("L_ld_vc:")
    ld_addr("s42", 0); ld_addr("s75", 1)
    A("s_waitcnt lgkmcnt(0)")
    ld_ring("L_ld_v")
    A("L_ld_c:")
    ld_ticket_req()
    F3 = cfg.F3 or F
    ld_body("KV", F=F3)
    A("s_add_u32 s67, s67, 1")
    A("s_cmp_lg_u32 s53, 0")
    A("s_cbranch_scc1 L_ld_cc")
    A("L_ld_next:")
    A("s_cmp_eq_u32 s71, 0"); A("s_cbranch_scc1 L_ld_tick")
    if cfg.SVC:
        A("s_branch L_ld_done")
    A("s_mov_b32 s71, 0"); A("s_mov_b32 s53, 1"); A("s_mov_b32 s66, s70"); A("s_mov_b32 s67, s72")
    A("s_branch L_ld_cc")
    A("L_ld_tick:")
    if cfg.DIAG == 1:
        A("s_memrealtime s[84:85]")
    A("s_waitcnt lgkmcnt(0)")
    if cfg.DIAG == 1:
        A("s_memrealtime s[86:87]"); A("s_waitcnt lgkmcnt(0)")
        A("s_sub_u32 s86, s86, s84"); A("s_lshl_b32 s88, s88, 8"); A("s_min_u32 s86, s86, 255"); A("s_or_b32 s88, s88, s86")
    if cfg.ET and not cfg.SVC:
        A("s_cmp_ge_u32 s54, s80"); A("s_cbranch_scc1 L_ld_tick2")
        A(f"s_mov_b32 s53, {cfg.EZ}"); A("s_mov_b32 s66, s70")
        A(f"s_mul_i32 s67, s54, {cfg.EZ}"); A(f"s_add_u32 s67, s67, {S - 2 * FC}")
        A("s_branch L_ld_cc")
        A("L_ld_tick2:")
        A("s_sub_u32 s54, s54, s80")
    A(f"s_cmp_ge_u32 s54, {NT}")
    A("s_cbranch_scc1 L_ld_done")
    if cfg.SVC:
        A("s_mul_i32 s51, s54, 4370"); A("s_lshr_b32 s51, s51, 16")
        A("s_mul_i32 s52, s51, 15"); A("s_sub_u32 s54, s54, s52")
        A("s_cmp_ge_u32 s54, s70"); A("s_addc_u32 s54, s54, 0")
        A("s_lshl_b32 s51, s51, 3")
    else:
        A("s_lshr_b32 s51, s54, 4"); A("s_lshl_b32 s51, s51, 3")
    A("s_lshr_b64 s[64:65], s[60:61], s51"); A("s_and_b32 s53, s64, 0xff")
    A("s_lshr_b64 s[64:65], s[62:63], s51"); A("s_and_b32 s67, s64, 0xff")
    A("s_and_b32 s66, s54, 15")
    A("L_ld_cc:")
    ld_addr("s42", 0)
    A("s_mov_b32 s75, s42")
    A("s_waitcnt lgkmcnt(0)")
    ld_ring("L_ld_c")
    A("L_ld_done:")
    A("s_lshl_b32 s50, s40, 16")
    A("s_or_b32 s51, s50, s43")
    A("v_mov_b32 v18, s51")
    A("ds_write_b32 v17, v18")
    for k in range(3, -1, -1):
        if 16 * k < max(F, F3):
            A(f"s_sub_u32 s51, s40, {k}")
            A("s_max_u32 s51, s51, s43")
            A("s_or_b32 s51, s51, s50")
            A(f"s_waitcnt vmcnt({16*k})")
            A(f"v_mov_b32 v18, s51")
            A("ds_write_b32 v17, v18")
            if k == 1 and cfg.EARLYK:
                A("s_or_b32 s51, s51, 0x8000")
                A("s_waitcnt vmcnt(8)")
                A(f"v_mov_b32 v18, s51")
                A("ds_write_b32 v17, v18")
    if cfg.DIAG:
        A("v_mov_b32 v250, s40"); A("v_mov_b32 v251, s88"); A("v_mov_b32 v252, 0")
        A("s_lshl_b32 s98, s2, 10"); A(f"s_add_u32 s98, s98, {WS_DIAG + 8*8}")
        A("s_mov_b64 exec, 1")
        A("buffer_store_dwordx2 v[250:251], v252, s[36:39], s98 offen")
        A("s_mov_b64 exec, -1")
        A("s_nop 1")
    stamp(1, light=True)
    if cfg.DIAG == 2:
        A("s_nop 1")
        A("v_mov_b32 v250, s92"); A("v_mov_b32 v251, s93"); A("s_mov_b64 exec, 1")
        A("buffer_store_dwordx2 v[250:251], v252, s[36:39], s98 offen offset:48")
    A("s_endpgm")

    A("L_notloader:")
    A(f"s_load_dword s58, s[26:27], {WS_EP}")
    A(f"s_mov_b32 s59, {TAGM}")
    A("v_and_b32 v3, 7, v1")
    A("v_lshrrev_b32 v4, 1, v3")
    A("v_and_b32 v5, 1, v3")
    A("v_mov_b32 v6, 0x0c0c0100")
    A("v_mov_b32 v7, 0x01000c0c")
    A("v_cmp_eq_u32 vcc, 1, v5")
    A("v_mov_b32 v8, 0x0c0c0302")
    A("v_mov_b32 v9, 0x03020c0c")
    A("v_cndmask_b32 v6, v6, v7, vcc")
    A("v_cndmask_b32 v8, v8, v9, vcc")
    A("v_mov_b32 v7, 0x0c0c0c0c")
    for k in range(4):
        A(f"v_cmp_eq_u32 vcc, {k}, v4")
        A("s_nop 1")
        A(f"v_cndmask_b32 v{12+k}, v7, v6, vcc")
        A(f"v_cndmask_b32 v{16+k}, v7, v8, vcc")
    A("v_and_b32 v10, 15, v1")
    A("v_lshrrev_b32 v11, 4, v1")
    A("s_lshr_b32 s50, s2, 4")
    A("s_and_b32 s51, s2, 15")
    A("s_lshr_b32 s52, s2, 7")
    A("s_and_b32 s53, s50, 7")
    A(f"s_mov_b32 s54, {hex(f2u(CSC))}")
    srd(36, 26, WS_SIZE)
    A("s_cmp_eq_u32 s3, 4")
    A("s_cbranch_scc1 L_helper")

    A("s_sub_u32 s55, s3, 1")
    A("s_cmp_gt_u32 s3, 4")
    A("s_cselect_b32 s47, 1, 0")
    A("s_sub_u32 s55, s55, s47")
    def wo_loads(i_reg, s_reg, issue=True, prep=True):
        if prep:
            srd(28, 12, 4096 * 896)
            A(f"s_lshl_b32 s82, s53, 9"); A(f"s_lshl_b32 s47, s51, 5"); A(f"s_add_u32 s82, s82, s47")
            A(f"s_mul_i32 s82, s82, 896"); A(f"s_lshl_b32 s47, s55, 8"); A(f"s_add_u32 s82, s82, s47")
            A(f"v_mul_u32_u24 v204, 896, v{s_reg}")
            A(f"v_lshl_add_u32 v204, v{i_reg}, 4, v204")
            A(f"s_cmp_eq_u32 s55, 3")
            A(f"s_cselect_b32 s47, 8, 16")
            A(f"v_cmp_le_u32 vcc, s47, v{i_reg}")
            A(f"v_bfrev_b32 v205, 2")
            A(f"s_nop 0")
            A(f"v_cndmask_b32 v204, v204, v205, vcc")
        if issue:
            for rr in range(4):
                for hi in range(2):
                    t = 4 * hi + rr
                    A(f"buffer_load_dwordx4 v[{156+4*t}:{159+4*t}], v204, s[28:31], s82 offen offset:{hi*4*896} nt")
                if rr < 3:
                    A(f"s_add_u32 s82, s82, {8*896}")
    wo_loads(10, 11, issue=False)
    if not cfg.WOLATE:
        A(f"s_cmp_ge_u32 s55, {0 if cfg.NOWO else 4}")
        A("s_cbranch_scc1 L_c_nowo")
        wo_loads(10, 11, prep=False)
    A("L_c_nowo:")
    A("v_xor_b32 v23, v10, v11")
    A("v_lshlrev_b32 v24, 9, v10")
    for a in range(4):
        A(f"v_xor_b32 v25, {4*a}, v23")
        A(f"v_lshl_add_u32 v{2+a}, v25, 4, v24")
    A("v_lshlrev_b32 v24, 11, v11")
    A("v_lshl_add_u32 v6, v10, 4, v24")
    A(f"v_mov_b32 v188, {LD['FLAGS']}")
    A(f"v_mov_b32 v20, {hex(f2u(-3.0e38))}")
    A("v_mul_f32 v21, s54, v20")
    A("v_mov_b32 v22, 0")
    for k in range(8):
        A(f"v_mov_b32 v{132+k}, 0")
    A("v_mov_b32 v189, v10"); A("v_mov_b32 v190, v11")
    A("v_lshrrev_b32 v23, 3, v10"); A("v_lshlrev_b32 v23, 6, v23"); A("v_lshl_add_u32 v23, v11, 4, v23")
    A(f"v_add_u32 v202, {LD['SC']}, v23")
    if not cfg.SVC:
        A(f"s_cmp_lt_u32 s50, {0 if cfg.NOCF else NFB}"); A(f"s_cselect_b32 s78, {FC}, 0")
        A("s_cmp_eq_u32 s51, s50"); A("s_cselect_b32 s78, s78, 0"); A(f"s_sub_u32 s78, {S // 2}, s78")
    else:
        A("s_cmp_eq_u32 s51, s50"); A(f"s_cselect_b32 s78, 0, {S // 2 + 4}")
    A("s_lshl_b32 s79, s78, 1")
    A("s_mov_b32 s40, s55")
    A("s_lshl_b32 s41, s55, 14")
    A("s_mov_b32 s44, 0")
    A("s_waitcnt lgkmcnt(0)")
    A("s_add_u32 s58, s58, 1")
    A("s_and_b32 s46, s58, s59")
    A(f"v_mov_b32 v{TG}, s46")
    def c_wait(lbl, can_end):
        A(f"{lbl}:")
        A("ds_read_b32 v23, v188")
        A("s_lshr_b32 s47, s41, 12")
        A("v_add_u32 v191, s47, v188")
        A("s_add_u32 s42, s40, 1")
        A("v_mov_b32 v192, s42")
        A("s_waitcnt lgkmcnt(0)")
        A("v_readfirstlane_b32 s43, v23")
        A("s_and_b32 s46, s43, 0x7fff")
        if can_end and cfg.EARLYK:
            A("s_bfe_u32 s47, s43, 0x1000f")
            A("s_add_u32 s46, s46, s47")
        A("s_cmp_gt_u32 s46, s40")
        A(f"s_cbranch_scc1 {lbl}_go")
        if can_end:
            A("s_lshr_b32 s46, s43, 16")
            A("s_sub_u32 s46, s46, 1")
            A("s_cmp_lt_u32 s46, s40")
            A("s_cbranch_scc1 L_c_tail")
        spin_tail(lbl, sleep=0 if can_end else cfg.PSLEEP)
        A(f"{lbl}_go:")
    def c_adv():
        A(f"s_add_u32 s40, s40, {C}")
        A(f"s_add_u32 s41, s41, {C*16384}")
        A(f"s_sub_u32 s47, s41, {R*16384}")
        A(f"s_cmp_ge_u32 s41, {R*16384}")
        A("s_cselect_b32 s41, s47, s41")
    def k_reads(base, off):
        for t in range(8):
            A(f"ds_read_b128 v[{base+4*t}:{base+3+4*t}], v{7 + t % 4} offset:{off + (t//4)*256}")
    def v_reads(base, off, rs=range(4)):
        for r in rs:
            for h in range(2):
                A(f"ds_read_b128 v[{base+8*r+4*h}:{base+3+8*r+4*h}], v11 offset:{off + r*512 + h*256}")
    def resc(lbl):
        A(f"{lbl}:")
        A("v_mov_b32 v31, v30")
        A("s_nop 1")
        A("v_permlane16_swap_b32 v30, v31")
        A("v_max_f32 v30, v30, v31")
        A("v_mov_b32 v31, v30")
        A("s_nop 1")
        A("v_permlane32_swap_b32 v30, v31")
        A("v_max3_f32 v20, v30, v31, v20")
        A("v_mul_f32 v30, s54, v20")
        A("v_sub_f32 v31, v21, v30")
        A("v_exp_f32 v31, v31")
        A("v_mov_b32 v21, v30")
        for k in range(8):
            A(f"v_mul_f32 v{132+k}, v{132+k}, v31")
        A("v_mul_f32 v22, v22, v31")
        A(f"s_branch {lbl}_ret")
    def pv(tiles):
        steps = [(pb + r // 2, 12 + 4 * (r % 2), vb + 8 * r) for (pb, vb) in tiles for r in range(4)]
        def mm(n):
            bb = 140 + 4 * (n % 4); vb = steps[n][2]
            for h in range(2):
                A(f"v_mfma_f32_16x16x32_bf16 v[{132+4*h}:{135+4*h}], v[{vb+4*h}:{vb+3+4*h}], v[{bb}:{bb+3}], v[{132+4*h}:{135+4*h}]")
        for n, (src, sel, vb) in enumerate(steps):
            for k in range(4):
                A(f"v_perm_b32 v{140+4*(n%4)+k}, v{src}, v{src}, v{sel+k}")
            if n >= 1:
                mm(n - 1)
        mm(len(steps) - 1)
    if cfg.SVC:
        A("s_cmp_eq_u32 s78, 0")
        A("s_cbranch_scc1 L_cc")
    c_wait("L_ck", False)
    for a in range(4):
        A(f"v_add_u32 v{7+a}, s41, v{2+a}")
    k_reads(64, 0); k_reads(96, 8192)
    A("s_lshl_b32 s47, s40, 7")
    A("v_add_u32 v203, s47, v202")
    A("s_waitcnt lgkmcnt(0)")
    A("ds_write_b32 v191, v192 offset:64")
    A("s_cmp_eq_u32 s44, 0")
    A("s_cbranch_scc1 L_c_first")
    A("L_ck_comp:")
    for t in range(8):
        A(f"v_mfma_f32_16x16x32_bf16 v[128:131], v[{64+4*t}:{67+4*t}], v[{32+4*t}:{35+4*t}], {'0' if t == 0 else 'v[128:131]'}")
        A(f"v_mfma_f32_16x16x32_bf16 v[140:143], v[{96+4*t}:{99+4*t}], v[{32+4*t}:{35+4*t}], {'0' if t == 0 else 'v[140:143]'}")
    c_adv()
    A("s_nop 2")
    A("v_cvt_pk_bf16_f32 v24, v128, v129")
    A("v_cvt_pk_bf16_f32 v25, v130, v131")
    A("v_cvt_pk_bf16_f32 v26, v140, v141")
    A("v_cvt_pk_bf16_f32 v27, v142, v143")
    A("s_mov_b32 exec_lo, 0x01010101"); A("s_mov_b32 exec_hi, 0x01010101")
    A("ds_write_b128 v203, v[24:27]")
    A("s_mov_b64 exec, -1")
    A("s_cmp_lt_u32 s40, s78")
    A("s_cbranch_scc1 L_ck")
    c_wait("L_cv", False)
    A("s_sub_u32 s47, s40, s78"); A("s_lshl_b32 s47, s47, 7")
    A("v_add_u32 v203, s47, v202")
    A("v_add_u32 v11, s41, v6")
    A("ds_read_b128 v[24:27], v203")
    v_reads(64, 0); v_reads(96, 8192, range(3))
    A("s_waitcnt lgkmcnt(14)")
    v_reads(96, 8192, [3])
    for k in range(4):
        A(f"v_lshlrev_b32 v{194+2*k}, 16, v{24+k}")
        A(f"v_and_b32 v{195+2*k}, 0xffff0000, v{24+k}")
    A("v_max3_f32 v30, v194, v195, v196")
    A("v_max3_f32 v31, v197, v198, v199")
    A("v_max3_f32 v30, v30, v200, v201")
    A("v_max_f32 v30, v30, v31")
    A("v_cmp_gt_f32 vcc, v30, v20")
    A("s_cbranch_vccnz L_cv_resc")
    A("L_cv_resc_ret:")
    for k in range(8):
        A(f"v_fma_f32 v{194+k}, v{194+k}, s54, -v21")
    for k in range(8):
        A(f"v_exp_f32 v{194+k}, v{194+k}")
    A("s_nop 0")
    for k in range(4):
        A(f"v_cvt_pk_bf16_f32 v{24+k}, v{194+2*k}, v{195+2*k}")
    for k in range(4):
        A(f"v_add_f32 v{194+2*k}, v{194+2*k}, v{195+2*k}")
    A("v_add_f32 v194, v194, v196"); A("v_add_f32 v198, v198, v200")
    A("v_add_f32 v22, v22, v194"); A("v_add_f32 v22, v22, v198")
    A("s_waitcnt lgkmcnt(0)")
    A("ds_write_b32 v191, v192 offset:64")
    pv([(24, 64), (26, 96)])
    c_adv()
    A("s_cmp_lt_u32 s40, s79")
    A("s_cbranch_scc1 L_cv")
    c_wait("L_cc", True)
    for a in range(4):
        A(f"v_add_u32 v{7+a}, s41, v{2+a}")
    A("v_add_u32 v11, s41, v6")
    if cfg.EARLYK:
        k_reads(64, 0)
        if cfg.SVC:
            A("s_cmp_eq_u32 s44, 0")
            A("s_cbranch_scc1 L_c_first")
            A("L_cc_comp:")
        for t in range(8):
            A(f"s_waitcnt lgkmcnt({7 - t})")
            A(f"v_mfma_f32_16x16x32_bf16 v[128:131], v[{64+4*t}:{67+4*t}], v[{32+4*t}:{35+4*t}], {'0' if t == 0 else 'v[128:131]'}")
        A("s_nop 7")
    else:
        k_reads(64, 0); v_reads(96, 8192)
        A("s_waitcnt lgkmcnt(8)")
        for t in range(8):
            A(f"v_mfma_f32_16x16x32_bf16 v[128:131], v[{64+4*t}:{67+4*t}], v[{32+4*t}:{35+4*t}], {'0' if t == 0 else 'v[128:131]'}")
        A("s_waitcnt lgkmcnt(0)")
        A("ds_write_b32 v191, v192 offset:64")
        c_adv()
        A("s_nop 0")
    A("v_cvt_pk_bf16_f32 v24, v128, v129")
    A("v_cvt_pk_bf16_f32 v25, v130, v131")
    A("v_lshlrev_b32 v26, 16, v24")
    A("v_and_b32 v27, 0xffff0000, v24")
    A("v_lshlrev_b32 v28, 16, v25")
    A("v_and_b32 v29, 0xffff0000, v25")
    A("v_max3_f32 v30, v26, v27, v28")
    A("v_max_f32 v30, v30, v29")
    A("v_cmp_gt_f32 vcc, v30, v20")
    A("s_cbranch_vccnz L_cc_resc")
    A("L_cc_resc_ret:")
    for k in range(4):
        A(f"v_fma_f32 v{26+k}, v{26+k}, s54, -v21")
    for k in range(4):
        A(f"v_exp_f32 v{26+k}, v{26+k}")
    A("s_nop 0")
    A("v_cvt_pk_bf16_f32 v24, v26, v27")
    A("v_cvt_pk_bf16_f32 v25, v28, v29")
    A("v_add_f32 v30, v26, v27")
    A("v_add_f32 v31, v28, v29")
    A("v_add_f32 v22, v22, v30")
    A("v_add_f32 v22, v22, v31")
    if cfg.EARLYK:
        A("L_cc_w2:")
        A("s_and_b32 s46, s43, 0x7fff")
        A("s_cmp_gt_u32 s46, s40")
        A("s_cbranch_scc1 L_cc_w2go")
        A("ds_read_b32 v23, v188")
        A("s_waitcnt lgkmcnt(0)")
        A("v_readfirstlane_b32 s43, v23")
        spin_tail("L_cc_w2", sleep=0)
        A("L_cc_w2go:")
        v_reads(96, 8192)
        for n in range(4):
            for k in range(4):
                A(f"v_perm_b32 v{140+4*n+k}, v{24 + n // 2}, v{24 + n // 2}, v{12 + 4 * (n % 2) + k}")
        c_adv()
        for n in range(4):
            for h in range(2):
                A(f"s_waitcnt lgkmcnt({7 - 2*n - h})")
                A(f"v_mfma_f32_16x16x32_bf16 v[{132+4*h}:{135+4*h}], v[{96+8*n+4*h}:{99+8*n+4*h}], v[{140+4*n}:{143+4*n}], v[{132+4*h}:{135+4*h}]")
        A("ds_write_b32 v191, v192 offset:64")
    else:
        pv([(24, 96)])
    A("s_lshr_b32 s46, s43, 16")
    A("s_sub_u32 s46, s46, 1")
    A("s_cmp_ge_u32 s46, s40")
    A("s_cbranch_scc1 L_cc")
    A("L_c_tail:")
    stamp(3)
    A(f"s_add_u32 s47, s41, {(R - C)*16384}")
    A(f"s_sub_u32 s48, s47, {R*16384}")
    A(f"s_cmp_ge_u32 s47, {R*16384}")
    A("s_cselect_b32 s47, s48, s47")
    A("v_lshl_add_u32 v25, v1, 4, s47")
    A("v_lshl_add_u32 v26, v1, 3, s47")
    A("v_mov_b32 v28, v21"); A("v_mov_b32 v29, v22")
    A("ds_write_b64 v26, v[28:29] offset:2048")
    A("ds_write_b128 v25, v[132:135]")
    A("ds_write_b128 v25, v[136:139] offset:1024")
    A("s_cmp_lt_u32 s55, 4")
    A("s_cbranch_scc1 L_p_wave")
    A("s_sub_u32 s56, s55, 4")
    A("s_lshr_b32 s46, s43, 16")
    A("s_sub_u32 s46, s40, s46")
    A("s_lshl_b32 s46, s46, 14")
    A("s_sub_i32 s46, s41, s46")
    for j in range(6):
        A("s_sub_i32 s46, s46, 16384")
        A(f"s_add_i32 s47, s46, {R*16384}")
        A("s_cmp_lt_i32 s46, 0")
        A("s_cselect_b32 s46, s47, s46")
        A(f"v_lshl_add_u32 v{70+j}, v1, 3, s46")
    A("s_lshl_b32 s47, s56, 10")
    A("v_lshl_add_u32 v27, v1, 3, s47")
    for j in range(6):
        A(f"v_add_u32 v{76+j}, v{70+j}, v27")
    if not cfg.HAL:
        A("v_lshrrev_b32 v26, 3, v189"); A("v_lshlrev_b32 v26, 14, v26"); A("v_lshl_add_u32 v26, v190, 11, v26")
        A("v_and_b32 v27, 7, v189"); A("v_lshl_add_u32 v26, v27, 4, v26")
        A("s_lshl_b32 s46, s50, 15"); A("s_lshl_b32 s47, s56, 13"); A("s_add_u32 s46, s46, s47")
        A("s_lshl_b32 s47, s51, 7"); A("s_add_u32 s46, s46, s47"); A(f"s_add_u32 s46, s46, {WS_HA}")
    else:
        A("v_lshrrev_b32 v26, 3, v189"); A("v_lshlrev_b32 v26, 9, v26"); A("v_lshl_add_u32 v26, v190, 7, v26")
        A("v_and_b32 v27, 7, v189"); A("v_lshl_add_u32 v26, v27, 4, v26")
        A(f"s_mul_i32 s46, s2, {HBS}"); A(f"s_add_u32 s49, s46, {WS_HA2 + 2048}")
        A("s_lshl_b32 s47, s56, 10"); A("s_add_u32 s46, s46, s47"); A(f"s_add_u32 s46, s46, {WS_HA2}")
    A("s_waitcnt lgkmcnt(0)")
    A("s_barrier")
    for j in range(6):
        A(f"ds_read_b64 v[{84+2*j}:{85+2*j}], v{70+j} offset:2048")
    for j in range(6):
        A(f"ds_read_b128 v[{96+4*j}:{99+4*j}], v{76+j}")
    A("s_waitcnt lgkmcnt(6)")
    A("v_max3_f32 v28, v84, v86, v88")
    A("v_max3_f32 v28, v28, v90, v92")
    A("v_max_f32 v28, v28, v94")
    for j in range(6):
        A(f"v_sub_f32 v{84+2*j}, v{84+2*j}, v28")
    for j in range(6):
        A(f"v_exp_f32 v{84+2*j}, v{84+2*j}")
    A("s_waitcnt lgkmcnt(0)")
    for k in range(4):
        A(f"v_mul_f32 v{120+k}, v84, v{96+k}")
    for j in range(1, 6):
        for k in range(4):
            A(f"v_fmac_f32 v{120+k}, v{84+2*j}, v{96+4*j+k}")
    for k in range(4):
        tag(120 + k)
    A("buffer_store_dwordx4 v[120:123], v26, s[36:39], s46 offen sc1")
    A("s_cmp_eq_u32 s56, 0")
    A("s_cbranch_scc1 L_x0")
    A("v_mul_f32 v29, v84, v85")
    for j in range(1, 6):
        A(f"v_fmac_f32 v29, v{84+2*j}, v{85+2*j}")
    A(f"v_lshlrev_b32 v27, {1 if cfg.HAL else 8}, v189")
    A("v_mov_b32 v24, v29")
    A("s_lshl_b32 s48, s50, 12"); A("s_lshl_b32 s47, s51, 7")
    A("v_permlane16_swap_b32 v29, v24")
    A("v_add_f32 v29, v29, v24")
    A("v_mov_b32 v24, v29")
    A("s_add_u32 s48, s48, s47"); A(f"s_add_u32 s48, s48, {WS_HM}")
    A("v_permlane32_swap_b32 v29, v24")
    A("v_add_f32 v29, v29, v24")
    A("v_mov_b32 v30, s58")
    A("v_mov_b32 v31, s58")
    A("s_mov_b64 exec, 0x101")
    A(f"buffer_store_dwordx4 v[28:31], v27, s[36:39], {'s49' if cfg.HAL else 's48'} offen sc1")
    A("s_mov_b64 exec, -1")
    if cfg.WOLATE == 4:
        A("s_barrier")
    stamp(4)
    A("s_endpgm")
    A("L_x0:")
    if cfg.WOLATE == 4:
        A("s_barrier")
    stamp(4)
    if not cfg.HAL:
        A("v_lshlrev_b32 v24, 7, v189")
        A("v_lshl_add_u32 v23, v190, 4, v24")
        A("s_lshl_b32 s46, s2, 11"); A(f"s_add_u32 s46, s46, {WS_HA}")
        A("s_lshl_b32 s48, s50, 12"); A("s_lshr_b32 s47, s51, 3"); A("s_lshl_b32 s47, s47, 11"); A("s_add_u32 s48, s48, s47"); A(f"s_add_u32 s48, s48, {WS_HM}")
    else:
        A(f"v_mul_u32_u24 v24, {HBS}, v189")
        A("v_lshl_add_u32 v23, v190, 4, v24")
        A(f"s_mul_i32 s48, s50, {16 * HBS}"); A(f"s_add_u32 s48, s48, {WS_HA2}")
        A("s_and_b32 s46, s51, 3"); A("s_lshl_b32 s46, s46, 7"); A("s_add_u32 s46, s46, s48")
        A("s_and_b32 s47, s51, 4"); A("s_lshl_b32 s47, s47, 8"); A("s_add_u32 s46, s46, s47")
        A("s_and_b32 s47, s51, 8"); A("s_lshl_b32 s49, s47, 6"); A("s_add_u32 s46, s46, s49")
        A("s_lshl_b32 s47, s47, 1"); A("s_add_u32 s48, s48, s47"); A("s_add_u32 s48, s48, 2048")
    A("v_lshl_add_u32 v27, v190, 4, v188")
    if cfg.BAR3:
        A("s_waitcnt vmcnt(0)")
    stamp(5)
    def issA():
        A("buffer_load_dwordx4 v[64:67], v23, s[36:39], s46 offen sc1")
        A("buffer_load_dwordx4 v[68:71], v23, s[36:39], s46 offen offset:64 sc1")
        A("buffer_load_dwordx4 v[72:75], v24, s[36:39], s48 offen sc1")
    poll("L_p_poll", issA, 3, lambda: tagcheck(range(64, 72), 25, full=(74, 75)), "L_p_go")
    A("L_p_go:")
    A("s_mov_b64 exec, -1")
    stamp(6)
    A("v_mov_b32 v26, v72")
    for sh in (8, 4, 2, 1):
        A("s_nop 1")
        A(f"v_max_f32_dpp v26, v26, v26 row_ror:{sh} row_mask:0xf bank_mask:0xf")
    A("v_sub_f32 v26, v72, v26")
    A("v_exp_f32 v26, v26")
    A("s_nop 0")
    A("v_mul_f32 v88, v73, v26")
    for k in range(8):
        A(f"v_mul_f32 v{80+k}, v{64+k}, v26")
    for sh in (8, 4, 2, 1):
        for k in (8, 0, 1, 2, 3, 4, 5, 6, 7):
            A(f"v_add_f32_dpp v{80+k}, v{80+k}, v{80+k} row_ror:{sh} row_mask:0xf bank_mask:0xf")
            if sh == 1 and k == 2:
                A("v_rcp_f32 v88, v88")
    for k in range(8):
        A(f"v_mul_f32 v{80+k}, v{80+k}, v88")
    for k in range(4):
        A(f"v_cvt_pk_bf16_f32 v{76+k}, v{80+2*k}, v{81+2*k}")
    A("s_mov_b32 exec_lo, 0x00010001"); A("s_mov_b32 exec_hi, 0x00010001")
    A("ds_write_b128 v27, v[76:79] offset:160")
    A("s_waitcnt lgkmcnt(0)")
    A("s_barrier")
    A("s_endpgm")
    A("L_p_wave:")
    if cfg.WOLATE == 1:
        wo_loads(0, 0, prep=False)
    A("v_lshl_add_u32 v27, v190, 4, v188")
    if cfg.HBL:
        A("v_lshlrev_b32 v23, 14, v190")
        A("v_lshl_add_u32 v23, v189, 4, v23")
        A("s_lshl_b32 s46, s52, 18"); A("s_lshl_b32 s47, s55, 16"); A("s_add_u32 s46, s46, s47")
        A("s_and_b32 s47, s2, 127"); A("s_lshl_b32 s47, s47, 7"); A("s_add_u32 s46, s46, s47"); A(f"s_add_u32 s46, s46, {WS_HB}")
    else:
        A("v_lshlrev_b32 v23, 7, v190")
        A("v_lshl_add_u32 v23, v189, 4, v23")
        A("s_lshl_b32 s46, s2, 11"); A("s_lshl_b32 s47, s55, 9"); A("s_add_u32 s46, s46, s47"); A(f"s_add_u32 s46, s46, {WS_HB}")
    A("s_cmp_eq_u32 s55, 3")
    A("s_cselect_b32 s47, 0, 0x00ff00ff")
    if cfg.WOLATE == 3:
        A("s_lshr_b32 s48, s43, 16"); A("s_sub_u32 s48, s40, s48")
        A(f"s_cmp_ge_u32 s48, {5 - (cfg.WOLATE - 3)}")
        A("s_cbranch_scc1 L_p_late")
        wo_loads(0, 0, prep=False)
        A("s_waitcnt lgkmcnt(0)")
        A("s_barrier")
        A("s_branch L_p_join")
        A("L_p_late:")
        A("s_waitcnt lgkmcnt(0)")
        A("s_barrier")
        wo_loads(0, 0, prep=False)
        A("L_p_join:")
    else:
        A("s_waitcnt lgkmcnt(0)")
        A("s_barrier")
    if cfg.WOLATE == 4:
        A("s_barrier")
    if cfg.WOLATE in (2, 4):
        wo_loads(0, 0, prep=False)
    A("s_waitcnt vmcnt(0)")
    A("s_barrier")
    A("ds_read_b128 v[76:79], v27 offset:160")
    stamp(5)
    A("s_waitcnt lgkmcnt(0)")
    for t in range(9):
        if t < 8:
            src = 76 + t // 2; sel = 12 + 4 * (t % 2)
            for k in range(4):
                A(f"v_perm_b32 v{96+4*t+k}, v{src}, v{src}, v{sel+k}")
        else:
            A("s_nop 0")
        if t >= 1:
            u = t - 1
            A(f"v_mfma_f32_16x16x32_bf16 v[128:131], v[{156+4*u}:{159+4*u}], v[{96+4*u}:{99+4*u}], {'0' if u == 0 else 'v[128:131]'}")
    A("s_mov_b32 exec_lo, 0x00ff00ff"); A("s_mov_b32 exec_hi, s47")
    A("s_nop 5")
    for k in range(4):
        tag(128 + k)
    A("buffer_store_dwordx4 v[128:131], v23, s[36:39], s46 offen sc1")
    A("s_mov_b64 exec, -1")
    stamp(6)
    A("s_waitcnt vmcnt(0)")
    A("s_endpgm")
    resc("L_cv_resc")
    resc("L_cc_resc")
    A("L_c_first:")
    A("L_c_qwait:")
    A("ds_read_b32 v23, v188 offset:4")
    A("s_waitcnt lgkmcnt(0)")
    A("v_readfirstlane_b32 s46, v23")
    A("s_cmp_lg_u32 s46, 0")
    A("s_cbranch_scc1 L_c_qgo")
    spin_tail("L_c_qwait")
    A("L_c_qgo:")
    A("v_lshrrev_b32 v23, 3, v189")
    A("v_lshlrev_b32 v23, 9, v23")
    A("v_lshl_add_u32 v23, v190, 4, v23")
    A(f"v_add_u32 v23, {LD['Q']}, v23")
    for t in range(8):
        A(f"ds_read_b128 v[{32+4*t}:{35+4*t}], v23 offset:{64*t}")
    A("s_mov_b32 s44, 1")
    A("s_waitcnt lgkmcnt(0)")
    stamp(2)
    if cfg.SVC:
        assert cfg.EARLYK
        A("s_cmp_eq_u32 s78, 0")
        A("s_cbranch_scc1 L_cc_comp")
    A("s_branch L_ck_comp")

    A("L_helper:")
    srd(28, 4, 1792)
    srd(32, 10, 16 if cfg.NOWQ else 448 * 8192)
    A("v_lshrrev_b32 v20, 5, v1")
    A("v_and_b32 v21, 31, v1")
    A("v_mul_u32_u24 v22, 896, v20")
    A("v_lshl_add_u32 v22, v21, 2, v22")
    for m in range(7):
        A(f"buffer_load_dword v{24+m}, v22, s[28:31], 0 offen offset:{128*m}")
    if cfg.QV == 1:
        A("s_and_b32 s56, s51, 3"); A("s_lshr_b32 s57, s51, 2")
        A(f"v_mul_u32_u24 v23, {28*8192}, v11")
        A("v_lshl_add_u32 v23, v10, 4, v23")
        A(f"s_mul_i32 s46, s57, {112*8192}"); A("s_lshl_b32 s47, s53, 10"); A("s_add_u32 s46, s46, s47")
        A("s_lshl_b32 s47, s56, 8"); A("s_add_u32 s46, s46, s47")
    else:
        A("s_and_b32 s56, s51, 7"); A("s_lshl_b32 s56, s56, 1"); A("s_lshr_b32 s57, s51, 3"); A("s_add_u32 s56, s56, s57")
        A("v_lshrrev_b32 v23, 2, v1"); A(f"v_mul_u32_u24 v23, {28*8192}, v23")
        A("v_and_b32 v31, 3, v1"); A("v_lshl_add_u32 v23, v31, 4, v23")
        A("s_lshl_b32 s46, s53, 10"); A("s_lshl_b32 s47, s56, 6"); A("s_add_u32 s46, s46, s47")
    for t in range(28):
        A(f"buffer_load_dwordx4 v[{64+4*t}:{67+4*t}], v23, s[32:35], s46 offen nt")
        if t < 27:
            A("s_add_u32 s46, s46, 8192")
    A(f"s_mul_i32 s46, s50, {PCS}"); A(f"s_add_u32 s46, s46, {WS_PC}")
    A("s_cmp_eq_u32 s51, 0"); A(f"s_cselect_b32 s46, s46, {WS_SIZE}")
    A("v_mov_b32 v186, 0")
    A("s_mov_b64 exec, 1")
    A("buffer_store_dword v186, v186, s[36:39], s46 offen sc1")
    A("s_mov_b64 exec, -1")
    A("s_waitcnt lgkmcnt(0)")
    A("s_add_u32 s58, s58, 1")
    A("s_and_b32 s46, s58, s59")
    A(f"v_mov_b32 v{TG}, s46")
    NAFTER = 28 + 1
    stamp(0)
    ND = 1 if cfg.DIAG == 1 else 0
    A(f"s_waitcnt vmcnt({NAFTER + ND})")
    for m in range(7):
        A(f"v_lshlrev_b32 v{32+2*m}, 16, v{24+m}")
        A(f"v_and_b32 v{33+2*m}, 0xffff0000, v{24+m}")
    def red32(v, t):
        for sh in (8, 4, 2, 1):
            A("s_nop 1")
            A(f"v_add_f32_dpp v{v}, v{v}, v{v} row_ror:{sh} row_mask:0xf bank_mask:0xf")
        A(f"v_mov_b32 v{t}, v{v}")
        A("s_nop 1")
        A(f"v_permlane16_swap_b32 v{v}, v{t}")
        A(f"v_add_f32 v{v}, v{v}, v{t}")
    A("v_add_f32 v46, v32, v33")
    for k in range(2, 14):
        A(f"v_add_f32 v46, v46, v{32+k}")
    red32(46, 47)
    A(f"v_mul_f32 v46, {hex(f2u(1.0/448))}, v46")
    A("v_sub_f32 v48, v32, v46")
    A("v_mul_f32 v47, v48, v48")
    for k in range(1, 14):
        A(f"v_sub_f32 v48, v{32+k}, v46")
        A("v_fmac_f32 v47, v48, v48")
    red32(47, 48)
    A(f"v_mul_f32 v47, {hex(f2u(1.0/448))}, v47")
    A("v_cvt_pk_bf16_f32 v48, v46, v47")
    A("v_lshlrev_b32 v46, 16, v48")
    A("v_and_b32 v47, 0xffff0000, v48")
    A(f"v_add_f32 v47, {hex(f2u(1e-5))}, v47")
    A("v_cvt_pk_bf16_f32 v47, v47, v47")
    A("v_lshlrev_b32 v47, 16, v47")
    A("v_sqrt_f32 v47, v47")
    A("s_nop 0")
    A("v_cvt_pk_bf16_f32 v47, v47, v47")
    A("v_lshlrev_b32 v47, 16, v47")
    A("v_rcp_f32 v47, v47")
    for k in range(14):
        A(f"v_sub_f32 v{32+k}, v{32+k}, v46")
    for m in range(7):
        A(f"v_cvt_pk_bf16_f32 v{24+m}, v{32+2*m}, v{33+2*m}")
    for m in range(7):
        A(f"v_lshlrev_b32 v{32+2*m}, 16, v{24+m}")
        A(f"v_and_b32 v{33+2*m}, 0xffff0000, v{24+m}")
    for k in range(14):
        A(f"v_mul_f32 v{32+k}, v{32+k}, v47")
    for m in range(7):
        A(f"v_cvt_pk_bf16_f32 v{24+m}, v{32+2*m}, v{33+2*m}")
    A(f"v_add_u32 v22, {LD['XN']}, v22")
    for m in range(7):
        A(f"ds_write_b32 v22, v{24+m} offset:{128*m}")
    if cfg.QV == 1:
        A("s_mul_i32 s46, s52, 896"); A("s_mul_i32 s47, s57, 224"); A("s_add_u32 s46, s46, s47"); A(f"s_add_u32 s46, s46, {LD['XN']}")
        A("v_mul_u32_u24 v22, 56, v11")
        A("v_add_u32 v22, s46, v22")
        A("s_waitcnt lgkmcnt(0)")
        for m in range(7):
            A(f"ds_read_b64 v[{32+2*m}:{33+2*m}], v22 offset:{8*m}")
        A("s_waitcnt lgkmcnt(0)")
        for t in range(28):
            src = 32 + t // 2; sel = 12 + 4 * (t % 2); bb = 48 + 4 * (t % 2)
            for k in range(4):
                A(f"v_perm_b32 v{bb+k}, v{src}, v{src}, v{sel+k}")
            A(f"s_waitcnt vmcnt({27 - t + 1 + ND})")
            A("s_nop 0")
            A(f"v_mfma_f32_16x16x32_bf16 v[56:59], v[{64+4*t}:{67+4*t}], v[{bb}:{bb+3}], {'0' if t == 0 else 'v[56:59]'}")
        A("v_lshlrev_b32 v23, 7, v11")
        A("v_lshl_add_u32 v23, v10, 4, v23")
        A("s_lshl_b32 s46, s50, 13"); A("s_lshl_b32 s47, s56, 11"); A("s_add_u32 s46, s46, s47")
        A("s_lshl_b32 s47, s57, 9"); A("s_add_u32 s46, s46, s47"); A(f"s_add_u32 s46, s46, {WS_QP}")
        A("s_waitcnt vmcnt(0)")
        for k in range(4):
            tag(56 + k)
        A("s_mov_b32 exec_lo, 0x00ff00ff"); A("s_mov_b32 exec_hi, 0x00ff00ff")
        A("buffer_store_dwordx4 v[56:59], v23, s[36:39], s46 offen sc1")
        A("s_mov_b64 exec, -1")
        stamp(1)
        A("v_lshlrev_b32 v25, 7, v1")
        A("s_lshl_b32 s46, s50, 13"); A(f"s_add_u32 s46, s46, {WS_QP}")
        A("s_add_u32 s47, s46, 4096")
        A("v_lshlrev_b32 v22, 11, v20")
        A("v_lshl_add_u32 v22, v21, 4, v22")
        A("L_h_qpoll:")
        A("buffer_load_dword v26, v25, s[36:39], s46 offen sc1")
        A("s_waitcnt vmcnt(0)")
        tagcheck([26], 27)
        A("s_cbranch_vccz L_h_qgo")
        A("L_h_qretry:")
        spin_tail("L_h_qpoll", sleep=cfg.QSLEEP)
        A("L_h_qgo:")
        for z in range(2):
            for rs in range(4):
                A(f"buffer_load_dwordx4 v[{64+16*z+4*rs}:{67+16*z+4*rs}], v22, s[36:39], s{46+z} offen offset:{rs*512} sc1")
        A("s_waitcnt vmcnt(0)")
        tagcheck(range(64, 96), 27)
        A("s_cbranch_vccnz L_h_qretry")
        A("v_lshrrev_b32 v23, 3, v21")
        A("v_lshlrev_b32 v23, 6, v23")
        A("v_lshl_add_u32 v23, v20, 8, v23")
        A("v_lshl_add_u32 v23, v3, 1, v23")
        A(f"v_add_u32 v23, {LD['Q']}, v23")
        for z in range(2):
            b0 = 64 + 16 * z
            for k in range(4):
                A(f"v_add_f32 v{b0+k}, v{b0+k}, v{b0+4+k}")
                A(f"v_add_f32 v{b0+8+k}, v{b0+8+k}, v{b0+12+k}")
            for k in range(4):
                A(f"v_add_f32 v{b0+k}, v{b0+k}, v{b0+8+k}")
            A(f"v_cvt_pk_bf16_f32 v{b0}, v{b0}, v{b0+1}")
            A(f"v_cvt_pk_bf16_f32 v{b0+1}, v{b0+2}, v{b0+3}")
            A(f"ds_write_b16 v23, v{b0} offset:{z*512}")
            A(f"ds_write_b16_d16_hi v23, v{b0} offset:{z*512+16}")
            A(f"ds_write_b16 v23, v{b0+1} offset:{z*512+32}")
            A(f"ds_write_b16_d16_hi v23, v{b0+1} offset:{z*512+48}")
    else:
        A("s_mul_i32 s46, s52, 896"); A(f"s_add_u32 s46, s46, {LD['XN']}")
        A("v_lshrrev_b32 v22, 3, v10"); A("v_lshl_add_u32 v22, v11, 2, v22"); A("v_mul_u32_u24 v22, 56, v22")
        A("v_add_u32 v22, s46, v22")
        A("s_waitcnt lgkmcnt(0)")
        for m in range(7):
            A(f"ds_read_b64 v[{32+2*m}:{33+2*m}], v22 offset:{8*m}")
        for m in range(7):
            A(f"ds_read_b64 v[{176+2*m}:{177+2*m}], v22 offset:{112+8*m}")
        A("s_waitcnt lgkmcnt(0)")
        for t in range(28):
            sel = 12 + 4 * (t % 2)
            for k in range(4):
                A(f"v_perm_b32 v{48+k}, v{32+t//2}, v{32+t//2}, v{sel+k}")
            for k in range(4):
                A(f"v_perm_b32 v{52+k}, v{176+t//2}, v{176+t//2}, v{sel+k}")
            A(f"s_waitcnt vmcnt({27 - t + 1 + ND})")
            A(f"v_mfma_f32_16x16x32_bf16 v[56:59], v[{64+4*t}:{67+4*t}], v[48:51], {'0' if t == 0 else 'v[56:59]'}")
            A(f"v_mfma_f32_16x16x32_bf16 v[60:63], v[{64+4*t}:{67+4*t}], v[52:55], {'0' if t == 0 else 'v[60:63]'}")
        A("v_lshlrev_b32 v23, 4, v1")
        A("s_lshl_b32 s46, s50, 11"); A(f"s_add_u32 s46, s46, {WS_QP}")
        A("s_lshl_b32 s47, s56, 7"); A("s_add_u32 s47, s47, s46")
        A("s_mov_b32 exec_lo, 0")
        A("s_nop 2")
        for k in range(4):
            A(f"v_mov_b32 v{56+k}, v{60+k}")
        A("s_mov_b32 exec_lo, 0x00ffff00"); A("s_mov_b32 exec_hi, 0x00ffff00")
        for k in range(4):
            A(f"v_mov_b32 v{56+k}, 0")
        A("s_mov_b64 exec, -1")
        for k in range(4):
            A(f"v_add_f32_dpp v{56+k}, v{56+k}, v{56+k} row_ror:8 row_mask:0xf bank_mask:0xf")
        for sw in ("16", "32"):
            for k in range(4):
                A(f"v_mov_b32 v{60+k}, v{56+k}")
            A("s_nop 0")
            for k in range(4):
                A(f"v_permlane{sw}_swap_b32 v{56+k}, v{60+k}")
            for k in range(4):
                A(f"v_add_f32 v{56+k}, v{56+k}, v{60+k}")
        for k in range(4):
            A(f"v_cvt_pk_bf16_f32 v{56+k}, 0, v{56+k}")
        for k in range(4):
            A(f"v_or_b32 v{56+k}, v{56+k}, v{TG}")
        A("s_waitcnt vmcnt(0)")
        A("s_mov_b64 exec, 0xff")
        A("buffer_store_dwordx4 v[56:59], v23, s[36:39], s47 offen sc1")
        A("s_mov_b64 exec, -1")
        stamp(1)
        A("v_lshrrev_b32 v22, 3, v1"); A("v_lshlrev_b32 v22, 6, v22"); A("v_lshl_add_u32 v22, v3, 1, v22")
        A(f"v_add_u32 v22, {LD['Q']}, v22")
        A("s_waitcnt vmcnt(0)")
        A("L_h_qpoll:")
        A("buffer_load_dwordx4 v[64:67], v23, s[36:39], s46 offen sc1")
        A("buffer_load_dwordx4 v[68:71], v23, s[36:39], s46 offen offset:1024 sc1")
        A("s_waitcnt vmcnt(0)")
        tagcheck(range(64, 72), 27)
        A("s_cbranch_vccz L_h_qgo")
        spin_tail("L_h_qpoll", sleep=cfg.QSLEEP)
        A("L_h_qgo:")
        for z in range(2):
            for r in range(4):
                A(f"ds_write_b16_d16_hi v22, v{64+4*z+r} offset:{z*512+16*r}")
    A(f"v_mov_b32 v24, {LD['FLAGS']}"); A("v_mov_b32 v25, 1")
    A("s_waitcnt lgkmcnt(0)")
    A("ds_write_b32 v24, v25 offset:4")
    stamp(2)
    A("s_mov_b32 s56, s50")
    A("s_cmp_lg_u32 s51, s50")
    A("s_cbranch_scc1 L_h_noffn")
    FB = cfg.FB; NFB = 1792 // FB; RS = FB // 4
    if NFB < 16:
        A(f"s_cmp_ge_u32 s50, {NFB}")
        A("s_cbranch_scc1 L_h_noffn")
    srd(28, 16, 16 if cfg.NOFFN in (1, 3) else 448 * 3584)
    srd(32, 18, 16 if cfg.NOFFN in (1, 3) else 448 * 3584)
    A(f"v_mul_u32_u24 v23, {112*3584}, v11")
    A("v_lshl_add_u32 v23, v10, 4, v23")
    A(f"v_cmp_le_u32 vcc, {FB // 8}, v10")
    A("v_bfrev_b32 v27, 2")
    A(f"s_mul_i32 s46, s56, {FB * 2}")
    A("v_cndmask_b32 v23, v23, v27, vcc")
    A("v_lshrrev_b32 v22, 3, v10")
    A("v_mul_u32_u24 v22, 896, v22")
    A("v_mul_u32_u24 v24, 224, v11")
    A(f"v_add3_u32 v22, v22, v24, 0")
    A(f"v_add_u32 v22, {LD['XN']}, v22")
    for k in range(8):
        A(f"v_mov_b32 v{56+k}, 0")
    def ffn_loads(t):
        A(f"buffer_load_dwordx4 v[{64+8*t}:{67+8*t}], v23, s[28:31], s46 offen nt")
        A(f"buffer_load_dwordx4 v[{68+8*t}:{71+8*t}], v23, s[32:35], s46 offen nt")
        A("s_add_u32 s46, s46, 3584")
    A("s_waitcnt vmcnt(0)")
    def fpause(lbl, units):
        if not units:
            return
        A(f"v_mov_b32 v30, {LD['FLAGS']}")
        A(f"{lbl}:")
        A("ds_read_b32 v29, v30")
        A("s_waitcnt lgkmcnt(0)")
        A("v_readfirstlane_b32 s75, v29")
        A("s_and_b32 s75, s75, 0x7fff")
        A(f"s_cmp_ge_u32 s75, {units}")
        A(f"s_cbranch_scc1 {lbl}_go")
        spin_tail(lbl, sleep=8)
        A(f"{lbl}_go:")
    fpause('L_h_fp1', cfg.FP1)
    FD = cfg.FD; DD = FD // 2; YA = 196
    for t in range(FD):
        ffn_loads(t)
    A(f"s_mov_b32 s57, {112 // FD - 1}")
    def ffn_iter(reissue):
        for z in range(FD // 8):
            A(f"ds_read_b128 v[{32+4*z}:{35+4*z}], v22 offset:{16*z}")
        A(f"v_add_u32 v22, {2*FD}, v22")
        A("s_waitcnt lgkmcnt(0)")
        for t in range(FD):
            src = 32 + t // 2; sel = 12 + 4 * (t % 2); bb = 48 + 4 * (t % 2)
            for k in range(4):
                A(f"v_perm_b32 v{bb+k}, v{src}, v{src}, v{sel+k}")
            A(f"s_waitcnt vmcnt({2*FD-2 if reissue else 2*FD-2 - 2*t})")
            A("s_nop 0")
            A(f"v_mfma_f32_16x16x32_bf16 v[56:59], v[{64+8*t}:{67+8*t}], v[{bb}:{bb+3}], v[56:59]")
            A(f"v_mfma_f32_16x16x32_bf16 v[60:63], v[{68+8*t}:{71+8*t}], v[{bb}:{bb+3}], v[60:63]")
            if reissue:
                ffn_loads(t)
    A("L_h_f1:")
    ffn_iter(True)
    A("s_sub_u32 s57, s57, 1"); A("s_cmp_lg_u32 s57, 0"); A("s_cbranch_scc1 L_h_f1")
    ffn_iter(False)
    srd(28, 20, 16 if cfg.NOFFN in (1, 2) else 1792 * 896)
    A(f"v_mul_u32_u24 v23, {RS*896}, v11")
    A("v_lshl_add_u32 v23, v10, 4, v23")
    A("v_cmp_le_u32 vcc, 8, v10")
    A(f"s_mul_i32 s46, s56, {FB*896}")
    A("s_nop 0")
    A("v_cndmask_b32 v26, v23, v27, vcc")
    def dn_loads(t):
        for nb in range(4):
            A(f"buffer_load_dwordx4 v[{64+16*t+4*nb}:{67+16*t+4*nb}], v{26 if nb == 3 else 23}, s[28:31], s46 offen offset:{nb*256} nt")
        A("s_add_u32 s46, s46, 896")
    A("s_nop 4")
    fpause('L_h_fp2', cfg.FP2)
    for t in range(DD):
        dn_loads(t)
    A("v_cvt_pk_bf16_f32 v32, v56, v57"); A("v_cvt_pk_bf16_f32 v33, v58, v59")
    A("v_cvt_pk_bf16_f32 v34, v60, v61"); A("v_cvt_pk_bf16_f32 v35, v62, v63")
    for k in range(4):
        A(f"v_lshlrev_b32 v{36+2*k}, 16, v{32+k}")
        A(f"v_and_b32 v{37+2*k}, 0xffff0000, v{32+k}")
    K0 = -2.0 * math.sqrt(2.0 / math.pi) * math.log2(math.e)
    A(f"s_mov_b32 s71, {hex(f2u(0.044715))}")
    for k in range(4):
        A(f"v_mul_f32 v{44+k}, v{36+k}, v{36+k}")
        A(f"v_mul_f32 v{44+k}, v{44+k}, v{36+k}")
        A(f"v_fma_f32 v{44+k}, v{44+k}, s71, v{36+k}")
        A(f"v_mul_f32 v{44+k}, {hex(f2u(K0))}, v{44+k}")
    for k in range(4):
        A(f"v_exp_f32 v{44+k}, v{44+k}")
    A("s_nop 0")
    for k in range(4):
        A(f"v_add_f32 v{44+k}, 1.0, v{44+k}")
    for k in range(4):
        A(f"v_rcp_f32 v{44+k}, v{44+k}")
    A("s_nop 0")
    for k in range(4):
        A(f"v_mul_f32 v{44+k}, v{44+k}, v{36+k}")
    A("v_cvt_pk_bf16_f32 v32, v44, v45"); A("v_cvt_pk_bf16_f32 v33, v46, v47")
    for k in range(2):
        A(f"v_lshlrev_b32 v{44+2*k}, 16, v{32+k}")
        A(f"v_and_b32 v{45+2*k}, 0xffff0000, v{32+k}")
    for k in range(4):
        A(f"v_mul_f32 v{44+k}, v{44+k}, v{40+k}")
    A("v_cvt_pk_bf16_f32 v32, v44, v45"); A("v_cvt_pk_bf16_f32 v33, v46, v47")
    A("v_lshrrev_b32 v22, 3, v10")
    A("v_lshlrev_b32 v22, 8, v22")
    A(f"v_add_u32 v22, {LD['H']}, v22")
    A("v_lshl_add_u32 v24, v11, 6, v22")
    A("v_lshl_add_u32 v24, v3, 1, v24")
    A(f"v_mul_u32_u24 v25, {RS*2}, v11")
    A("v_add_u32 v22, v22, v25")
    A("ds_write_b16 v24, v32")
    A("ds_write_b16_d16_hi v24, v32 offset:16")
    A("ds_write_b16 v24, v33 offset:32")
    A("ds_write_b16_d16_hi v24, v33 offset:48")
    for k in range(16):
        A(f"v_mov_b32 v{YA+k}, 0")
    A("s_waitcnt lgkmcnt(0)")
    A(f"s_mov_b32 s57, {RS // DD - 1}")
    def dn_iter(reissue):
        for z in range(DD // 4):
            A(f"ds_read_b64 v[{32+2*z}:{33+2*z}], v22 offset:{8*z}")
        A(f"v_add_u32 v22, {2*DD}, v22")
        A("s_waitcnt lgkmcnt(0)")
        for t in range(DD):
            src = 32 + t // 2; sel = 12 + 4 * (t % 2); bb = 48 + 4 * (t % 2)
            for k in range(4):
                A(f"v_perm_b32 v{bb+k}, v{src}, v{src}, v{sel+k}")
            A(f"s_waitcnt vmcnt({4*DD-4 if reissue else 4*DD-4 - 4*t})")
            A("s_nop 0")
            for nb in range(4):
                A(f"v_mfma_f32_16x16x32_bf16 v[{YA+4*nb}:{YA+3+4*nb}], v[{64+16*t+4*nb}:{67+16*t+4*nb}], v[{bb}:{bb+3}], v[{YA+4*nb}:{YA+3+4*nb}]")
            if reissue:
                dn_loads(t)
    A("L_h_f2:")
    dn_iter(True)
    A("s_sub_u32 s57, s57, 1"); A("s_cmp_lg_u32 s57, 0"); A("s_cbranch_scc1 L_h_f2")
    dn_iter(False)
    A("v_lshrrev_b32 v22, 3, v10")
    A("v_lshlrev_b32 v22, 11, v22")
    A("v_lshl_add_u32 v22, v11, 7, v22")
    A("v_lshl_add_u32 v22, v3, 4, v22")
    A("s_lshl_b32 s46, s56, 12"); A(f"s_add_u32 s46, s46, {WS_HY}")
    A("s_nop 4")
    for k in range(16):
        tag(YA + k)
    for nb in range(4):
        if nb == 3:
            A("s_mov_b32 exec_hi, 0")
        A(f"buffer_store_dwordx4 v[{YA+4*nb}:{YA+3+4*nb}], v22, s[36:39], s46 offen offset:{nb*512} sc1")
    A("s_mov_b64 exec, -1")
    stamp(3)
    A("L_h_noffn:")
    A("s_and_b32 s56, s2, 127")
    A("s_cmp_eq_u32 s2, 255")
    A("s_cbranch_scc1 L_h_epoch")
    A("s_cmp_ge_u32 s56, 28")
    A("s_cbranch_scc1 L_end")
    A("v_lshlrev_b32 v22, 12, v10")
    A("v_lshl_add_u32 v22, v11, 4, v22")
    A("s_lshl_b32 s46, s52, 11"); A("s_lshl_b32 s47, s56, 6"); A("s_add_u32 s46, s46, s47"); A(f"s_add_u32 s46, s46, {WS_HY}")
    for k in range(4):
        A(f"v_mov_b32 v{64+k}, 0")
    ym = ((1 << NFB) - 1) * 0x10001
    A(f"s_mov_b32 exec_lo, {hex(ym)}"); A(f"s_mov_b32 exec_hi, {hex(ym)}")
    A("L_h_ypoll:")
    A("buffer_load_dwordx4 v[64:67], v22, s[36:39], s46 offen sc1")
    A("s_waitcnt vmcnt(0)")
    tagcheck(range(64, 68), 27)
    A("s_cbranch_vccz L_h_ygo")
    spin_tail("L_h_ypoll", sleep=64)
    A("L_h_ygo:")
    A("s_mov_b64 exec, -1")
    A("s_lshr_b32 s47, s56, 1"); A("s_lshl_b32 s47, s47, 5"); A("s_and_b32 s48, s56, 1"); A("s_lshl_b32 s48, s48, 2")
    A("s_add_u32 s47, s47, s48"); A("s_mul_i32 s48, s52, 448"); A("s_add_u32 s47, s47, s48"); A("s_lshl_b32 s57, s47, 1")
    srd(28, 4, 1792)
    srd(32, 22, 1792)
    A("v_lshlrev_b32 v23, 1, v11")
    for rr in range(4):
        A(f"buffer_load_ushort v{72+rr}, v23, s[28:31], s57 offen offset:{16*rr}")
    A("s_waitcnt vmcnt(0)")
    for sh in (8, 4, 2, 1):
        for k in range(4):
            A(f"v_add_f32_dpp v{64+k}, v{64+k}, v{64+k} row_ror:{sh} row_mask:0xf bank_mask:0xf")
    A("v_cvt_pk_bf16_f32 v68, v64, v65"); A("v_cvt_pk_bf16_f32 v69, v66, v67")
    for k in range(2):
        A(f"v_lshlrev_b32 v{64+2*k}, 16, v{68+k}")
        A(f"v_and_b32 v{65+2*k}, 0xffff0000, v{68+k}")
    for k in range(4):
        A(f"v_mul_f32 v{68+k}, {hex(f2u(-math.log2(math.e)))}, v{64+k}")
    for k in range(4):
        A(f"v_exp_f32 v{68+k}, v{68+k}")
    A("s_nop 0")
    for k in range(4):
        A(f"v_add_f32 v{68+k}, 1.0, v{68+k}")
    for k in range(4):
        A(f"v_rcp_f32 v{68+k}, v{68+k}")
    A("s_nop 0")
    for k in range(4):
        A(f"v_mul_f32 v{64+k}, v{64+k}, v{68+k}")
    A("v_cvt_pk_bf16_f32 v68, v64, v65"); A("v_cvt_pk_bf16_f32 v69, v66, v67")
    for k in range(2):
        A(f"v_lshlrev_b32 v{76+2*k}, 16, v{68+k}")
        A(f"v_and_b32 v{77+2*k}, 0xffff0000, v{68+k}")
    for k in range(4):
        A(f"v_lshlrev_b32 v{72+k}, 16, v{72+k}")
    if not cfg.HBL:
        A("v_lshlrev_b32 v22, 11, v10")
        A("v_lshl_add_u32 v22, v11, 4, v22")
        A("s_lshl_b32 s46, s52, 18"); A("s_lshl_b32 s47, s56, 6"); A("s_add_u32 s46, s46, s47"); A(f"s_add_u32 s46, s46, {WS_HB}")
        for k in range(1, 8):
            A(f"s_add_u32 s{63+k}, s46, {k*32768}")
    else:
        A("v_lshlrev_b32 v22, 7, v10")
        A("v_lshl_add_u32 v22, v11, 4, v22")
        A("s_lshl_b32 s46, s52, 18"); A("s_lshr_b32 s47, s56, 1"); A("s_lshl_b32 s47, s47, 14"); A("s_add_u32 s46, s46, s47")
        A("s_and_b32 s47, s56, 1"); A("s_lshl_b32 s47, s47, 6"); A("s_add_u32 s46, s46, s47"); A(f"s_add_u32 s46, s46, {WS_HB}")
        for k in range(1, 8):
            A(f"s_add_u32 s{63+k}, s46, {k*2048}")
    stamp(4)
    A("s_waitcnt vmcnt(0) lgkmcnt(0)")
    A("s_barrier")
    A("s_barrier")
    if cfg.WOLATE == 4:
        A("s_barrier")
    if cfg.BAR4:
        A("s_barrier")
    def issB():
        for k in range(8):
            A(f"buffer_load_dwordx4 v[{96+4*k}:{99+4*k}], v22, s[36:39], s{46 if k == 0 else 63+k} offen sc1")
    if cfg.ICHK:
        A("L_h_bpoll:")
        issB()
        for k in range(8):
            A(f"s_waitcnt vmcnt({7-k})")
            r0 = 96 + 4 * k
            if k == 0:
                A(f"v_bitop3_b32 v24, v{r0}, v{r0+1}, v{TG} bitop3:0x7e")
            else:
                A(f"v_bitop3_b32 v25, v{r0}, v{r0+1}, v{TG} bitop3:0x7e")
            A(f"v_bitop3_b32 v26, v{r0+2}, v{r0+3}, v{TG} bitop3:0x7e")
            A("v_or_b32 v24, v24, v26" if k == 0 else "v_or3_b32 v24, v24, v25, v26")
        A("v_and_b32 v24, s59, v24")
        A("v_cmp_ne_u32 vcc, 0, v24")
        A("s_cbranch_vccz L_h_bgo")
        remask()
        spin_tail("L_h_bpoll", sleep=cfg.HSLEEP)
    else:
        poll("L_h_bpoll", issB, 8, lambda: tagcheck(range(96, 128), 24), "L_h_bgo")
    A("L_h_bgo:")
    A("s_mov_b64 exec, -1")
    stamp(5)
    for k in range(16):
        A(f"v_add_f32 v{128+k}, v{96+k}, v{112+k}")
    for step in (8, 4):
        for k in range(step):
            A(f"v_add_f32 v{128+k}, v{128+k}, v{128+step+k}")
    A("s_nop 0")
    for sh in (8, 4, 2, 1):
        for k in range(4):
            A(f"v_add_f32_dpp v{128+k}, v{128+k}, v{128+k} row_ror:{sh} row_mask:0xf bank_mask:0xf")
    A("v_cvt_pk_bf16_f32 v132, v128, v129"); A("v_cvt_pk_bf16_f32 v133, v130, v131")
    for k in range(2):
        A(f"v_lshlrev_b32 v{128+2*k}, 16, v{132+k}")
        A(f"v_and_b32 v{129+2*k}, 0xffff0000, v{132+k}")
    for k in range(4):
        A(f"v_mul_f32 v{128+k}, v{128+k}, v{76+k}")
    A("v_cvt_pk_bf16_f32 v132, v128, v129"); A("v_cvt_pk_bf16_f32 v133, v130, v131")
    for k in range(2):
        A(f"v_lshlrev_b32 v{128+2*k}, 16, v{132+k}")
        A(f"v_and_b32 v{129+2*k}, 0xffff0000, v{132+k}")
    for k in range(4):
        A(f"v_add_f32 v{128+k}, v{128+k}, v{72+k}")
    A("v_cvt_pk_bf16_f32 v132, v128, v129"); A("v_cvt_pk_bf16_f32 v133, v130, v131")
    A("s_mov_b32 exec_lo, 0x00010001"); A("s_mov_b32 exec_hi, 0x00010001")
    A("buffer_store_short v132, v23, s[32:35], s57 offen" + (" sc0 sc1 " if cfg.OSC else ""))
    A("buffer_store_short_d16_hi v132, v23, s[32:35], s57 offen offset:16" + (" sc0 sc1 " if cfg.OSC else ""))
    A("buffer_store_short v133, v23, s[32:35], s57 offen offset:32" + (" sc0 sc1 " if cfg.OSC else ""))
    A("buffer_store_short_d16_hi v133, v23, s[32:35], s57 offen offset:48" + (" sc0 sc1 " if cfg.OSC else ""))
    A("s_mov_b64 exec, -1")
    stamp(6, light=True)
    if cfg.DBGT:
        A("s_memrealtime s[94:95]")
        srd(28, 24, 256)
        A("s_waitcnt lgkmcnt(0)")
        A("s_not_b32 s92, s92")
        A("v_mov_b32 v24, s92"); A("v_mov_b32 v25, s94"); A("v_mov_b32 v26, 0")
        A("s_mov_b64 exec, 1")
        A("buffer_atomic_umax v24, v26, s[28:31], 0 offen sc1")
        A("buffer_atomic_umax v25, v26, s[28:31], 0 offen offset:4 sc1")
    A("L_end:")
    A("s_endpgm")
    A("L_h_epoch:")
    if cfg.HAL:
        A(f"v_mul_u32_u24 v22, {HBS}, v1")
        for k in range(4):
            A(f"s_mov_b32 s{64+k}, {WS_HA2 + 2048 + k*64*HBS}")
    else:
        A("v_lshlrev_b32 v22, 12, v11")
        A("v_lshl_add_u32 v22, v10, 7, v22")
        for k in range(4):
            A(f"s_mov_b32 s{64+k}, {WS_HM + k*4*4096}")
    A("s_waitcnt vmcnt(0) lgkmcnt(0)")
    A("s_barrier")
    A("s_barrier")
    if cfg.WOLATE == 4:
        A("s_barrier")
    if cfg.BAR4:
        A("s_barrier")
    A("L_h_epoll:")
    for k in range(4):
        A(f"buffer_load_dwordx2 v[{96+2*k}:{97+2*k}], v22, s[36:39], s{64+k} offen offset:8 sc1")
    A("s_waitcnt vmcnt(0)")
    tagcheck([], 24, full=range(96, 104))
    A("s_cbranch_vccz L_h_ego")
    spin_tail("L_h_epoll", sleep=8)
    A("L_h_ego:")
    A("v_mov_b32 v24, s58"); A("v_mov_b32 v25, 0")
    A("s_mov_b64 exec, 1")
    A(f"buffer_store_dword v24, v25, s[36:39], 0 offen offset:{WS_EP}" + (" sc0 sc1 " if cfg.OSC else ""))
    A("s_endpgm")
    nv = 256 if cfg.DIAG else 216
    A('.section .rodata,"a"'); A(".p2align 6"); A(f".amdhsa_kernel {NAME}")
    A.L.append(f"  .amdhsa_next_free_vgpr {nv}"); A.L.append("  .amdhsa_next_free_sgpr 102"); A.L.append(f"  .amdhsa_accum_offset {nv}")
    A.L.append("  .amdhsa_group_segment_fixed_size 0"); A.L.append("  .amdhsa_kernarg_size 96"); A.L.append("  .amdhsa_user_sgpr_count 2")
    A.L.append("  .amdhsa_user_sgpr_kernarg_segment_ptr 1"); A.L.append("  .amdhsa_system_sgpr_workgroup_id_x 1"); A(".end_amdhsa_kernel")
    FL = {0: "sc1", 1: "sc0 sc1", 2: "sc0 sc1 nt", 3: "sc1 nt"}
    for i, line in enumerate(A.L):
        if line.startswith("buffer_load") and line.endswith(" sc1"):
            A.L[i] = line[:-3] + FL[cfg.PF]
        if line.startswith("buffer_load") and line.endswith(" nt"):
            A.L[i] = line[:-2] + POL[cfg.WP]
        if line.startswith("buffer_store") and line.endswith(" sc1"):
            A.L[i] = line[:-3] + FL[cfg.SF]
    if cfg.DIAG:
        sys.stderr.write(str(codes) + "\n")
    return "\n".join(A.L) + "\n"

if __name__ == "__main__":
    cfg = Cfg()
    out = sys.argv[1]
    for kv in sys.argv[2:]:
        k, v = kv.split("=")
        setattr(cfg, k, tuple(int(x) for x in v.split("/") if x) if k == "SIZES" else int(v))
    open(out, "w").write(gen(cfg))
```

```python
import sys, math
NAME = "recurrent_scan__gqa_block_cached__glu_gated_geglu__decode_kernel"

class Cfg:
    F = 20
    R = 9
    C = 6
    DIAG = False
    SPIN = 1 << 22
    NOSWZ = 0
    NOCOMP = 0
    NOWO = 0
    NOWQ = 0
    PSLEEP = 1
    QSLEEP = 4
    BAR3 = 1
    BAR4 = 1
    MASKP = 1
    DBGT = 0
    F3 = 32
    LBAR = 0
    FD = 8
    ET = 2
    PIPE = 0
    QV = 2
    HAL = 0
    EARLYK = 1
    WOLATE = 4
    NOCF = 0
    SVC = 0
    HBL = 1
    FP1 = 0
    OSC = 0
    FP2 = 47
    ICHK = 1
    LSLEEP = 16
    PGAP = 4
    EZ = 6
    HSLEEP = 1
    PF = 0
    FB = 128
    STAT = 2
    KP = 1
    VP = 1
    WP = 1
    ROT = 5
    GS = 11
    WIN = 1
    SF = 0
    SIZES = (3, 2, 1)
    NOFFN = 0

def lds_layout(R):
    o = R * 16384
    L = {}
    L['FLAGS'] = o; o += 256
    L['Q'] = o; o += 1024
    L['XN'] = o; o += 1792
    L['H'] = o; o += 512
    L['SC'] = o; o += 72 * 128
    L['END'] = o
    return L

WS_EP = 0
WS_PC = 0x1000
PCS = 4352
WS_QP = 0x20000
WS_HA = 0x40000
WS_HA2 = 0x280000
HBS = 2304
WS_HM = 0xC0000
WS_HB = 0xD0000
WS_HY = 0x150000
WS_DIAG = 0x200000
WS_SIZE = 0x400000
TAGM = 0xf
POL = {0: "", 1: "nt", 2: "sc1", 3: "sc0 sc1", 4: "sc1 nt", 5: "sc0 sc1 nt", 6: "sc0", 7: "sc0 nt"}
CSC = 0.0625 * math.log2(math.e)

import struct
def f2u(x):
    return struct.unpack('<I', struct.pack('<f', x))[0]

class Asm:
    def __init__(self):
        self.L = []
        self.n = 0
    def __call__(self, s):
        for line in s.strip('\n').split('\n'):
            self.L.append(line.strip() if not line.strip().endswith(':') else line.strip())
    def label(self, base):
        self.n += 1
        return f"L_{base}_{self.n}"

def gen(cfg):
    F, R, C = cfg.F, cfg.R, cfg.C
    LD = lds_layout(R)
    assert LD['END'] <= 163840, LD['END']
    A = Asm()
    NUNITS = 128
    SIZES = tuple(cfg.SIZES)
    S = NUNITS - sum(SIZES)
    NT = (15 if cfg.SVC else 16) * len(SIZES)
    assert len(SIZES) <= 8
    SZP = sum(v << (8 * r) for r, v in enumerate(SIZES))
    STP = sum((S + sum(SIZES[:r])) << (8 * r) for r in range(len(SIZES)))
    def srd(dst, base, size, add=None):
        if add is None:
            A(f"s_mov_b32 s{dst}, s{base}")
            A(f"s_and_b32 s{dst+1}, s{base+1}, 0xffff")
        else:
            A(f"s_add_u32 s{dst}, s{base}, s{add}")
            A(f"s_addc_u32 s{dst+1}, s{base+1}, 0")
            A(f"s_and_b32 s{dst+1}, s{dst+1}, 0xffff")
        A(f"s_mov_b32 s{dst+2}, {size}")
        A(f"s_mov_b32 s{dst+3}, 0x20000")
    def stamp(idx, tmpv=(250, 251, 252), light=False):
        if not cfg.DIAG or (cfg.DIAG == 2 and not light):
            return
        A(f"s_memrealtime s[96:97]")
        A(f"s_lshl_b32 s98, s2, 3")
        A(f"s_add_u32 s98, s98, s3")
        A(f"s_lshl_b32 s98, s98, 7")
        A(f"s_add_u32 s98, s98, {WS_DIAG + idx*8}")
        A(f"s_waitcnt lgkmcnt(0)")
        A(f"v_mov_b32 v{tmpv[0]}, s96")
        A(f"v_mov_b32 v{tmpv[1]}, s97")
        A(f"v_mov_b32 v{tmpv[2]}, 0")
        A(f"s_mov_b64 s[94:95], exec")
        A(f"s_mov_b64 exec, 1")
        A(f"buffer_store_dwordx2 v[{tmpv[0]}:{tmpv[1]}], v{tmpv[2]}, s[36:39], s98 offen")
        A(f"s_mov_b64 exec, s[94:95]")
    TG = 193
    def tag(v):
        A(f"v_bfi_b32 v{v}, s59, v{TG}, v{v}")
    def tagcheck(regs, acc, full=()):
        regs = list(regs)
        if len(regs) == 0:
            A(f"v_mov_b32 v{acc}, 0")
        elif len(regs) == 1:
            A(f"v_xor_b32 v{acc}, v{regs[0]}, v{TG}")
        else:
            A(f"v_bitop3_b32 v{acc}, v{regs[0]}, v{regs[1]}, v{TG} bitop3:0x7e")
            for r in regs[2:]:
                A(f"v_bitop3_b32 v{acc}, v{acc}, v{r}, v{TG} bitop3:0xf6")
        A(f"v_and_b32 v{acc}, s59, v{acc}")
        for r in full:
            A(f"v_bitop3_b32 v{acc}, v{acc}, v{r}, s58 bitop3:0xf6")
        A(f"v_cmp_ne_u32 vcc, 0, v{acc}")
    def remask():
        if cfg.MASKP:
            A("s_or_b32 s76, vcc_lo, vcc_hi"); A("s_lshr_b32 s77, s76, 16"); A("s_or_b32 s76, s76, s77")
            A("s_pack_ll_b32_b16 s76, s76, s76")
            A("s_mov_b32 exec_lo, s76"); A("s_mov_b32 exec_hi, s76")
    def poll(lbl, issue, n, check, go):
        if not cfg.PIPE:
            A(f"{lbl}:")
            issue()
            A("s_waitcnt vmcnt(0)")
            check()
            A(f"s_cbranch_vccz {go}")
            remask()
            if cfg.SVC and n == 3:
                q = A.label("awake")
                A("s_bcnt1_i32_b32 s77, s76"); A("s_cmp_lt_u32 s77, 30"); A(f"s_cbranch_scc1 {q}")
                A(f"s_sleep {cfg.LSLEEP}")
                A(f"{q}:")
            spin_tail(lbl, sleep=cfg.HSLEEP)
        else:
            issue()
            A("s_waitcnt vmcnt(0)")
            check()
            A(f"s_cbranch_vccz {go}")
            remask()
            for d in range(cfg.PIPE):
                issue()
                A(f"s_sleep {cfg.PGAP}")
            A(f"{lbl}:")
            issue()
            A(f"s_waitcnt vmcnt({n * cfg.PIPE})")
            check()
            A(f"s_cbranch_vccz {go}")
            remask()
            spin_tail(lbl, sleep=0)
    codes = {}
    def die(lbl):
        if cfg.DIAG:
            codes.setdefault(lbl, len(codes) + 1)
            A("s_mov_b64 exec, 1")
            A(f"v_mov_b32 v248, {codes[lbl]}"); A("v_mov_b32 v249, s40"); A("v_mov_b32 v250, s43"); A("v_mov_b32 v251, s73"); A("v_mov_b32 v252, 0")
            A("s_lshl_b32 s98, s2, 3"); A("s_add_u32 s98, s98, s3"); A("s_lshl_b32 s98, s98, 7"); A(f"s_add_u32 s98, s98, {WS_DIAG + 112}")
            A("buffer_store_dwordx4 v[248:251], v252, s[36:39], s98 offen")
        A("s_endpgm")
    def spin_tail(lbl, cnt="s45", sleep=1):
        A(f"s_sleep {sleep}")
        A(f"s_sub_u32 {cnt}, {cnt}, 1")
        A(f"s_cmp_lg_u32 {cnt}, 0")
        A(f"s_cbranch_scc1 {lbl}")
        die(lbl)

    hdr = open('recurrent_scan__gqa_block_cached__glu_gated_geglu__decode.s.ref').read().split('\n')
    for line in hdr:
        if line.startswith('; @launch') or not line.startswith(';'):
            break
        A.L.append(line)
    A(f"; @launch grid=(256,1,1) block=(512,1,1) lds={LD['END']}")
    A('.amdgcn_target "amdgcn-amd-amdhsa--gfx950"')
    A(".text"); A(f".globl {NAME}"); A(".p2align 8"); A(f".type {NAME},@function"); A(f"{NAME}:")
    if cfg.DIAG or cfg.DBGT:
        A("s_memrealtime s[92:93]")
    A(f"""
    s_cmp_ge_u32 s2, 256
    s_cbranch_scc1 L_end
    s_load_dwordx8 s[4:11], s[0:1], 0
    s_load_dwordx8 s[12:19], s[0:1], 32
    s_load_dwordx8 s[20:27], s[0:1], 64
    v_and_b32 v1, 63, v0
    v_lshrrev_b32 v2, 6, v0
    v_lshlrev_b32 v3, 2, v1
    v_add_u32 v3, {LD['FLAGS']}, v3
    v_mov_b32 v4, 0
    ds_write_b32 v3, v4
    v_readfirstlane_b32 s3, v2
    s_mov_b32 s45, {cfg.SPIN}
    s_mov_b32 s40, 0
    s_mov_b32 s43, 0
    s_mov_b32 s73, 0
    """)
    A("v_lshrrev_b32 v5, 5, v1")
    A("v_and_b32 v6, 31, v1")
    A("v_xor_b32 v6, v6, v5")
    A("v_lshlrev_b32 v5, 9, v5")
    for j in range(8):
        A(f"v_xor_b32 v7, {2*j}, v6")
        A(f"v_lshl_add_u32 v{8+j}, v7, 4, v5")
    A("v_lshlrev_b32 v16, 4, v1")
    A(f"v_mov_b32 v17, {LD['FLAGS']}")
    A("s_lshr_b32 s46, s2, 4")
    A("s_lshl_b32 s46, s46, 24")
    def ld_addr(dst, dt):
        A(f"s_add_u32 s69, s67, {dt}")
        A(f"s_add_u32 {dst}, s69, s68"); A(f"s_and_b32 {dst}, {dst}, 127"); A(f"s_lshl_b32 {dst}, {dst}, 17")
        A(f"s_mul_i32 s69, s69, {cfg.ROT}"); A("s_add_u32 s69, s69, s66"); A("s_and_b32 s69, s69, 15"); A("s_lshl_b32 s69, s69, 13")
        A(f"s_or_b32 {dst}, {dst}, s69")
    A("s_mov_b32 s41, 0"); A("s_and_b32 s66, s2, 15"); A("s_mov_b32 s67, 0"); A("s_mov_b32 s44, 0")
    A("s_lshr_b32 s70, s2, 4"); A(f"s_mul_i32 s68, s70, {cfg.GS}")
    ld_addr("s42", 0); ld_addr("s75", 1)
    A("s_mov_b32 s53, 0")
    A(f"s_mov_b32 s30, {1 << 24}"); A("s_mov_b32 s31, 0x20000"); A(f"s_mov_b32 s34, {1 << 24}"); A("s_mov_b32 s35, 0x20000")
    A("s_waitcnt lgkmcnt(0)")
    A("s_add_u32 s28, s6, s46"); A("s_addc_u32 s29, s7, 0"); A("s_and_b32 s29, s29, 0xffff")
    if cfg.LBAR:
        A("s_cmp_eq_u32 s3, 0")
        A("s_cbranch_scc1 L_loader")
        A("s_barrier")
        A("s_branch L_notloader")
        A("L_loader:")
    else:
        A("s_barrier")
        A("s_cmp_lg_u32 s3, 0")
        A("s_cbranch_scc1 L_notloader")
    A("s_setprio 3")
    if cfg.DIAG:
        srd(36, 26, WS_SIZE)
    stamp(0)
    if cfg.DIAG == 1:
        A("v_mov_b32 v250, s92"); A("v_mov_b32 v251, s93"); A("s_mov_b64 exec, 1")
        A("buffer_store_dwordx2 v[250:251], v252, s[36:39], s98 offen offset:56")
        A("s_mov_b64 exec, -1")
    a_, jp = divmod(F - 1, 16)
    assert S % 2 == 0
    NFB = 1792 // cfg.FB
    assert (cfg.ET * cfg.EZ) % 2 == 0
    FC = 8 + cfg.ET * cfg.EZ // 2
    if cfg.DIAG:
        A("s_mov_b32 s90, 0")
        A("s_mov_b32 s88, 0")
    def ld_body(kinds, first=False, F=F):
        a_, jp = divmod(F - 1, 16)
        for j in range(16):
            if not first:
                A(f"s_waitcnt vmcnt({F-1})")
            if j == jp and not first:
                A(f"s_sub_i32 s49, s40, {a_}")
                A("s_max_i32 s43, s43, s49")
                A("v_mov_b32 v18, s43")
                A("ds_write_b32 v17, v18")
            if j % 4 == 0:
                A(f"s_add_u32 m0, s41, {j*1024}")
                A(f"s_add_u32 s47, {'s42' if j < 8 else 's75'}, {(j % 8)*1024}")
            if j == 8:
                A("s_add_u32 s44, s44, 4"); A(f"s_cmp_ge_u32 s44, {R*4}"); A("s_cselect_b32 s44, 0, s44")
                A("v_add_u32 v19, s44, v17")
                A("ds_read_b32 v20, v19 offset:64")
            if kinds[j // 8] == 'K':
                A(f"buffer_load_dwordx4 v{8 + j % 8}, s[28:31], s47 offen offset:{(j%4)*1024} {POL[cfg.KP]} lds")
            else:
                A(f"buffer_load_dwordx4 v16, s[32:35], s47 offen offset:{(j%4)*1024} {POL[cfg.VP]} lds")
        A("s_add_u32 s40, s40, 1")
        A("s_add_u32 s41, s41, 16384"); A(f"s_cmp_ge_u32 s41, {R*16384}"); A("s_cselect_b32 s41, 0, s41")
        A("s_sub_u32 s53, s53, 1")
    def ld_ring(lbl):
        if cfg.DIAG == 1:
            n = A.label("nops")
            A("s_and_b32 s91, s40, 15"); A("s_cmp_lg_u32 s91, 0"); A(f"s_cbranch_scc1 {n}")
            A("s_cmp_gt_u32 s40, 80"); A(f"s_cbranch_scc1 {n}")
            A("s_memrealtime s[96:97]")
            A("s_lshl_b32 s98, s2, 10"); A("s_lshr_b32 s91, s40, 1"); A("s_add_u32 s98, s98, s91"); A(f"s_add_u32 s98, s98, {WS_DIAG + 64}")
            A("s_waitcnt lgkmcnt(0)")
            A("v_mov_b32 v250, s96"); A("v_mov_b32 v251, s97"); A("v_mov_b32 v252, 0")
            A("s_mov_b64 exec, 1")
            A("buffer_store_dwordx2 v[250:251], v252, s[36:39], s98 offen")
            A("s_mov_b64 exec, -1")
            A(f"{n}:")
        A(f"s_sub_i32 s48, s40, {R-1}")
        A("v_readfirstlane_b32 s47, v20")
        A("s_cmp_ge_i32 s47, s48")
        A(f"s_cbranch_scc1 {lbl}")
        if cfg.DIAG == 1:
            n = A.label("nost")
            A("s_cmp_lg_u32 s90, 0"); A(f"s_cbranch_scc1 {n}"); A("s_mov_b32 s90, 1")
            stamp(2)
            A(f"{n}:")
            stamp(3)
        A("s_waitcnt vmcnt(0)")
        A("s_mov_b32 s43, s40")
        A("v_mov_b32 v18, s43")
        A("ds_write_b32 v17, v18")
        sp = lbl + "_spin"
        A(f"{sp}:")
        A("ds_read_b32 v20, v19 offset:64")
        A("s_waitcnt lgkmcnt(0)")
        A("v_readfirstlane_b32 s47, v20")
        A("s_cmp_ge_i32 s47, s48")
        A(f"s_cbranch_scc1 {lbl}")
        spin_tail(sp)
    def ld_ticket_req():
        n = A.label("noat")
        A("s_add_u32 s74, s53, s71")
        A("s_cmp_lg_u32 s74, 1")
        A(f"s_cbranch_scc1 {n}")
        A("s_mov_b32 s54, 1")
        if NT:
            A("s_atomic_add s54, s[56:57], 0x0 glc")
        A(f"{n}:")
    def ld_adv():
        if not cfg.SVC:
            A("s_add_u32 s67, s67, 2")
            return
        o = A.label("own"); d = A.label("adv")
        A("s_cmp_eq_u32 s66, s70"); A(f"s_cbranch_scc1 {o}")
        A("s_cmp_lg_u32 s67, s83"); A(f"s_cbranch_scc1 {o}")
        A("s_mov_b32 s66, s70"); A("s_add_u32 s83, s83, 30"); A(f"s_branch {d}")
        A(f"{o}:")
        A("s_mov_b32 s66, s81"); A("s_add_u32 s67, s67, 2")
        A(f"{d}:")
    if cfg.SVC:
        assert 120 <= S <= 122 and not cfg.LBAR
        A("s_cmp_eq_u32 s66, s70")
        A("s_cbranch_scc1 L_ld_svc")
    ld_body("KK", first=True)
    A("s_add_u32 s32, s8, s46"); A("s_addc_u32 s33, s9, 0"); A("s_and_b32 s33, s33, 0xffff")
    if cfg.LBAR:
        A("s_barrier")
    A(f"s_mul_i32 s50, s70, {PCS}"); A(f"s_add_u32 s50, s50, {WS_PC}")
    A("s_add_u32 s56, s26, s50"); A("s_addc_u32 s57, s27, 0")
    A(f"s_mov_b32 s60, {hex(SZP & 0xffffffff)}"); A(f"s_mov_b32 s61, {hex(SZP >> 32)}")
    A(f"s_mov_b32 s62, {hex(STP & 0xffffffff)}"); A(f"s_mov_b32 s63, {hex(STP >> 32)}")
    A("s_mov_b32 s54, 0")
    if not cfg.SVC:
        A(f"s_cmp_lt_u32 s70, {0 if cfg.NOCF else NFB}"); A("s_cselect_b32 s71, 1, 0")
        A(f"s_add_u32 s72, s66, {S - 16}")
        A("s_cmp_eq_u32 s66, s70"); A("s_cselect_b32 s78, s71, 0"); A(f"s_mul_i32 s78, s78, {FC}"); A(f"s_sub_u32 s78, {S // 2}, s78")
        A(f"s_mul_i32 s80, s71, {cfg.ET}")
    else:
        A("s_mov_b32 s71, 0"); A(f"s_mov_b32 s78, {S // 2 + 4}"); A("s_mov_b32 s81, s66")
        A("s_cmp_gt_u32 s66, s70"); A("s_cselect_b32 s82, 1, 0"); A("s_sub_u32 s82, s66, s82"); A("s_lshl_b32 s82, s82, 1")
        A("s_mov_b32 s83, s82")
    A("s_sub_u32 s53, s78, 1")
    A("s_branch L_ld_kbot")
    if cfg.SVC:
        A("L_ld_svc:")
        A("s_add_u32 s32, s8, s46"); A("s_addc_u32 s33, s9, 0"); A("s_and_b32 s33, s33, 0xffff")
        A("s_mov_b32 s53, 8"); A("s_mov_b32 s67, 120"); A("s_mov_b32 s71, 64")
        A("s_mov_b32 s56, s26"); A("s_mov_b32 s57, s27")
        ld_addr("s42", 0)
        A("s_mov_b32 s75, s42")
        A("s_branch L_ld_c")
    A("L_ld_k:")
    ld_body("KK")
    A("L_ld_kbot:")
    ld_adv()
    A("s_cmp_lg_u32 s53, 0")
    A("s_cbranch_scc1 L_ld_kc")
    A("s_mov_b32 s67, 0"); A("s_mov_b32 s53, s78")
    if cfg.SVC:
        A("s_mov_b32 s66, s81"); A("s_mov_b32 s83, s82")
    A("s_branch L_ld_vc")
    A("L_ld_kc:")
    ld_addr("s42", 0); ld_addr("s75", 1)
    A("s_waitcnt lgkmcnt(0)")
    ld_ring("L_ld_k")
    A("L_ld_v:")
    ld_ticket_req()
    ld_body("VV")
    ld_adv()
    A("s_cmp_eq_u32 s53, 0")
    A("s_cbranch_scc1 L_ld_next")
    A("L_ld_vc:")
    ld_addr("s42", 0); ld_addr("s75", 1)
    A("s_waitcnt lgkmcnt(0)")
    ld_ring("L_ld_v")
    A("L_ld_c:")
    ld_ticket_req()
    F3 = cfg.F3 or F
    ld_body("KV", F=F3)
    A("s_add_u32 s67, s67, 1")
    A("s_cmp_lg_u32 s53, 0")
    A("s_cbranch_scc1 L_ld_cc")
    A("L_ld_next:")
    A("s_cmp_eq_u32 s71, 0"); A("s_cbranch_scc1 L_ld_tick")
    if cfg.SVC:
        A("s_branch L_ld_done")
    A("s_mov_b32 s71, 0"); A("s_mov_b32 s53, 1"); A("s_mov_b32 s66, s70"); A("s_mov_b32 s67, s72")
    A("s_branch L_ld_cc")
    A("L_ld_tick:")
    if cfg.DIAG == 1:
        A("s_memrealtime s[84:85]")
    A("s_waitcnt lgkmcnt(0)")
    if cfg.DIAG == 1:
        A("s_memrealtime s[86:87]"); A("s_waitcnt lgkmcnt(0)")
        A("s_sub_u32 s86, s86, s84"); A("s_lshl_b32 s88, s88, 8"); A("s_min_u32 s86, s86, 255"); A("s_or_b32 s88, s88, s86")
    if cfg.ET and not cfg.SVC:
        A("s_cmp_ge_u32 s54, s80"); A("s_cbranch_scc1 L_ld_tick2")
        A(f"s_mov_b32 s53, {cfg.EZ}"); A("s_mov_b32 s66, s70")
        A(f"s_mul_i32 s67, s54, {cfg.EZ}"); A(f"s_add_u32 s67, s67, {S - 2 * FC}")
        A("s_branch L_ld_cc")
        A("L_ld_tick2:")
        A("s_sub_u32 s54, s54, s80")
    A(f"s_cmp_ge_u32 s54, {NT}")
    A("s_cbranch_scc1 L_ld_done")
    if cfg.SVC:
        A("s_mul_i32 s51, s54, 4370"); A("s_lshr_b32 s51, s51, 16")
        A("s_mul_i32 s52, s51, 15"); A("s_sub_u32 s54, s54, s52")
        A("s_cmp_ge_u32 s54, s70"); A("s_addc_u32 s54, s54, 0")
        A("s_lshl_b32 s51, s51, 3")
    else:
        A("s_lshr_b32 s51, s54, 4"); A("s_lshl_b32 s51, s51, 3")
    A("s_lshr_b64 s[64:65], s[60:61], s51"); A("s_and_b32 s53, s64, 0xff")
    A("s_lshr_b64 s[64:65], s[62:63], s51"); A("s_and_b32 s67, s64, 0xff")
    A("s_and_b32 s66, s54, 15")
    A("L_ld_cc:")
    ld_addr("s42", 0)
    A("s_mov_b32 s75, s42")
    A("s_waitcnt lgkmcnt(0)")
    ld_ring("L_ld_c")
    A("L_ld_done:")
    A("s_lshl_b32 s50, s40, 16")
    A("s_or_b32 s51, s50, s43")
    A("v_mov_b32 v18, s51")
    A("ds_write_b32 v17, v18")
    for k in range(3, -1, -1):
        if 16 * k < max(F, F3):
            A(f"s_sub_u32 s51, s40, {k}")
            A("s_max_u32 s51, s51, s43")
            A("s_or_b32 s51, s51, s50")
            A(f"s_waitcnt vmcnt({16*k})")
            A(f"v_mov_b32 v18, s51")
            A("ds_write_b32 v17, v18")
            if k == 1 and cfg.EARLYK:
                A("s_or_b32 s51, s51, 0x8000")
                A("s_waitcnt vmcnt(8)")
                A(f"v_mov_b32 v18, s51")
                A("ds_write_b32 v17, v18")
    if cfg.DIAG:
        A("v_mov_b32 v250, s40"); A("v_mov_b32 v251, s88"); A("v_mov_b32 v252, 0")
        A("s_lshl_b32 s98, s2, 10"); A(f"s_add_u32 s98, s98, {WS_DIAG + 8*8}")
        A("s_mov_b64 exec, 1")
        A("buffer_store_dwordx2 v[250:251], v252, s[36:39], s98 offen")
        A("s_mov_b64 exec, -1")
        A("s_nop 1")
    stamp(1, light=True)
    if cfg.DIAG == 2:
        A("s_nop 1")
        A("v_mov_b32 v250, s92"); A("v_mov_b32 v251, s93"); A("s_mov_b64 exec, 1")
        A("buffer_store_dwordx2 v[250:251], v252, s[36:39], s98 offen offset:48")
    A("s_endpgm")

    A("L_notloader:")
    A(f"s_load_dword s58, s[26:27], {WS_EP}")
    A(f"s_mov_b32 s59, {TAGM}")
    A("v_and_b32 v3, 7, v1")
    A("v_lshrrev_b32 v4, 1, v3")
    A("v_and_b32 v5, 1, v3")
    A("v_mov_b32 v6, 0x0c0c0100")
    A("v_mov_b32 v7, 0x01000c0c")
    A("v_cmp_eq_u32 vcc, 1, v5")
    A("v_mov_b32 v8, 0x0c0c0302")
    A("v_mov_b32 v9, 0x03020c0c")
    A("v_cndmask_b32 v6, v6, v7, vcc")
    A("v_cndmask_b32 v8, v8, v9, vcc")
    A("v_mov_b32 v7, 0x0c0c0c0c")
    for k in range(4):
        A(f"v_cmp_eq_u32 vcc, {k}, v4")
        A("s_nop 1")
        A(f"v_cndmask_b32 v{12+k}, v7, v6, vcc")
        A(f"v_cndmask_b32 v{16+k}, v7, v8, vcc")
    A("v_and_b32 v10, 15, v1")
    A("v_lshrrev_b32 v11, 4, v1")
    A("s_lshr_b32 s50, s2, 4")
    A("s_and_b32 s51, s2, 15")
    A("s_lshr_b32 s52, s2, 7")
    A("s_and_b32 s53, s50, 7")
    A(f"s_mov_b32 s54, {hex(f2u(CSC))}")
    srd(36, 26, WS_SIZE)
    A("s_cmp_eq_u32 s3, 4")
    A("s_cbranch_scc1 L_helper")

    A("s_sub_u32 s55, s3, 1")
    A("s_cmp_gt_u32 s3, 4")
    A("s_cselect_b32 s47, 1, 0")
    A("s_sub_u32 s55, s55, s47")
    def wo_loads(i_reg, s_reg, issue=True, prep=True):
        if prep:
            srd(28, 12, 4096 * 896)
            A(f"s_lshl_b32 s82, s53, 9"); A(f"s_lshl_b32 s47, s51, 5"); A(f"s_add_u32 s82, s82, s47")
            A(f"s_mul_i32 s82, s82, 896"); A(f"s_lshl_b32 s47, s55, 8"); A(f"s_add_u32 s82, s82, s47")
            A(f"v_mul_u32_u24 v204, 896, v{s_reg}")
            A(f"v_lshl_add_u32 v204, v{i_reg}, 4, v204")
            A(f"s_cmp_eq_u32 s55, 3")
            A(f"s_cselect_b32 s47, 8, 16")
            A(f"v_cmp_le_u32 vcc, s47, v{i_reg}")
            A(f"v_bfrev_b32 v205, 2")
            A(f"s_nop 0")
            A(f"v_cndmask_b32 v204, v204, v205, vcc")
        if issue:
            for rr in range(4):
                for hi in range(2):
                    t = 4 * hi + rr
                    A(f"buffer_load_dwordx4 v[{156+4*t}:{159+4*t}], v204, s[28:31], s82 offen offset:{hi*4*896} nt")
                if rr < 3:
                    A(f"s_add_u32 s82, s82, {8*896}")
    wo_loads(10, 11, issue=False)
    if not cfg.WOLATE:
        A(f"s_cmp_ge_u32 s55, {0 if cfg.NOWO else 4}")
        A("s_cbranch_scc1 L_c_nowo")
        wo_loads(10, 11, prep=False)
    A("L_c_nowo:")
    A("v_xor_b32 v23, v10, v11")
    A("v_lshlrev_b32 v24, 9, v10")
    for a in range(4):
        A(f"v_xor_b32 v25, {4*a}, v23")
        A(f"v_lshl_add_u32 v{2+a}, v25, 4, v24")
    A("v_lshlrev_b32 v24, 11, v11")
    A("v_lshl_add_u32 v6, v10, 4, v24")
    A(f"v_mov_b32 v188, {LD['FLAGS']}")
    A(f"v_mov_b32 v20, {hex(f2u(-3.0e38))}")
    A("v_mul_f32 v21, s54, v20")
    A("v_mov_b32 v22, 0")
    for k in range(8):
        A(f"v_mov_b32 v{132+k}, 0")
    A("v_mov_b32 v189, v10"); A("v_mov_b32 v190, v11")
    A("v_lshrrev_b32 v23, 3, v10"); A("v_lshlrev_b32 v23, 6, v23"); A("v_lshl_add_u32 v23, v11, 4, v23")
    A(f"v_add_u32 v202, {LD['SC']}, v23")
    if not cfg.SVC:
        A(f"s_cmp_lt_u32 s50, {0 if cfg.NOCF else NFB}"); A(f"s_cselect_b32 s78, {FC}, 0")
        A("s_cmp_eq_u32 s51, s50"); A("s_cselect_b32 s78, s78, 0"); A(f"s_sub_u32 s78, {S // 2}, s78")
    else:
        A("s_cmp_eq_u32 s51, s50"); A(f"s_cselect_b32 s78, 0, {S // 2 + 4}")
    A("s_lshl_b32 s79, s78, 1")
    A("s_mov_b32 s40, s55")
    A("s_lshl_b32 s41, s55, 14")
    A("s_mov_b32 s44, 0")
    A("s_waitcnt lgkmcnt(0)")
    A("s_add_u32 s58, s58, 1")
    A("s_and_b32 s46, s58, s59")
    A(f"v_mov_b32 v{TG}, s46")
    def c_wait(lbl, can_end):
        A(f"{lbl}:")
        A("ds_read_b32 v23, v188")
        A("s_lshr_b32 s47, s41, 12")
        A("v_add_u32 v191, s47, v188")
        A("s_add_u32 s42, s40, 1")
        A("v_mov_b32 v192, s42")
        A("s_waitcnt lgkmcnt(0)")
        A("v_readfirstlane_b32 s43, v23")
        A("s_and_b32 s46, s43, 0x7fff")
        if can_end and cfg.EARLYK:
            A("s_bfe_u32 s47, s43, 0x1000f")
            A("s_add_u32 s46, s46, s47")
        A("s_cmp_gt_u32 s46, s40")
        A(f"s_cbranch_scc1 {lbl}_go")
        if can_end:
            A("s_lshr_b32 s46, s43, 16")
            A("s_sub_u32 s46, s46, 1")
            A("s_cmp_lt_u32 s46, s40")
            A("s_cbranch_scc1 L_c_tail")
        spin_tail(lbl, sleep=0 if can_end else cfg.PSLEEP)
        A(f"{lbl}_go:")
    def c_adv():
        A(f"s_add_u32 s40, s40, {C}")
        A(f"s_add_u32 s41, s41, {C*16384}")
        A(f"s_sub_u32 s47, s41, {R*16384}")
        A(f"s_cmp_ge_u32 s41, {R*16384}")
        A("s_cselect_b32 s41, s47, s41")
    def k_reads(base, off):
        for t in range(8):
            A(f"ds_read_b128 v[{base+4*t}:{base+3+4*t}], v{7 + t % 4} offset:{off + (t//4)*256}")
    def v_reads(base, off, rs=range(4)):
        for r in rs:
            for h in range(2):
                A(f"ds_read_b128 v[{base+8*r+4*h}:{base+3+8*r+4*h}], v11 offset:{off + r*512 + h*256}")
    def resc(lbl):
        A(f"{lbl}:")
        A("v_mov_b32 v31, v30")
        A("s_nop 1")
        A("v_permlane16_swap_b32 v30, v31")
        A("v_max_f32 v30, v30, v31")
        A("v_mov_b32 v31, v30")
        A("s_nop 1")
        A("v_permlane32_swap_b32 v30, v31")
        A("v_max3_f32 v20, v30, v31, v20")
        A("v_mul_f32 v30, s54, v20")
        A("v_sub_f32 v31, v21, v30")
        A("v_exp_f32 v31, v31")
        A("v_mov_b32 v21, v30")
        for k in range(8):
            A(f"v_mul_f32 v{132+k}, v{132+k}, v31")
        A("v_mul_f32 v22, v22, v31")
        A(f"s_branch {lbl}_ret")
    def pv(tiles):
        steps = [(pb + r // 2, 12 + 4 * (r % 2), vb + 8 * r) for (pb, vb) in tiles for r in range(4)]
        def mm(n):
            bb = 140 + 4 * (n % 4); vb = steps[n][2]
            for h in range(2):
                A(f"v_mfma_f32_16x16x32_bf16 v[{132+4*h}:{135+4*h}], v[{vb+4*h}:{vb+3+4*h}], v[{bb}:{bb+3}], v[{132+4*h}:{135+4*h}]")
        for n, (src, sel, vb) in enumerate(steps):
            for k in range(4):
                A(f"v_perm_b32 v{140+4*(n%4)+k}, v{src}, v{src}, v{sel+k}")
            if n >= 1:
                mm(n - 1)
        mm(len(steps) - 1)
    if cfg.SVC:
        A("s_cmp_eq_u32 s78, 0")
        A("s_cbranch_scc1 L_cc")
    c_wait("L_ck", False)
    for a in range(4):
        A(f"v_add_u32 v{7+a}, s41, v{2+a}")
    k_reads(64, 0); k_reads(96, 8192)
    A("s_lshl_b32 s47, s40, 7")
    A("v_add_u32 v203, s47, v202")
    A("s_waitcnt lgkmcnt(0)")
    A("ds_write_b32 v191, v192 offset:64")
    A("s_cmp_eq_u32 s44, 0")
    A("s_cbranch_scc1 L_c_first")
    A("L_ck_comp:")
    for t in range(8):
        A(f"v_mfma_f32_16x16x32_bf16 v[128:131], v[{64+4*t}:{67+4*t}], v[{32+4*t}:{35+4*t}], {'0' if t == 0 else 'v[128:131]'}")
        A(f"v_mfma_f32_16x16x32_bf16 v[140:143], v[{96+4*t}:{99+4*t}], v[{32+4*t}:{35+4*t}], {'0' if t == 0 else 'v[140:143]'}")
    c_adv()
    A("s_nop 2")
    A("v_cvt_pk_bf16_f32 v24, v128, v129")
    A("v_cvt_pk_bf16_f32 v25, v130, v131")
    A("v_cvt_pk_bf16_f32 v26, v140, v141")
    A("v_cvt_pk_bf16_f32 v27, v142, v143")
    A("s_mov_b32 exec_lo, 0x01010101"); A("s_mov_b32 exec_hi, 0x01010101")
    A("ds_write_b128 v203, v[24:27]")
    A("s_mov_b64 exec, -1")
    A("s_cmp_lt_u32 s40, s78")
    A("s_cbranch_scc1 L_ck")
    c_wait("L_cv", False)
    A("s_sub_u32 s47, s40, s78"); A("s_lshl_b32 s47, s47, 7")
    A("v_add_u32 v203, s47, v202")
    A("v_add_u32 v11, s41, v6")
    A("ds_read_b128 v[24:27], v203")
    v_reads(64, 0); v_reads(96, 8192, range(3))
    A("s_waitcnt lgkmcnt(14)")
    v_reads(96, 8192, [3])
    for k in range(4):
        A(f"v_lshlrev_b32 v{194+2*k}, 16, v{24+k}")
        A(f"v_and_b32 v{195+2*k}, 0xffff0000, v{24+k}")
    A("v_max3_f32 v30, v194, v195, v196")
    A("v_max3_f32 v31, v197, v198, v199")
    A("v_max3_f32 v30, v30, v200, v201")
    A("v_max_f32 v30, v30, v31")
    A("v_cmp_gt_f32 vcc, v30, v20")
    A("s_cbranch_vccnz L_cv_resc")
    A("L_cv_resc_ret:")
    for k in range(8):
        A(f"v_fma_f32 v{194+k}, v{194+k}, s54, -v21")
    for k in range(8):
        A(f"v_exp_f32 v{194+k}, v{194+k}")
    A("s_nop 0")
    for k in range(4):
        A(f"v_cvt_pk_bf16_f32 v{24+k}, v{194+2*k}, v{195+2*k}")
    for k in range(4):
        A(f"v_add_f32 v{194+2*k}, v{194+2*k}, v{195+2*k}")
    A("v_add_f32 v194, v194, v196"); A("v_add_f32 v198, v198, v200")
    A("v_add_f32 v22, v22, v194"); A("v_add_f32 v22, v22, v198")
    A("s_waitcnt lgkmcnt(0)")
    A("ds_write_b32 v191, v192 offset:64")
    pv([(24, 64), (26, 96)])
    c_adv()
    A("s_cmp_lt_u32 s40, s79")
    A("s_cbranch_scc1 L_cv")
    c_wait("L_cc", True)
    for a in range(4):
        A(f"v_add_u32 v{7+a}, s41, v{2+a}")
    A("v_add_u32 v11, s41, v6")
    if cfg.EARLYK:
        k_reads(64, 0)
        if cfg.SVC:
            A("s_cmp_eq_u32 s44, 0")
            A("s_cbranch_scc1 L_c_first")
            A("L_cc_comp:")
        for t in range(8):
            A(f"s_waitcnt lgkmcnt({7 - t})")
            A(f"v_mfma_f32_16x16x32_bf16 v[128:131], v[{64+4*t}:{67+4*t}], v[{32+4*t}:{35+4*t}], {'0' if t == 0 else 'v[128:131]'}")
        A("s_nop 7")
    else:
        k_reads(64, 0); v_reads(96, 8192)
        A("s_waitcnt lgkmcnt(8)")
        for t in range(8):
            A(f"v_mfma_f32_16x16x32_bf16 v[128:131], v[{64+4*t}:{67+4*t}], v[{32+4*t}:{35+4*t}], {'0' if t == 0 else 'v[128:131]'}")
        A("s_waitcnt lgkmcnt(0)")
        A("ds_write_b32 v191, v192 offset:64")
        c_adv()
        A("s_nop 0")
    A("v_cvt_pk_bf16_f32 v24, v128, v129")
    A("v_cvt_pk_bf16_f32 v25, v130, v131")
    A("v_lshlrev_b32 v26, 16, v24")
    A("v_and_b32 v27, 0xffff0000, v24")
    A("v_lshlrev_b32 v28, 16, v25")
    A("v_and_b32 v29, 0xffff0000, v25")
    A("v_max3_f32 v30, v26, v27, v28")
    A("v_max_f32 v30, v30, v29")
    A("v_cmp_gt_f32 vcc, v30, v20")
    A("s_cbranch_vccnz L_cc_resc")
    A("L_cc_resc_ret:")
    for k in range(4):
        A(f"v_fma_f32 v{26+k}, v{26+k}, s54, -v21")
    for k in range(4):
        A(f"v_exp_f32 v{26+k}, v{26+k}")
    A("s_nop 0")
    A("v_cvt_pk_bf16_f32 v24, v26, v27")
    A("v_cvt_pk_bf16_f32 v25, v28, v29")
    A("v_add_f32 v30, v26, v27")
    A("v_add_f32 v31, v28, v29")
    A("v_add_f32 v22, v22, v30")
    A("v_add_f32 v22, v22, v31")
    if cfg.EARLYK:
        A("L_cc_w2:")
        A("s_and_b32 s46, s43, 0x7fff")
        A("s_cmp_gt_u32 s46, s40")
        A("s_cbranch_scc1 L_cc_w2go")
        A("ds_read_b32 v23, v188")
        A("s_waitcnt lgkmcnt(0)")
        A("v_readfirstlane_b32 s43, v23")
        spin_tail("L_cc_w2", sleep=0)
        A("L_cc_w2go:")
        v_reads(96, 8192)
        for n in range(4):
            for k in range(4):
                A(f"v_perm_b32 v{140+4*n+k}, v{24 + n // 2}, v{24 + n // 2}, v{12 + 4 * (n % 2) + k}")
        c_adv()
        for n in range(4):
            for h in range(2):
                A(f"s_waitcnt lgkmcnt({7 - 2*n - h})")
                A(f"v_mfma_f32_16x16x32_bf16 v[{132+4*h}:{135+4*h}], v[{96+8*n+4*h}:{99+8*n+4*h}], v[{140+4*n}:{143+4*n}], v[{132+4*h}:{135+4*h}]")
        A("ds_write_b32 v191, v192 offset:64")
    else:
        pv([(24, 96)])
    A("s_lshr_b32 s46, s43, 16")
    A("s_sub_u32 s46, s46, 1")
    A("s_cmp_ge_u32 s46, s40")
    A("s_cbranch_scc1 L_cc")
    A("L_c_tail:")
    stamp(3)
    A(f"s_add_u32 s47, s41, {(R - C)*16384}")
    A(f"s_sub_u32 s48, s47, {R*16384}")
    A(f"s_cmp_ge_u32 s47, {R*16384}")
    A("s_cselect_b32 s47, s48, s47")
    A("v_lshl_add_u32 v25, v1, 4, s47")
    A("v_lshl_add_u32 v26, v1, 3, s47")
    A("v_mov_b32 v28, v21"); A("v_mov_b32 v29, v22")
    A("ds_write_b64 v26, v[28:29] offset:2048")
    A("ds_write_b128 v25, v[132:135]")
    A("ds_write_b128 v25, v[136:139] offset:1024")
    A("s_cmp_lt_u32 s55, 4")
    A("s_cbranch_scc1 L_p_wave")
    A("s_sub_u32 s56, s55, 4")
    A("s_lshr_b32 s46, s43, 16")
    A("s_sub_u32 s46, s40, s46")
    A("s_lshl_b32 s46, s46, 14")
    A("s_sub_i32 s46, s41, s46")
    for j in range(6):
        A("s_sub_i32 s46, s46, 16384")
        A(f"s_add_i32 s47, s46, {R*16384}")
        A("s_cmp_lt_i32 s46, 0")
        A("s_cselect_b32 s46, s47, s46")
        A(f"v_lshl_add_u32 v{70+j}, v1, 3, s46")
    A("s_lshl_b32 s47, s56, 10")
    A("v_lshl_add_u32 v27, v1, 3, s47")
    for j in range(6):
        A(f"v_add_u32 v{76+j}, v{70+j}, v27")
    if not cfg.HAL:
        A("v_lshrrev_b32 v26, 3, v189"); A("v_lshlrev_b32 v26, 14, v26"); A("v_lshl_add_u32 v26, v190, 11, v26")
        A("v_and_b32 v27, 7, v189"); A("v_lshl_add_u32 v26, v27, 4, v26")
        A("s_lshl_b32 s46, s50, 15"); A("s_lshl_b32 s47, s56, 13"); A("s_add_u32 s46, s46, s47")
        A("s_lshl_b32 s47, s51, 7"); A("s_add_u32 s46, s46, s47"); A(f"s_add_u32 s46, s46, {WS_HA}")
    else:
        A("v_lshrrev_b32 v26, 3, v189"); A("v_lshlrev_b32 v26, 9, v26"); A("v_lshl_add_u32 v26, v190, 7, v26")
        A("v_and_b32 v27, 7, v189"); A("v_lshl_add_u32 v26, v27, 4, v26")
        A(f"s_mul_i32 s46, s2, {HBS}"); A(f"s_add_u32 s49, s46, {WS_HA2 + 2048}")
        A("s_lshl_b32 s47, s56, 10"); A("s_add_u32 s46, s46, s47"); A(f"s_add_u32 s46, s46, {WS_HA2}")
    A("s_waitcnt lgkmcnt(0)")
    A("s_barrier")
    for j in range(6):
        A(f"ds_read_b64 v[{84+2*j}:{85+2*j}], v{70+j} offset:2048")
    for j in range(6):
        A(f"ds_read_b128 v[{96+4*j}:{99+4*j}], v{76+j}")
    A("s_waitcnt lgkmcnt(6)")
    A("v_max3_f32 v28, v84, v86, v88")
    A("v_max3_f32 v28, v28, v90, v92")
    A("v_max_f32 v28, v28, v94")
    for j in range(6):
        A(f"v_sub_f32 v{84+2*j}, v{84+2*j}, v28")
    for j in range(6):
        A(f"v_exp_f32 v{84+2*j}, v{84+2*j}")
    A("s_waitcnt lgkmcnt(0)")
    for k in range(4):
        A(f"v_mul_f32 v{120+k}, v84, v{96+k}")
    for j in range(1, 6):
        for k in range(4):
            A(f"v_fmac_f32 v{120+k}, v{84+2*j}, v{96+4*j+k}")
    for k in range(4):
        tag(120 + k)
    A("buffer_store_dwordx4 v[120:123], v26, s[36:39], s46 offen sc1")
    A("s_cmp_eq_u32 s56, 0")
    A("s_cbranch_scc1 L_x0")
    A("v_mul_f32 v29, v84, v85")
    for j in range(1, 6):
        A(f"v_fmac_f32 v29, v{84+2*j}, v{85+2*j}")
    A(f"v_lshlrev_b32 v27, {1 if cfg.HAL else 8}, v189")
    A("v_mov_b32 v24, v29")
    A("s_lshl_b32 s48, s50, 12"); A("s_lshl_b32 s47, s51, 7")
    A("v_permlane16_swap_b32 v29, v24")
    A("v_add_f32 v29, v29, v24")
    A("v_mov_b32 v24, v29")
    A("s_add_u32 s48, s48, s47"); A(f"s_add_u32 s48, s48, {WS_HM}")
    A("v_permlane32_swap_b32 v29, v24")
    A("v_add_f32 v29, v29, v24")
    A("v_mov_b32 v30, s58")
    A("v_mov_b32 v31, s58")
    A("s_mov_b64 exec, 0x101")
    A(f"buffer_store_dwordx4 v[28:31], v27, s[36:39], {'s49' if cfg.HAL else 's48'} offen sc1")
    A("s_mov_b64 exec, -1")
    if cfg.WOLATE == 4:
        A("s_barrier")
    stamp(4)
    A("s_endpgm")
    A("L_x0:")
    if cfg.WOLATE == 4:
        A("s_barrier")
    stamp(4)
    if not cfg.HAL:
        A("v_lshlrev_b32 v24, 7, v189")
        A("v_lshl_add_u32 v23, v190, 4, v24")
        A("s_lshl_b32 s46, s2, 11"); A(f"s_add_u32 s46, s46, {WS_HA}")
        A("s_lshl_b32 s48, s50, 12"); A("s_lshr_b32 s47, s51, 3"); A("s_lshl_b32 s47, s47, 11"); A("s_add_u32 s48, s48, s47"); A(f"s_add_u32 s48, s48, {WS_HM}")
    else:
        A(f"v_mul_u32_u24 v24, {HBS}, v189")
        A("v_lshl_add_u32 v23, v190, 4, v24")
        A(f"s_mul_i32 s48, s50, {16 * HBS}"); A(f"s_add_u32 s48, s48, {WS_HA2}")
        A("s_and_b32 s46, s51, 3"); A("s_lshl_b32 s46, s46, 7"); A("s_add_u32 s46, s46, s48")
        A("s_and_b32 s47, s51, 4"); A("s_lshl_b32 s47, s47, 8"); A("s_add_u32 s46, s46, s47")
        A("s_and_b32 s47, s51, 8"); A("s_lshl_b32 s49, s47, 6"); A("s_add_u32 s46, s46, s49")
        A("s_lshl_b32 s47, s47, 1"); A("s_add_u32 s48, s48, s47"); A("s_add_u32 s48, s48, 2048")
    A("v_lshl_add_u32 v27, v190, 4, v188")
    if cfg.BAR3:
        A("s_waitcnt vmcnt(0)")
    stamp(5)
    def issA():
        A("buffer_load_dwordx4 v[64:67], v23, s[36:39], s46 offen sc1")
        A("buffer_load_dwordx4 v[68:71], v23, s[36:39], s46 offen offset:64 sc1")
        A("buffer_load_dwordx4 v[72:75], v24, s[36:39], s48 offen sc1")
    poll("L_p_poll", issA, 3, lambda: tagcheck(range(64, 72), 25, full=(74, 75)), "L_p_go")
    A("L_p_go:")
    A("s_mov_b64 exec, -1")
    stamp(6)
    A("v_mov_b32 v26, v72")
    for sh in (8, 4, 2, 1):
        A("s_nop 1")
        A(f"v_max_f32_dpp v26, v26, v26 row_ror:{sh} row_mask:0xf bank_mask:0xf")
    A("v_sub_f32 v26, v72, v26")
    A("v_exp_f32 v26, v26")
    A("s_nop 0")
    A("v_mul_f32 v88, v73, v26")
    for k in range(8):
        A(f"v_mul_f32 v{80+k}, v{64+k}, v26")
    for sh in (8, 4, 2, 1):
        for k in (8, 0, 1, 2, 3, 4, 5, 6, 7):
            A(f"v_add_f32_dpp v{80+k}, v{80+k}, v{80+k} row_ror:{sh} row_mask:0xf bank_mask:0xf")
            if sh == 1 and k == 2:
                A("v_rcp_f32 v88, v88")
    for k in range(8):
        A(f"v_mul_f32 v{80+k}, v{80+k}, v88")
    for k in range(4):
        A(f"v_cvt_pk_bf16_f32 v{76+k}, v{80+2*k}, v{81+2*k}")
    A("s_mov_b32 exec_lo, 0x00010001"); A("s_mov_b32 exec_hi, 0x00010001")
    A("ds_write_b128 v27, v[76:79] offset:160")
    A("s_waitcnt lgkmcnt(0)")
    A("s_barrier")
    A("s_endpgm")
    A("L_p_wave:")
    if cfg.WOLATE == 1:
        wo_loads(0, 0, prep=False)
    A("v_lshl_add_u32 v27, v190, 4, v188")
    if cfg.HBL:
        A("v_lshlrev_b32 v23, 14, v190")
        A("v_lshl_add_u32 v23, v189, 4, v23")
        A("s_lshl_b32 s46, s52, 18"); A("s_lshl_b32 s47, s55, 16"); A("s_add_u32 s46, s46, s47")
        A("s_and_b32 s47, s2, 127"); A("s_lshl_b32 s47, s47, 7"); A("s_add_u32 s46, s46, s47"); A(f"s_add_u32 s46, s46, {WS_HB}")
    else:
        A("v_lshlrev_b32 v23, 7, v190")
        A("v_lshl_add_u32 v23, v189, 4, v23")
        A("s_lshl_b32 s46, s2, 11"); A("s_lshl_b32 s47, s55, 9"); A("s_add_u32 s46, s46, s47"); A(f"s_add_u32 s46, s46, {WS_HB}")
    A("s_cmp_eq_u32 s55, 3")
    A("s_cselect_b32 s47, 0, 0x00ff00ff")
    if cfg.WOLATE == 3:
        A("s_lshr_b32 s48, s43, 16"); A("s_sub_u32 s48, s40, s48")
        A(f"s_cmp_ge_u32 s48, {5 - (cfg.WOLATE - 3)}")
        A("s_cbranch_scc1 L_p_late")
        wo_loads(0, 0, prep=False)
        A("s_waitcnt lgkmcnt(0)")
        A("s_barrier")
        A("s_branch L_p_join")
        A("L_p_late:")
        A("s_waitcnt lgkmcnt(0)")
        A("s_barrier")
        wo_loads(0, 0, prep=False)
        A("L_p_join:")
    else:
        A("s_waitcnt lgkmcnt(0)")
        A("s_barrier")
    if cfg.WOLATE == 4:
        A("s_barrier")
    if cfg.WOLATE in (2, 4):
        wo_loads(0, 0, prep=False)
    A("s_waitcnt vmcnt(0)")
    A("s_barrier")
    A("ds_read_b128 v[76:79], v27 offset:160")
    stamp(5)
    A("s_waitcnt lgkmcnt(0)")
    for t in range(9):
        if t < 8:
            src = 76 + t // 2; sel = 12 + 4 * (t % 2)
            for k in range(4):
                A(f"v_perm_b32 v{96+4*t+k}, v{src}, v{src}, v{sel+k}")
        else:
            A("s_nop 0")
        if t >= 1:
            u = t - 1
            A(f"v_mfma_f32_16x16x32_bf16 v[128:131], v[{156+4*u}:{159+4*u}], v[{96+4*u}:{99+4*u}], {'0' if u == 0 else 'v[128:131]'}")
    A("s_mov_b32 exec_lo, 0x00ff00ff"); A("s_mov_b32 exec_hi, s47")
    A("s_nop 5")
    for k in range(4):
        tag(128 + k)
    A("buffer_store_dwordx4 v[128:131], v23, s[36:39], s46 offen sc1")
    A("s_mov_b64 exec, -1")
    stamp(6)
    A("s_waitcnt vmcnt(0)")
    A("s_endpgm")
    resc("L_cv_resc")
    resc("L_cc_resc")
    A("L_c_first:")
    A("L_c_qwait:")
    A("ds_read_b32 v23, v188 offset:4")
    A("s_waitcnt lgkmcnt(0)")
    A("v_readfirstlane_b32 s46, v23")
    A("s_cmp_lg_u32 s46, 0")
    A("s_cbranch_scc1 L_c_qgo")
    spin_tail("L_c_qwait")
    A("L_c_qgo:")
    A("v_lshrrev_b32 v23, 3, v189")
    A("v_lshlrev_b32 v23, 9, v23")
    A("v_lshl_add_u32 v23, v190, 4, v23")
    A(f"v_add_u32 v23, {LD['Q']}, v23")
    for t in range(8):
        A(f"ds_read_b128 v[{32+4*t}:{35+4*t}], v23 offset:{64*t}")
    A("s_mov_b32 s44, 1")
    A("s_waitcnt lgkmcnt(0)")
    stamp(2)
    if cfg.SVC:
        assert cfg.EARLYK
        A("s_cmp_eq_u32 s78, 0")
        A("s_cbranch_scc1 L_cc_comp")
    A("s_branch L_ck_comp")

    A("L_helper:")
    srd(28, 4, 1792)
    srd(32, 10, 16 if cfg.NOWQ else 448 * 8192)
    A("v_lshrrev_b32 v20, 5, v1")
    A("v_and_b32 v21, 31, v1")
    A("v_mul_u32_u24 v22, 896, v20")
    A("v_lshl_add_u32 v22, v21, 2, v22")
    for m in range(7):
        A(f"buffer_load_dword v{24+m}, v22, s[28:31], 0 offen offset:{128*m}")
    if cfg.QV == 1:
        A("s_and_b32 s56, s51, 3"); A("s_lshr_b32 s57, s51, 2")
        A(f"v_mul_u32_u24 v23, {28*8192}, v11")
        A("v_lshl_add_u32 v23, v10, 4, v23")
        A(f"s_mul_i32 s46, s57, {112*8192}"); A("s_lshl_b32 s47, s53, 10"); A("s_add_u32 s46, s46, s47")
        A("s_lshl_b32 s47, s56, 8"); A("s_add_u32 s46, s46, s47")
    else:
        A("s_and_b32 s56, s51, 7"); A("s_lshl_b32 s56, s56, 1"); A("s_lshr_b32 s57, s51, 3"); A("s_add_u32 s56, s56, s57")
        A("v_lshrrev_b32 v23, 2, v1"); A(f"v_mul_u32_u24 v23, {28*8192}, v23")
        A("v_and_b32 v31, 3, v1"); A("v_lshl_add_u32 v23, v31, 4, v23")
        A("s_lshl_b32 s46, s53, 10"); A("s_lshl_b32 s47, s56, 6"); A("s_add_u32 s46, s46, s47")
    for t in range(28):
        A(f"buffer_load_dwordx4 v[{64+4*t}:{67+4*t}], v23, s[32:35], s46 offen nt")
        if t < 27:
            A("s_add_u32 s46, s46, 8192")
    A(f"s_mul_i32 s46, s50, {PCS}"); A(f"s_add_u32 s46, s46, {WS_PC}")
    A("s_cmp_eq_u32 s51, 0"); A(f"s_cselect_b32 s46, s46, {WS_SIZE}")
    A("v_mov_b32 v186, 0")
    A("s_mov_b64 exec, 1")
    A("buffer_store_dword v186, v186, s[36:39], s46 offen sc1")
    A("s_mov_b64 exec, -1")
    A("s_waitcnt lgkmcnt(0)")
    A("s_add_u32 s58, s58, 1")
    A("s_and_b32 s46, s58, s59")
    A(f"v_mov_b32 v{TG}, s46")
    NAFTER = 28 + 1
    stamp(0)
    ND = 1 if cfg.DIAG == 1 else 0
    A(f"s_waitcnt vmcnt({NAFTER + ND})")
    for m in range(7):
        A(f"v_lshlrev_b32 v{32+2*m}, 16, v{24+m}")
        A(f"v_and_b32 v{33+2*m}, 0xffff0000, v{24+m}")
    def red32(v, t):
        for sh in (8, 4, 2, 1):
            A("s_nop 1")
            A(f"v_add_f32_dpp v{v}, v{v}, v{v} row_ror:{sh} row_mask:0xf bank_mask:0xf")
        A(f"v_mov_b32 v{t}, v{v}")
        A("s_nop 1")
        A(f"v_permlane16_swap_b32 v{v}, v{t}")
        A(f"v_add_f32 v{v}, v{v}, v{t}")
    A("v_add_f32 v46, v32, v33")
    for k in range(2, 14):
        A(f"v_add_f32 v46, v46, v{32+k}")
    red32(46, 47)
    A(f"v_mul_f32 v46, {hex(f2u(1.0/448))}, v46")
    A("v_sub_f32 v48, v32, v46")
    A("v_mul_f32 v47, v48, v48")
    for k in range(1, 14):
        A(f"v_sub_f32 v48, v{32+k}, v46")
        A("v_fmac_f32 v47, v48, v48")
    red32(47, 48)
    A(f"v_mul_f32 v47, {hex(f2u(1.0/448))}, v47")
    A("v_cvt_pk_bf16_f32 v48, v46, v47")
    A("v_lshlrev_b32 v46, 16, v48")
    A("v_and_b32 v47, 0xffff0000, v48")
    A(f"v_add_f32 v47, {hex(f2u(1e-5))}, v47")
    A("v_cvt_pk_bf16_f32 v47, v47, v47")
    A("v_lshlrev_b32 v47, 16, v47")
    A("v_sqrt_f32 v47, v47")
    A("s_nop 0")
    A("v_cvt_pk_bf16_f32 v47, v47, v47")
    A("v_lshlrev_b32 v47, 16, v47")
    A("v_rcp_f32 v47, v47")
    for k in range(14):
        A(f"v_sub_f32 v{32+k}, v{32+k}, v46")
    for m in range(7):
        A(f"v_cvt_pk_bf16_f32 v{24+m}, v{32+2*m}, v{33+2*m}")
    for m in range(7):
        A(f"v_lshlrev_b32 v{32+2*m}, 16, v{24+m}")
        A(f"v_and_b32 v{33+2*m}, 0xffff0000, v{24+m}")
    for k in range(14):
        A(f"v_mul_f32 v{32+k}, v{32+k}, v47")
    for m in range(7):
        A(f"v_cvt_pk_bf16_f32 v{24+m}, v{32+2*m}, v{33+2*m}")
    A(f"v_add_u32 v22, {LD['XN']}, v22")
    for m in range(7):
        A(f"ds_write_b32 v22, v{24+m} offset:{128*m}")
    if cfg.QV == 1:
        A("s_mul_i32 s46, s52, 896"); A("s_mul_i32 s47, s57, 224"); A("s_add_u32 s46, s46, s47"); A(f"s_add_u32 s46, s46, {LD['XN']}")
        A("v_mul_u32_u24 v22, 56, v11")
        A("v_add_u32 v22, s46, v22")
        A("s_waitcnt lgkmcnt(0)")
        for m in range(7):
            A(f"ds_read_b64 v[{32+2*m}:{33+2*m}], v22 offset:{8*m}")
        A("s_waitcnt lgkmcnt(0)")
        for t in range(28):
            src = 32 + t // 2; sel = 12 + 4 * (t % 2); bb = 48 + 4 * (t % 2)
            for k in range(4):
                A(f"v_perm_b32 v{bb+k}, v{src}, v{src}, v{sel+k}")
            A(f"s_waitcnt vmcnt({27 - t + 1 + ND})")
            A("s_nop 0")
            A(f"v_mfma_f32_16x16x32_bf16 v[56:59], v[{64+4*t}:{67+4*t}], v[{bb}:{bb+3}], {'0' if t == 0 else 'v[56:59]'}")
        A("v_lshlrev_b32 v23, 7, v11")
        A("v_lshl_add_u32 v23, v10, 4, v23")
        A("s_lshl_b32 s46, s50, 13"); A("s_lshl_b32 s47, s56, 11"); A("s_add_u32 s46, s46, s47")
        A("s_lshl_b32 s47, s57, 9"); A("s_add_u32 s46, s46, s47"); A(f"s_add_u32 s46, s46, {WS_QP}")
        A("s_waitcnt vmcnt(0)")
        for k in range(4):
            tag(56 + k)
        A("s_mov_b32 exec_lo, 0x00ff00ff"); A("s_mov_b32 exec_hi, 0x00ff00ff")
        A("buffer_store_dwordx4 v[56:59], v23, s[36:39], s46 offen sc1")
        A("s_mov_b64 exec, -1")
        stamp(1)
        A("v_lshlrev_b32 v25, 7, v1")
        A("s_lshl_b32 s46, s50, 13"); A(f"s_add_u32 s46, s46, {WS_QP}")
        A("s_add_u32 s47, s46, 4096")
        A("v_lshlrev_b32 v22, 11, v20")
        A("v_lshl_add_u32 v22, v21, 4, v22")
        A("L_h_qpoll:")
        A("buffer_load_dword v26, v25, s[36:39], s46 offen sc1")
        A("s_waitcnt vmcnt(0)")
        tagcheck([26], 27)
        A("s_cbranch_vccz L_h_qgo")
        A("L_h_qretry:")
        spin_tail("L_h_qpoll", sleep=cfg.QSLEEP)
        A("L_h_qgo:")
        for z in range(2):
            for rs in range(4):
                A(f"buffer_load_dwordx4 v[{64+16*z+4*rs}:{67+16*z+4*rs}], v22, s[36:39], s{46+z} offen offset:{rs*512} sc1")
        A("s_waitcnt vmcnt(0)")
        tagcheck(range(64, 96), 27)
        A("s_cbranch_vccnz L_h_qretry")
        A("v_lshrrev_b32 v23, 3, v21")
        A("v_lshlrev_b32 v23, 6, v23")
        A("v_lshl_add_u32 v23, v20, 8, v23")
        A("v_lshl_add_u32 v23, v3, 1, v23")
        A(f"v_add_u32 v23, {LD['Q']}, v23")
        for z in range(2):
            b0 = 64 + 16 * z
            for k in range(4):
                A(f"v_add_f32 v{b0+k}, v{b0+k}, v{b0+4+k}")
                A(f"v_add_f32 v{b0+8+k}, v{b0+8+k}, v{b0+12+k}")
            for k in range(4):
                A(f"v_add_f32 v{b0+k}, v{b0+k}, v{b0+8+k}")
            A(f"v_cvt_pk_bf16_f32 v{b0}, v{b0}, v{b0+1}")
            A(f"v_cvt_pk_bf16_f32 v{b0+1}, v{b0+2}, v{b0+3}")
            A(f"ds_write_b16 v23, v{b0} offset:{z*512}")
            A(f"ds_write_b16_d16_hi v23, v{b0} offset:{z*512+16}")
            A(f"ds_write_b16 v23, v{b0+1} offset:{z*512+32}")
            A(f"ds_write_b16_d16_hi v23, v{b0+1} offset:{z*512+48}")
    else:
        A("s_mul_i32 s46, s52, 896"); A(f"s_add_u32 s46, s46, {LD['XN']}")
        A("v_lshrrev_b32 v22, 3, v10"); A("v_lshl_add_u32 v22, v11, 2, v22"); A("v_mul_u32_u24 v22, 56, v22")
        A("v_add_u32 v22, s46, v22")
        A("s_waitcnt lgkmcnt(0)")
        for m in range(7):
            A(f"ds_read_b64 v[{32+2*m}:{33+2*m}], v22 offset:{8*m}")
        for m in range(7):
            A(f"ds_read_b64 v[{176+2*m}:{177+2*m}], v22 offset:{112+8*m}")
        A("s_waitcnt lgkmcnt(0)")
        for t in range(28):
            sel = 12 + 4 * (t % 2)
            for k in range(4):
                A(f"v_perm_b32 v{48+k}, v{32+t//2}, v{32+t//2}, v{sel+k}")
            for k in range(4):
                A(f"v_perm_b32 v{52+k}, v{176+t//2}, v{176+t//2}, v{sel+k}")
            A(f"s_waitcnt vmcnt({27 - t + 1 + ND})")
            A(f"v_mfma_f32_16x16x32_bf16 v[56:59], v[{64+4*t}:{67+4*t}], v[48:51], {'0' if t == 0 else 'v[56:59]'}")
            A(f"v_mfma_f32_16x16x32_bf16 v[60:63], v[{64+4*t}:{67+4*t}], v[52:55], {'0' if t == 0 else 'v[60:63]'}")
        A("v_lshlrev_b32 v23, 4, v1")
        A("s_lshl_b32 s46, s50, 11"); A(f"s_add_u32 s46, s46, {WS_QP}")
        A("s_lshl_b32 s47, s56, 7"); A("s_add_u32 s47, s47, s46")
        A("s_mov_b32 exec_lo, 0")
        A("s_nop 2")
        for k in range(4):
            A(f"v_mov_b32 v{56+k}, v{60+k}")
        A("s_mov_b32 exec_lo, 0x00ffff00"); A("s_mov_b32 exec_hi, 0x00ffff00")
        for k in range(4):
            A(f"v_mov_b32 v{56+k}, 0")
        A("s_mov_b64 exec, -1")
        for k in range(4):
            A(f"v_add_f32_dpp v{56+k}, v{56+k}, v{56+k} row_ror:8 row_mask:0xf bank_mask:0xf")
        for sw in ("16", "32"):
            for k in range(4):
                A(f"v_mov_b32 v{60+k}, v{56+k}")
            A("s_nop 0")
            for k in range(4):
                A(f"v_permlane{sw}_swap_b32 v{56+k}, v{60+k}")
            for k in range(4):
                A(f"v_add_f32 v{56+k}, v{56+k}, v{60+k}")
        for k in range(4):
            A(f"v_cvt_pk_bf16_f32 v{56+k}, 0, v{56+k}")
        for k in range(4):
            A(f"v_or_b32 v{56+k}, v{56+k}, v{TG}")
        A("s_waitcnt vmcnt(0)")
        A("s_mov_b64 exec, 0xff")
        A("buffer_store_dwordx4 v[56:59], v23, s[36:39], s47 offen sc1")
        A("s_mov_b64 exec, -1")
        stamp(1)
        A("v_lshrrev_b32 v22, 3, v1"); A("v_lshlrev_b32 v22, 6, v22"); A("v_lshl_add_u32 v22, v3, 1, v22")
        A(f"v_add_u32 v22, {LD['Q']}, v22")
        A("s_waitcnt vmcnt(0)")
        A("L_h_qpoll:")
        A("buffer_load_dwordx4 v[64:67], v23, s[36:39], s46 offen sc1")
        A("buffer_load_dwordx4 v[68:71], v23, s[36:39], s46 offen offset:1024 sc1")
        A("s_waitcnt vmcnt(0)")
        tagcheck(range(64, 72), 27)
        A("s_cbranch_vccz L_h_qgo")
        spin_tail("L_h_qpoll", sleep=cfg.QSLEEP)
        A("L_h_qgo:")
        for z in range(2):
            for r in range(4):
                A(f"ds_write_b16_d16_hi v22, v{64+4*z+r} offset:{z*512+16*r}")
    A(f"v_mov_b32 v24, {LD['FLAGS']}"); A("v_mov_b32 v25, 1")
    A("s_waitcnt lgkmcnt(0)")
    A("ds_write_b32 v24, v25 offset:4")
    stamp(2)
    A("s_mov_b32 s56, s50")
    A("s_cmp_lg_u32 s51, s50")
    A("s_cbranch_scc1 L_h_noffn")
    FB = cfg.FB; NFB = 1792 // FB; RS = FB // 4
    if NFB < 16:
        A(f"s_cmp_ge_u32 s50, {NFB}")
        A("s_cbranch_scc1 L_h_noffn")
    srd(28, 16, 16 if cfg.NOFFN in (1, 3) else 448 * 3584)
    srd(32, 18, 16 if cfg.NOFFN in (1, 3) else 448 * 3584)
    A(f"v_mul_u32_u24 v23, {112*3584}, v11")
    A("v_lshl_add_u32 v23, v10, 4, v23")
    A(f"v_cmp_le_u32 vcc, {FB // 8}, v10")
    A("v_bfrev_b32 v27, 2")
    A(f"s_mul_i32 s46, s56, {FB * 2}")
    A("v_cndmask_b32 v23, v23, v27, vcc")
    A("v_lshrrev_b32 v22, 3, v10")
    A("v_mul_u32_u24 v22, 896, v22")
    A("v_mul_u32_u24 v24, 224, v11")
    A(f"v_add3_u32 v22, v22, v24, 0")
    A(f"v_add_u32 v22, {LD['XN']}, v22")
    for k in range(8):
        A(f"v_mov_b32 v{56+k}, 0")
    def ffn_loads(t):
        A(f"buffer_load_dwordx4 v[{64+8*t}:{67+8*t}], v23, s[28:31], s46 offen nt")
        A(f"buffer_load_dwordx4 v[{68+8*t}:{71+8*t}], v23, s[32:35], s46 offen nt")
        A("s_add_u32 s46, s46, 3584")
    A("s_waitcnt vmcnt(0)")
    def fpause(lbl, units):
        if not units:
            return
        A(f"v_mov_b32 v30, {LD['FLAGS']}")
        A(f"{lbl}:")
        A("ds_read_b32 v29, v30")
        A("s_waitcnt lgkmcnt(0)")
        A("v_readfirstlane_b32 s75, v29")
        A("s_and_b32 s75, s75, 0x7fff")
        A(f"s_cmp_ge_u32 s75, {units}")
        A(f"s_cbranch_scc1 {lbl}_go")
        spin_tail(lbl, sleep=8)
        A(f"{lbl}_go:")
    fpause('L_h_fp1', cfg.FP1)
    FD = cfg.FD; DD = FD // 2; YA = 196
    for t in range(FD):
        ffn_loads(t)
    A(f"s_mov_b32 s57, {112 // FD - 1}")
    def ffn_iter(reissue):
        for z in range(FD // 8):
            A(f"ds_read_b128 v[{32+4*z}:{35+4*z}], v22 offset:{16*z}")
        A(f"v_add_u32 v22, {2*FD}, v22")
        A("s_waitcnt lgkmcnt(0)")
        for t in range(FD):
            src = 32 + t // 2; sel = 12 + 4 * (t % 2); bb = 48 + 4 * (t % 2)
            for k in range(4):
                A(f"v_perm_b32 v{bb+k}, v{src}, v{src}, v{sel+k}")
            A(f"s_waitcnt vmcnt({2*FD-2 if reissue else 2*FD-2 - 2*t})")
            A("s_nop 0")
            A(f"v_mfma_f32_16x16x32_bf16 v[56:59], v[{64+8*t}:{67+8*t}], v[{bb}:{bb+3}], v[56:59]")
            A(f"v_mfma_f32_16x16x32_bf16 v[60:63], v[{68+8*t}:{71+8*t}], v[{bb}:{bb+3}], v[60:63]")
            if reissue:
                ffn_loads(t)
    A("L_h_f1:")
    ffn_iter(True)
    A("s_sub_u32 s57, s57, 1"); A("s_cmp_lg_u32 s57, 0"); A("s_cbranch_scc1 L_h_f1")
    ffn_iter(False)
    srd(28, 20, 16 if cfg.NOFFN in (1, 2) else 1792 * 896)
    A(f"v_mul_u32_u24 v23, {RS*896}, v11")
    A("v_lshl_add_u32 v23, v10, 4, v23")
    A("v_cmp_le_u32 vcc, 8, v10")
    A(f"s_mul_i32 s46, s56, {FB*896}")
    A("s_nop 0")
    A("v_cndmask_b32 v26, v23, v27, vcc")
    def dn_loads(t):
        for nb in range(4):
            A(f"buffer_load_dwordx4 v[{64+16*t+4*nb}:{67+16*t+4*nb}], v{26 if nb == 3 else 23}, s[28:31], s46 offen offset:{nb*256} nt")
        A("s_add_u32 s46, s46, 896")
    A("s_nop 4")
    fpause('L_h_fp2', cfg.FP2)
    for t in range(DD):
        dn_loads(t)
    A("v_cvt_pk_bf16_f32 v32, v56, v57"); A("v_cvt_pk_bf16_f32 v33, v58, v59")
    A("v_cvt_pk_bf16_f32 v34, v60, v61"); A("v_cvt_pk_bf16_f32 v35, v62, v63")
    for k in range(4):
        A(f"v_lshlrev_b32 v{36+2*k}, 16, v{32+k}")
        A(f"v_and_b32 v{37+2*k}, 0xffff0000, v{32+k}")
    K0 = -2.0 * math.sqrt(2.0 / math.pi) * math.log2(math.e)
    A(f"s_mov_b32 s71, {hex(f2u(0.044715))}")
    for k in range(4):
        A(f"v_mul_f32 v{44+k}, v{36+k}, v{36+k}")
        A(f"v_mul_f32 v{44+k}, v{44+k}, v{36+k}")
        A(f"v_fma_f32 v{44+k}, v{44+k}, s71, v{36+k}")
        A(f"v_mul_f32 v{44+k}, {hex(f2u(K0))}, v{44+k}")
    for k in range(4):
        A(f"v_exp_f32 v{44+k}, v{44+k}")
    A("s_nop 0")
    for k in range(4):
        A(f"v_add_f32 v{44+k}, 1.0, v{44+k}")
    for k in range(4):
        A(f"v_rcp_f32 v{44+k}, v{44+k}")
    A("s_nop 0")
    for k in range(4):
        A(f"v_mul_f32 v{44+k}, v{44+k}, v{36+k}")
    A("v_cvt_pk_bf16_f32 v32, v44, v45"); A("v_cvt_pk_bf16_f32 v33, v46, v47")
    for k in range(2):
        A(f"v_lshlrev_b32 v{44+2*k}, 16, v{32+k}")
        A(f"v_and_b32 v{45+2*k}, 0xffff0000, v{32+k}")
    for k in range(4):
        A(f"v_mul_f32 v{44+k}, v{44+k}, v{40+k}")
    A("v_cvt_pk_bf16_f32 v32, v44, v45"); A("v_cvt_pk_bf16_f32 v33, v46, v47")
    A("v_lshrrev_b32 v22, 3, v10")
    A("v_lshlrev_b32 v22, 8, v22")
    A(f"v_add_u32 v22, {LD['H']}, v22")
    A("v_lshl_add_u32 v24, v11, 6, v22")
    A("v_lshl_add_u32 v24, v3, 1, v24")
    A(f"v_mul_u32_u24 v25, {RS*2}, v11")
    A("v_add_u32 v22, v22, v25")
    A("ds_write_b16 v24, v32")
    A("ds_write_b16_d16_hi v24, v32 offset:16")
    A("ds_write_b16 v24, v33 offset:32")
    A("ds_write_b16_d16_hi v24, v33 offset:48")
    for k in range(16):
        A(f"v_mov_b32 v{YA+k}, 0")
    A("s_waitcnt lgkmcnt(0)")
    A(f"s_mov_b32 s57, {RS // DD - 1}")
    def dn_iter(reissue):
        for z in range(DD // 4):
            A(f"ds_read_b64 v[{32+2*z}:{33+2*z}], v22 offset:{8*z}")
        A(f"v_add_u32 v22, {2*DD}, v22")
        A("s_waitcnt lgkmcnt(0)")
        for t in range(DD):
            src = 32 + t // 2; sel = 12 + 4 * (t % 2); bb = 48 + 4 * (t % 2)
            for k in range(4):
                A(f"v_perm_b32 v{bb+k}, v{src}, v{src}, v{sel+k}")
            A(f"s_waitcnt vmcnt({4*DD-4 if reissue else 4*DD-4 - 4*t})")
            A("s_nop 0")
            for nb in range(4):
                A(f"v_mfma_f32_16x16x32_bf16 v[{YA+4*nb}:{YA+3+4*nb}], v[{64+16*t+4*nb}:{67+16*t+4*nb}], v[{bb}:{bb+3}], v[{YA+4*nb}:{YA+3+4*nb}]")
            if reissue:
                dn_loads(t)
    A("L_h_f2:")
    dn_iter(True)
    A("s_sub_u32 s57, s57, 1"); A("s_cmp_lg_u32 s57, 0"); A("s_cbranch_scc1 L_h_f2")
    dn_iter(False)
    A("v_lshrrev_b32 v22, 3, v10")
    A("v_lshlrev_b32 v22, 11, v22")
    A("v_lshl_add_u32 v22, v11, 7, v22")
    A("v_lshl_add_u32 v22, v3, 4, v22")
    A("s_lshl_b32 s46, s56, 12"); A(f"s_add_u32 s46, s46, {WS_HY}")
    A("s_nop 4")
    for k in range(16):
        tag(YA + k)
    for nb in range(4):
        if nb == 3:
            A("s_mov_b32 exec_hi, 0")
        A(f"buffer_store_dwordx4 v[{YA+4*nb}:{YA+3+4*nb}], v22, s[36:39], s46 offen offset:{nb*512} sc1")
    A("s_mov_b64 exec, -1")
    stamp(3)
    A("L_h_noffn:")
    A("s_and_b32 s56, s2, 127")
    A("s_cmp_eq_u32 s2, 255")
    A("s_cbranch_scc1 L_h_epoch")
    A("s_cmp_ge_u32 s56, 28")
    A("s_cbranch_scc1 L_end")
    A("v_lshlrev_b32 v22, 12, v10")
    A("v_lshl_add_u32 v22, v11, 4, v22")
    A("s_lshl_b32 s46, s52, 11"); A("s_lshl_b32 s47, s56, 6"); A("s_add_u32 s46, s46, s47"); A(f"s_add_u32 s46, s46, {WS_HY}")
    for k in range(4):
        A(f"v_mov_b32 v{64+k}, 0")
    ym = ((1 << NFB) - 1) * 0x10001
    A(f"s_mov_b32 exec_lo, {hex(ym)}"); A(f"s_mov_b32 exec_hi, {hex(ym)}")
    A("L_h_ypoll:")
    A("buffer_load_dwordx4 v[64:67], v22, s[36:39], s46 offen sc1")
    A("s_waitcnt vmcnt(0)")
    tagcheck(range(64, 68), 27)
    A("s_cbranch_vccz L_h_ygo")
    spin_tail("L_h_ypoll", sleep=64)
    A("L_h_ygo:")
    A("s_mov_b64 exec, -1")
    A("s_lshr_b32 s47, s56, 1"); A("s_lshl_b32 s47, s47, 5"); A("s_and_b32 s48, s56, 1"); A("s_lshl_b32 s48, s48, 2")
    A("s_add_u32 s47, s47, s48"); A("s_mul_i32 s48, s52, 448"); A("s_add_u32 s47, s47, s48"); A("s_lshl_b32 s57, s47, 1")
    srd(28, 4, 1792)
    srd(32, 22, 1792)
    A("v_lshlrev_b32 v23, 1, v11")
    for rr in range(4):
        A(f"buffer_load_ushort v{72+rr}, v23, s[28:31], s57 offen offset:{16*rr}")
    A("s_waitcnt vmcnt(0)")
    for sh in (8, 4, 2, 1):
        for k in range(4):
            A(f"v_add_f32_dpp v{64+k}, v{64+k}, v{64+k} row_ror:{sh} row_mask:0xf bank_mask:0xf")
    A("v_cvt_pk_bf16_f32 v68, v64, v65"); A("v_cvt_pk_bf16_f32 v69, v66, v67")
    for k in range(2):
        A(f"v_lshlrev_b32 v{64+2*k}, 16, v{68+k}")
        A(f"v_and_b32 v{65+2*k}, 0xffff0000, v{68+k}")
    for k in range(4):
        A(f"v_mul_f32 v{68+k}, {hex(f2u(-math.log2(math.e)))}, v{64+k}")
    for k in range(4):
        A(f"v_exp_f32 v{68+k}, v{68+k}")
    A("s_nop 0")
    for k in range(4):
        A(f"v_add_f32 v{68+k}, 1.0, v{68+k}")
    for k in range(4):
        A(f"v_rcp_f32 v{68+k}, v{68+k}")
    A("s_nop 0")
    for k in range(4):
        A(f"v_mul_f32 v{64+k}, v{64+k}, v{68+k}")
    A("v_cvt_pk_bf16_f32 v68, v64, v65"); A("v_cvt_pk_bf16_f32 v69, v66, v67")
    for k in range(2):
        A(f"v_lshlrev_b32 v{76+2*k}, 16, v{68+k}")
        A(f"v_and_b32 v{77+2*k}, 0xffff0000, v{68+k}")
    for k in range(4):
        A(f"v_lshlrev_b32 v{72+k}, 16, v{72+k}")
    if not cfg.HBL:
        A("v_lshlrev_b32 v22, 11, v10")
        A("v_lshl_add_u32 v22, v11, 4, v22")
        A("s_lshl_b32 s46, s52, 18"); A("s_lshl_b32 s47, s56, 6"); A("s_add_u32 s46, s46, s47"); A(f"s_add_u32 s46, s46, {WS_HB}")
        for k in range(1, 8):
            A(f"s_add_u32 s{63+k}, s46, {k*32768}")
    else:
        A("v_lshlrev_b32 v22, 7, v10")
        A("v_lshl_add_u32 v22, v11, 4, v22")
        A("s_lshl_b32 s46, s52, 18"); A("s_lshr_b32 s47, s56, 1"); A("s_lshl_b32 s47, s47, 14"); A("s_add_u32 s46, s46, s47")
        A("s_and_b32 s47, s56, 1"); A("s_lshl_b32 s47, s47, 6"); A("s_add_u32 s46, s46, s47"); A(f"s_add_u32 s46, s46, {WS_HB}")
        for k in range(1, 8):
            A(f"s_add_u32 s{63+k}, s46, {k*2048}")
    stamp(4)
    A("s_waitcnt vmcnt(0) lgkmcnt(0)")
    A("s_barrier")
    A("s_barrier")
    if cfg.WOLATE == 4:
        A("s_barrier")
    if cfg.BAR4:
        A("s_barrier")
    def issB():
        for k in range(8):
            A(f"buffer_load_dwordx4 v[{96+4*k}:{99+4*k}], v22, s[36:39], s{46 if k == 0 else 63+k} offen sc1")
    if cfg.ICHK:
        A("L_h_bpoll:")
        issB()
        for k in range(8):
            A(f"s_waitcnt vmcnt({7-k})")
            r0 = 96 + 4 * k
            if k == 0:
                A(f"v_bitop3_b32 v24, v{r0}, v{r0+1}, v{TG} bitop3:0x7e")
            else:
                A(f"v_bitop3_b32 v25, v{r0}, v{r0+1}, v{TG} bitop3:0x7e")
            A(f"v_bitop3_b32 v26, v{r0+2}, v{r0+3}, v{TG} bitop3:0x7e")
            A("v_or_b32 v24, v24, v26" if k == 0 else "v_or3_b32 v24, v24, v25, v26")
        A("v_and_b32 v24, s59, v24")
        A("v_cmp_ne_u32 vcc, 0, v24")
        A("s_cbranch_vccz L_h_bgo")
        remask()
        spin_tail("L_h_bpoll", sleep=cfg.HSLEEP)
    else:
        poll("L_h_bpoll", issB, 8, lambda: tagcheck(range(96, 128), 24), "L_h_bgo")
    A("L_h_bgo:")
    A("s_mov_b64 exec, -1")
    stamp(5)
    for k in range(16):
        A(f"v_add_f32 v{128+k}, v{96+k}, v{112+k}")
    for step in (8, 4):
        for k in range(step):
            A(f"v_add_f32 v{128+k}, v{128+k}, v{128+step+k}")
    A("s_nop 0")
    for sh in (8, 4, 2, 1):
        for k in range(4):
            A(f"v_add_f32_dpp v{128+k}, v{128+k}, v{128+k} row_ror:{sh} row_mask:0xf bank_mask:0xf")
    A("v_cvt_pk_bf16_f32 v132, v128, v129"); A("v_cvt_pk_bf16_f32 v133, v130, v131")
    for k in range(2):
        A(f"v_lshlrev_b32 v{128+2*k}, 16, v{132+k}")
        A(f"v_and_b32 v{129+2*k}, 0xffff0000, v{132+k}")
    for k in range(4):
        A(f"v_mul_f32 v{128+k}, v{128+k}, v{76+k}")
    A("v_cvt_pk_bf16_f32 v132, v128, v129"); A("v_cvt_pk_bf16_f32 v133, v130, v131")
    for k in range(2):
        A(f"v_lshlrev_b32 v{128+2*k}, 16, v{132+k}")
        A(f"v_and_b32 v{129+2*k}, 0xffff0000, v{132+k}")
    for k in range(4):
        A(f"v_add_f32 v{128+k}, v{128+k}, v{72+k}")
    A("v_cvt_pk_bf16_f32 v132, v128, v129"); A("v_cvt_pk_bf16_f32 v133, v130, v131")
    A("s_mov_b32 exec_lo, 0x00010001"); A("s_mov_b32 exec_hi, 0x00010001")
    A("buffer_store_short v132, v23, s[32:35], s57 offen" + (" sc0 sc1 " if cfg.OSC else ""))
    A("buffer_store_short_d16_hi v132, v23, s[32:35], s57 offen offset:16" + (" sc0 sc1 " if cfg.OSC else ""))
    A("buffer_store_short v133, v23, s[32:35], s57 offen offset:32" + (" sc0 sc1 " if cfg.OSC else ""))
    A("buffer_store_short_d16_hi v133, v23, s[32:35], s57 offen offset:48" + (" sc0 sc1 " if cfg.OSC else ""))
    A("s_mov_b64 exec, -1")
    stamp(6, light=True)
    if cfg.DBGT == 2:
        A("s_cmp_lg_u32 s2, 0"); A("s_cbranch_scc1 L_end")
        A("s_memrealtime s[94:95]"); A("s_waitcnt lgkmcnt(0)")
        A("s_sub_u32 s96, s94, s92"); A("s_sub_i32 s96, s96, 7000"); A("s_max_i32 s96, s96, 0"); A("s_min_i32 s96, s96, 3000"); A("s_mul_i32 s96, s96, 10")
        A("L_dly:")
        A("s_memrealtime s[98:99]"); A("s_waitcnt lgkmcnt(0)")
        A("s_sub_u32 s98, s98, s94"); A("s_cmp_lt_u32 s98, s96"); A("s_cbranch_scc1 L_dly")
    if cfg.DBGT == 1:
        A("s_memrealtime s[94:95]")
        srd(28, 24, 256)
        A("s_waitcnt lgkmcnt(0)")
        A("s_not_b32 s92, s92")
        A("v_mov_b32 v24, s92"); A("v_mov_b32 v25, s94"); A("v_mov_b32 v26, 0")
        A("s_mov_b64 exec, 1")
        A("buffer_atomic_umax v24, v26, s[28:31], 0 offen sc1")
        A("buffer_atomic_umax v25, v26, s[28:31], 0 offen offset:4 sc1")
    A("L_end:")
    A("s_endpgm")
    A("L_h_epoch:")
    if cfg.HAL:
        A(f"v_mul_u32_u24 v22, {HBS}, v1")
        for k in range(4):
            A(f"s_mov_b32 s{64+k}, {WS_HA2 + 2048 + k*64*HBS}")
    else:
        A("v_lshlrev_b32 v22, 12, v11")
        A("v_lshl_add_u32 v22, v10, 7, v22")
        for k in range(4):
            A(f"s_mov_b32 s{64+k}, {WS_HM + k*4*4096}")
    A("s_waitcnt vmcnt(0) lgkmcnt(0)")
    A("s_barrier")
    A("s_barrier")
    if cfg.WOLATE == 4:
        A("s_barrier")
    if cfg.BAR4:
        A("s_barrier")
    A("L_h_epoll:")
    for k in range(4):
        A(f"buffer_load_dwordx2 v[{96+2*k}:{97+2*k}], v22, s[36:39], s{64+k} offen offset:8 sc1")
    A("s_waitcnt vmcnt(0)")
    tagcheck([], 24, full=range(96, 104))
    A("s_cbranch_vccz L_h_ego")
    spin_tail("L_h_epoll", sleep=8)
    A("L_h_ego:")
    A("v_mov_b32 v24, s58"); A("v_mov_b32 v25, 0")
    A("s_mov_b64 exec, 1")
    A(f"buffer_store_dword v24, v25, s[36:39], 0 offen offset:{WS_EP}" + (" sc0 sc1 " if cfg.OSC else ""))
    A("s_endpgm")
    nv = 256 if cfg.DIAG else 216
    A('.section .rodata,"a"'); A(".p2align 6"); A(f".amdhsa_kernel {NAME}")
    A.L.append(f"  .amdhsa_next_free_vgpr {nv}"); A.L.append("  .amdhsa_next_free_sgpr 102"); A.L.append(f"  .amdhsa_accum_offset {nv}")
    A.L.append("  .amdhsa_group_segment_fixed_size 0"); A.L.append("  .amdhsa_kernarg_size 96"); A.L.append("  .amdhsa_user_sgpr_count 2")
    A.L.append("  .amdhsa_user_sgpr_kernarg_segment_ptr 1"); A.L.append("  .amdhsa_system_sgpr_workgroup_id_x 1"); A(".end_amdhsa_kernel")
    FL = {0: "sc1", 1: "sc0 sc1", 2: "sc0 sc1 nt", 3: "sc1 nt"}
    for i, line in enumerate(A.L):
        if line.startswith("buffer_load") and line.endswith(" sc1"):
            A.L[i] = line[:-3] + FL[cfg.PF]
        if line.startswith("buffer_load") and line.endswith(" nt"):
            A.L[i] = line[:-2] + POL[cfg.WP]
        if line.startswith("buffer_store") and line.endswith(" sc1"):
            A.L[i] = line[:-3] + FL[cfg.SF]
    if cfg.DIAG:
        sys.stderr.write(str(codes) + "\n")
    return "\n".join(A.L) + "\n"

if __name__ == "__main__":
    cfg = Cfg()
    out = sys.argv[1]
    for kv in sys.argv[2:]:
        k, v = kv.split("=")
        setattr(cfg, k, tuple(int(x) for x in v.split("/") if x) if k == "SIZES" else int(v))
    open(out, "w").write(gen(cfg))
```

```python
import sys, math
NAME = "recurrent_scan__gqa_block_cached__glu_gated_geglu__decode_kernel"

class Cfg:
    F = 20
    R = 9
    C = 6
    DIAG = False
    SPIN = 1 << 22
    NOSWZ = 0
    NOCOMP = 0
    NOWO = 0
    NOWQ = 0
    PSLEEP = 1
    QSLEEP = 4
    BAR3 = 1
    BAR4 = 1
    MASKP = 1
    DBGT = 0
    F3 = 32
    LBAR = 0
    FD = 8
    ET = 2
    PIPE = 0
    QV = 2
    HAL = 0
    EARLYK = 1
    WOLATE = 4
    NOCF = 0
    SVC = 0
    HBL = 1
    FP1 = 0
    OSC = 0
    G4 = 1
    FP2 = 47
    ICHK = 1
    LSLEEP = 16
    PGAP = 4
    EZ = 6
    HSLEEP = 1
    PF = 0
    FB = 128
    STAT = 2
    KP = 1
    VP = 1
    WP = 1
    ROT = 5
    GS = 43
    WIN = 1
    SF = 0
    SIZES = (3, 2, 1)
    NOFFN = 0

def lds_layout(R):
    o = R * 16384
    L = {}
    L['FLAGS'] = o; o += 256
    L['Q'] = o; o += 1024
    L['XN'] = o; o += 1792
    L['H'] = o; o += 512
    L['SC'] = o; o += 72 * 128
    L['END'] = o
    return L

WS_EP = 0
WS_PC = 0x1000
PCS = 4352
WS_QP = 0x20000
WS_HA = 0x40000
WS_HA2 = 0x280000
HBS = 2304
WS_HM = 0xC0000
WS_HB = 0xD0000
WS_HY = 0x150000
WS_DIAG = 0x200000
WS_SIZE = 0x400000
TAGM = 0xf
POL = {0: "", 1: "nt", 2: "sc1", 3: "sc0 sc1", 4: "sc1 nt", 5: "sc0 sc1 nt", 6: "sc0", 7: "sc0 nt"}
CSC = 0.0625 * math.log2(math.e)

import struct
def f2u(x):
    return struct.unpack('<I', struct.pack('<f', x))[0]

class Asm:
    def __init__(self):
        self.L = []
        self.n = 0
    def __call__(self, s):
        for line in s.strip('\n').split('\n'):
            self.L.append(line.strip() if not line.strip().endswith(':') else line.strip())
    def label(self, base):
        self.n += 1
        return f"L_{base}_{self.n}"

def gen(cfg):
    F, R, C = cfg.F, cfg.R, cfg.C
    LD = lds_layout(R)
    assert LD['END'] <= 163840, LD['END']
    A = Asm()
    NUNITS = 128
    SIZES = tuple(cfg.SIZES)
    S = NUNITS - sum(SIZES)
    NT = (15 if cfg.SVC else 16) * len(SIZES)
    assert len(SIZES) <= 8
    SZP = sum(v << (8 * r) for r, v in enumerate(SIZES))
    STP = sum((S + sum(SIZES[:r])) << (8 * r) for r in range(len(SIZES)))
    def srd(dst, base, size, add=None):
        if add is None:
            A(f"s_mov_b32 s{dst}, s{base}")
            A(f"s_and_b32 s{dst+1}, s{base+1}, 0xffff")
        else:
            A(f"s_add_u32 s{dst}, s{base}, s{add}")
            A(f"s_addc_u32 s{dst+1}, s{base+1}, 0")
            A(f"s_and_b32 s{dst+1}, s{dst+1}, 0xffff")
        A(f"s_mov_b32 s{dst+2}, {size}")
        A(f"s_mov_b32 s{dst+3}, 0x20000")
    def stamp(idx, tmpv=(250, 251, 252), light=False):
        if not cfg.DIAG or (cfg.DIAG == 2 and not light):
            return
        A(f"s_memrealtime s[96:97]")
        A(f"s_lshl_b32 s98, s2, 3")
        A(f"s_add_u32 s98, s98, s3")
        A(f"s_lshl_b32 s98, s98, 7")
        A(f"s_add_u32 s98, s98, {WS_DIAG + idx*8}")
        A(f"s_waitcnt lgkmcnt(0)")
        A(f"v_mov_b32 v{tmpv[0]}, s96")
        A(f"v_mov_b32 v{tmpv[1]}, s97")
        A(f"v_mov_b32 v{tmpv[2]}, 0")
        A(f"s_mov_b64 s[94:95], exec")
        A(f"s_mov_b64 exec, 1")
        A(f"buffer_store_dwordx2 v[{tmpv[0]}:{tmpv[1]}], v{tmpv[2]}, s[36:39], s98 offen")
        A(f"s_mov_b64 exec, s[94:95]")
    TG = 193
    def tag(v):
        A(f"v_bfi_b32 v{v}, s59, v{TG}, v{v}")
    def tagcheck(regs, acc, full=()):
        regs = list(regs)
        if len(regs) == 0:
            A(f"v_mov_b32 v{acc}, 0")
        elif len(regs) == 1:
            A(f"v_xor_b32 v{acc}, v{regs[0]}, v{TG}")
        else:
            A(f"v_bitop3_b32 v{acc}, v{regs[0]}, v{regs[1]}, v{TG} bitop3:0x7e")
            for r in regs[2:]:
                A(f"v_bitop3_b32 v{acc}, v{acc}, v{r}, v{TG} bitop3:0xf6")
        A(f"v_and_b32 v{acc}, s59, v{acc}")
        for r in full:
            A(f"v_bitop3_b32 v{acc}, v{acc}, v{r}, s58 bitop3:0xf6")
        A(f"v_cmp_ne_u32 vcc, 0, v{acc}")
    def remask():
        if cfg.MASKP:
            A("s_or_b32 s76, vcc_lo, vcc_hi"); A("s_lshr_b32 s77, s76, 16"); A("s_or_b32 s76, s76, s77")
            A("s_pack_ll_b32_b16 s76, s76, s76")
            A("s_mov_b32 exec_lo, s76"); A("s_mov_b32 exec_hi, s76")
    def poll(lbl, issue, n, check, go):
        if not cfg.PIPE:
            A(f"{lbl}:")
            issue()
            A("s_waitcnt vmcnt(0)")
            check()
            A(f"s_cbranch_vccz {go}")
            remask()
            if cfg.SVC and n == 3:
                q = A.label("awake")
                A("s_bcnt1_i32_b32 s77, s76"); A("s_cmp_lt_u32 s77, 30"); A(f"s_cbranch_scc1 {q}")
                A(f"s_sleep {cfg.LSLEEP}")
                A(f"{q}:")
            spin_tail(lbl, sleep=cfg.HSLEEP)
        else:
            issue()
            A("s_waitcnt vmcnt(0)")
            check()
            A(f"s_cbranch_vccz {go}")
            remask()
            for d in range(cfg.PIPE):
                issue()
                A(f"s_sleep {cfg.PGAP}")
            A(f"{lbl}:")
            issue()
            A(f"s_waitcnt vmcnt({n * cfg.PIPE})")
            check()
            A(f"s_cbranch_vccz {go}")
            remask()
            spin_tail(lbl, sleep=0)
    codes = {}
    def die(lbl):
        if cfg.DIAG:
            codes.setdefault(lbl, len(codes) + 1)
            A("s_mov_b64 exec, 1")
            A(f"v_mov_b32 v248, {codes[lbl]}"); A("v_mov_b32 v249, s40"); A("v_mov_b32 v250, s43"); A("v_mov_b32 v251, s73"); A("v_mov_b32 v252, 0")
            A("s_lshl_b32 s98, s2, 3"); A("s_add_u32 s98, s98, s3"); A("s_lshl_b32 s98, s98, 7"); A(f"s_add_u32 s98, s98, {WS_DIAG + 112}")
            A("buffer_store_dwordx4 v[248:251], v252, s[36:39], s98 offen")
        A("s_endpgm")
    def spin_tail(lbl, cnt="s45", sleep=1):
        A(f"s_sleep {sleep}")
        A(f"s_sub_u32 {cnt}, {cnt}, 1")
        A(f"s_cmp_lg_u32 {cnt}, 0")
        A(f"s_cbranch_scc1 {lbl}")
        die(lbl)

    hdr = open('recurrent_scan__gqa_block_cached__glu_gated_geglu__decode.s.ref').read().split('\n')
    for line in hdr:
        if line.startswith('; @launch') or not line.startswith(';'):
            break
        A.L.append(line)
    A(f"; @launch grid=(256,1,1) block=(512,1,1) lds={LD['END']}")
    A('.amdgcn_target "amdgcn-amd-amdhsa--gfx950"')
    A(".text"); A(f".globl {NAME}"); A(".p2align 8"); A(f".type {NAME},@function"); A(f"{NAME}:")
    if cfg.DIAG or cfg.DBGT:
        A("s_memrealtime s[92:93]")
    A(f"""
    s_cmp_ge_u32 s2, 256
    s_cbranch_scc1 L_end
    s_load_dwordx8 s[4:11], s[0:1], 0
    s_load_dwordx8 s[12:19], s[0:1], 32
    s_load_dwordx8 s[20:27], s[0:1], 64
    v_and_b32 v1, 63, v0
    v_lshrrev_b32 v2, 6, v0
    v_lshlrev_b32 v3, 2, v1
    v_add_u32 v3, {LD['FLAGS']}, v3
    v_mov_b32 v4, 0
    ds_write_b32 v3, v4
    v_readfirstlane_b32 s3, v2
    s_mov_b32 s45, {cfg.SPIN}
    s_mov_b32 s40, 0
    s_mov_b32 s43, 0
    s_mov_b32 s73, 0
    """)
    A("v_lshrrev_b32 v5, 5, v1")
    A("v_and_b32 v6, 31, v1")
    A("v_xor_b32 v6, v6, v5")
    A("v_lshlrev_b32 v5, 9, v5")
    for j in range(8):
        A(f"v_xor_b32 v7, {2*j}, v6")
        A(f"v_lshl_add_u32 v{8+j}, v7, 4, v5")
    A("v_lshlrev_b32 v16, 4, v1")
    A(f"v_mov_b32 v17, {LD['FLAGS']}")
    A("s_lshr_b32 s46, s2, 4")
    A("s_lshl_b32 s46, s46, 24")
    def ld_addr(dst, dt):
        if cfg.G4:
            if dst != "s42":
                return
            A("s_lshl_b32 s69, s67, 1")
            A("s_add_u32 s42, s69, s68"); A("s_and_b32 s42, s42, 255"); A("s_lshl_b32 s42, s42, 16")
            A(f"s_mul_i32 s69, s69, {cfg.ROT}"); A("s_add_u32 s69, s69, s66"); A("s_and_b32 s69, s69, 15"); A("s_lshl_b32 s75, s69, 12")
            return
        A(f"s_add_u32 s69, s67, {dt}")
        A(f"s_add_u32 {dst}, s69, s68"); A(f"s_and_b32 {dst}, {dst}, 127"); A(f"s_lshl_b32 {dst}, {dst}, 17")
        A(f"s_mul_i32 s69, s69, {cfg.ROT}"); A("s_add_u32 s69, s69, s66"); A("s_and_b32 s69, s69, 15"); A("s_lshl_b32 s69, s69, 13")
        A(f"s_or_b32 {dst}, {dst}, s69")
    A("s_mov_b32 s41, 0"); A("s_and_b32 s66, s2, 15"); A("s_mov_b32 s67, 0"); A("s_mov_b32 s44, 0")
    A("s_lshr_b32 s70, s2, 4"); A(f"s_mul_i32 s68, s70, {cfg.GS}")
    ld_addr("s42", 0); ld_addr("s75", 1)
    A("s_mov_b32 s53, 0")
    A(f"s_mov_b32 s30, {1 << 24}"); A("s_mov_b32 s31, 0x20000"); A(f"s_mov_b32 s34, {1 << 24}"); A("s_mov_b32 s35, 0x20000")
    A("s_waitcnt lgkmcnt(0)")
    A("s_add_u32 s28, s6, s46"); A("s_addc_u32 s29, s7, 0"); A("s_and_b32 s29, s29, 0xffff")
    if cfg.LBAR:
        A("s_cmp_eq_u32 s3, 0")
        A("s_cbranch_scc1 L_loader")
        A("s_barrier")
        A("s_branch L_notloader")
        A("L_loader:")
    else:
        A("s_barrier")
        A("s_cmp_lg_u32 s3, 0")
        A("s_cbranch_scc1 L_notloader")
    A("s_setprio 3")
    if cfg.DIAG:
        srd(36, 26, WS_SIZE)
    stamp(0)
    if cfg.DIAG == 1:
        A("v_mov_b32 v250, s92"); A("v_mov_b32 v251, s93"); A("s_mov_b64 exec, 1")
        A("buffer_store_dwordx2 v[250:251], v252, s[36:39], s98 offen offset:56")
        A("s_mov_b64 exec, -1")
    a_, jp = divmod(F - 1, 16)
    assert S % 2 == 0
    NFB = 1792 // cfg.FB
    assert (cfg.ET * cfg.EZ) % 2 == 0
    FC = 8 + cfg.ET * cfg.EZ // 2
    if cfg.DIAG:
        A("s_mov_b32 s90, 0")
        A("s_mov_b32 s88, 0")
    def ld_body(kinds, first=False, F=F):
        a_, jp = divmod(F - 1, 16)
        for j in range(16):
            if j % 4 == 0:
                A(f"s_add_u32 m0, s41, {j*1024}")
                if cfg.G4:
                    if kinds == "KV" and j >= 8:
                        A(f"s_mov_b32 s47, s{76 + (j - 8) // 4}")
                    else:
                        A("s_or_b32 s47, s42, s75")
                        if kinds == "KV":
                            A(f"s_mov_b32 s{76 + j // 4}, s47")
                else:
                    A(f"s_add_u32 s47, {'s42' if j < 8 else 's75'}, {(j % 8)*1024}")
            if cfg.G4 and j % 4 == 1 and not (kinds == "KV" and j >= 8):
                A("s_add_u32 s42, s42, 0x10000"); A("s_and_b32 s42, s42, 0xffffff")
                A(f"s_add_u32 s75, s75, {cfg.ROT << 12}"); A("s_and_b32 s75, s75, 0xffff")
            if j == 8:
                A("s_add_u32 s44, s44, 4"); A(f"s_cmp_ge_u32 s44, {R*4}"); A("s_cselect_b32 s44, 0, s44")
                A("v_add_u32 v19, s44, v17")
                A("ds_read_b32 v20, v19 offset:64")
            if not first:
                A(f"s_waitcnt vmcnt({F-1})")
            if kinds[j // 8] == 'K':
                A(f"buffer_load_dwordx4 v{8 + j % 8}, s[28:31], s47 offen offset:{(j%4)*1024} {POL[cfg.KP]} lds")
            else:
                A(f"buffer_load_dwordx4 v16, s[32:35], s47 offen offset:{(j%4)*1024} {POL[cfg.VP]} lds")
            if j == jp and not first:
                A(f"s_sub_i32 s49, s40, {a_}")
                A("s_max_i32 s43, s43, s49")
                A("v_mov_b32 v18, s43")
                A("ds_write_b32 v17, v18")
        A("s_add_u32 s40, s40, 1")
        A("s_add_u32 s41, s41, 16384"); A(f"s_cmp_ge_u32 s41, {R*16384}"); A("s_cselect_b32 s41, 0, s41")
        A("s_sub_u32 s53, s53, 1")
    def ld_ring(lbl):
        if cfg.DIAG == 1:
            n = A.label("nops")
            A("s_and_b32 s91, s40, 15"); A("s_cmp_lg_u32 s91, 0"); A(f"s_cbranch_scc1 {n}")
            A("s_cmp_gt_u32 s40, 80"); A(f"s_cbranch_scc1 {n}")
            A("s_memrealtime s[96:97]")
            A("s_lshl_b32 s98, s2, 10"); A("s_lshr_b32 s91, s40, 1"); A("s_add_u32 s98, s98, s91"); A(f"s_add_u32 s98, s98, {WS_DIAG + 64}")
            A("s_waitcnt lgkmcnt(0)")
            A("v_mov_b32 v250, s96"); A("v_mov_b32 v251, s97"); A("v_mov_b32 v252, 0")
            A("s_mov_b64 exec, 1")
            A("buffer_store_dwordx2 v[250:251], v252, s[36:39], s98 offen")
            A("s_mov_b64 exec, -1")
            A(f"{n}:")
        A(f"s_sub_i32 s48, s40, {R-1}")
        A("v_readfirstlane_b32 s47, v20")
        A("s_cmp_ge_i32 s47, s48")
        A(f"s_cbranch_scc1 {lbl}")
        if cfg.DIAG == 1:
            n = A.label("nost")
            A("s_cmp_lg_u32 s90, 0"); A(f"s_cbranch_scc1 {n}"); A("s_mov_b32 s90, 1")
            stamp(2)
            A(f"{n}:")
            stamp(3)
        A("s_waitcnt vmcnt(0)")
        A("s_mov_b32 s43, s40")
        A("v_mov_b32 v18, s43")
        A("ds_write_b32 v17, v18")
        sp = lbl + "_spin"
        A(f"{sp}:")
        A("ds_read_b32 v20, v19 offset:64")
        A("s_waitcnt lgkmcnt(0)")
        A("v_readfirstlane_b32 s47, v20")
        A("s_cmp_ge_i32 s47, s48")
        A(f"s_cbranch_scc1 {lbl}")
        spin_tail(sp)
    def ld_ticket_req():
        n = A.label("noat")
        A("s_add_u32 s74, s53, s71")
        A("s_cmp_lg_u32 s74, 1")
        A(f"s_cbranch_scc1 {n}")
        A("s_mov_b32 s54, 1")
        if NT:
            A("s_atomic_add s54, s[56:57], 0x0 glc")
        A(f"{n}:")
    def ld_adv():
        if not cfg.SVC:
            A("s_add_u32 s67, s67, 2")
            return
        o = A.label("own"); d = A.label("adv")
        A("s_cmp_eq_u32 s66, s70"); A(f"s_cbranch_scc1 {o}")
        A("s_cmp_lg_u32 s67, s83"); A(f"s_cbranch_scc1 {o}")
        A("s_mov_b32 s66, s70"); A("s_add_u32 s83, s83, 30"); A(f"s_branch {d}")
        A(f"{o}:")
        A("s_mov_b32 s66, s81"); A("s_add_u32 s67, s67, 2")
        A(f"{d}:")
    if cfg.SVC:
        assert 120 <= S <= 122 and not cfg.LBAR
        A("s_cmp_eq_u32 s66, s70")
        A("s_cbranch_scc1 L_ld_svc")
    ld_body("KK", first=True)
    A("s_add_u32 s32, s8, s46"); A("s_addc_u32 s33, s9, 0"); A("s_and_b32 s33, s33, 0xffff")
    if cfg.LBAR:
        A("s_barrier")
    A(f"s_mul_i32 s50, s70, {PCS}"); A(f"s_add_u32 s50, s50, {WS_PC}")
    A("s_add_u32 s56, s26, s50"); A("s_addc_u32 s57, s27, 0")
    A(f"s_mov_b32 s60, {hex(SZP & 0xffffffff)}"); A(f"s_mov_b32 s61, {hex(SZP >> 32)}")
    A(f"s_mov_b32 s62, {hex(STP & 0xffffffff)}"); A(f"s_mov_b32 s63, {hex(STP >> 32)}")
    A("s_mov_b32 s54, 0")
    if not cfg.SVC:
        A(f"s_cmp_lt_u32 s70, {0 if cfg.NOCF else NFB}"); A("s_cselect_b32 s71, 1, 0")
        A(f"s_add_u32 s72, s66, {S - 16}")
        A("s_cmp_eq_u32 s66, s70"); A("s_cselect_b32 s78, s71, 0"); A(f"s_mul_i32 s78, s78, {FC}"); A(f"s_sub_u32 s78, {S // 2}, s78")
        A(f"s_mul_i32 s80, s71, {cfg.ET}")
    else:
        A("s_mov_b32 s71, 0"); A(f"s_mov_b32 s78, {S // 2 + 4}"); A("s_mov_b32 s81, s66")
        A("s_cmp_gt_u32 s66, s70"); A("s_cselect_b32 s82, 1, 0"); A("s_sub_u32 s82, s66, s82"); A("s_lshl_b32 s82, s82, 1")
        A("s_mov_b32 s83, s82")
    A("s_sub_u32 s53, s78, 1")
    A("s_branch L_ld_kbot")
    if cfg.SVC:
        A("L_ld_svc:")
        A("s_add_u32 s32, s8, s46"); A("s_addc_u32 s33, s9, 0"); A("s_and_b32 s33, s33, 0xffff")
        A("s_mov_b32 s53, 8"); A("s_mov_b32 s67, 120"); A("s_mov_b32 s71, 64")
        A("s_mov_b32 s56, s26"); A("s_mov_b32 s57, s27")
        ld_addr("s42", 0)
        A("s_mov_b32 s75, s42")
        A("s_branch L_ld_c")
    A("L_ld_k:")
    ld_body("KK")
    A("L_ld_kbot:")
    ld_adv()
    A("s_cmp_lg_u32 s53, 0")
    A("s_cbranch_scc1 L_ld_kc")
    A("s_mov_b32 s67, 0"); A("s_mov_b32 s53, s78")
    if cfg.SVC:
        A("s_mov_b32 s66, s81"); A("s_mov_b32 s83, s82")
    A("s_branch L_ld_vc")
    A("L_ld_kc:")
    if not cfg.G4 or cfg.SVC:
        ld_addr("s42", 0); ld_addr("s75", 1)
    A("s_waitcnt lgkmcnt(0)")
    ld_ring("L_ld_k")
    A("L_ld_v:")
    ld_ticket_req()
    ld_body("VV")
    ld_adv()
    A("s_cmp_eq_u32 s53, 0")
    A("s_cbranch_scc1 L_ld_next")
    A("L_ld_vc:")
    ld_addr("s42", 0); ld_addr("s75", 1)
    A("s_waitcnt lgkmcnt(0)")
    ld_ring("L_ld_v")
    A("L_ld_c:")
    ld_ticket_req()
    F3 = cfg.F3 or F
    ld_body("KV", F=F3)
    A("s_add_u32 s67, s67, 1")
    A("s_cmp_lg_u32 s53, 0")
    A("s_cbranch_scc1 L_ld_cc")
    A("L_ld_next:")
    A("s_cmp_eq_u32 s71, 0"); A("s_cbranch_scc1 L_ld_tick")
    if cfg.SVC:
        A("s_branch L_ld_done")
    A("s_mov_b32 s71, 0"); A("s_mov_b32 s53, 1"); A("s_mov_b32 s66, s70"); A("s_mov_b32 s67, s72")
    A("s_branch L_ld_cc")
    A("L_ld_tick:")
    if cfg.DIAG == 1:
        A("s_memrealtime s[84:85]")
    A("s_waitcnt lgkmcnt(0)")
    if cfg.DIAG == 1:
        A("s_memrealtime s[86:87]"); A("s_waitcnt lgkmcnt(0)")
        A("s_sub_u32 s86, s86, s84"); A("s_lshl_b32 s88, s88, 8"); A("s_min_u32 s86, s86, 255"); A("s_or_b32 s88, s88, s86")
    if cfg.ET and not cfg.SVC:
        A("s_cmp_ge_u32 s54, s80"); A("s_cbranch_scc1 L_ld_tick2")
        A(f"s_mov_b32 s53, {cfg.EZ}"); A("s_mov_b32 s66, s70")
        A(f"s_mul_i32 s67, s54, {cfg.EZ}"); A(f"s_add_u32 s67, s67, {S - 2 * FC}")
        A("s_branch L_ld_cc")
        A("L_ld_tick2:")
        A("s_sub_u32 s54, s54, s80")
    A(f"s_cmp_ge_u32 s54, {NT}")
    A("s_cbranch_scc1 L_ld_done")
    if cfg.SVC:
        A("s_mul_i32 s51, s54, 4370"); A("s_lshr_b32 s51, s51, 16")
        A("s_mul_i32 s52, s51, 15"); A("s_sub_u32 s54, s54, s52")
        A("s_cmp_ge_u32 s54, s70"); A("s_addc_u32 s54, s54, 0")
        A("s_lshl_b32 s51, s51, 3")
    else:
        A("s_lshr_b32 s51, s54, 4"); A("s_lshl_b32 s51, s51, 3")
    A("s_lshr_b64 s[64:65], s[60:61], s51"); A("s_and_b32 s53, s64, 0xff")
    A("s_lshr_b64 s[64:65], s[62:63], s51"); A("s_and_b32 s67, s64, 0xff")
    A("s_and_b32 s66, s54, 15")
    A("L_ld_cc:")
    ld_addr("s42", 0)
    if not cfg.G4:
        A("s_mov_b32 s75, s42")
    A("s_waitcnt lgkmcnt(0)")
    ld_ring("L_ld_c")
    A("L_ld_done:")
    A("s_lshl_b32 s50, s40, 16")
    A("s_or_b32 s51, s50, s43")
    A("v_mov_b32 v18, s51")
    A("ds_write_b32 v17, v18")
    for k in range(3, -1, -1):
        if 16 * k < max(F, F3):
            A(f"s_sub_u32 s51, s40, {k}")
            A("s_max_u32 s51, s51, s43")
            A("s_or_b32 s51, s51, s50")
            A(f"s_waitcnt vmcnt({16*k})")
            A(f"v_mov_b32 v18, s51")
            A("ds_write_b32 v17, v18")
            if k == 1 and cfg.EARLYK:
                A("s_or_b32 s51, s51, 0x8000")
                A("s_waitcnt vmcnt(8)")
                A(f"v_mov_b32 v18, s51")
                A("ds_write_b32 v17, v18")
    if cfg.DIAG:
        A("v_mov_b32 v250, s40"); A("v_mov_b32 v251, s88"); A("v_mov_b32 v252, 0")
        A("s_lshl_b32 s98, s2, 10"); A(f"s_add_u32 s98, s98, {WS_DIAG + 8*8}")
        A("s_mov_b64 exec, 1")
        A("buffer_store_dwordx2 v[250:251], v252, s[36:39], s98 offen")
        A("s_mov_b64 exec, -1")
        A("s_nop 1")
    stamp(1, light=True)
    if cfg.DIAG == 2:
        A("s_nop 1")
        A("v_mov_b32 v250, s92"); A("v_mov_b32 v251, s93"); A("s_mov_b64 exec, 1")
        A("buffer_store_dwordx2 v[250:251], v252, s[36:39], s98 offen offset:48")
    A("s_endpgm")

    A("L_notloader:")
    A(f"s_load_dword s58, s[26:27], {WS_EP}")
    A(f"s_mov_b32 s59, {TAGM}")
    A("v_and_b32 v3, 7, v1")
    A("v_lshrrev_b32 v4, 1, v3")
    A("v_and_b32 v5, 1, v3")
    A("v_mov_b32 v6, 0x0c0c0100")
    A("v_mov_b32 v7, 0x01000c0c")
    A("v_cmp_eq_u32 vcc, 1, v5")
    A("v_mov_b32 v8, 0x0c0c0302")
    A("v_mov_b32 v9, 0x03020c0c")
    A("v_cndmask_b32 v6, v6, v7, vcc")
    A("v_cndmask_b32 v8, v8, v9, vcc")
    A("v_mov_b32 v7, 0x0c0c0c0c")
    for k in range(4):
        A(f"v_cmp_eq_u32 vcc, {k}, v4")
        A("s_nop 1")
        A(f"v_cndmask_b32 v{12+k}, v7, v6, vcc")
        A(f"v_cndmask_b32 v{16+k}, v7, v8, vcc")
    A("v_and_b32 v10, 15, v1")
    A("v_lshrrev_b32 v11, 4, v1")
    A("s_lshr_b32 s50, s2, 4")
    A("s_and_b32 s51, s2, 15")
    A("s_lshr_b32 s52, s2, 7")
    A("s_and_b32 s53, s50, 7")
    A(f"s_mov_b32 s54, {hex(f2u(CSC))}")
    srd(36, 26, WS_SIZE)
    A("s_cmp_eq_u32 s3, 4")
    A("s_cbranch_scc1 L_helper")

    A("s_sub_u32 s55, s3, 1")
    A("s_cmp_gt_u32 s3, 4")
    A("s_cselect_b32 s47, 1, 0")
    A("s_sub_u32 s55, s55, s47")
    def wo_loads(i_reg, s_reg, issue=True, prep=True):
        if prep:
            srd(28, 12, 4096 * 896)
            A(f"s_lshl_b32 s82, s53, 9"); A(f"s_lshl_b32 s47, s51, 5"); A(f"s_add_u32 s82, s82, s47")
            A(f"s_mul_i32 s82, s82, 896"); A(f"s_lshl_b32 s47, s55, 8"); A(f"s_add_u32 s82, s82, s47")
            A(f"v_mul_u32_u24 v204, 896, v{s_reg}")
            A(f"v_lshl_add_u32 v204, v{i_reg}, 4, v204")
            A(f"s_cmp_eq_u32 s55, 3")
            A(f"s_cselect_b32 s47, 8, 16")
            A(f"v_cmp_le_u32 vcc, s47, v{i_reg}")
            A(f"v_bfrev_b32 v205, 2")
            A(f"s_nop 0")
            A(f"v_cndmask_b32 v204, v204, v205, vcc")
        if issue:
            for rr in range(4):
                for hi in range(2):
                    t = 4 * hi + rr
                    A(f"buffer_load_dwordx4 v[{156+4*t}:{159+4*t}], v204, s[28:31], s82 offen offset:{hi*4*896} nt")
                if rr < 3:
                    A(f"s_add_u32 s82, s82, {8*896}")
    wo_loads(10, 11, issue=False)
    if not cfg.WOLATE:
        A(f"s_cmp_ge_u32 s55, {0 if cfg.NOWO else 4}")
        A("s_cbranch_scc1 L_c_nowo")
        wo_loads(10, 11, prep=False)
    A("L_c_nowo:")
    A("v_xor_b32 v23, v10, v11")
    A("v_lshlrev_b32 v24, 9, v10")
    for a in range(4):
        A(f"v_xor_b32 v25, {4*a}, v23")
        A(f"v_lshl_add_u32 v{2+a}, v25, 4, v24")
    A("v_lshlrev_b32 v24, 11, v11")
    A("v_lshl_add_u32 v6, v10, 4, v24")
    A(f"v_mov_b32 v188, {LD['FLAGS']}")
    A(f"v_mov_b32 v20, {hex(f2u(-3.0e38))}")
    A("v_mul_f32 v21, s54, v20")
    A("v_mov_b32 v22, 0")
    for k in range(8):
        A(f"v_mov_b32 v{132+k}, 0")
    A("v_mov_b32 v189, v10"); A("v_mov_b32 v190, v11")
    A("v_lshrrev_b32 v23, 3, v10"); A("v_lshlrev_b32 v23, 6, v23"); A("v_lshl_add_u32 v23, v11, 4, v23")
    A(f"v_add_u32 v202, {LD['SC']}, v23")
    if not cfg.SVC:
        A(f"s_cmp_lt_u32 s50, {0 if cfg.NOCF else NFB}"); A(f"s_cselect_b32 s78, {FC}, 0")
        A("s_cmp_eq_u32 s51, s50"); A("s_cselect_b32 s78, s78, 0"); A(f"s_sub_u32 s78, {S // 2}, s78")
    else:
        A("s_cmp_eq_u32 s51, s50"); A(f"s_cselect_b32 s78, 0, {S // 2 + 4}")
    A("s_lshl_b32 s79, s78, 1")
    A("s_mov_b32 s40, s55")
    A("s_lshl_b32 s41, s55, 14")
    A("s_mov_b32 s44, 0")
    A("s_waitcnt lgkmcnt(0)")
    A("s_add_u32 s58, s58, 1")
    A("s_and_b32 s46, s58, s59")
    A(f"v_mov_b32 v{TG}, s46")
    def c_wait(lbl, can_end):
        A(f"{lbl}:")
        A("ds_read_b32 v23, v188")
        A("s_lshr_b32 s47, s41, 12")
        A("v_add_u32 v191, s47, v188")
        A("s_add_u32 s42, s40, 1")
        A("v_mov_b32 v192, s42")
        A("s_waitcnt lgkmcnt(0)")
        A("v_readfirstlane_b32 s43, v23")
        A("s_and_b32 s46, s43, 0x7fff")
        if can_end and cfg.EARLYK:
            A("s_bfe_u32 s47, s43, 0x1000f")
            A("s_add_u32 s46, s46, s47")
        A("s_cmp_gt_u32 s46, s40")
        A(f"s_cbranch_scc1 {lbl}_go")
        if can_end:
            A("s_lshr_b32 s46, s43, 16")
            A("s_sub_u32 s46, s46, 1")
            A("s_cmp_lt_u32 s46, s40")
            A("s_cbranch_scc1 L_c_tail")
        spin_tail(lbl, sleep=0 if can_end else cfg.PSLEEP)
        A(f"{lbl}_go:")
    def c_adv():
        A(f"s_add_u32 s40, s40, {C}")
        A(f"s_add_u32 s41, s41, {C*16384}")
        A(f"s_sub_u32 s47, s41, {R*16384}")
        A(f"s_cmp_ge_u32 s41, {R*16384}")
        A("s_cselect_b32 s41, s47, s41")
    def k_reads(base, off):
        for t in range(8):
            A(f"ds_read_b128 v[{base+4*t}:{base+3+4*t}], v{7 + t % 4} offset:{off + (t//4)*256}")
    def v_reads(base, off, rs=range(4)):
        for r in rs:
            for h in range(2):
                A(f"ds_read_b128 v[{base+8*r+4*h}:{base+3+8*r+4*h}], v11 offset:{off + r*512 + h*256}")
    def resc(lbl):
        A(f"{lbl}:")
        A("v_mov_b32 v31, v30")
        A("s_nop 1")
        A("v_permlane16_swap_b32 v30, v31")
        A("v_max_f32 v30, v30, v31")
        A("v_mov_b32 v31, v30")
        A("s_nop 1")
        A("v_permlane32_swap_b32 v30, v31")
        A("v_max3_f32 v20, v30, v31, v20")
        A("v_mul_f32 v30, s54, v20")
        A("v_sub_f32 v31, v21, v30")
        A("v_exp_f32 v31, v31")
        A("v_mov_b32 v21, v30")
        for k in range(8):
            A(f"v_mul_f32 v{132+k}, v{132+k}, v31")
        A("v_mul_f32 v22, v22, v31")
        A(f"s_branch {lbl}_ret")
    def pv(tiles):
        steps = [(pb + r // 2, 12 + 4 * (r % 2), vb + 8 * r) for (pb, vb) in tiles for r in range(4)]
        def mm(n):
            bb = 140 + 4 * (n % 4); vb = steps[n][2]
            for h in range(2):
                A(f"v_mfma_f32_16x16x32_bf16 v[{132+4*h}:{135+4*h}], v[{vb+4*h}:{vb+3+4*h}], v[{bb}:{bb+3}], v[{132+4*h}:{135+4*h}]")
        for n, (src, sel, vb) in enumerate(steps):
            for k in range(4):
                A(f"v_perm_b32 v{140+4*(n%4)+k}, v{src}, v{src}, v{sel+k}")
            if n >= 1:
                mm(n - 1)
        mm(len(steps) - 1)
    if cfg.SVC:
        A("s_cmp_eq_u32 s78, 0")
        A("s_cbranch_scc1 L_cc")
    c_wait("L_ck", False)
    for a in range(4):
        A(f"v_add_u32 v{7+a}, s41, v{2+a}")
    k_reads(64, 0); k_reads(96, 8192)
    A("s_lshl_b32 s47, s40, 7")
    A("v_add_u32 v203, s47, v202")
    A("s_waitcnt lgkmcnt(0)")
    A("ds_write_b32 v191, v192 offset:64")
    A("s_cmp_eq_u32 s44, 0")
    A("s_cbranch_scc1 L_c_first")
    A("L_ck_comp:")
    for t in range(8):
        A(f"v_mfma_f32_16x16x32_bf16 v[128:131], v[{64+4*t}:{67+4*t}], v[{32+4*t}:{35+4*t}], {'0' if t == 0 else 'v[128:131]'}")
        A(f"v_mfma_f32_16x16x32_bf16 v[140:143], v[{96+4*t}:{99+4*t}], v[{32+4*t}:{35+4*t}], {'0' if t == 0 else 'v[140:143]'}")
    c_adv()
    A("s_nop 2")
    A("v_cvt_pk_bf16_f32 v24, v128, v129")
    A("v_cvt_pk_bf16_f32 v25, v130, v131")
    A("v_cvt_pk_bf16_f32 v26, v140, v141")
    A("v_cvt_pk_bf16_f32 v27, v142, v143")
    A("s_mov_b32 exec_lo, 0x01010101"); A("s_mov_b32 exec_hi, 0x01010101")
    A("ds_write_b128 v203, v[24:27]")
    A("s_mov_b64 exec, -1")
    A("s_cmp_lt_u32 s40, s78")
    A("s_cbranch_scc1 L_ck")
    c_wait("L_cv", False)
    A("s_sub_u32 s47, s40, s78"); A("s_lshl_b32 s47, s47, 7")
    A("v_add_u32 v203, s47, v202")
    A("v_add_u32 v11, s41, v6")
    A("ds_read_b128 v[24:27], v203")
    v_reads(64, 0); v_reads(96, 8192, range(3))
    A("s_waitcnt lgkmcnt(14)")
    v_reads(96, 8192, [3])
    for k in range(4):
        A(f"v_lshlrev_b32 v{194+2*k}, 16, v{24+k}")
        A(f"v_and_b32 v{195+2*k}, 0xffff0000, v{24+k}")
    A("v_max3_f32 v30, v194, v195, v196")
    A("v_max3_f32 v31, v197, v198, v199")
    A("v_max3_f32 v30, v30, v200, v201")
    A("v_max_f32 v30, v30, v31")
    A("v_cmp_gt_f32 vcc, v30, v20")
    A("s_cbranch_vccnz L_cv_resc")
    A("L_cv_resc_ret:")
    for k in range(8):
        A(f"v_fma_f32 v{194+k}, v{194+k}, s54, -v21")
    for k in range(8):
        A(f"v_exp_f32 v{194+k}, v{194+k}")
    A("s_nop 0")
    for k in range(4):
        A(f"v_cvt_pk_bf16_f32 v{24+k}, v{194+2*k}, v{195+2*k}")
    for k in range(4):
        A(f"v_add_f32 v{194+2*k}, v{194+2*k}, v{195+2*k}")
    A("v_add_f32 v194, v194, v196"); A("v_add_f32 v198, v198, v200")
    A("v_add_f32 v22, v22, v194"); A("v_add_f32 v22, v22, v198")
    A("s_waitcnt lgkmcnt(0)")
    A("ds_write_b32 v191, v192 offset:64")
    pv([(24, 64), (26, 96)])
    c_adv()
    A("s_cmp_lt_u32 s40, s79")
    A("s_cbranch_scc1 L_cv")
    c_wait("L_cc", True)
    for a in range(4):
        A(f"v_add_u32 v{7+a}, s41, v{2+a}")
    A("v_add_u32 v11, s41, v6")
    if cfg.EARLYK:
        k_reads(64, 0)
        if cfg.SVC:
            A("s_cmp_eq_u32 s44, 0")
            A("s_cbranch_scc1 L_c_first")
            A("L_cc_comp:")
        for t in range(8):
            A(f"s_waitcnt lgkmcnt({7 - t})")
            A(f"v_mfma_f32_16x16x32_bf16 v[128:131], v[{64+4*t}:{67+4*t}], v[{32+4*t}:{35+4*t}], {'0' if t == 0 else 'v[128:131]'}")
        A("s_nop 7")
    else:
        k_reads(64, 0); v_reads(96, 8192)
        A("s_waitcnt lgkmcnt(8)")
        for t in range(8):
            A(f"v_mfma_f32_16x16x32_bf16 v[128:131], v[{64+4*t}:{67+4*t}], v[{32+4*t}:{35+4*t}], {'0' if t == 0 else 'v[128:131]'}")
        A("s_waitcnt lgkmcnt(0)")
        A("ds_write_b32 v191, v192 offset:64")
        c_adv()
        A("s_nop 0")
    A("v_cvt_pk_bf16_f32 v24, v128, v129")
    A("v_cvt_pk_bf16_f32 v25, v130, v131")
    A("v_lshlrev_b32 v26, 16, v24")
    A("v_and_b32 v27, 0xffff0000, v24")
    A("v_lshlrev_b32 v28, 16, v25")
    A("v_and_b32 v29, 0xffff0000, v25")
    A("v_max3_f32 v30, v26, v27, v28")
    A("v_max_f32 v30, v30, v29")
    A("v_cmp_gt_f32 vcc, v30, v20")
    A("s_cbranch_vccnz L_cc_resc")
    A("L_cc_resc_ret:")
    for k in range(4):
        A(f"v_fma_f32 v{26+k}, v{26+k}, s54, -v21")
    for k in range(4):
        A(f"v_exp_f32 v{26+k}, v{26+k}")
    A("s_nop 0")
    A("v_cvt_pk_bf16_f32 v24, v26, v27")
    A("v_cvt_pk_bf16_f32 v25, v28, v29")
    A("v_add_f32 v30, v26, v27")
    A("v_add_f32 v31, v28, v29")
    A("v_add_f32 v22, v22, v30")
    A("v_add_f32 v22, v22, v31")
    if cfg.EARLYK:
        A("L_cc_w2:")
        A("s_and_b32 s46, s43, 0x7fff")
        A("s_cmp_gt_u32 s46, s40")
        A("s_cbranch_scc1 L_cc_w2go")
        A("ds_read_b32 v23, v188")
        A("s_waitcnt lgkmcnt(0)")
        A("v_readfirstlane_b32 s43, v23")
        spin_tail("L_cc_w2", sleep=0)
        A("L_cc_w2go:")
        v_reads(96, 8192)
        for n in range(4):
            for k in range(4):
                A(f"v_perm_b32 v{140+4*n+k}, v{24 + n // 2}, v{24 + n // 2}, v{12 + 4 * (n % 2) + k}")
        c_adv()
        for n in range(4):
            for h in range(2):
                A(f"s_waitcnt lgkmcnt({7 - 2*n - h})")
                A(f"v_mfma_f32_16x16x32_bf16 v[{132+4*h}:{135+4*h}], v[{96+8*n+4*h}:{99+8*n+4*h}], v[{140+4*n}:{143+4*n}], v[{132+4*h}:{135+4*h}]")
        A("ds_write_b32 v191, v192 offset:64")
    else:
        pv([(24, 96)])
    A("s_lshr_b32 s46, s43, 16")
    A("s_sub_u32 s46, s46, 1")
    A("s_cmp_ge_u32 s46, s40")
    A("s_cbranch_scc1 L_cc")
    A("L_c_tail:")
    stamp(3)
    A(f"s_add_u32 s47, s41, {(R - C)*16384}")
    A(f"s_sub_u32 s48, s47, {R*16384}")
    A(f"s_cmp_ge_u32 s47, {R*16384}")
    A("s_cselect_b32 s47, s48, s47")
    A("v_lshl_add_u32 v25, v1, 4, s47")
    A("v_lshl_add_u32 v26, v1, 3, s47")
    A("v_mov_b32 v28, v21"); A("v_mov_b32 v29, v22")
    A("ds_write_b64 v26, v[28:29] offset:2048")
    A("ds_write_b128 v25, v[132:135]")
    A("ds_write_b128 v25, v[136:139] offset:1024")
    A("s_cmp_lt_u32 s55, 4")
    A("s_cbranch_scc1 L_p_wave")
    A("s_sub_u32 s56, s55, 4")
    A("s_lshr_b32 s46, s43, 16")
    A("s_sub_u32 s46, s40, s46")
    A("s_lshl_b32 s46, s46, 14")
    A("s_sub_i32 s46, s41, s46")
    for j in range(6):
        A("s_sub_i32 s46, s46, 16384")
        A(f"s_add_i32 s47, s46, {R*16384}")
        A("s_cmp_lt_i32 s46, 0")
        A("s_cselect_b32 s46, s47, s46")
        A(f"v_lshl_add_u32 v{70+j}, v1, 3, s46")
    A("s_lshl_b32 s47, s56, 10")
    A("v_lshl_add_u32 v27, v1, 3, s47")
    for j in range(6):
        A(f"v_add_u32 v{76+j}, v{70+j}, v27")
    if not cfg.HAL:
        A("v_lshrrev_b32 v26, 3, v189"); A("v_lshlrev_b32 v26, 14, v26"); A("v_lshl_add_u32 v26, v190, 11, v26")
        A("v_and_b32 v27, 7, v189"); A("v_lshl_add_u32 v26, v27, 4, v26")
        A("s_lshl_b32 s46, s50, 15"); A("s_lshl_b32 s47, s56, 13"); A("s_add_u32 s46, s46, s47")
        A("s_lshl_b32 s47, s51, 7"); A("s_add_u32 s46, s46, s47"); A(f"s_add_u32 s46, s46, {WS_HA}")
    else:
        A("v_lshrrev_b32 v26, 3, v189"); A("v_lshlrev_b32 v26, 9, v26"); A("v_lshl_add_u32 v26, v190, 7, v26")
        A("v_and_b32 v27, 7, v189"); A("v_lshl_add_u32 v26, v27, 4, v26")
        A(f"s_mul_i32 s46, s2, {HBS}"); A(f"s_add_u32 s49, s46, {WS_HA2 + 2048}")
        A("s_lshl_b32 s47, s56, 10"); A("s_add_u32 s46, s46, s47"); A(f"s_add_u32 s46, s46, {WS_HA2}")
    A("s_waitcnt lgkmcnt(0)")
    A("s_barrier")
    for j in range(6):
        A(f"ds_read_b64 v[{84+2*j}:{85+2*j}], v{70+j} offset:2048")
    for j in range(6):
        A(f"ds_read_b128 v[{96+4*j}:{99+4*j}], v{76+j}")
    A("s_waitcnt lgkmcnt(6)")
    A("v_max3_f32 v28, v84, v86, v88")
    A("v_max3_f32 v28, v28, v90, v92")
    A("v_max_f32 v28, v28, v94")
    for j in range(6):
        A(f"v_sub_f32 v{84+2*j}, v{84+2*j}, v28")
    for j in range(6):
        A(f"v_exp_f32 v{84+2*j}, v{84+2*j}")
    A("s_waitcnt lgkmcnt(0)")
    for k in range(4):
        A(f"v_mul_f32 v{120+k}, v84, v{96+k}")
    for j in range(1, 6):
        for k in range(4):
            A(f"v_fmac_f32 v{120+k}, v{84+2*j}, v{96+4*j+k}")
    for k in range(4):
        tag(120 + k)
    A("buffer_store_dwordx4 v[120:123], v26, s[36:39], s46 offen sc1")
    A("s_cmp_eq_u32 s56, 0")
    A("s_cbranch_scc1 L_x0")
    A("v_mul_f32 v29, v84, v85")
    for j in range(1, 6):
        A(f"v_fmac_f32 v29, v{84+2*j}, v{85+2*j}")
    A(f"v_lshlrev_b32 v27, {1 if cfg.HAL else 8}, v189")
    A("v_mov_b32 v24, v29")
    A("s_lshl_b32 s48, s50, 12"); A("s_lshl_b32 s47, s51, 7")
    A("v_permlane16_swap_b32 v29, v24")
    A("v_add_f32 v29, v29, v24")
    A("v_mov_b32 v24, v29")
    A("s_add_u32 s48, s48, s47"); A(f"s_add_u32 s48, s48, {WS_HM}")
    A("v_permlane32_swap_b32 v29, v24")
    A("v_add_f32 v29, v29, v24")
    A("v_mov_b32 v30, s58")
    A("v_mov_b32 v31, s58")
    A("s_mov_b64 exec, 0x101")
    A(f"buffer_store_dwordx4 v[28:31], v27, s[36:39], {'s49' if cfg.HAL else 's48'} offen sc1")
    A("s_mov_b64 exec, -1")
    if cfg.WOLATE == 4:
        A("s_barrier")
    stamp(4)
    A("s_endpgm")
    A("L_x0:")
    if cfg.WOLATE == 4:
        A("s_barrier")
    stamp(4)
    if not cfg.HAL:
        A("v_lshlrev_b32 v24, 7, v189")
        A("v_lshl_add_u32 v23, v190, 4, v24")
        A("s_lshl_b32 s46, s2, 11"); A(f"s_add_u32 s46, s46, {WS_HA}")
        A("s_lshl_b32 s48, s50, 12"); A("s_lshr_b32 s47, s51, 3"); A("s_lshl_b32 s47, s47, 11"); A("s_add_u32 s48, s48, s47"); A(f"s_add_u32 s48, s48, {WS_HM}")
    else:
        A(f"v_mul_u32_u24 v24, {HBS}, v189")
        A("v_lshl_add_u32 v23, v190, 4, v24")
        A(f"s_mul_i32 s48, s50, {16 * HBS}"); A(f"s_add_u32 s48, s48, {WS_HA2}")
        A("s_and_b32 s46, s51, 3"); A("s_lshl_b32 s46, s46, 7"); A("s_add_u32 s46, s46, s48")
        A("s_and_b32 s47, s51, 4"); A("s_lshl_b32 s47, s47, 8"); A("s_add_u32 s46, s46, s47")
        A("s_and_b32 s47, s51, 8"); A("s_lshl_b32 s49, s47, 6"); A("s_add_u32 s46, s46, s49")
        A("s_lshl_b32 s47, s47, 1"); A("s_add_u32 s48, s48, s47"); A("s_add_u32 s48, s48, 2048")
    A("v_lshl_add_u32 v27, v190, 4, v188")
    if cfg.BAR3:
        A("s_waitcnt vmcnt(0)")
    stamp(5)
    def issA():
        A("buffer_load_dwordx4 v[64:67], v23, s[36:39], s46 offen sc1")
        A("buffer_load_dwordx4 v[68:71], v23, s[36:39], s46 offen offset:64 sc1")
        A("buffer_load_dwordx4 v[72:75], v24, s[36:39], s48 offen sc1")
    poll("L_p_poll", issA, 3, lambda: tagcheck(range(64, 72), 25, full=(74, 75)), "L_p_go")
    A("L_p_go:")
    A("s_mov_b64 exec, -1")
    stamp(6)
    A("v_mov_b32 v26, v72")
    for sh in (8, 4, 2, 1):
        A("s_nop 1")
        A(f"v_max_f32_dpp v26, v26, v26 row_ror:{sh} row_mask:0xf bank_mask:0xf")
    A("v_sub_f32 v26, v72, v26")
    A("v_exp_f32 v26, v26")
    A("s_nop 0")
    A("v_mul_f32 v88, v73, v26")
    for k in range(8):
        A(f"v_mul_f32 v{80+k}, v{64+k}, v26")
    for sh in (8, 4, 2, 1):
        for k in (8, 0, 1, 2, 3, 4, 5, 6, 7):
            A(f"v_add_f32_dpp v{80+k}, v{80+k}, v{80+k} row_ror:{sh} row_mask:0xf bank_mask:0xf")
            if sh == 1 and k == 2:
                A("v_rcp_f32 v88, v88")
    for k in range(8):
        A(f"v_mul_f32 v{80+k}, v{80+k}, v88")
    for k in range(4):
        A(f"v_cvt_pk_bf16_f32 v{76+k}, v{80+2*k}, v{81+2*k}")
    A("s_mov_b32 exec_lo, 0x00010001"); A("s_mov_b32 exec_hi, 0x00010001")
    A("ds_write_b128 v27, v[76:79] offset:160")
    A("s_waitcnt lgkmcnt(0)")
    A("s_barrier")
    A("s_endpgm")
    A("L_p_wave:")
    if cfg.WOLATE == 1:
        wo_loads(0, 0, prep=False)
    A("v_lshl_add_u32 v27, v190, 4, v188")
    if cfg.HBL:
        A("v_lshlrev_b32 v23, 14, v190")
        A("v_lshl_add_u32 v23, v189, 4, v23")
        A("s_lshl_b32 s46, s52, 18"); A("s_lshl_b32 s47, s55, 16"); A("s_add_u32 s46, s46, s47")
        A("s_and_b32 s47, s2, 127"); A("s_lshl_b32 s47, s47, 7"); A("s_add_u32 s46, s46, s47"); A(f"s_add_u32 s46, s46, {WS_HB}")
    else:
        A("v_lshlrev_b32 v23, 7, v190")
        A("v_lshl_add_u32 v23, v189, 4, v23")
        A("s_lshl_b32 s46, s2, 11"); A("s_lshl_b32 s47, s55, 9"); A("s_add_u32 s46, s46, s47"); A(f"s_add_u32 s46, s46, {WS_HB}")
    A("s_cmp_eq_u32 s55, 3")
    A("s_cselect_b32 s47, 0, 0x00ff00ff")
    if cfg.WOLATE == 3:
        A("s_lshr_b32 s48, s43, 16"); A("s_sub_u32 s48, s40, s48")
        A(f"s_cmp_ge_u32 s48, {5 - (cfg.WOLATE - 3)}")
        A("s_cbranch_scc1 L_p_late")
        wo_loads(0, 0, prep=False)
        A("s_waitcnt lgkmcnt(0)")
        A("s_barrier")
        A("s_branch L_p_join")
        A("L_p_late:")
        A("s_waitcnt lgkmcnt(0)")
        A("s_barrier")
        wo_loads(0, 0, prep=False)
        A("L_p_join:")
    else:
        A("s_waitcnt lgkmcnt(0)")
        A("s_barrier")
    if cfg.WOLATE == 4:
        A("s_barrier")
    if cfg.WOLATE in (2, 4):
        wo_loads(0, 0, prep=False)
    A("s_waitcnt vmcnt(0)")
    A("s_barrier")
    A("ds_read_b128 v[76:79], v27 offset:160")
    stamp(5)
    A("s_waitcnt lgkmcnt(0)")
    for t in range(9):
        if t < 8:
            src = 76 + t // 2; sel = 12 + 4 * (t % 2)
            for k in range(4):
                A(f"v_perm_b32 v{96+4*t+k}, v{src}, v{src}, v{sel+k}")
        else:
            A("s_nop 0")
        if t >= 1:
            u = t - 1
            A(f"v_mfma_f32_16x16x32_bf16 v[128:131], v[{156+4*u}:{159+4*u}], v[{96+4*u}:{99+4*u}], {'0' if u == 0 else 'v[128:131]'}")
    A("s_mov_b32 exec_lo, 0x00ff00ff"); A("s_mov_b32 exec_hi, s47")
    A("s_nop 5")
    for k in range(4):
        tag(128 + k)
    A("buffer_store_dwordx4 v[128:131], v23, s[36:39], s46 offen sc1")
    A("s_mov_b64 exec, -1")
    stamp(6)
    A("s_waitcnt vmcnt(0)")
    A("s_endpgm")
    resc("L_cv_resc")
    resc("L_cc_resc")
    A("L_c_first:")
    A("L_c_qwait:")
    A("ds_read_b32 v23, v188 offset:4")
    A("s_waitcnt lgkmcnt(0)")
    A("v_readfirstlane_b32 s46, v23")
    A("s_cmp_lg_u32 s46, 0")
    A("s_cbranch_scc1 L_c_qgo")
    spin_tail("L_c_qwait")
    A("L_c_qgo:")
    A("v_lshrrev_b32 v23, 3, v189")
    A("v_lshlrev_b32 v23, 9, v23")
    A("v_lshl_add_u32 v23, v190, 4, v23")
    A(f"v_add_u32 v23, {LD['Q']}, v23")
    for t in range(8):
        A(f"ds_read_b128 v[{32+4*t}:{35+4*t}], v23 offset:{64*t}")
    A("s_mov_b32 s44, 1")
    A("s_waitcnt lgkmcnt(0)")
    stamp(2)
    if cfg.SVC:
        assert cfg.EARLYK
        A("s_cmp_eq_u32 s78, 0")
        A("s_cbranch_scc1 L_cc_comp")
    A("s_branch L_ck_comp")

    A("L_helper:")
    srd(28, 4, 1792)
    srd(32, 10, 16 if cfg.NOWQ else 448 * 8192)
    A("v_lshrrev_b32 v20, 5, v1")
    A("v_and_b32 v21, 31, v1")
    A("v_mul_u32_u24 v22, 896, v20")
    A("v_lshl_add_u32 v22, v21, 2, v22")
    for m in range(7):
        A(f"buffer_load_dword v{24+m}, v22, s[28:31], 0 offen offset:{128*m}")
    if cfg.QV == 1:
        A("s_and_b32 s56, s51, 3"); A("s_lshr_b32 s57, s51, 2")
        A(f"v_mul_u32_u24 v23, {28*8192}, v11")
        A("v_lshl_add_u32 v23, v10, 4, v23")
        A(f"s_mul_i32 s46, s57, {112*8192}"); A("s_lshl_b32 s47, s53, 10"); A("s_add_u32 s46, s46, s47")
        A("s_lshl_b32 s47, s56, 8"); A("s_add_u32 s46, s46, s47")
    else:
        A("s_and_b32 s56, s51, 7"); A("s_lshl_b32 s56, s56, 1"); A("s_lshr_b32 s57, s51, 3"); A("s_add_u32 s56, s56, s57")
        A("v_lshrrev_b32 v23, 2, v1"); A(f"v_mul_u32_u24 v23, {28*8192}, v23")
        A("v_and_b32 v31, 3, v1"); A("v_lshl_add_u32 v23, v31, 4, v23")
        A("s_lshl_b32 s46, s53, 10"); A("s_lshl_b32 s47, s56, 6"); A("s_add_u32 s46, s46, s47")
    for t in range(28):
        A(f"buffer_load_dwordx4 v[{64+4*t}:{67+4*t}], v23, s[32:35], s46 offen nt")
        if t < 27:
            A("s_add_u32 s46, s46, 8192")
    A(f"s_mul_i32 s46, s50, {PCS}"); A(f"s_add_u32 s46, s46, {WS_PC}")
    A("s_cmp_eq_u32 s51, 0"); A(f"s_cselect_b32 s46, s46, {WS_SIZE}")
    A("v_mov_b32 v186, 0")
    A("s_mov_b64 exec, 1")
    A("buffer_store_dword v186, v186, s[36:39], s46 offen sc1")
    A("s_mov_b64 exec, -1")
    A("s_waitcnt lgkmcnt(0)")
    A("s_add_u32 s58, s58, 1")
    A("s_and_b32 s46, s58, s59")
    A(f"v_mov_b32 v{TG}, s46")
    NAFTER = 28 + 1
    stamp(0)
    ND = 1 if cfg.DIAG == 1 else 0
    A(f"s_waitcnt vmcnt({NAFTER + ND})")
    for m in range(7):
        A(f"v_lshlrev_b32 v{32+2*m}, 16, v{24+m}")
        A(f"v_and_b32 v{33+2*m}, 0xffff0000, v{24+m}")
    def red32(v, t):
        for sh in (8, 4, 2, 1):
            A("s_nop 1")
            A(f"v_add_f32_dpp v{v}, v{v}, v{v} row_ror:{sh} row_mask:0xf bank_mask:0xf")
        A(f"v_mov_b32 v{t}, v{v}")
        A("s_nop 1")
        A(f"v_permlane16_swap_b32 v{v}, v{t}")
        A(f"v_add_f32 v{v}, v{v}, v{t}")
    A("v_add_f32 v46, v32, v33")
    for k in range(2, 14):
        A(f"v_add_f32 v46, v46, v{32+k}")
    red32(46, 47)
    A(f"v_mul_f32 v46, {hex(f2u(1.0/448))}, v46")
    A("v_sub_f32 v48, v32, v46")
    A("v_mul_f32 v47, v48, v48")
    for k in range(1, 14):
        A(f"v_sub_f32 v48, v{32+k}, v46")
        A("v_fmac_f32 v47, v48, v48")
    red32(47, 48)
    A(f"v_mul_f32 v47, {hex(f2u(1.0/448))}, v47")
    A("v_cvt_pk_bf16_f32 v48, v46, v47")
    A("v_lshlrev_b32 v46, 16, v48")
    A("v_and_b32 v47, 0xffff0000, v48")
    A(f"v_add_f32 v47, {hex(f2u(1e-5))}, v47")
    A("v_cvt_pk_bf16_f32 v47, v47, v47")
    A("v_lshlrev_b32 v47, 16, v47")
    A("v_sqrt_f32 v47, v47")
    A("s_nop 0")
    A("v_cvt_pk_bf16_f32 v47, v47, v47")
    A("v_lshlrev_b32 v47, 16, v47")
    A("v_rcp_f32 v47, v47")
    for k in range(14):
        A(f"v_sub_f32 v{32+k}, v{32+k}, v46")
    for m in range(7):
        A(f"v_cvt_pk_bf16_f32 v{24+m}, v{32+2*m}, v{33+2*m}")
    for m in range(7):
        A(f"v_lshlrev_b32 v{32+2*m}, 16, v{24+m}")
        A(f"v_and_b32 v{33+2*m}, 0xffff0000, v{24+m}")
    for k in range(14):
        A(f"v_mul_f32 v{32+k}, v{32+k}, v47")
    for m in range(7):
        A(f"v_cvt_pk_bf16_f32 v{24+m}, v{32+2*m}, v{33+2*m}")
    A(f"v_add_u32 v22, {LD['XN']}, v22")
    for m in range(7):
        A(f"ds_write_b32 v22, v{24+m} offset:{128*m}")
    if cfg.QV == 1:
        A("s_mul_i32 s46, s52, 896"); A("s_mul_i32 s47, s57, 224"); A("s_add_u32 s46, s46, s47"); A(f"s_add_u32 s46, s46, {LD['XN']}")
        A("v_mul_u32_u24 v22, 56, v11")
        A("v_add_u32 v22, s46, v22")
        A("s_waitcnt lgkmcnt(0)")
        for m in range(7):
            A(f"ds_read_b64 v[{32+2*m}:{33+2*m}], v22 offset:{8*m}")
        A("s_waitcnt lgkmcnt(0)")
        for t in range(28):
            src = 32 + t // 2; sel = 12 + 4 * (t % 2); bb = 48 + 4 * (t % 2)
            for k in range(4):
                A(f"v_perm_b32 v{bb+k}, v{src}, v{src}, v{sel+k}")
            A(f"s_waitcnt vmcnt({27 - t + 1 + ND})")
            A("s_nop 0")
            A(f"v_mfma_f32_16x16x32_bf16 v[56:59], v[{64+4*t}:{67+4*t}], v[{bb}:{bb+3}], {'0' if t == 0 else 'v[56:59]'}")
        A("v_lshlrev_b32 v23, 7, v11")
        A("v_lshl_add_u32 v23, v10, 4, v23")
        A("s_lshl_b32 s46, s50, 13"); A("s_lshl_b32 s47, s56, 11"); A("s_add_u32 s46, s46, s47")
        A("s_lshl_b32 s47, s57, 9"); A("s_add_u32 s46, s46, s47"); A(f"s_add_u32 s46, s46, {WS_QP}")
        A("s_waitcnt vmcnt(0)")
        for k in range(4):
            tag(56 + k)
        A("s_mov_b32 exec_lo, 0x00ff00ff"); A("s_mov_b32 exec_hi, 0x00ff00ff")
        A("buffer_store_dwordx4 v[56:59], v23, s[36:39], s46 offen sc1")
        A("s_mov_b64 exec, -1")
        stamp(1)
        A("v_lshlrev_b32 v25, 7, v1")
        A("s_lshl_b32 s46, s50, 13"); A(f"s_add_u32 s46, s46, {WS_QP}")
        A("s_add_u32 s47, s46, 4096")
        A("v_lshlrev_b32 v22, 11, v20")
        A("v_lshl_add_u32 v22, v21, 4, v22")
        A("L_h_qpoll:")
        A("buffer_load_dword v26, v25, s[36:39], s46 offen sc1")
        A("s_waitcnt vmcnt(0)")
        tagcheck([26], 27)
        A("s_cbranch_vccz L_h_qgo")
        A("L_h_qretry:")
        spin_tail("L_h_qpoll", sleep=cfg.QSLEEP)
        A("L_h_qgo:")
        for z in range(2):
            for rs in range(4):
                A(f"buffer_load_dwordx4 v[{64+16*z+4*rs}:{67+16*z+4*rs}], v22, s[36:39], s{46+z} offen offset:{rs*512} sc1")
        A("s_waitcnt vmcnt(0)")
        tagcheck(range(64, 96), 27)
        A("s_cbranch_vccnz L_h_qretry")
        A("v_lshrrev_b32 v23, 3, v21")
        A("v_lshlrev_b32 v23, 6, v23")
        A("v_lshl_add_u32 v23, v20, 8, v23")
        A("v_lshl_add_u32 v23, v3, 1, v23")
        A(f"v_add_u32 v23, {LD['Q']}, v23")
        for z in range(2):
            b0 = 64 + 16 * z
            for k in range(4):
                A(f"v_add_f32 v{b0+k}, v{b0+k}, v{b0+4+k}")
                A(f"v_add_f32 v{b0+8+k}, v{b0+8+k}, v{b0+12+k}")
            for k in range(4):
                A(f"v_add_f32 v{b0+k}, v{b0+k}, v{b0+8+k}")
            A(f"v_cvt_pk_bf16_f32 v{b0}, v{b0}, v{b0+1}")
            A(f"v_cvt_pk_bf16_f32 v{b0+1}, v{b0+2}, v{b0+3}")
            A(f"ds_write_b16 v23, v{b0} offset:{z*512}")
            A(f"ds_write_b16_d16_hi v23, v{b0} offset:{z*512+16}")
            A(f"ds_write_b16 v23, v{b0+1} offset:{z*512+32}")
            A(f"ds_write_b16_d16_hi v23, v{b0+1} offset:{z*512+48}")
    else:
        A("s_mul_i32 s46, s52, 896"); A(f"s_add_u32 s46, s46, {LD['XN']}")
        A("v_lshrrev_b32 v22, 3, v10"); A("v_lshl_add_u32 v22, v11, 2, v22"); A("v_mul_u32_u24 v22, 56, v22")
        A("v_add_u32 v22, s46, v22")
        A("s_waitcnt lgkmcnt(0)")
        for m in range(7):
            A(f"ds_read_b64 v[{32+2*m}:{33+2*m}], v22 offset:{8*m}")
        for m in range(7):
            A(f"ds_read_b64 v[{176+2*m}:{177+2*m}], v22 offset:{112+8*m}")
        A("s_waitcnt lgkmcnt(0)")
        for t in range(28):
            sel = 12 + 4 * (t % 2)
            for k in range(4):
                A(f"v_perm_b32 v{48+k}, v{32+t//2}, v{32+t//2}, v{sel+k}")
            for k in range(4):
                A(f"v_perm_b32 v{52+k}, v{176+t//2}, v{176+t//2}, v{sel+k}")
            A(f"s_waitcnt vmcnt({27 - t + 1 + ND})")
            A(f"v_mfma_f32_16x16x32_bf16 v[56:59], v[{64+4*t}:{67+4*t}], v[48:51], {'0' if t == 0 else 'v[56:59]'}")
            A(f"v_mfma_f32_16x16x32_bf16 v[60:63], v[{64+4*t}:{67+4*t}], v[52:55], {'0' if t == 0 else 'v[60:63]'}")
        A("v_lshlrev_b32 v23, 4, v1")
        A("s_lshl_b32 s46, s50, 11"); A(f"s_add_u32 s46, s46, {WS_QP}")
        A("s_lshl_b32 s47, s56, 7"); A("s_add_u32 s47, s47, s46")
        A("s_mov_b32 exec_lo, 0")
        A("s_nop 2")
        for k in range(4):
            A(f"v_mov_b32 v{56+k}, v{60+k}")
        A("s_mov_b32 exec_lo, 0x00ffff00"); A("s_mov_b32 exec_hi, 0x00ffff00")
        for k in range(4):
            A(f"v_mov_b32 v{56+k}, 0")
        A("s_mov_b64 exec, -1")
        for k in range(4):
            A(f"v_add_f32_dpp v{56+k}, v{56+k}, v{56+k} row_ror:8 row_mask:0xf bank_mask:0xf")
        for sw in ("16", "32"):
            for k in range(4):
                A(f"v_mov_b32 v{60+k}, v{56+k}")
            A("s_nop 0")
            for k in range(4):
                A(f"v_permlane{sw}_swap_b32 v{56+k}, v{60+k}")
            for k in range(4):
                A(f"v_add_f32 v{56+k}, v{56+k}, v{60+k}")
        for k in range(4):
            A(f"v_cvt_pk_bf16_f32 v{56+k}, 0, v{56+k}")
        for k in range(4):
            A(f"v_or_b32 v{56+k}, v{56+k}, v{TG}")
        A("s_waitcnt vmcnt(0)")
        A("s_mov_b64 exec, 0xff")
        A("buffer_store_dwordx4 v[56:59], v23, s[36:39], s47 offen sc1")
        A("s_mov_b64 exec, -1")
        stamp(1)
        A("v_lshrrev_b32 v22, 3, v1"); A("v_lshlrev_b32 v22, 6, v22"); A("v_lshl_add_u32 v22, v3, 1, v22")
        A(f"v_add_u32 v22, {LD['Q']}, v22")
        A("s_waitcnt vmcnt(0)")
        A("L_h_qpoll:")
        A("buffer_load_dwordx4 v[64:67], v23, s[36:39], s46 offen sc1")
        A("buffer_load_dwordx4 v[68:71], v23, s[36:39], s46 offen offset:1024 sc1")
        A("s_waitcnt vmcnt(0)")
        tagcheck(range(64, 72), 27)
        A("s_cbranch_vccz L_h_qgo")
        spin_tail("L_h_qpoll", sleep=cfg.QSLEEP)
        A("L_h_qgo:")
        for z in range(2):
            for r in range(4):
                A(f"ds_write_b16_d16_hi v22, v{64+4*z+r} offset:{z*512+16*r}")
    A(f"v_mov_b32 v24, {LD['FLAGS']}"); A("v_mov_b32 v25, 1")
    A("s_waitcnt lgkmcnt(0)")
    A("ds_write_b32 v24, v25 offset:4")
    stamp(2)
    A("s_mov_b32 s56, s50")
    A("s_cmp_lg_u32 s51, s50")
    A("s_cbranch_scc1 L_h_noffn")
    FB = cfg.FB; NFB = 1792 // FB; RS = FB // 4
    if NFB < 16:
        A(f"s_cmp_ge_u32 s50, {NFB}")
        A("s_cbranch_scc1 L_h_noffn")
    srd(28, 16, 16 if cfg.NOFFN in (1, 3) else 448 * 3584)
    srd(32, 18, 16 if cfg.NOFFN in (1, 3) else 448 * 3584)
    A(f"v_mul_u32_u24 v23, {112*3584}, v11")
    A("v_lshl_add_u32 v23, v10, 4, v23")
    A(f"v_cmp_le_u32 vcc, {FB // 8}, v10")
    A("v_bfrev_b32 v27, 2")
    A(f"s_mul_i32 s46, s56, {FB * 2}")
    A("v_cndmask_b32 v23, v23, v27, vcc")
    if cfg.NOFFN == 4:
        A("v_lshlrev_b32 v23, 4, v1"); A(f"s_mul_i32 s46, s56, {112 * 1024}")
    A("v_lshrrev_b32 v22, 3, v10")
    A("v_mul_u32_u24 v22, 896, v22")
    A("v_mul_u32_u24 v24, 224, v11")
    A(f"v_add3_u32 v22, v22, v24, 0")
    A(f"v_add_u32 v22, {LD['XN']}, v22")
    for k in range(8):
        A(f"v_mov_b32 v{56+k}, 0")
    def ffn_loads(t):
        A(f"buffer_load_dwordx4 v[{64+8*t}:{67+8*t}], v23, s[28:31], s46 offen nt")
        A(f"buffer_load_dwordx4 v[{68+8*t}:{71+8*t}], v23, s[32:35], s46 offen nt")
        A(f"s_add_u32 s46, s46, {1024 if cfg.NOFFN == 4 else 3584}")
    A("s_waitcnt vmcnt(0)")
    def fpause(lbl, units):
        if not units:
            return
        A(f"v_mov_b32 v30, {LD['FLAGS']}")
        A(f"{lbl}:")
        A("ds_read_b32 v29, v30")
        A("s_waitcnt lgkmcnt(0)")
        A("v_readfirstlane_b32 s75, v29")
        A("s_and_b32 s75, s75, 0x7fff")
        A(f"s_cmp_ge_u32 s75, {units}")
        A(f"s_cbranch_scc1 {lbl}_go")
        spin_tail(lbl, sleep=8)
        A(f"{lbl}_go:")
    fpause('L_h_fp1', cfg.FP1)
    FD = cfg.FD; DD = FD // 2; YA = 196
    for t in range(FD):
        ffn_loads(t)
    A(f"s_mov_b32 s57, {112 // FD - 1}")
    def ffn_iter(reissue):
        for z in range(FD // 8):
            A(f"ds_read_b128 v[{32+4*z}:{35+4*z}], v22 offset:{16*z}")
        A(f"v_add_u32 v22, {2*FD}, v22")
        A("s_waitcnt lgkmcnt(0)")
        for t in range(FD):
            src = 32 + t // 2; sel = 12 + 4 * (t % 2); bb = 48 + 4 * (t % 2)
            for k in range(4):
                A(f"v_perm_b32 v{bb+k}, v{src}, v{src}, v{sel+k}")
            A(f"s_waitcnt vmcnt({2*FD-2 if reissue else 2*FD-2 - 2*t})")
            A("s_nop 0")
            A(f"v_mfma_f32_16x16x32_bf16 v[56:59], v[{64+8*t}:{67+8*t}], v[{bb}:{bb+3}], v[56:59]")
            A(f"v_mfma_f32_16x16x32_bf16 v[60:63], v[{68+8*t}:{71+8*t}], v[{bb}:{bb+3}], v[60:63]")
            if reissue:
                ffn_loads(t)
    A("L_h_f1:")
    ffn_iter(True)
    A("s_sub_u32 s57, s57, 1"); A("s_cmp_lg_u32 s57, 0"); A("s_cbranch_scc1 L_h_f1")
    ffn_iter(False)
    srd(28, 20, 16 if cfg.NOFFN in (1, 2) else 1792 * 896)
    A(f"v_mul_u32_u24 v23, {RS*896}, v11")
    A("v_lshl_add_u32 v23, v10, 4, v23")
    A("v_cmp_le_u32 vcc, 8, v10")
    A(f"s_mul_i32 s46, s56, {FB*896}")
    A("s_nop 0")
    A("v_cndmask_b32 v26, v23, v27, vcc")
    def dn_loads(t):
        for nb in range(4):
            A(f"buffer_load_dwordx4 v[{64+16*t+4*nb}:{67+16*t+4*nb}], v{26 if nb == 3 else 23}, s[28:31], s46 offen offset:{nb*256} nt")
        A("s_add_u32 s46, s46, 896")
    A("s_nop 4")
    fpause('L_h_fp2', cfg.FP2)
    for t in range(DD):
        dn_loads(t)
    A("v_cvt_pk_bf16_f32 v32, v56, v57"); A("v_cvt_pk_bf16_f32 v33, v58, v59")
    A("v_cvt_pk_bf16_f32 v34, v60, v61"); A("v_cvt_pk_bf16_f32 v35, v62, v63")
    for k in range(4):
        A(f"v_lshlrev_b32 v{36+2*k}, 16, v{32+k}")
        A(f"v_and_b32 v{37+2*k}, 0xffff0000, v{32+k}")
    K0 = -2.0 * math.sqrt(2.0 / math.pi) * math.log2(math.e)
    A(f"s_mov_b32 s71, {hex(f2u(0.044715))}")
    for k in range(4):
        A(f"v_mul_f32 v{44+k}, v{36+k}, v{36+k}")
        A(f"v_mul_f32 v{44+k}, v{44+k}, v{36+k}")
        A(f"v_fma_f32 v{44+k}, v{44+k}, s71, v{36+k}")
        A(f"v_mul_f32 v{44+k}, {hex(f2u(K0))}, v{44+k}")
    for k in range(4):
        A(f"v_exp_f32 v{44+k}, v{44+k}")
    A("s_nop 0")
    for k in range(4):
        A(f"v_add_f32 v{44+k}, 1.0, v{44+k}")
    for k in range(4):
        A(f"v_rcp_f32 v{44+k}, v{44+k}")
    A("s_nop 0")
    for k in range(4):
        A(f"v_mul_f32 v{44+k}, v{44+k}, v{36+k}")
    A("v_cvt_pk_bf16_f32 v32, v44, v45"); A("v_cvt_pk_bf16_f32 v33, v46, v47")
    for k in range(2):
        A(f"v_lshlrev_b32 v{44+2*k}, 16, v{32+k}")
        A(f"v_and_b32 v{45+2*k}, 0xffff0000, v{32+k}")
    for k in range(4):
        A(f"v_mul_f32 v{44+k}, v{44+k}, v{40+k}")
    A("v_cvt_pk_bf16_f32 v32, v44, v45"); A("v_cvt_pk_bf16_f32 v33, v46, v47")
    A("v_lshrrev_b32 v22, 3, v10")
    A("v_lshlrev_b32 v22, 8, v22")
    A(f"v_add_u32 v22, {LD['H']}, v22")
    A("v_lshl_add_u32 v24, v11, 6, v22")
    A("v_lshl_add_u32 v24, v3, 1, v24")
    A(f"v_mul_u32_u24 v25, {RS*2}, v11")
    A("v_add_u32 v22, v22, v25")
    A("ds_write_b16 v24, v32")
    A("ds_write_b16_d16_hi v24, v32 offset:16")
    A("ds_write_b16 v24, v33 offset:32")
    A("ds_write_b16_d16_hi v24, v33 offset:48")
    for k in range(16):
        A(f"v_mov_b32 v{YA+k}, 0")
    A("s_waitcnt lgkmcnt(0)")
    A(f"s_mov_b32 s57, {RS // DD - 1}")
    def dn_iter(reissue):
        for z in range(DD // 4):
            A(f"ds_read_b64 v[{32+2*z}:{33+2*z}], v22 offset:{8*z}")
        A(f"v_add_u32 v22, {2*DD}, v22")
        A("s_waitcnt lgkmcnt(0)")
        for t in range(DD):
            src = 32 + t // 2; sel = 12 + 4 * (t % 2); bb = 48 + 4 * (t % 2)
            for k in range(4):
                A(f"v_perm_b32 v{bb+k}, v{src}, v{src}, v{sel+k}")
            A(f"s_waitcnt vmcnt({4*DD-4 if reissue else 4*DD-4 - 4*t})")
            A("s_nop 0")
            for nb in range(4):
                A(f"v_mfma_f32_16x16x32_bf16 v[{YA+4*nb}:{YA+3+4*nb}], v[{64+16*t+4*nb}:{67+16*t+4*nb}], v[{bb}:{bb+3}], v[{YA+4*nb}:{YA+3+4*nb}]")
            if reissue:
                dn_loads(t)
    A("L_h_f2:")
    dn_iter(True)
    A("s_sub_u32 s57, s57, 1"); A("s_cmp_lg_u32 s57, 0"); A("s_cbranch_scc1 L_h_f2")
    dn_iter(False)
    A("v_lshrrev_b32 v22, 3, v10")
    A("v_lshlrev_b32 v22, 11, v22")
    A("v_lshl_add_u32 v22, v11, 7, v22")
    A("v_lshl_add_u32 v22, v3, 4, v22")
    A("s_lshl_b32 s46, s56, 12"); A(f"s_add_u32 s46, s46, {WS_HY}")
    A("s_nop 4")
    for k in range(16):
        tag(YA + k)
    for nb in range(4):
        if nb == 3:
            A("s_mov_b32 exec_hi, 0")
        A(f"buffer_store_dwordx4 v[{YA+4*nb}:{YA+3+4*nb}], v22, s[36:39], s46 offen offset:{nb*512} sc1")
    A("s_mov_b64 exec, -1")
    stamp(3)
    A("L_h_noffn:")
    A("s_and_b32 s56, s2, 127")
    A("s_cmp_eq_u32 s2, 255")
    A("s_cbranch_scc1 L_h_epoch")
    A("s_cmp_ge_u32 s56, 28")
    A("s_cbranch_scc1 L_end")
    A("v_lshlrev_b32 v22, 12, v10")
    A("v_lshl_add_u32 v22, v11, 4, v22")
    A("s_lshl_b32 s46, s52, 11"); A("s_lshl_b32 s47, s56, 6"); A("s_add_u32 s46, s46, s47"); A(f"s_add_u32 s46, s46, {WS_HY}")
    for k in range(4):
        A(f"v_mov_b32 v{64+k}, 0")
    ym = ((1 << NFB) - 1) * 0x10001
    A(f"s_mov_b32 exec_lo, {hex(ym)}"); A(f"s_mov_b32 exec_hi, {hex(ym)}")
    A("L_h_ypoll:")
    A("buffer_load_dwordx4 v[64:67], v22, s[36:39], s46 offen sc1")
    A("s_waitcnt vmcnt(0)")
    tagcheck(range(64, 68), 27)
    A("s_cbranch_vccz L_h_ygo")
    spin_tail("L_h_ypoll", sleep=64)
    A("L_h_ygo:")
    A("s_mov_b64 exec, -1")
    A("s_lshr_b32 s47, s56, 1"); A("s_lshl_b32 s47, s47, 5"); A("s_and_b32 s48, s56, 1"); A("s_lshl_b32 s48, s48, 2")
    A("s_add_u32 s47, s47, s48"); A("s_mul_i32 s48, s52, 448"); A("s_add_u32 s47, s47, s48"); A("s_lshl_b32 s57, s47, 1")
    srd(28, 4, 1792)
    srd(32, 22, 1792)
    A("v_lshlrev_b32 v23, 1, v11")
    for rr in range(4):
        A(f"buffer_load_ushort v{72+rr}, v23, s[28:31], s57 offen offset:{16*rr}")
    A("s_waitcnt vmcnt(0)")
    for sh in (8, 4, 2, 1):
        for k in range(4):
            A(f"v_add_f32_dpp v{64+k}, v{64+k}, v{64+k} row_ror:{sh} row_mask:0xf bank_mask:0xf")
    A("v_cvt_pk_bf16_f32 v68, v64, v65"); A("v_cvt_pk_bf16_f32 v69, v66, v67")
    for k in range(2):
        A(f"v_lshlrev_b32 v{64+2*k}, 16, v{68+k}")
        A(f"v_and_b32 v{65+2*k}, 0xffff0000, v{68+k}")
    for k in range(4):
        A(f"v_mul_f32 v{68+k}, {hex(f2u(-math.log2(math.e)))}, v{64+k}")
    for k in range(4):
        A(f"v_exp_f32 v{68+k}, v{68+k}")
    A("s_nop 0")
    for k in range(4):
        A(f"v_add_f32 v{68+k}, 1.0, v{68+k}")
    for k in range(4):
        A(f"v_rcp_f32 v{68+k}, v{68+k}")
    A("s_nop 0")
    for k in range(4):
        A(f"v_mul_f32 v{64+k}, v{64+k}, v{68+k}")
    A("v_cvt_pk_bf16_f32 v68, v64, v65"); A("v_cvt_pk_bf16_f32 v69, v66, v67")
    for k in range(2):
        A(f"v_lshlrev_b32 v{76+2*k}, 16, v{68+k}")
        A(f"v_and_b32 v{77+2*k}, 0xffff0000, v{68+k}")
    for k in range(4):
        A(f"v_lshlrev_b32 v{72+k}, 16, v{72+k}")
    if not cfg.HBL:
        A("v_lshlrev_b32 v22, 11, v10")
        A("v_lshl_add_u32 v22, v11, 4, v22")
        A("s_lshl_b32 s46, s52, 18"); A("s_lshl_b32 s47, s56, 6"); A("s_add_u32 s46, s46, s47"); A(f"s_add_u32 s46, s46, {WS_HB}")
        for k in range(1, 8):
            A(f"s_add_u32 s{63+k}, s46, {k*32768}")
    else:
        A("v_lshlrev_b32 v22, 7, v10")
        A("v_lshl_add_u32 v22, v11, 4, v22")
        A("s_lshl_b32 s46, s52, 18"); A("s_lshr_b32 s47, s56, 1"); A("s_lshl_b32 s47, s47, 14"); A("s_add_u32 s46, s46, s47")
        A("s_and_b32 s47, s56, 1"); A("s_lshl_b32 s47, s47, 6"); A("s_add_u32 s46, s46, s47"); A(f"s_add_u32 s46, s46, {WS_HB}")
        for k in range(1, 8):
            A(f"s_add_u32 s{63+k}, s46, {k*2048}")
    stamp(4)
    A("s_waitcnt vmcnt(0) lgkmcnt(0)")
    A("s_barrier")
    A("s_barrier")
    if cfg.WOLATE == 4:
        A("s_barrier")
    if cfg.BAR4:
        A("s_barrier")
    def issB():
        for k in range(8):
            A(f"buffer_load_dwordx4 v[{96+4*k}:{99+4*k}], v22, s[36:39], s{46 if k == 0 else 63+k} offen sc1")
    if cfg.ICHK:
        A("L_h_bpoll:")
        issB()
        for k in range(8):
            A(f"s_waitcnt vmcnt({7-k})")
            r0 = 96 + 4 * k
            if k == 0:
                A(f"v_bitop3_b32 v24, v{r0}, v{r0+1}, v{TG} bitop3:0x7e")
            else:
                A(f"v_bitop3_b32 v25, v{r0}, v{r0+1}, v{TG} bitop3:0x7e")
            A(f"v_bitop3_b32 v26, v{r0+2}, v{r0+3}, v{TG} bitop3:0x7e")
            A("v_or_b32 v24, v24, v26" if k == 0 else "v_or3_b32 v24, v24, v25, v26")
        A("v_and_b32 v24, s59, v24")
        A("v_cmp_ne_u32 vcc, 0, v24")
        A("s_cbranch_vccz L_h_bgo")
        remask()
        spin_tail("L_h_bpoll", sleep=cfg.HSLEEP)
    else:
        poll("L_h_bpoll", issB, 8, lambda: tagcheck(range(96, 128), 24), "L_h_bgo")
    A("L_h_bgo:")
    A("s_mov_b64 exec, -1")
    stamp(5)
    for k in range(16):
        A(f"v_add_f32 v{128+k}, v{96+k}, v{112+k}")
    for step in (8, 4):
        for k in range(step):
            A(f"v_add_f32 v{128+k}, v{128+k}, v{128+step+k}")
    A("s_nop 0")
    for sh in (8, 4, 2, 1):
        for k in range(4):
            A(f"v_add_f32_dpp v{128+k}, v{128+k}, v{128+k} row_ror:{sh} row_mask:0xf bank_mask:0xf")
    A("v_cvt_pk_bf16_f32 v132, v128, v129"); A("v_cvt_pk_bf16_f32 v133, v130, v131")
    for k in range(2):
        A(f"v_lshlrev_b32 v{128+2*k}, 16, v{132+k}")
        A(f"v_and_b32 v{129+2*k}, 0xffff0000, v{132+k}")
    for k in range(4):
        A(f"v_mul_f32 v{128+k}, v{128+k}, v{76+k}")
    A("v_cvt_pk_bf16_f32 v132, v128, v129"); A("v_cvt_pk_bf16_f32 v133, v130, v131")
    for k in range(2):
        A(f"v_lshlrev_b32 v{128+2*k}, 16, v{132+k}")
        A(f"v_and_b32 v{129+2*k}, 0xffff0000, v{132+k}")
    for k in range(4):
        A(f"v_add_f32 v{128+k}, v{128+k}, v{72+k}")
    A("v_cvt_pk_bf16_f32 v132, v128, v129"); A("v_cvt_pk_bf16_f32 v133, v130, v131")
    A("s_mov_b32 exec_lo, 0x00010001"); A("s_mov_b32 exec_hi, 0x00010001")
    A("buffer_store_short v132, v23, s[32:35], s57 offen" + (" sc0 sc1 " if cfg.OSC else ""))
    A("buffer_store_short_d16_hi v132, v23, s[32:35], s57 offen offset:16" + (" sc0 sc1 " if cfg.OSC else ""))
    A("buffer_store_short v133, v23, s[32:35], s57 offen offset:32" + (" sc0 sc1 " if cfg.OSC else ""))
    A("buffer_store_short_d16_hi v133, v23, s[32:35], s57 offen offset:48" + (" sc0 sc1 " if cfg.OSC else ""))
    A("s_mov_b64 exec, -1")
    stamp(6, light=True)
    if cfg.DBGT == 2:
        A("s_cmp_lg_u32 s2, 0"); A("s_cbranch_scc1 L_end")
        A("s_memrealtime s[94:95]"); A("s_waitcnt lgkmcnt(0)")
        A("s_sub_u32 s96, s94, s92"); A("s_sub_i32 s96, s96, 7000"); A("s_max_i32 s96, s96, 0"); A("s_min_i32 s96, s96, 3000"); A("s_mul_i32 s96, s96, 10")
        A("L_dly:")
        A("s_memrealtime s[98:99]"); A("s_waitcnt lgkmcnt(0)")
        A("s_sub_u32 s98, s98, s94"); A("s_cmp_lt_u32 s98, s96"); A("s_cbranch_scc1 L_dly")
    if cfg.DBGT == 1:
        A("s_memrealtime s[94:95]")
        srd(28, 24, 256)
        A("s_waitcnt lgkmcnt(0)")
        A("s_not_b32 s92, s92")
        A("v_mov_b32 v24, s92"); A("v_mov_b32 v25, s94"); A("v_mov_b32 v26, 0")
        A("s_mov_b64 exec, 1")
        A("buffer_atomic_umax v24, v26, s[28:31], 0 offen sc1")
        A("buffer_atomic_umax v25, v26, s[28:31], 0 offen offset:4 sc1")
    A("L_end:")
    A("s_endpgm")
    A("L_h_epoch:")
    if cfg.HAL:
        A(f"v_mul_u32_u24 v22, {HBS}, v1")
        for k in range(4):
            A(f"s_mov_b32 s{64+k}, {WS_HA2 + 2048 + k*64*HBS}")
    else:
        A("v_lshlrev_b32 v22, 12, v11")
        A("v_lshl_add_u32 v22, v10, 7, v22")
        for k in range(4):
            A(f"s_mov_b32 s{64+k}, {WS_HM + k*4*4096}")
    A("s_waitcnt vmcnt(0) lgkmcnt(0)")
    A("s_barrier")
    A("s_barrier")
    if cfg.WOLATE == 4:
        A("s_barrier")
    if cfg.BAR4:
        A("s_barrier")
    A("L_h_epoll:")
    for k in range(4):
        A(f"buffer_load_dwordx2 v[{96+2*k}:{97+2*k}], v22, s[36:39], s{64+k} offen offset:8 sc1")
    A("s_waitcnt vmcnt(0)")
    tagcheck([], 24, full=range(96, 104))
    A("s_cbranch_vccz L_h_ego")
    spin_tail("L_h_epoll", sleep=8)
    A("L_h_ego:")
    A("v_mov_b32 v24, s58"); A("v_mov_b32 v25, 0")
    A("s_mov_b64 exec, 1")
    A(f"buffer_store_dword v24, v25, s[36:39], 0 offen offset:{WS_EP}" + (" sc0 sc1 " if cfg.OSC else ""))
    A("s_endpgm")
    nv = 256 if cfg.DIAG else 216
    A('.section .rodata,"a"'); A(".p2align 6"); A(f".amdhsa_kernel {NAME}")
    A.L.append(f"  .amdhsa_next_free_vgpr {nv}"); A.L.append("  .amdhsa_next_free_sgpr 102"); A.L.append(f"  .amdhsa_accum_offset {nv}")
    A.L.append("  .amdhsa_group_segment_fixed_size 0"); A.L.append("  .amdhsa_kernarg_size 96"); A.L.append("  .amdhsa_user_sgpr_count 2")
    A.L.append("  .amdhsa_user_sgpr_kernarg_segment_ptr 1"); A.L.append("  .amdhsa_system_sgpr_workgroup_id_x 1"); A(".end_amdhsa_kernel")
    FL = {0: "sc1", 1: "sc0 sc1", 2: "sc0 sc1 nt", 3: "sc1 nt"}
    for i, line in enumerate(A.L):
        if line.startswith("buffer_load") and line.endswith(" sc1"):
            A.L[i] = line[:-3] + FL[cfg.PF]
        if line.startswith("buffer_load") and line.endswith(" nt"):
            A.L[i] = line[:-2] + POL[cfg.WP]
        if line.startswith("buffer_store") and line.endswith(" sc1"):
            A.L[i] = line[:-3] + FL[cfg.SF]
    if cfg.DIAG:
        sys.stderr.write(str(codes) + "\n")
    return "\n".join(A.L) + "\n"

if __name__ == "__main__":
    cfg = Cfg()
    out = sys.argv[1]
    for kv in sys.argv[2:]:
        k, v = kv.split("=")
        setattr(cfg, k, tuple(int(x) for x in v.split("/") if x) if k == "SIZES" else int(v))
    open(out, "w").write(gen(cfg))
```

```python
import sys, math
NAME = "recurrent_scan__gqa_block_cached__glu_gated_geglu__decode_kernel"

class Cfg:
    F = 20
    R = 9
    C = 6
    DIAG = False
    SPIN = 1 << 20
    NOSWZ = 0
    NOCOMP = 0
    NOWO = 0
    NOWQ = 0
    PSLEEP = 1
    QSLEEP = 4
    BAR3 = 1
    BAR4 = 1
    MASKP = 1
    DBGT = 0
    F3 = 32
    LBAR = 0
    FD = 8
    ET = 2
    PIPE = 0
    QV = 2
    HAL = 0
    EARLYK = 1
    WOLATE = 4
    NOCF = 0
    SVC = 0
    HBL = 1
    FP1 = 0
    OSC = 0
    G4 = 1
    WONT = 0
    FP2 = 47
    ICHK = 1
    LSLEEP = 16
    PGAP = 4
    EZ = 6
    HSLEEP = 1
    PF = 0
    FB = 128
    STAT = 2
    KP = 1
    VP = 1
    WP = 1
    ROT = 5
    GS = 43
    WIN = 1
    SF = 0
    SIZES = (3, 2, 1)
    NOFFN = 0

def lds_layout(R):
    o = R * 16384
    L = {}
    L['FLAGS'] = o; o += 256
    L['Q'] = o; o += 1024
    L['XN'] = o; o += 1792
    L['H'] = o; o += 512
    L['SC'] = o; o += 72 * 128
    L['END'] = o
    return L

WS_EP = 0
WS_PC = 0x1000
PCS = 4352
WS_QP = 0x20000
WS_HA = 0x40000
WS_HA2 = 0x280000
HBS = 2304
WS_HM = 0xC0000
WS_HB = 0xD0000
WS_HY = 0x150000
WS_DIAG = 0x200000
WS_SIZE = 0x400000
TAGM = 0xf
POL = {0: "", 1: "nt", 2: "sc1", 3: "sc0 sc1", 4: "sc1 nt", 5: "sc0 sc1 nt", 6: "sc0", 7: "sc0 nt"}
CSC = 0.0625 * math.log2(math.e)

import struct
def f2u(x):
    return struct.unpack('<I', struct.pack('<f', x))[0]

class Asm:
    def __init__(self):
        self.L = []
        self.n = 0
    def __call__(self, s):
        for line in s.strip('\n').split('\n'):
            self.L.append(line.strip() if not line.strip().endswith(':') else line.strip())
    def label(self, base):
        self.n += 1
        return f"L_{base}_{self.n}"

def gen(cfg):
    F, R, C = cfg.F, cfg.R, cfg.C
    LD = lds_layout(R)
    assert LD['END'] <= 163840, LD['END']
    A = Asm()
    NUNITS = 128
    SIZES = tuple(cfg.SIZES)
    S = NUNITS - sum(SIZES)
    NT = (15 if cfg.SVC else 16) * len(SIZES)
    assert len(SIZES) <= 8
    SZP = sum(v << (8 * r) for r, v in enumerate(SIZES))
    STP = sum((S + sum(SIZES[:r])) << (8 * r) for r in range(len(SIZES)))
    def srd(dst, base, size, add=None):
        if add is None:
            A(f"s_mov_b32 s{dst}, s{base}")
            A(f"s_and_b32 s{dst+1}, s{base+1}, 0xffff")
        else:
            A(f"s_add_u32 s{dst}, s{base}, s{add}")
            A(f"s_addc_u32 s{dst+1}, s{base+1}, 0")
            A(f"s_and_b32 s{dst+1}, s{dst+1}, 0xffff")
        A(f"s_mov_b32 s{dst+2}, {size}")
        A(f"s_mov_b32 s{dst+3}, 0x20000")
    def stamp(idx, tmpv=(250, 251, 252), light=False):
        if not cfg.DIAG or (cfg.DIAG == 2 and not light):
            return
        A(f"s_memrealtime s[96:97]")
        A(f"s_lshl_b32 s98, s2, 3")
        A(f"s_add_u32 s98, s98, s3")
        A(f"s_lshl_b32 s98, s98, 7")
        A(f"s_add_u32 s98, s98, {WS_DIAG + idx*8}")
        A(f"s_waitcnt lgkmcnt(0)")
        A(f"v_mov_b32 v{tmpv[0]}, s96")
        A(f"v_mov_b32 v{tmpv[1]}, s97")
        A(f"v_mov_b32 v{tmpv[2]}, 0")
        A(f"s_mov_b64 s[94:95], exec")
        A(f"s_mov_b64 exec, 1")
        A(f"buffer_store_dwordx2 v[{tmpv[0]}:{tmpv[1]}], v{tmpv[2]}, s[36:39], s98 offen")
        A(f"s_mov_b64 exec, s[94:95]")
    TG = 193
    def tag(v):
        A(f"v_bfi_b32 v{v}, s59, v{TG}, v{v}")
    def tagcheck(regs, acc, full=(), strip=False):
        regs = list(regs)
        if strip:
            assert not cfg.PIPE and len(regs) % 2 == 0
            for r in regs:
                A(f"v_xor_b32 v{r}, v{r}, v{TG}")
            A(f"v_or_b32 v{acc}, v{regs[0]}, v{regs[1]}")
            for k in range(2, len(regs), 2):
                A(f"v_or3_b32 v{acc}, v{acc}, v{regs[k]}, v{regs[k+1]}")
        elif len(regs) == 0:
            A(f"v_mov_b32 v{acc}, 0")
        elif len(regs) == 1:
            A(f"v_xor_b32 v{acc}, v{regs[0]}, v{TG}")
        else:
            A(f"v_bitop3_b32 v{acc}, v{regs[0]}, v{regs[1]}, v{TG} bitop3:0x7e")
            for r in regs[2:]:
                A(f"v_bitop3_b32 v{acc}, v{acc}, v{r}, v{TG} bitop3:0xf6")
        A(f"v_and_b32 v{acc}, s59, v{acc}")
        for r in full:
            A(f"v_bitop3_b32 v{acc}, v{acc}, v{r}, s58 bitop3:0xf6")
        A(f"v_cmp_ne_u32 vcc, 0, v{acc}")
    def remask():
        if cfg.MASKP:
            A("s_or_b32 s76, vcc_lo, vcc_hi"); A("s_lshr_b32 s77, s76, 16"); A("s_or_b32 s76, s76, s77")
            A("s_pack_ll_b32_b16 s76, s76, s76")
            A("s_mov_b32 exec_lo, s76"); A("s_mov_b32 exec_hi, s76")
    def poll(lbl, issue, n, check, go):
        if not cfg.PIPE:
            A(f"{lbl}:")
            issue()
            A("s_waitcnt vmcnt(0)")
            check()
            A(f"s_cbranch_vccz {go}")
            remask()
            if cfg.SVC and n == 3:
                q = A.label("awake")
                A("s_bcnt1_i32_b32 s77, s76"); A("s_cmp_lt_u32 s77, 30"); A(f"s_cbranch_scc1 {q}")
                A(f"s_sleep {cfg.LSLEEP}")
                A(f"{q}:")
            spin_tail(lbl, sleep=cfg.HSLEEP)
        else:
            issue()
            A("s_waitcnt vmcnt(0)")
            check()
            A(f"s_cbranch_vccz {go}")
            remask()
            for d in range(cfg.PIPE):
                issue()
                A(f"s_sleep {cfg.PGAP}")
            A(f"{lbl}:")
            issue()
            A(f"s_waitcnt vmcnt({n * cfg.PIPE})")
            check()
            A(f"s_cbranch_vccz {go}")
            remask()
            spin_tail(lbl, sleep=0)
    codes = {}
    def die(lbl):
        if cfg.DIAG:
            codes.setdefault(lbl, len(codes) + 1)
            A("s_mov_b64 exec, 1")
            A(f"v_mov_b32 v248, {codes[lbl]}"); A("v_mov_b32 v249, s40"); A("v_mov_b32 v250, s43"); A("v_mov_b32 v251, s73"); A("v_mov_b32 v252, 0")
            A("s_lshl_b32 s98, s2, 3"); A("s_add_u32 s98, s98, s3"); A("s_lshl_b32 s98, s98, 7"); A(f"s_add_u32 s98, s98, {WS_DIAG + 112}")
            A("buffer_store_dwordx4 v[248:251], v252, s[36:39], s98 offen")
        A("s_endpgm")
    def spin_tail(lbl, cnt="s45", sleep=1):
        A(f"s_sleep {sleep}")
        A(f"s_sub_u32 {cnt}, {cnt}, 1")
        A(f"s_cmp_lg_u32 {cnt}, 0")
        A(f"s_cbranch_scc1 {lbl}")
        die(lbl)

    hdr = open('recurrent_scan__gqa_block_cached__glu_gated_geglu__decode.s.ref').read().split('\n')
    for line in hdr:
        if line.startswith('; @launch') or not line.startswith(';'):
            break
        A.L.append(line)
    A(f"; @launch grid=(256,1,1) block=(512,1,1) lds={LD['END']}")
    A('.amdgcn_target "amdgcn-amd-amdhsa--gfx950"')

    DOC = """
; ---------------------------------------------------------------------------------------------
;   wave 0      loader: streams K, then V, by LDS-DMA into a ring of 9 x 16 KB slots with a fixed number of
;               loads in flight; the last few units of every group are handed out by a ticket counter.
; readers poll until every dword carries the tag.  All polling loops are bounded.
; ---------------------------------------------------------------------------------------------
"""
    for l in DOC.strip().split("\n"):
        A.L.append(l)
    A(".text"); A(f".globl {NAME}"); A(".p2align 8"); A(f".type {NAME},@function"); A(f"{NAME}:")
    if cfg.DIAG or cfg.DBGT:
        A("s_memrealtime s[92:93]")
    A(f"""
    s_cmp_ge_u32 s2, 256
    s_cbranch_scc1 L_end
    s_load_dwordx8 s[4:11], s[0:1], 0
    s_load_dwordx8 s[12:19], s[0:1], 32
    s_load_dwordx8 s[20:27], s[0:1], 64
    v_and_b32 v1, 63, v0
    v_lshrrev_b32 v2, 6, v0
    v_lshlrev_b32 v3, 2, v1
    v_add_u32 v3, {LD['FLAGS']}, v3
    v_mov_b32 v4, 0
    ds_write_b32 v3, v4
    v_readfirstlane_b32 s3, v2
    s_mov_b32 s45, {cfg.SPIN}
    s_mov_b32 s40, 0
    s_mov_b32 s43, 0
    s_mov_b32 s73, 0
    """)
    A("v_lshrrev_b32 v5, 5, v1")
    A("v_and_b32 v6, 31, v1")
    A("v_xor_b32 v6, v6, v5")
    A("v_lshlrev_b32 v5, 9, v5")
    for j in range(8):
        A(f"v_xor_b32 v7, {2*j}, v6")
        A(f"v_lshl_add_u32 v{8+j}, v7, 4, v5")
    A("v_lshlrev_b32 v16, 4, v1")
    A(f"v_mov_b32 v17, {LD['FLAGS']}")
    A("s_lshr_b32 s46, s2, 4")
    A("s_lshl_b32 s46, s46, 24")
    def ld_addr(dst, dt):
        if cfg.G4:
            if dst != "s42":
                return
            A("s_lshl_b32 s69, s67, 1")
            A("s_add_u32 s42, s69, s68"); A("s_and_b32 s42, s42, 255"); A("s_lshl_b32 s42, s42, 16")
            A(f"s_mul_i32 s69, s69, {cfg.ROT}"); A("s_add_u32 s69, s69, s66"); A("s_and_b32 s69, s69, 15"); A("s_lshl_b32 s75, s69, 12")
            return
        A(f"s_add_u32 s69, s67, {dt}")
        A(f"s_add_u32 {dst}, s69, s68"); A(f"s_and_b32 {dst}, {dst}, 127"); A(f"s_lshl_b32 {dst}, {dst}, 17")
        A(f"s_mul_i32 s69, s69, {cfg.ROT}"); A("s_add_u32 s69, s69, s66"); A("s_and_b32 s69, s69, 15"); A("s_lshl_b32 s69, s69, 13")
        A(f"s_or_b32 {dst}, {dst}, s69")
    A("s_mov_b32 s41, 0"); A("s_and_b32 s66, s2, 15"); A("s_mov_b32 s67, 0"); A("s_mov_b32 s44, 0")
    A("s_lshr_b32 s70, s2, 4"); A(f"s_mul_i32 s68, s70, {cfg.GS}")
    ld_addr("s42", 0); ld_addr("s75", 1)
    A("s_mov_b32 s53, 0")
    A(f"s_mov_b32 s30, {1 << 24}"); A("s_mov_b32 s31, 0x20000"); A(f"s_mov_b32 s34, {1 << 24}"); A("s_mov_b32 s35, 0x20000")
    A("s_waitcnt lgkmcnt(0)")
    A("s_add_u32 s28, s6, s46"); A("s_addc_u32 s29, s7, 0"); A("s_and_b32 s29, s29, 0xffff")
    if cfg.LBAR:
        A("s_cmp_eq_u32 s3, 0")
        A("s_cbranch_scc1 L_loader")
        A("s_barrier")
        A("s_branch L_notloader")
        A("L_loader:")
    else:
        A("s_barrier")
        A("s_cmp_lg_u32 s3, 0")
        A("s_cbranch_scc1 L_notloader")
    A("s_setprio 3")
    if cfg.DIAG:
        srd(36, 26, WS_SIZE)
    stamp(0)
    if cfg.DIAG == 1:
        A("v_mov_b32 v250, s92"); A("v_mov_b32 v251, s93"); A("s_mov_b64 exec, 1")
        A("buffer_store_dwordx2 v[250:251], v252, s[36:39], s98 offen offset:56")
        A("s_mov_b64 exec, -1")
    a_, jp = divmod(F - 1, 16)
    assert S % 2 == 0
    NFB = 1792 // cfg.FB
    assert (cfg.ET * cfg.EZ) % 2 == 0
    FC = 8 + cfg.ET * cfg.EZ // 2
    if cfg.DIAG:
        A("s_mov_b32 s90, 0")
        A("s_mov_b32 s88, 0")
    def ld_body(kinds, first=False, F=F):
        a_, jp = divmod(F - 1, 16)
        for j in range(16):
            if j % 4 == 0:
                A(f"s_add_u32 m0, s41, {j*1024}")
                if cfg.G4:
                    if kinds == "KV" and j >= 8:
                        A(f"s_mov_b32 s47, s{76 + (j - 8) // 4}")
                    else:
                        A("s_or_b32 s47, s42, s75")
                        if kinds == "KV":
                            A(f"s_mov_b32 s{76 + j // 4}, s47")
                else:
                    A(f"s_add_u32 s47, {'s42' if j < 8 else 's75'}, {(j % 8)*1024}")
            if cfg.G4 and j % 4 == 1 and not (kinds == "KV" and j >= 8):
                A("s_add_u32 s42, s42, 0x10000"); A("s_and_b32 s42, s42, 0xffffff")
                A(f"s_add_u32 s75, s75, {cfg.ROT << 12}"); A("s_and_b32 s75, s75, 0xffff")
            if j == 8:
                A("s_add_u32 s44, s44, 4"); A(f"s_cmp_ge_u32 s44, {R*4}"); A("s_cselect_b32 s44, 0, s44")
                A("v_add_u32 v19, s44, v17")
                A("ds_read_b32 v20, v19 offset:64")
            if not first:
                A(f"s_waitcnt vmcnt({F-1})")
            if kinds[j // 8] == 'K':
                A(f"buffer_load_dwordx4 v{8 + j % 8}, s[28:31], s47 offen offset:{(j%4)*1024} {POL[cfg.KP]} lds")
            else:
                A(f"buffer_load_dwordx4 v16, s[32:35], s47 offen offset:{(j%4)*1024} {POL[cfg.VP]} lds")
            if j == jp and not first:
                A(f"s_sub_i32 s49, s40, {a_}")
                A("s_max_i32 s43, s43, s49")
                A("v_mov_b32 v18, s43")
                A("ds_write_b32 v17, v18")
        A("s_add_u32 s40, s40, 1")
        A("s_add_u32 s41, s41, 16384"); A(f"s_cmp_ge_u32 s41, {R*16384}"); A("s_cselect_b32 s41, 0, s41")
        A("s_sub_u32 s53, s53, 1")
    def ld_ring(lbl):
        if cfg.DIAG == 1:
            n = A.label("nops")
            A("s_and_b32 s91, s40, 15"); A("s_cmp_lg_u32 s91, 0"); A(f"s_cbranch_scc1 {n}")
            A("s_cmp_gt_u32 s40, 80"); A(f"s_cbranch_scc1 {n}")
            A("s_memrealtime s[96:97]")
            A("s_lshl_b32 s98, s2, 10"); A("s_lshr_b32 s91, s40, 1"); A("s_add_u32 s98, s98, s91"); A(f"s_add_u32 s98, s98, {WS_DIAG + 64}")
            A("s_waitcnt lgkmcnt(0)")
            A("v_mov_b32 v250, s96"); A("v_mov_b32 v251, s97"); A("v_mov_b32 v252, 0")
            A("s_mov_b64 exec, 1")
            A("buffer_store_dwordx2 v[250:251], v252, s[36:39], s98 offen")
            A("s_mov_b64 exec, -1")
            A(f"{n}:")
        A(f"s_sub_i32 s48, s40, {R-1}")
        A("v_readfirstlane_b32 s47, v20")
        A("s_cmp_ge_i32 s47, s48")
        A(f"s_cbranch_scc1 {lbl}")
        if cfg.DIAG == 1:
            n = A.label("nost")
            A("s_cmp_lg_u32 s90, 0"); A(f"s_cbranch_scc1 {n}"); A("s_mov_b32 s90, 1")
            stamp(2)
            A(f"{n}:")
            stamp(3)
        A("s_waitcnt vmcnt(0)")
        A("s_mov_b32 s43, s40")
        A("v_mov_b32 v18, s43")
        A("ds_write_b32 v17, v18")
        sp = lbl + "_spin"
        A(f"{sp}:")
        A("ds_read_b32 v20, v19 offset:64")
        A("s_waitcnt lgkmcnt(0)")
        A("v_readfirstlane_b32 s47, v20")
        A("s_cmp_ge_i32 s47, s48")
        A(f"s_cbranch_scc1 {lbl}")
        spin_tail(sp)
    def ld_ticket_req():
        n = A.label("noat")
        A("s_add_u32 s74, s53, s71")
        A("s_cmp_lg_u32 s74, 1")
        A(f"s_cbranch_scc1 {n}")
        A("s_mov_b32 s54, 1")
        if NT:
            A("s_atomic_add s54, s[56:57], 0x0 glc")
        A(f"{n}:")
    def ld_adv():
        if not cfg.SVC:
            A("s_add_u32 s67, s67, 2")
            return
        o = A.label("own"); d = A.label("adv")
        A("s_cmp_eq_u32 s66, s70"); A(f"s_cbranch_scc1 {o}")
        A("s_cmp_lg_u32 s67, s83"); A(f"s_cbranch_scc1 {o}")
        A("s_mov_b32 s66, s70"); A("s_add_u32 s83, s83, 30"); A(f"s_branch {d}")
        A(f"{o}:")
        A("s_mov_b32 s66, s81"); A("s_add_u32 s67, s67, 2")
        A(f"{d}:")
    if cfg.SVC:
        assert 120 <= S <= 122 and not cfg.LBAR
        A("s_cmp_eq_u32 s66, s70")
        A("s_cbranch_scc1 L_ld_svc")
    ld_body("KK", first=True)
    A("s_add_u32 s32, s8, s46"); A("s_addc_u32 s33, s9, 0"); A("s_and_b32 s33, s33, 0xffff")
    if cfg.LBAR:
        A("s_barrier")
    A(f"s_mul_i32 s50, s70, {PCS}"); A(f"s_add_u32 s50, s50, {WS_PC}")
    A("s_add_u32 s56, s26, s50"); A("s_addc_u32 s57, s27, 0")
    A(f"s_mov_b32 s60, {hex(SZP & 0xffffffff)}"); A(f"s_mov_b32 s61, {hex(SZP >> 32)}")
    A(f"s_mov_b32 s62, {hex(STP & 0xffffffff)}"); A(f"s_mov_b32 s63, {hex(STP >> 32)}")
    A("s_mov_b32 s54, 0")
    if not cfg.SVC:
        A(f"s_cmp_lt_u32 s70, {0 if cfg.NOCF else NFB}"); A("s_cselect_b32 s71, 1, 0")
        A(f"s_add_u32 s72, s66, {S - 16}")
        A("s_cmp_eq_u32 s66, s70"); A("s_cselect_b32 s78, s71, 0"); A(f"s_mul_i32 s78, s78, {FC}"); A(f"s_sub_u32 s78, {S // 2}, s78")
        A(f"s_mul_i32 s80, s71, {cfg.ET}")
    else:
        A("s_mov_b32 s71, 0"); A(f"s_mov_b32 s78, {S // 2 + 4}"); A("s_mov_b32 s81, s66")
        A("s_cmp_gt_u32 s66, s70"); A("s_cselect_b32 s82, 1, 0"); A("s_sub_u32 s82, s66, s82"); A("s_lshl_b32 s82, s82, 1")
        A("s_mov_b32 s83, s82")
    A("s_sub_u32 s53, s78, 1")
    A("s_branch L_ld_kbot")
    if cfg.SVC:
        A("L_ld_svc:")
        A("s_add_u32 s32, s8, s46"); A("s_addc_u32 s33, s9, 0"); A("s_and_b32 s33, s33, 0xffff")
        A("s_mov_b32 s53, 8"); A("s_mov_b32 s67, 120"); A("s_mov_b32 s71, 64")
        A("s_mov_b32 s56, s26"); A("s_mov_b32 s57, s27")
        ld_addr("s42", 0)
        A("s_mov_b32 s75, s42")
        A("s_branch L_ld_c")
    A("L_ld_k:")
    ld_body("KK")
    A("L_ld_kbot:")
    ld_adv()
    A("s_cmp_lg_u32 s53, 0")
    A("s_cbranch_scc1 L_ld_kc")
    A("s_mov_b32 s67, 0"); A("s_mov_b32 s53, s78")
    if cfg.SVC:
        A("s_mov_b32 s66, s81"); A("s_mov_b32 s83, s82")
    A("s_branch L_ld_vc")
    A("L_ld_kc:")
    if not cfg.G4 or cfg.SVC:
        ld_addr("s42", 0); ld_addr("s75", 1)
    A("s_waitcnt lgkmcnt(0)")
    ld_ring("L_ld_k")
    A("L_ld_v:")
    ld_ticket_req()
    ld_body("VV")
    ld_adv()
    A("s_cmp_eq_u32 s53, 0")
    A("s_cbranch_scc1 L_ld_next")
    A("L_ld_vc:")
    ld_addr("s42", 0); ld_addr("s75", 1)
    A("s_waitcnt lgkmcnt(0)")
    ld_ring("L_ld_v")
    A("L_ld_c:")
    ld_ticket_req()
    F3 = cfg.F3 or F
    ld_body("KV", F=F3)
    A("s_add_u32 s67, s67, 1")
    A("s_cmp_lg_u32 s53, 0")
    A("s_cbranch_scc1 L_ld_cc")
    A("L_ld_next:")
    A("s_cmp_eq_u32 s71, 0"); A("s_cbranch_scc1 L_ld_tick")
    if cfg.SVC:
        A("s_branch L_ld_done")
    A("s_mov_b32 s71, 0"); A("s_mov_b32 s53, 1"); A("s_mov_b32 s66, s70"); A("s_mov_b32 s67, s72")
    A("s_branch L_ld_cc")
    A("L_ld_tick:")
    if cfg.DIAG == 1:
        A("s_memrealtime s[84:85]")
    A("s_waitcnt lgkmcnt(0)")
    if cfg.DIAG == 1:
        A("s_memrealtime s[86:87]"); A("s_waitcnt lgkmcnt(0)")
        A("s_sub_u32 s86, s86, s84"); A("s_lshl_b32 s88, s88, 8"); A("s_min_u32 s86, s86, 255"); A("s_or_b32 s88, s88, s86")
    if cfg.ET and not cfg.SVC:
        A("s_cmp_ge_u32 s54, s80"); A("s_cbranch_scc1 L_ld_tick2")
        A(f"s_mov_b32 s53, {cfg.EZ}"); A("s_mov_b32 s66, s70")
        A(f"s_mul_i32 s67, s54, {cfg.EZ}"); A(f"s_add_u32 s67, s67, {S - 2 * FC}")
        A("s_branch L_ld_cc")
        A("L_ld_tick2:")
        A("s_sub_u32 s54, s54, s80")
    A(f"s_cmp_ge_u32 s54, {NT}")
    A("s_cbranch_scc1 L_ld_done")
    if cfg.SVC:
        A("s_mul_i32 s51, s54, 4370"); A("s_lshr_b32 s51, s51, 16")
        A("s_mul_i32 s52, s51, 15"); A("s_sub_u32 s54, s54, s52")
        A("s_cmp_ge_u32 s54, s70"); A("s_addc_u32 s54, s54, 0")
        A("s_lshl_b32 s51, s51, 3")
    else:
        A("s_lshr_b32 s51, s54, 4"); A("s_lshl_b32 s51, s51, 3")
    A("s_lshr_b64 s[64:65], s[60:61], s51"); A("s_and_b32 s53, s64, 0xff")
    A("s_lshr_b64 s[64:65], s[62:63], s51"); A("s_and_b32 s67, s64, 0xff")
    A("s_and_b32 s66, s54, 15")
    A("L_ld_cc:")
    ld_addr("s42", 0)
    if not cfg.G4:
        A("s_mov_b32 s75, s42")
    A("s_waitcnt lgkmcnt(0)")
    ld_ring("L_ld_c")
    A("L_ld_done:")
    A("s_lshl_b32 s50, s40, 16")
    A("s_or_b32 s51, s50, s43")
    A("v_mov_b32 v18, s51")
    A("ds_write_b32 v17, v18")
    for k in range(3, -1, -1):
        if 16 * k < max(F, F3):
            A(f"s_sub_u32 s51, s40, {k}")
            A("s_max_u32 s51, s51, s43")
            A("s_or_b32 s51, s51, s50")
            A(f"s_waitcnt vmcnt({16*k})")
            A(f"v_mov_b32 v18, s51")
            A("ds_write_b32 v17, v18")
            if k == 1 and cfg.EARLYK:
                A("s_or_b32 s51, s51, 0x8000")
                A("s_waitcnt vmcnt(8)")
                A(f"v_mov_b32 v18, s51")
                A("ds_write_b32 v17, v18")
    if cfg.DIAG:
        A("v_mov_b32 v250, s40"); A("v_mov_b32 v251, s88"); A("v_mov_b32 v252, 0")
        A("s_lshl_b32 s98, s2, 10"); A(f"s_add_u32 s98, s98, {WS_DIAG + 8*8}")
        A("s_mov_b64 exec, 1")
        A("buffer_store_dwordx2 v[250:251], v252, s[36:39], s98 offen")
        A("s_mov_b64 exec, -1")
        A("s_nop 1")
    stamp(1, light=True)
    if cfg.DIAG == 2:
        A("s_nop 1")
        A("v_mov_b32 v250, s92"); A("v_mov_b32 v251, s93"); A("s_mov_b64 exec, 1")
        A("buffer_store_dwordx2 v[250:251], v252, s[36:39], s98 offen offset:48")
    A("s_endpgm")

    A("L_notloader:")
    A(f"s_load_dword s58, s[26:27], {WS_EP}")
    A(f"s_mov_b32 s59, {TAGM}")
    A("v_and_b32 v3, 7, v1")
    A("v_lshrrev_b32 v4, 1, v3")
    A("v_and_b32 v5, 1, v3")
    A("v_mov_b32 v6, 0x0c0c0100")
    A("v_mov_b32 v7, 0x01000c0c")
    A("v_cmp_eq_u32 vcc, 1, v5")
    A("v_mov_b32 v8, 0x0c0c0302")
    A("v_mov_b32 v9, 0x03020c0c")
    A("v_cndmask_b32 v6, v6, v7, vcc")
    A("v_cndmask_b32 v8, v8, v9, vcc")
    A("v_mov_b32 v7, 0x0c0c0c0c")
    for k in range(4):
        A(f"v_cmp_eq_u32 vcc, {k}, v4")
        A("s_nop 1")
        A(f"v_cndmask_b32 v{12+k}, v7, v6, vcc")
        A(f"v_cndmask_b32 v{16+k}, v7, v8, vcc")
    A("v_and_b32 v10, 15, v1")
    A("v_lshrrev_b32 v11, 4, v1")
    A("s_lshr_b32 s50, s2, 4")
    A("s_and_b32 s51, s2, 15")
    A("s_lshr_b32 s52, s2, 7")
    A("s_and_b32 s53, s50, 7")
    A(f"s_mov_b32 s54, {hex(f2u(CSC))}")
    srd(36, 26, WS_SIZE)
    A("s_cmp_eq_u32 s3, 4")
    A("s_cbranch_scc1 L_helper")

    A("s_sub_u32 s55, s3, 1")
    A("s_cmp_gt_u32 s3, 4")
    A("s_cselect_b32 s47, 1, 0")
    A("s_sub_u32 s55, s55, s47")
    def wo_loads(i_reg, s_reg, issue=True, prep=True):
        if prep:
            srd(28, 12, 4096 * 896)
            A(f"s_lshl_b32 s82, s53, 9"); A(f"s_lshl_b32 s47, s51, 5"); A(f"s_add_u32 s82, s82, s47")
            A(f"s_mul_i32 s82, s82, 896"); A(f"s_lshl_b32 s47, s55, 8"); A(f"s_add_u32 s82, s82, s47")
            A(f"v_mul_u32_u24 v204, 896, v{s_reg}")
            A(f"v_lshl_add_u32 v204, v{i_reg}, 4, v204")
            A(f"s_cmp_eq_u32 s55, 3")
            A(f"s_cselect_b32 s47, 8, 16")
            A(f"v_cmp_le_u32 vcc, s47, v{i_reg}")
            A(f"v_bfrev_b32 v205, 2")
            A(f"s_nop 0")
            A(f"v_cndmask_b32 v204, v204, v205, vcc")
        if issue:
            for rr in range(4):
                for hi in range(2):
                    t = 4 * hi + rr
                    A(f"buffer_load_dwordx4 v[{156+4*t}:{159+4*t}], v204, s[28:31], s82 offen offset:{hi*4*896}" + (" nt" if cfg.WONT else ""))
                if rr < 3:
                    A(f"s_add_u32 s82, s82, {8*896}")
    wo_loads(10, 11, issue=False)
    if not cfg.WOLATE:
        A(f"s_cmp_ge_u32 s55, {0 if cfg.NOWO else 4}")
        A("s_cbranch_scc1 L_c_nowo")
        wo_loads(10, 11, prep=False)
    A("L_c_nowo:")
    A("v_xor_b32 v23, v10, v11")
    A("v_lshlrev_b32 v24, 9, v10")
    for a in range(4):
        A(f"v_xor_b32 v25, {4*a}, v23")
        A(f"v_lshl_add_u32 v{2+a}, v25, 4, v24")
    A("v_lshlrev_b32 v24, 11, v11")
    A("v_lshl_add_u32 v6, v10, 4, v24")
    A(f"v_mov_b32 v188, {LD['FLAGS']}")
    A(f"v_mov_b32 v20, {hex(f2u(-3.0e38))}")
    A("v_mul_f32 v21, s54, v20")
    A("v_mov_b32 v22, 0")
    for k in range(8):
        A(f"v_mov_b32 v{132+k}, 0")
    A("v_mov_b32 v189, v10"); A("v_mov_b32 v190, v11")
    A("v_lshrrev_b32 v23, 3, v10"); A("v_lshlrev_b32 v23, 6, v23"); A("v_lshl_add_u32 v23, v11, 4, v23")
    A(f"v_add_u32 v202, {LD['SC']}, v23")
    if not cfg.SVC:
        A(f"s_cmp_lt_u32 s50, {0 if cfg.NOCF else NFB}"); A(f"s_cselect_b32 s78, {FC}, 0")
        A("s_cmp_eq_u32 s51, s50"); A("s_cselect_b32 s78, s78, 0"); A(f"s_sub_u32 s78, {S // 2}, s78")
    else:
        A("s_cmp_eq_u32 s51, s50"); A(f"s_cselect_b32 s78, 0, {S // 2 + 4}")
    A("s_lshl_b32 s79, s78, 1")
    A("s_mov_b32 s40, s55")
    A("s_lshl_b32 s41, s55, 14")
    A("s_mov_b32 s44, 0")
    A("s_waitcnt lgkmcnt(0)")
    A("s_add_u32 s58, s58, 1")
    A("s_and_b32 s46, s58, s59")
    A(f"v_mov_b32 v{TG}, s46")
    def c_wait(lbl, can_end):
        A(f"{lbl}:")
        A("ds_read_b32 v23, v188")
        A("s_lshr_b32 s47, s41, 12")
        A("v_add_u32 v191, s47, v188")
        A("s_add_u32 s42, s40, 1")
        A("v_mov_b32 v192, s42")
        A("s_waitcnt lgkmcnt(0)")
        A("v_readfirstlane_b32 s43, v23")
        A("s_and_b32 s46, s43, 0x7fff")
        if can_end and cfg.EARLYK:
            A("s_bfe_u32 s47, s43, 0x1000f")
            A("s_add_u32 s46, s46, s47")
        A("s_cmp_gt_u32 s46, s40")
        A(f"s_cbranch_scc1 {lbl}_go")
        if can_end:
            A("s_lshr_b32 s46, s43, 16")
            A("s_sub_u32 s46, s46, 1")
            A("s_cmp_lt_u32 s46, s40")
            A("s_cbranch_scc1 L_c_tail")
        spin_tail(lbl, sleep=0 if can_end else cfg.PSLEEP)
        A(f"{lbl}_go:")
    def c_adv():
        A(f"s_add_u32 s40, s40, {C}")
        A(f"s_add_u32 s41, s41, {C*16384}")
        A(f"s_sub_u32 s47, s41, {R*16384}")
        A(f"s_cmp_ge_u32 s41, {R*16384}")
        A("s_cselect_b32 s41, s47, s41")
    def k_reads(base, off):
        for t in range(8):
            A(f"ds_read_b128 v[{base+4*t}:{base+3+4*t}], v{7 + t % 4} offset:{off + (t//4)*256}")
    def v_reads(base, off, rs=range(4)):
        for r in rs:
            for h in range(2):
                A(f"ds_read_b128 v[{base+8*r+4*h}:{base+3+8*r+4*h}], v11 offset:{off + r*512 + h*256}")
    def resc(lbl):
        A(f"{lbl}:")
        A("v_mov_b32 v31, v30")
        A("s_nop 1")
        A("v_permlane16_swap_b32 v30, v31")
        A("v_max_f32 v30, v30, v31")
        A("v_mov_b32 v31, v30")
        A("s_nop 1")
        A("v_permlane32_swap_b32 v30, v31")
        A("v_max3_f32 v20, v30, v31, v20")
        A("v_mul_f32 v30, s54, v20")
        A("v_sub_f32 v31, v21, v30")
        A("v_exp_f32 v31, v31")
        A("v_mov_b32 v21, v30")
        for k in range(8):
            A(f"v_mul_f32 v{132+k}, v{132+k}, v31")
        A("v_mul_f32 v22, v22, v31")
        A(f"s_branch {lbl}_ret")
    def pv(tiles):
        steps = [(pb + r // 2, 12 + 4 * (r % 2), vb + 8 * r) for (pb, vb) in tiles for r in range(4)]
        def mm(n):
            bb = 140 + 4 * (n % 4); vb = steps[n][2]
            for h in range(2):
                A(f"v_mfma_f32_16x16x32_bf16 v[{132+4*h}:{135+4*h}], v[{vb+4*h}:{vb+3+4*h}], v[{bb}:{bb+3}], v[{132+4*h}:{135+4*h}]")
        for n, (src, sel, vb) in enumerate(steps):
            for k in range(4):
                A(f"v_perm_b32 v{140+4*(n%4)+k}, v{src}, v{src}, v{sel+k}")
            if n >= 1:
                mm(n - 1)
        mm(len(steps) - 1)
    if cfg.SVC:
        A("s_cmp_eq_u32 s78, 0")
        A("s_cbranch_scc1 L_cc")
    c_wait("L_ck", False)
    for a in range(4):
        A(f"v_add_u32 v{7+a}, s41, v{2+a}")
    k_reads(64, 0); k_reads(96, 8192)
    A("s_lshl_b32 s47, s40, 7")
    A("v_add_u32 v203, s47, v202")
    A("s_waitcnt lgkmcnt(0)")
    A("ds_write_b32 v191, v192 offset:64")
    A("s_cmp_eq_u32 s44, 0")
    A("s_cbranch_scc1 L_c_first")
    A("L_ck_comp:")
    for t in range(8):
        A(f"v_mfma_f32_16x16x32_bf16 v[128:131], v[{64+4*t}:{67+4*t}], v[{32+4*t}:{35+4*t}], {'0' if t == 0 else 'v[128:131]'}")
        A(f"v_mfma_f32_16x16x32_bf16 v[140:143], v[{96+4*t}:{99+4*t}], v[{32+4*t}:{35+4*t}], {'0' if t == 0 else 'v[140:143]'}")
    c_adv()
    A("s_nop 2")
    A("v_cvt_pk_bf16_f32 v24, v128, v129")
    A("v_cvt_pk_bf16_f32 v25, v130, v131")
    A("v_cvt_pk_bf16_f32 v26, v140, v141")
    A("v_cvt_pk_bf16_f32 v27, v142, v143")
    A("s_mov_b32 exec_lo, 0x01010101"); A("s_mov_b32 exec_hi, 0x01010101")
    A("ds_write_b128 v203, v[24:27]")
    A("s_mov_b64 exec, -1")
    A("s_cmp_lt_u32 s40, s78")
    A("s_cbranch_scc1 L_ck")
    c_wait("L_cv", False)
    A("s_sub_u32 s47, s40, s78"); A("s_lshl_b32 s47, s47, 7")
    A("v_add_u32 v203, s47, v202")
    A("v_add_u32 v11, s41, v6")
    A("ds_read_b128 v[24:27], v203")
    v_reads(64, 0); v_reads(96, 8192, range(3))
    A("s_waitcnt lgkmcnt(14)")
    v_reads(96, 8192, [3])
    for k in range(4):
        A(f"v_lshlrev_b32 v{194+2*k}, 16, v{24+k}")
        A(f"v_and_b32 v{195+2*k}, 0xffff0000, v{24+k}")
    A("v_max3_f32 v30, v194, v195, v196")
    A("v_max3_f32 v31, v197, v198, v199")
    A("v_max3_f32 v30, v30, v200, v201")
    A("v_max_f32 v30, v30, v31")
    A("v_cmp_gt_f32 vcc, v30, v20")
    A("s_cbranch_vccnz L_cv_resc")
    A("L_cv_resc_ret:")
    for k in range(8):
        A(f"v_fma_f32 v{194+k}, v{194+k}, s54, -v21")
    for k in range(8):
        A(f"v_exp_f32 v{194+k}, v{194+k}")
    A("s_nop 0")
    for k in range(4):
        A(f"v_cvt_pk_bf16_f32 v{24+k}, v{194+2*k}, v{195+2*k}")
    for k in range(4):
        A(f"v_add_f32 v{194+2*k}, v{194+2*k}, v{195+2*k}")
    A("v_add_f32 v194, v194, v196"); A("v_add_f32 v198, v198, v200")
    A("v_add_f32 v22, v22, v194"); A("v_add_f32 v22, v22, v198")
    A("s_waitcnt lgkmcnt(0)")
    A("ds_write_b32 v191, v192 offset:64")
    pv([(24, 64), (26, 96)])
    c_adv()
    A("s_cmp_lt_u32 s40, s79")
    A("s_cbranch_scc1 L_cv")
    c_wait("L_cc", True)
    for a in range(4):
        A(f"v_add_u32 v{7+a}, s41, v{2+a}")
    A("v_add_u32 v11, s41, v6")
    if cfg.EARLYK:
        k_reads(64, 0)
        if cfg.SVC:
            A("s_cmp_eq_u32 s44, 0")
            A("s_cbranch_scc1 L_c_first")
            A("L_cc_comp:")
        for t in range(8):
            A(f"s_waitcnt lgkmcnt({7 - t})")
            A(f"v_mfma_f32_16x16x32_bf16 v[128:131], v[{64+4*t}:{67+4*t}], v[{32+4*t}:{35+4*t}], {'0' if t == 0 else 'v[128:131]'}")
        A("s_nop 7")
    else:
        k_reads(64, 0); v_reads(96, 8192)
        A("s_waitcnt lgkmcnt(8)")
        for t in range(8):
            A(f"v_mfma_f32_16x16x32_bf16 v[128:131], v[{64+4*t}:{67+4*t}], v[{32+4*t}:{35+4*t}], {'0' if t == 0 else 'v[128:131]'}")
        A("s_waitcnt lgkmcnt(0)")
        A("ds_write_b32 v191, v192 offset:64")
        c_adv()
        A("s_nop 0")
    A("v_cvt_pk_bf16_f32 v24, v128, v129")
    A("v_cvt_pk_bf16_f32 v25, v130, v131")
    A("v_lshlrev_b32 v26, 16, v24")
    A("v_and_b32 v27, 0xffff0000, v24")
    A("v_lshlrev_b32 v28, 16, v25")
    A("v_and_b32 v29, 0xffff0000, v25")
    A("v_max3_f32 v30, v26, v27, v28")
    A("v_max_f32 v30, v30, v29")
    A("v_cmp_gt_f32 vcc, v30, v20")
    A("s_cbranch_vccnz L_cc_resc")
    A("L_cc_resc_ret:")
    for k in range(4):
        A(f"v_fma_f32 v{26+k}, v{26+k}, s54, -v21")
    for k in range(4):
        A(f"v_exp_f32 v{26+k}, v{26+k}")
    A("s_nop 0")
    A("v_cvt_pk_bf16_f32 v24, v26, v27")
    A("v_cvt_pk_bf16_f32 v25, v28, v29")
    A("v_add_f32 v30, v26, v27")
    A("v_add_f32 v31, v28, v29")
    A("v_add_f32 v22, v22, v30")
    A("v_add_f32 v22, v22, v31")
    if cfg.EARLYK:
        A("L_cc_w2:")
        A("s_and_b32 s46, s43, 0x7fff")
        A("s_cmp_gt_u32 s46, s40")
        A("s_cbranch_scc1 L_cc_w2go")
        A("ds_read_b32 v23, v188")
        A("s_waitcnt lgkmcnt(0)")
        A("v_readfirstlane_b32 s43, v23")
        spin_tail("L_cc_w2", sleep=0)
        A("L_cc_w2go:")
        v_reads(96, 8192)
        for n in range(4):
            for k in range(4):
                A(f"v_perm_b32 v{140+4*n+k}, v{24 + n // 2}, v{24 + n // 2}, v{12 + 4 * (n % 2) + k}")
        c_adv()
        for n in range(4):
            for h in range(2):
                A(f"s_waitcnt lgkmcnt({7 - 2*n - h})")
                A(f"v_mfma_f32_16x16x32_bf16 v[{132+4*h}:{135+4*h}], v[{96+8*n+4*h}:{99+8*n+4*h}], v[{140+4*n}:{143+4*n}], v[{132+4*h}:{135+4*h}]")
        A("ds_write_b32 v191, v192 offset:64")
    else:
        pv([(24, 96)])
    A("s_lshr_b32 s46, s43, 16")
    A("s_sub_u32 s46, s46, 1")
    A("s_cmp_ge_u32 s46, s40")
    A("s_cbranch_scc1 L_cc")
    A("L_c_tail:")
    stamp(3)
    A(f"s_add_u32 s47, s41, {(R - C)*16384}")
    A(f"s_sub_u32 s48, s47, {R*16384}")
    A(f"s_cmp_ge_u32 s47, {R*16384}")
    A("s_cselect_b32 s47, s48, s47")
    A("v_lshl_add_u32 v25, v1, 4, s47")
    A("v_lshl_add_u32 v26, v1, 3, s47")
    A("v_mov_b32 v28, v21"); A("v_mov_b32 v29, v22")
    A("ds_write_b64 v26, v[28:29] offset:2048")
    A("ds_write_b128 v25, v[132:135]")
    A("ds_write_b128 v25, v[136:139] offset:1024")
    A("s_cmp_lt_u32 s55, 4")
    A("s_cbranch_scc1 L_p_wave")
    A("s_sub_u32 s56, s55, 4")
    A("s_lshr_b32 s46, s43, 16")
    A("s_sub_u32 s46, s40, s46")
    A("s_lshl_b32 s46, s46, 14")
    A("s_sub_i32 s46, s41, s46")
    for j in range(6):
        A("s_sub_i32 s46, s46, 16384")
        A(f"s_add_i32 s47, s46, {R*16384}")
        A("s_cmp_lt_i32 s46, 0")
        A("s_cselect_b32 s46, s47, s46")
        A(f"v_lshl_add_u32 v{70+j}, v1, 3, s46")
    A("s_lshl_b32 s47, s56, 10")
    A("v_lshl_add_u32 v27, v1, 3, s47")
    for j in range(6):
        A(f"v_add_u32 v{76+j}, v{70+j}, v27")
    if not cfg.HAL:
        A("v_lshrrev_b32 v26, 3, v189"); A("v_lshlrev_b32 v26, 14, v26"); A("v_lshl_add_u32 v26, v190, 11, v26")
        A("v_and_b32 v27, 7, v189"); A("v_lshl_add_u32 v26, v27, 4, v26")
        A("s_lshl_b32 s46, s50, 15"); A("s_lshl_b32 s47, s56, 13"); A("s_add_u32 s46, s46, s47")
        A("s_lshl_b32 s47, s51, 7"); A("s_add_u32 s46, s46, s47"); A(f"s_add_u32 s46, s46, {WS_HA}")
    else:
        A("v_lshrrev_b32 v26, 3, v189"); A("v_lshlrev_b32 v26, 9, v26"); A("v_lshl_add_u32 v26, v190, 7, v26")
        A("v_and_b32 v27, 7, v189"); A("v_lshl_add_u32 v26, v27, 4, v26")
        A(f"s_mul_i32 s46, s2, {HBS}"); A(f"s_add_u32 s49, s46, {WS_HA2 + 2048}")
        A("s_lshl_b32 s47, s56, 10"); A("s_add_u32 s46, s46, s47"); A(f"s_add_u32 s46, s46, {WS_HA2}")
    A("s_waitcnt lgkmcnt(0)")
    A("s_barrier")
    for j in range(6):
        A(f"ds_read_b64 v[{84+2*j}:{85+2*j}], v{70+j} offset:2048")
    for j in range(6):
        A(f"ds_read_b128 v[{96+4*j}:{99+4*j}], v{76+j}")
    A("s_waitcnt lgkmcnt(6)")
    A("v_max3_f32 v28, v84, v86, v88")
    A("v_max3_f32 v28, v28, v90, v92")
    A("v_max_f32 v28, v28, v94")
    for j in range(6):
        A(f"v_sub_f32 v{84+2*j}, v{84+2*j}, v28")
    for j in range(6):
        A(f"v_exp_f32 v{84+2*j}, v{84+2*j}")
    A("s_waitcnt lgkmcnt(0)")
    for k in range(4):
        A(f"v_mul_f32 v{120+k}, v84, v{96+k}")
    for j in range(1, 6):
        for k in range(4):
            A(f"v_fmac_f32 v{120+k}, v{84+2*j}, v{96+4*j+k}")
    for k in range(4):
        tag(120 + k)
    A("buffer_store_dwordx4 v[120:123], v26, s[36:39], s46 offen sc1")
    A("s_cmp_eq_u32 s56, 0")
    A("s_cbranch_scc1 L_x0")
    A("v_mul_f32 v29, v84, v85")
    for j in range(1, 6):
        A(f"v_fmac_f32 v29, v{84+2*j}, v{85+2*j}")
    A(f"v_lshlrev_b32 v27, {1 if cfg.HAL else 8}, v189")
    A("v_mov_b32 v24, v29")
    A("s_lshl_b32 s48, s50, 12"); A("s_lshl_b32 s47, s51, 7")
    A("v_permlane16_swap_b32 v29, v24")
    A("v_add_f32 v29, v29, v24")
    A("v_mov_b32 v24, v29")
    A("s_add_u32 s48, s48, s47"); A(f"s_add_u32 s48, s48, {WS_HM}")
    A("v_permlane32_swap_b32 v29, v24")
    A("v_add_f32 v29, v29, v24")
    A("v_mov_b32 v30, s58")
    A("v_mov_b32 v31, s58")
    A("s_mov_b64 exec, 0x101")
    A(f"buffer_store_dwordx4 v[28:31], v27, s[36:39], {'s49' if cfg.HAL else 's48'} offen sc1")
    A("s_mov_b64 exec, -1")
    if cfg.WOLATE == 4:
        A("s_barrier")
    stamp(4)
    A("s_endpgm")
    A("L_x0:")
    if cfg.WOLATE == 4:
        A("s_barrier")
    stamp(4)
    if not cfg.HAL:
        A("v_lshlrev_b32 v24, 7, v189")
        A("v_lshl_add_u32 v23, v190, 4, v24")
        A("s_lshl_b32 s46, s2, 11"); A(f"s_add_u32 s46, s46, {WS_HA}")
        A("s_lshl_b32 s48, s50, 12"); A("s_lshr_b32 s47, s51, 3"); A("s_lshl_b32 s47, s47, 11"); A("s_add_u32 s48, s48, s47"); A(f"s_add_u32 s48, s48, {WS_HM}")
    else:
        A(f"v_mul_u32_u24 v24, {HBS}, v189")
        A("v_lshl_add_u32 v23, v190, 4, v24")
        A(f"s_mul_i32 s48, s50, {16 * HBS}"); A(f"s_add_u32 s48, s48, {WS_HA2}")
        A("s_and_b32 s46, s51, 3"); A("s_lshl_b32 s46, s46, 7"); A("s_add_u32 s46, s46, s48")
        A("s_and_b32 s47, s51, 4"); A("s_lshl_b32 s47, s47, 8"); A("s_add_u32 s46, s46, s47")
        A("s_and_b32 s47, s51, 8"); A("s_lshl_b32 s49, s47, 6"); A("s_add_u32 s46, s46, s49")
        A("s_lshl_b32 s47, s47, 1"); A("s_add_u32 s48, s48, s47"); A("s_add_u32 s48, s48, 2048")
    A("v_lshl_add_u32 v27, v190, 4, v188")
    if cfg.BAR3:
        A("s_waitcnt vmcnt(0)")
    stamp(5)
    def issA():
        A("buffer_load_dwordx4 v[64:67], v23, s[36:39], s46 offen sc1")
        A("buffer_load_dwordx4 v[68:71], v23, s[36:39], s46 offen offset:64 sc1")
        A("buffer_load_dwordx4 v[72:75], v24, s[36:39], s48 offen sc1")
    poll("L_p_poll", issA, 3, lambda: tagcheck(range(64, 72), 25, full=(74, 75), strip=True), "L_p_go")
    A("L_p_go:")
    A("s_mov_b64 exec, -1")
    stamp(6)
    A("v_mov_b32 v26, v72")
    for sh in (8, 4, 2, 1):
        A("s_nop 1")
        A(f"v_max_f32_dpp v26, v26, v26 row_ror:{sh} row_mask:0xf bank_mask:0xf")
    A("v_sub_f32 v26, v72, v26")
    A("v_exp_f32 v26, v26")
    A("s_nop 0")
    A("v_mul_f32 v88, v73, v26")
    for k in range(8):
        A(f"v_mul_f32 v{80+k}, v{64+k}, v26")
    for sh in (8, 4, 2, 1):
        for k in (8, 0, 1, 2, 3, 4, 5, 6, 7):
            A(f"v_add_f32_dpp v{80+k}, v{80+k}, v{80+k} row_ror:{sh} row_mask:0xf bank_mask:0xf")
            if sh == 1 and k == 2:
                A("v_rcp_f32 v88, v88")
    for k in range(8):
        A(f"v_mul_f32 v{80+k}, v{80+k}, v88")
    for k in range(4):
        A(f"v_cvt_pk_bf16_f32 v{76+k}, v{80+2*k}, v{81+2*k}")
    A("s_mov_b32 exec_lo, 0x00010001"); A("s_mov_b32 exec_hi, 0x00010001")
    A("ds_write_b128 v27, v[76:79] offset:160")
    A("s_waitcnt lgkmcnt(0)")
    A("s_barrier")
    A("s_endpgm")
    A("L_p_wave:")
    if cfg.WOLATE == 1:
        wo_loads(0, 0, prep=False)
    A("v_lshl_add_u32 v27, v190, 4, v188")
    if cfg.HBL:
        A("v_lshlrev_b32 v23, 14, v190")
        A("v_lshl_add_u32 v23, v189, 4, v23")
        A("s_lshl_b32 s46, s52, 18"); A("s_lshl_b32 s47, s55, 16"); A("s_add_u32 s46, s46, s47")
        A("s_and_b32 s47, s2, 127"); A("s_lshl_b32 s47, s47, 7"); A("s_add_u32 s46, s46, s47"); A(f"s_add_u32 s46, s46, {WS_HB}")
    else:
        A("v_lshlrev_b32 v23, 7, v190")
        A("v_lshl_add_u32 v23, v189, 4, v23")
        A("s_lshl_b32 s46, s2, 11"); A("s_lshl_b32 s47, s55, 9"); A("s_add_u32 s46, s46, s47"); A(f"s_add_u32 s46, s46, {WS_HB}")
    A("s_cmp_eq_u32 s55, 3")
    A("s_cselect_b32 s47, 0, 0x00ff00ff")
    if cfg.WOLATE == 3:
        A("s_lshr_b32 s48, s43, 16"); A("s_sub_u32 s48, s40, s48")
        A(f"s_cmp_ge_u32 s48, {5 - (cfg.WOLATE - 3)}")
        A("s_cbranch_scc1 L_p_late")
        wo_loads(0, 0, prep=False)
        A("s_waitcnt lgkmcnt(0)")
        A("s_barrier")
        A("s_branch L_p_join")
        A("L_p_late:")
        A("s_waitcnt lgkmcnt(0)")
        A("s_barrier")
        wo_loads(0, 0, prep=False)
        A("L_p_join:")
    else:
        A("s_waitcnt lgkmcnt(0)")
        A("s_barrier")
    if cfg.WOLATE == 4:
        A("s_barrier")
    if cfg.WOLATE in (2, 4):
        wo_loads(0, 0, prep=False)
    A("s_waitcnt vmcnt(0)")
    A("s_barrier")
    A("ds_read_b128 v[76:79], v27 offset:160")
    stamp(5)
    A("s_waitcnt lgkmcnt(0)")
    for t in range(9):
        if t < 8:
            src = 76 + t // 2; sel = 12 + 4 * (t % 2)
            for k in range(4):
                A(f"v_perm_b32 v{96+4*t+k}, v{src}, v{src}, v{sel+k}")
        else:
            A("s_nop 0")
        if t >= 1:
            u = t - 1
            A(f"v_mfma_f32_16x16x32_bf16 v[128:131], v[{156+4*u}:{159+4*u}], v[{96+4*u}:{99+4*u}], {'0' if u == 0 else 'v[128:131]'}")
    A("s_mov_b32 exec_lo, 0x00ff00ff"); A("s_mov_b32 exec_hi, s47")
    A("s_nop 5")
    for k in range(4):
        tag(128 + k)
    A("buffer_store_dwordx4 v[128:131], v23, s[36:39], s46 offen sc1")
    A("s_mov_b64 exec, -1")
    stamp(6)
    A("s_waitcnt vmcnt(0)")
    A("s_endpgm")
    resc("L_cv_resc")
    resc("L_cc_resc")
    A("L_c_first:")
    A("L_c_qwait:")
    A("ds_read_b32 v23, v188 offset:4")
    A("s_waitcnt lgkmcnt(0)")
    A("v_readfirstlane_b32 s46, v23")
    A("s_cmp_lg_u32 s46, 0")
    A("s_cbranch_scc1 L_c_qgo")
    spin_tail("L_c_qwait")
    A("L_c_qgo:")
    A("v_lshrrev_b32 v23, 3, v189")
    A("v_lshlrev_b32 v23, 9, v23")
    A("v_lshl_add_u32 v23, v190, 4, v23")
    A(f"v_add_u32 v23, {LD['Q']}, v23")
    for t in range(8):
        A(f"ds_read_b128 v[{32+4*t}:{35+4*t}], v23 offset:{64*t}")
    A("s_mov_b32 s44, 1")
    A("s_waitcnt lgkmcnt(0)")
    stamp(2)
    if cfg.SVC:
        assert cfg.EARLYK
        A("s_cmp_eq_u32 s78, 0")
        A("s_cbranch_scc1 L_cc_comp")
    A("s_branch L_ck_comp")

    A("L_helper:")
    srd(28, 4, 1792)
    srd(32, 10, 16 if cfg.NOWQ else 448 * 8192)
    A("v_lshrrev_b32 v20, 5, v1")
    A("v_and_b32 v21, 31, v1")
    A("v_mul_u32_u24 v22, 896, v20")
    A("v_lshl_add_u32 v22, v21, 2, v22")
    for m in range(7):
        A(f"buffer_load_dword v{24+m}, v22, s[28:31], 0 offen offset:{128*m}")
    if cfg.QV == 1:
        A("s_and_b32 s56, s51, 3"); A("s_lshr_b32 s57, s51, 2")
        A(f"v_mul_u32_u24 v23, {28*8192}, v11")
        A("v_lshl_add_u32 v23, v10, 4, v23")
        A(f"s_mul_i32 s46, s57, {112*8192}"); A("s_lshl_b32 s47, s53, 10"); A("s_add_u32 s46, s46, s47")
        A("s_lshl_b32 s47, s56, 8"); A("s_add_u32 s46, s46, s47")
    else:
        A("s_and_b32 s56, s51, 7"); A("s_lshl_b32 s56, s56, 1"); A("s_lshr_b32 s57, s51, 3"); A("s_add_u32 s56, s56, s57")
        A("v_lshrrev_b32 v23, 2, v1"); A(f"v_mul_u32_u24 v23, {28*8192}, v23")
        A("v_and_b32 v31, 3, v1"); A("v_lshl_add_u32 v23, v31, 4, v23")
        A("s_lshl_b32 s46, s53, 10"); A("s_lshl_b32 s47, s56, 6"); A("s_add_u32 s46, s46, s47")
    for t in range(28):
        A(f"buffer_load_dwordx4 v[{64+4*t}:{67+4*t}], v23, s[32:35], s46 offen nt")
        if t < 27:
            A("s_add_u32 s46, s46, 8192")
    A(f"s_mul_i32 s46, s50, {PCS}"); A(f"s_add_u32 s46, s46, {WS_PC}")
    A("s_cmp_eq_u32 s51, 0"); A(f"s_cselect_b32 s46, s46, {WS_SIZE}")
    A("v_mov_b32 v186, 0")
    A("s_mov_b64 exec, 1")
    A("buffer_store_dword v186, v186, s[36:39], s46 offen sc1")
    A("s_mov_b64 exec, -1")
    A("s_waitcnt lgkmcnt(0)")
    A("s_add_u32 s58, s58, 1")
    A("s_and_b32 s46, s58, s59")
    A(f"v_mov_b32 v{TG}, s46")
    NAFTER = 28 + 1
    stamp(0)
    ND = 1 if cfg.DIAG == 1 else 0
    A(f"s_waitcnt vmcnt({NAFTER + ND})")
    for m in range(7):
        A(f"v_lshlrev_b32 v{32+2*m}, 16, v{24+m}")
        A(f"v_and_b32 v{33+2*m}, 0xffff0000, v{24+m}")
    def red32(v, t):
        for sh in (8, 4, 2, 1):
            A("s_nop 1")
            A(f"v_add_f32_dpp v{v}, v{v}, v{v} row_ror:{sh} row_mask:0xf bank_mask:0xf")
        A(f"v_mov_b32 v{t}, v{v}")
        A("s_nop 1")
        A(f"v_permlane16_swap_b32 v{v}, v{t}")
        A(f"v_add_f32 v{v}, v{v}, v{t}")
    A("v_add_f32 v46, v32, v33")
    for k in range(2, 14):
        A(f"v_add_f32 v46, v46, v{32+k}")
    red32(46, 47)
    A(f"v_mul_f32 v46, {hex(f2u(1.0/448))}, v46")
    A("v_sub_f32 v48, v32, v46")
    A("v_mul_f32 v47, v48, v48")
    for k in range(1, 14):
        A(f"v_sub_f32 v48, v{32+k}, v46")
        A("v_fmac_f32 v47, v48, v48")
    red32(47, 48)
    A(f"v_mul_f32 v47, {hex(f2u(1.0/448))}, v47")
    A("v_cvt_pk_bf16_f32 v48, v46, v47")
    A("v_lshlrev_b32 v46, 16, v48")
    A("v_and_b32 v47, 0xffff0000, v48")
    A(f"v_add_f32 v47, {hex(f2u(1e-5))}, v47")
    A("v_cvt_pk_bf16_f32 v47, v47, v47")
    A("v_lshlrev_b32 v47, 16, v47")
    A("v_sqrt_f32 v47, v47")
    A("s_nop 0")
    A("v_cvt_pk_bf16_f32 v47, v47, v47")
    A("v_lshlrev_b32 v47, 16, v47")
    A("v_rcp_f32 v47, v47")
    for k in range(14):
        A(f"v_sub_f32 v{32+k}, v{32+k}, v46")
    for m in range(7):
        A(f"v_cvt_pk_bf16_f32 v{24+m}, v{32+2*m}, v{33+2*m}")
    for m in range(7):
        A(f"v_lshlrev_b32 v{32+2*m}, 16, v{24+m}")
        A(f"v_and_b32 v{33+2*m}, 0xffff0000, v{24+m}")
    for k in range(14):
        A(f"v_mul_f32 v{32+k}, v{32+k}, v47")
    for m in range(7):
        A(f"v_cvt_pk_bf16_f32 v{24+m}, v{32+2*m}, v{33+2*m}")
    A(f"v_add_u32 v22, {LD['XN']}, v22")
    for m in range(7):
        A(f"ds_write_b32 v22, v{24+m} offset:{128*m}")
    if cfg.QV == 1:
        A("s_mul_i32 s46, s52, 896"); A("s_mul_i32 s47, s57, 224"); A("s_add_u32 s46, s46, s47"); A(f"s_add_u32 s46, s46, {LD['XN']}")
        A("v_mul_u32_u24 v22, 56, v11")
        A("v_add_u32 v22, s46, v22")
        A("s_waitcnt lgkmcnt(0)")
        for m in range(7):
            A(f"ds_read_b64 v[{32+2*m}:{33+2*m}], v22 offset:{8*m}")
        A("s_waitcnt lgkmcnt(0)")
        for t in range(28):
            src = 32 + t // 2; sel = 12 + 4 * (t % 2); bb = 48 + 4 * (t % 2)
            for k in range(4):
                A(f"v_perm_b32 v{bb+k}, v{src}, v{src}, v{sel+k}")
            A(f"s_waitcnt vmcnt({27 - t + 1 + ND})")
            A("s_nop 0")
            A(f"v_mfma_f32_16x16x32_bf16 v[56:59], v[{64+4*t}:{67+4*t}], v[{bb}:{bb+3}], {'0' if t == 0 else 'v[56:59]'}")
        A("v_lshlrev_b32 v23, 7, v11")
        A("v_lshl_add_u32 v23, v10, 4, v23")
        A("s_lshl_b32 s46, s50, 13"); A("s_lshl_b32 s47, s56, 11"); A("s_add_u32 s46, s46, s47")
        A("s_lshl_b32 s47, s57, 9"); A("s_add_u32 s46, s46, s47"); A(f"s_add_u32 s46, s46, {WS_QP}")
        A("s_waitcnt vmcnt(0)")
        for k in range(4):
            tag(56 + k)
        A("s_mov_b32 exec_lo, 0x00ff00ff"); A("s_mov_b32 exec_hi, 0x00ff00ff")
        A("buffer_store_dwordx4 v[56:59], v23, s[36:39], s46 offen sc1")
        A("s_mov_b64 exec, -1")
        stamp(1)
        A("v_lshlrev_b32 v25, 7, v1")
        A("s_lshl_b32 s46, s50, 13"); A(f"s_add_u32 s46, s46, {WS_QP}")
        A("s_add_u32 s47, s46, 4096")
        A("v_lshlrev_b32 v22, 11, v20")
        A("v_lshl_add_u32 v22, v21, 4, v22")
        A("L_h_qpoll:")
        A("buffer_load_dword v26, v25, s[36:39], s46 offen sc1")
        A("s_waitcnt vmcnt(0)")
        tagcheck([26], 27)
        A("s_cbranch_vccz L_h_qgo")
        A("L_h_qretry:")
        spin_tail("L_h_qpoll", sleep=cfg.QSLEEP)
        A("L_h_qgo:")
        for z in range(2):
            for rs in range(4):
                A(f"buffer_load_dwordx4 v[{64+16*z+4*rs}:{67+16*z+4*rs}], v22, s[36:39], s{46+z} offen offset:{rs*512} sc1")
        A("s_waitcnt vmcnt(0)")
        tagcheck(range(64, 96), 27)
        A("s_cbranch_vccnz L_h_qretry")
        A("v_lshrrev_b32 v23, 3, v21")
        A("v_lshlrev_b32 v23, 6, v23")
        A("v_lshl_add_u32 v23, v20, 8, v23")
        A("v_lshl_add_u32 v23, v3, 1, v23")
        A(f"v_add_u32 v23, {LD['Q']}, v23")
        for z in range(2):
            b0 = 64 + 16 * z
            for k in range(4):
                A(f"v_add_f32 v{b0+k}, v{b0+k}, v{b0+4+k}")
                A(f"v_add_f32 v{b0+8+k}, v{b0+8+k}, v{b0+12+k}")
            for k in range(4):
                A(f"v_add_f32 v{b0+k}, v{b0+k}, v{b0+8+k}")
            A(f"v_cvt_pk_bf16_f32 v{b0}, v{b0}, v{b0+1}")
            A(f"v_cvt_pk_bf16_f32 v{b0+1}, v{b0+2}, v{b0+3}")
            A(f"ds_write_b16 v23, v{b0} offset:{z*512}")
            A(f"ds_write_b16_d16_hi v23, v{b0} offset:{z*512+16}")
            A(f"ds_write_b16 v23, v{b0+1} offset:{z*512+32}")
            A(f"ds_write_b16_d16_hi v23, v{b0+1} offset:{z*512+48}")
    else:
        A("s_mul_i32 s46, s52, 896"); A(f"s_add_u32 s46, s46, {LD['XN']}")
        A("v_lshrrev_b32 v22, 3, v10"); A("v_lshl_add_u32 v22, v11, 2, v22"); A("v_mul_u32_u24 v22, 56, v22")
        A("v_add_u32 v22, s46, v22")
        A("s_waitcnt lgkmcnt(0)")
        for m in range(7):
            A(f"ds_read_b64 v[{32+2*m}:{33+2*m}], v22 offset:{8*m}")
        for m in range(7):
            A(f"ds_read_b64 v[{176+2*m}:{177+2*m}], v22 offset:{112+8*m}")
        A("s_waitcnt lgkmcnt(0)")
        for t in range(28):
            sel = 12 + 4 * (t % 2)
            for k in range(4):
                A(f"v_perm_b32 v{48+k}, v{32+t//2}, v{32+t//2}, v{sel+k}")
            for k in range(4):
                A(f"v_perm_b32 v{52+k}, v{176+t//2}, v{176+t//2}, v{sel+k}")
            A(f"s_waitcnt vmcnt({27 - t + 1 + ND})")
            A(f"v_mfma_f32_16x16x32_bf16 v[56:59], v[{64+4*t}:{67+4*t}], v[48:51], {'0' if t == 0 else 'v[56:59]'}")
            A(f"v_mfma_f32_16x16x32_bf16 v[60:63], v[{64+4*t}:{67+4*t}], v[52:55], {'0' if t == 0 else 'v[60:63]'}")
        A("v_lshlrev_b32 v23, 4, v1")
        A("s_lshl_b32 s46, s50, 11"); A(f"s_add_u32 s46, s46, {WS_QP}")
        A("s_lshl_b32 s47, s56, 7"); A("s_add_u32 s47, s47, s46")
        A("s_mov_b32 exec_lo, 0")
        A("s_nop 2")
        for k in range(4):
            A(f"v_mov_b32 v{56+k}, v{60+k}")
        A("s_mov_b32 exec_lo, 0x00ffff00"); A("s_mov_b32 exec_hi, 0x00ffff00")
        for k in range(4):
            A(f"v_mov_b32 v{56+k}, 0")
        A("s_mov_b64 exec, -1")
        for k in range(4):
            A(f"v_add_f32_dpp v{56+k}, v{56+k}, v{56+k} row_ror:8 row_mask:0xf bank_mask:0xf")
        for sw in ("16", "32"):
            for k in range(4):
                A(f"v_mov_b32 v{60+k}, v{56+k}")
            A("s_nop 0")
            for k in range(4):
                A(f"v_permlane{sw}_swap_b32 v{56+k}, v{60+k}")
            for k in range(4):
                A(f"v_add_f32 v{56+k}, v{56+k}, v{60+k}")
        for k in range(4):
            A(f"v_cvt_pk_bf16_f32 v{56+k}, 0, v{56+k}")
        for k in range(4):
            A(f"v_or_b32 v{56+k}, v{56+k}, v{TG}")
        A("s_waitcnt vmcnt(0)")
        A("s_mov_b64 exec, 0xff")
        A("buffer_store_dwordx4 v[56:59], v23, s[36:39], s47 offen sc1")
        A("s_mov_b64 exec, -1")
        stamp(1)
        A("v_lshrrev_b32 v22, 3, v1"); A("v_lshlrev_b32 v22, 6, v22"); A("v_lshl_add_u32 v22, v3, 1, v22")
        A(f"v_add_u32 v22, {LD['Q']}, v22")
        A("s_waitcnt vmcnt(0)")
        A("L_h_qpoll:")
        A("buffer_load_dwordx4 v[64:67], v23, s[36:39], s46 offen sc1")
        A("buffer_load_dwordx4 v[68:71], v23, s[36:39], s46 offen offset:1024 sc1")
        A("s_waitcnt vmcnt(0)")
        tagcheck(range(64, 72), 27)
        A("s_cbranch_vccz L_h_qgo")
        spin_tail("L_h_qpoll", sleep=cfg.QSLEEP)
        A("L_h_qgo:")
        for z in range(2):
            for r in range(4):
                A(f"ds_write_b16_d16_hi v22, v{64+4*z+r} offset:{z*512+16*r}")
    A(f"v_mov_b32 v24, {LD['FLAGS']}"); A("v_mov_b32 v25, 1")
    A("s_waitcnt lgkmcnt(0)")
    A("ds_write_b32 v24, v25 offset:4")
    stamp(2)
    A("s_mov_b32 s56, s50")
    A("s_cmp_lg_u32 s51, s50")
    A("s_cbranch_scc1 L_h_noffn")
    FB = cfg.FB; NFB = 1792 // FB; RS = FB // 4
    if NFB < 16:
        A(f"s_cmp_ge_u32 s50, {NFB}")
        A("s_cbranch_scc1 L_h_noffn")
    srd(28, 16, 16 if cfg.NOFFN in (1, 3) else 448 * 3584)
    srd(32, 18, 16 if cfg.NOFFN in (1, 3) else 448 * 3584)
    A(f"v_mul_u32_u24 v23, {112*3584}, v11")
    A("v_lshl_add_u32 v23, v10, 4, v23")
    A(f"v_cmp_le_u32 vcc, {FB // 8}, v10")
    A("v_bfrev_b32 v27, 2")
    A(f"s_mul_i32 s46, s56, {FB * 2}")
    A("v_cndmask_b32 v23, v23, v27, vcc")
    if cfg.NOFFN == 4:
        A("v_lshlrev_b32 v23, 4, v1"); A(f"s_mul_i32 s46, s56, {112 * 1024}")
    A("v_lshrrev_b32 v22, 3, v10")
    A("v_mul_u32_u24 v22, 896, v22")
    A("v_mul_u32_u24 v24, 224, v11")
    A(f"v_add3_u32 v22, v22, v24, 0")
    A(f"v_add_u32 v22, {LD['XN']}, v22")
    for k in range(8):
        A(f"v_mov_b32 v{56+k}, 0")
    def ffn_loads(t):
        A(f"buffer_load_dwordx4 v[{64+8*t}:{67+8*t}], v23, s[28:31], s46 offen nt")
        A(f"buffer_load_dwordx4 v[{68+8*t}:{71+8*t}], v23, s[32:35], s46 offen nt")
        A(f"s_add_u32 s46, s46, {1024 if cfg.NOFFN == 4 else 3584}")
    A("s_waitcnt vmcnt(0)")
    def fpause(lbl, units):
        if not units:
            return
        A(f"v_mov_b32 v30, {LD['FLAGS']}")
        A(f"{lbl}:")
        A("ds_read_b32 v29, v30")
        A("s_waitcnt lgkmcnt(0)")
        A("v_readfirstlane_b32 s75, v29")
        A("s_and_b32 s75, s75, 0x7fff")
        A(f"s_cmp_ge_u32 s75, {units}")
        A(f"s_cbranch_scc1 {lbl}_go")
        spin_tail(lbl, sleep=8)
        A(f"{lbl}_go:")
    fpause('L_h_fp1', cfg.FP1)
    FD = cfg.FD; DD = FD // 2; YA = 196
    for t in range(FD):
        ffn_loads(t)
    A(f"s_mov_b32 s57, {112 // FD - 1}")
    def ffn_iter(reissue):
        for z in range(FD // 8):
            A(f"ds_read_b128 v[{32+4*z}:{35+4*z}], v22 offset:{16*z}")
        A(f"v_add_u32 v22, {2*FD}, v22")
        A("s_waitcnt lgkmcnt(0)")
        for t in range(FD):
            src = 32 + t // 2; sel = 12 + 4 * (t % 2); bb = 48 + 4 * (t % 2)
            for k in range(4):
                A(f"v_perm_b32 v{bb+k}, v{src}, v{src}, v{sel+k}")
            A(f"s_waitcnt vmcnt({2*FD-2 if reissue else 2*FD-2 - 2*t})")
            A("s_nop 0")
            A(f"v_mfma_f32_16x16x32_bf16 v[56:59], v[{64+8*t}:{67+8*t}], v[{bb}:{bb+3}], v[56:59]")
            A(f"v_mfma_f32_16x16x32_bf16 v[60:63], v[{68+8*t}:{71+8*t}], v[{bb}:{bb+3}], v[60:63]")
            if reissue:
                ffn_loads(t)
    A("L_h_f1:")
    ffn_iter(True)
    A("s_sub_u32 s57, s57, 1"); A("s_cmp_lg_u32 s57, 0"); A("s_cbranch_scc1 L_h_f1")
    ffn_iter(False)
    srd(28, 20, 16 if cfg.NOFFN in (1, 2) else 1792 * 896)
    A(f"v_mul_u32_u24 v23, {RS*896}, v11")
    A("v_lshl_add_u32 v23, v10, 4, v23")
    A("v_cmp_le_u32 vcc, 8, v10")
    A(f"s_mul_i32 s46, s56, {FB*896}")
    A("s_nop 0")
    A("v_cndmask_b32 v26, v23, v27, vcc")
    def dn_loads(t):
        for nb in range(4):
            A(f"buffer_load_dwordx4 v[{64+16*t+4*nb}:{67+16*t+4*nb}], v{26 if nb == 3 else 23}, s[28:31], s46 offen offset:{nb*256} nt")
        A("s_add_u32 s46, s46, 896")
    A("s_nop 4")
    fpause('L_h_fp2', cfg.FP2)
    for t in range(DD):
        dn_loads(t)
    A("v_cvt_pk_bf16_f32 v32, v56, v57"); A("v_cvt_pk_bf16_f32 v33, v58, v59")
    A("v_cvt_pk_bf16_f32 v34, v60, v61"); A("v_cvt_pk_bf16_f32 v35, v62, v63")
    for k in range(4):
        A(f"v_lshlrev_b32 v{36+2*k}, 16, v{32+k}")
        A(f"v_and_b32 v{37+2*k}, 0xffff0000, v{32+k}")
    K0 = -2.0 * math.sqrt(2.0 / math.pi) * math.log2(math.e)
    A(f"s_mov_b32 s71, {hex(f2u(0.044715))}")
    for k in range(4):
        A(f"v_mul_f32 v{44+k}, v{36+k}, v{36+k}")
        A(f"v_mul_f32 v{44+k}, v{44+k}, v{36+k}")
        A(f"v_fma_f32 v{44+k}, v{44+k}, s71, v{36+k}")
        A(f"v_mul_f32 v{44+k}, {hex(f2u(K0))}, v{44+k}")
    for k in range(4):
        A(f"v_exp_f32 v{44+k}, v{44+k}")
    A("s_nop 0")
    for k in range(4):
        A(f"v_add_f32 v{44+k}, 1.0, v{44+k}")
    for k in range(4):
        A(f"v_rcp_f32 v{44+k}, v{44+k}")
    A("s_nop 0")
    for k in range(4):
        A(f"v_mul_f32 v{44+k}, v{44+k}, v{36+k}")
    A("v_cvt_pk_bf16_f32 v32, v44, v45"); A("v_cvt_pk_bf16_f32 v33, v46, v47")
    for k in range(2):
        A(f"v_lshlrev_b32 v{44+2*k}, 16, v{32+k}")
        A(f"v_and_b32 v{45+2*k}, 0xffff0000, v{32+k}")
    for k in range(4):
        A(f"v_mul_f32 v{44+k}, v{44+k}, v{40+k}")
    A("v_cvt_pk_bf16_f32 v32, v44, v45"); A("v_cvt_pk_bf16_f32 v33, v46, v47")
    A("v_lshrrev_b32 v22, 3, v10")
    A("v_lshlrev_b32 v22, 8, v22")
    A(f"v_add_u32 v22, {LD['H']}, v22")
    A("v_lshl_add_u32 v24, v11, 6, v22")
    A("v_lshl_add_u32 v24, v3, 1, v24")
    A(f"v_mul_u32_u24 v25, {RS*2}, v11")
    A("v_add_u32 v22, v22, v25")
    A("ds_write_b16 v24, v32")
    A("ds_write_b16_d16_hi v24, v32 offset:16")
    A("ds_write_b16 v24, v33 offset:32")
    A("ds_write_b16_d16_hi v24, v33 offset:48")
    for k in range(16):
        A(f"v_mov_b32 v{YA+k}, 0")
    A("s_waitcnt lgkmcnt(0)")
    A(f"s_mov_b32 s57, {RS // DD - 1}")
    def dn_iter(reissue):
        for z in range(DD // 4):
            A(f"ds_read_b64 v[{32+2*z}:{33+2*z}], v22 offset:{8*z}")
        A(f"v_add_u32 v22, {2*DD}, v22")
        A("s_waitcnt lgkmcnt(0)")
        for t in range(DD):
            src = 32 + t // 2; sel = 12 + 4 * (t % 2); bb = 48 + 4 * (t % 2)
            for k in range(4):
                A(f"v_perm_b32 v{bb+k}, v{src}, v{src}, v{sel+k}")
            A(f"s_waitcnt vmcnt({4*DD-4 if reissue else 4*DD-4 - 4*t})")
            A("s_nop 0")
            for nb in range(4):
                A(f"v_mfma_f32_16x16x32_bf16 v[{YA+4*nb}:{YA+3+4*nb}], v[{64+16*t+4*nb}:{67+16*t+4*nb}], v[{bb}:{bb+3}], v[{YA+4*nb}:{YA+3+4*nb}]")
            if reissue:
                dn_loads(t)
    A("L_h_f2:")
    dn_iter(True)
    A("s_sub_u32 s57, s57, 1"); A("s_cmp_lg_u32 s57, 0"); A("s_cbranch_scc1 L_h_f2")
    dn_iter(False)
    A("v_lshrrev_b32 v22, 3, v10")
    A("v_lshlrev_b32 v22, 11, v22")
    A("v_lshl_add_u32 v22, v11, 7, v22")
    A("v_lshl_add_u32 v22, v3, 4, v22")
    A("s_lshl_b32 s46, s56, 12"); A(f"s_add_u32 s46, s46, {WS_HY}")
    A("s_nop 4")
    for k in range(16):
        tag(YA + k)
    for nb in range(4):
        if nb == 3:
            A("s_mov_b32 exec_hi, 0")
        A(f"buffer_store_dwordx4 v[{YA+4*nb}:{YA+3+4*nb}], v22, s[36:39], s46 offen offset:{nb*512} sc1")
    A("s_mov_b64 exec, -1")
    stamp(3)
    A("L_h_noffn:")
    A("s_and_b32 s56, s2, 127")
    A("s_cmp_eq_u32 s2, 255")
    A("s_cbranch_scc1 L_h_epoch")
    A("s_cmp_ge_u32 s56, 28")
    A("s_cbranch_scc1 L_end")
    A("v_lshlrev_b32 v22, 12, v10")
    A("v_lshl_add_u32 v22, v11, 4, v22")
    A("s_lshl_b32 s46, s52, 11"); A("s_lshl_b32 s47, s56, 6"); A("s_add_u32 s46, s46, s47"); A(f"s_add_u32 s46, s46, {WS_HY}")
    for k in range(4):
        A(f"v_mov_b32 v{64+k}, 0")
    ym = ((1 << NFB) - 1) * 0x10001
    A(f"s_mov_b32 exec_lo, {hex(ym)}"); A(f"s_mov_b32 exec_hi, {hex(ym)}")
    A("L_h_ypoll:")
    A("buffer_load_dwordx4 v[64:67], v22, s[36:39], s46 offen sc1")
    A("s_waitcnt vmcnt(0)")
    tagcheck(range(64, 68), 27, strip=True)
    A("s_cbranch_vccz L_h_ygo")
    spin_tail("L_h_ypoll", sleep=64)
    A("L_h_ygo:")
    A("s_mov_b64 exec, -1")
    A("s_lshr_b32 s47, s56, 1"); A("s_lshl_b32 s47, s47, 5"); A("s_and_b32 s48, s56, 1"); A("s_lshl_b32 s48, s48, 2")
    A("s_add_u32 s47, s47, s48"); A("s_mul_i32 s48, s52, 448"); A("s_add_u32 s47, s47, s48"); A("s_lshl_b32 s57, s47, 1")
    srd(28, 4, 1792)
    srd(32, 22, 1792)
    A("v_lshlrev_b32 v23, 1, v11")
    for rr in range(4):
        A(f"buffer_load_ushort v{72+rr}, v23, s[28:31], s57 offen offset:{16*rr}")
    A("s_waitcnt vmcnt(0)")
    for sh in (8, 4, 2, 1):
        for k in range(4):
            A(f"v_add_f32_dpp v{64+k}, v{64+k}, v{64+k} row_ror:{sh} row_mask:0xf bank_mask:0xf")
    A("v_cvt_pk_bf16_f32 v68, v64, v65"); A("v_cvt_pk_bf16_f32 v69, v66, v67")
    for k in range(2):
        A(f"v_lshlrev_b32 v{64+2*k}, 16, v{68+k}")
        A(f"v_and_b32 v{65+2*k}, 0xffff0000, v{68+k}")
    for k in range(4):
        A(f"v_mul_f32 v{68+k}, {hex(f2u(-math.log2(math.e)))}, v{64+k}")
    for k in range(4):
        A(f"v_exp_f32 v{68+k}, v{68+k}")
    A("s_nop 0")
    for k in range(4):
        A(f"v_add_f32 v{68+k}, 1.0, v{68+k}")
    for k in range(4):
        A(f"v_rcp_f32 v{68+k}, v{68+k}")
    A("s_nop 0")
    for k in range(4):
        A(f"v_mul_f32 v{64+k}, v{64+k}, v{68+k}")
    A("v_cvt_pk_bf16_f32 v68, v64, v65"); A("v_cvt_pk_bf16_f32 v69, v66, v67")
    for k in range(2):
        A(f"v_lshlrev_b32 v{76+2*k}, 16, v{68+k}")
        A(f"v_and_b32 v{77+2*k}, 0xffff0000, v{68+k}")
    for k in range(4):
        A(f"v_lshlrev_b32 v{72+k}, 16, v{72+k}")
    if not cfg.HBL:
        A("v_lshlrev_b32 v22, 11, v10")
        A("v_lshl_add_u32 v22, v11, 4, v22")
        A("s_lshl_b32 s46, s52, 18"); A("s_lshl_b32 s47, s56, 6"); A("s_add_u32 s46, s46, s47"); A(f"s_add_u32 s46, s46, {WS_HB}")
        for k in range(1, 8):
            A(f"s_add_u32 s{63+k}, s46, {k*32768}")
    else:
        A("v_lshlrev_b32 v22, 7, v10")
        A("v_lshl_add_u32 v22, v11, 4, v22")
        A("s_lshl_b32 s46, s52, 18"); A("s_lshr_b32 s47, s56, 1"); A("s_lshl_b32 s47, s47, 14"); A("s_add_u32 s46, s46, s47")
        A("s_and_b32 s47, s56, 1"); A("s_lshl_b32 s47, s47, 6"); A("s_add_u32 s46, s46, s47"); A(f"s_add_u32 s46, s46, {WS_HB}")
        for k in range(1, 8):
            A(f"s_add_u32 s{63+k}, s46, {k*2048}")
    stamp(4)
    A("s_waitcnt vmcnt(0) lgkmcnt(0)")
    A("s_barrier")
    A("s_barrier")
    if cfg.WOLATE == 4:
        A("s_barrier")
    if cfg.BAR4:
        A("s_barrier")
    def issB():
        for k in range(8):
            A(f"buffer_load_dwordx4 v[{96+4*k}:{99+4*k}], v22, s[36:39], s{46 if k == 0 else 63+k} offen sc1")
    if cfg.ICHK:
        A("L_h_bpoll:")
        issB()
        for k in range(8):
            A(f"s_waitcnt vmcnt({7-k})")
            r0 = 96 + 4 * k
            for z in range(4):
                A(f"v_xor_b32 v{r0+z}, v{r0+z}, v{TG}")
            A(f"v_or_b32 v24, v{r0}, v{r0+1}" if k == 0 else f"v_or3_b32 v24, v24, v{r0}, v{r0+1}")
            A(f"v_or3_b32 v24, v24, v{r0+2}, v{r0+3}")
        A("v_and_b32 v24, s59, v24")
        A("v_cmp_ne_u32 vcc, 0, v24")
        A("s_cbranch_vccz L_h_bgo")
        remask()
        spin_tail("L_h_bpoll", sleep=cfg.HSLEEP)
    else:
        poll("L_h_bpoll", issB, 8, lambda: tagcheck(range(96, 128), 24), "L_h_bgo")
    A("L_h_bgo:")
    A("s_mov_b64 exec, -1")
    stamp(5)
    for k in range(16):
        A(f"v_add_f32 v{128+k}, v{96+k}, v{112+k}")
    for step in (8, 4):
        for k in range(step):
            A(f"v_add_f32 v{128+k}, v{128+k}, v{128+step+k}")
    A("s_nop 0")
    for sh in (8, 4, 2, 1):
        for k in range(4):
            A(f"v_add_f32_dpp v{128+k}, v{128+k}, v{128+k} row_ror:{sh} row_mask:0xf bank_mask:0xf")
    A("v_cvt_pk_bf16_f32 v132, v128, v129"); A("v_cvt_pk_bf16_f32 v133, v130, v131")
    for k in range(2):
        A(f"v_lshlrev_b32 v{128+2*k}, 16, v{132+k}")
        A(f"v_and_b32 v{129+2*k}, 0xffff0000, v{132+k}")
    for k in range(4):
        A(f"v_mul_f32 v{128+k}, v{128+k}, v{76+k}")
    A("v_cvt_pk_bf16_f32 v132, v128, v129"); A("v_cvt_pk_bf16_f32 v133, v130, v131")
    for k in range(2):
        A(f"v_lshlrev_b32 v{128+2*k}, 16, v{132+k}")
        A(f"v_and_b32 v{129+2*k}, 0xffff0000, v{132+k}")
    for k in range(4):
        A(f"v_add_f32 v{128+k}, v{128+k}, v{72+k}")
    A("v_cvt_pk_bf16_f32 v132, v128, v129"); A("v_cvt_pk_bf16_f32 v133, v130, v131")
    A("s_mov_b32 exec_lo, 0x00010001"); A("s_mov_b32 exec_hi, 0x00010001")
    A("buffer_store_short v132, v23, s[32:35], s57 offen" + (" sc0 sc1 " if cfg.OSC else ""))
    A("buffer_store_short_d16_hi v132, v23, s[32:35], s57 offen offset:16" + (" sc0 sc1 " if cfg.OSC else ""))
    A("buffer_store_short v133, v23, s[32:35], s57 offen offset:32" + (" sc0 sc1 " if cfg.OSC else ""))
    A("buffer_store_short_d16_hi v133, v23, s[32:35], s57 offen offset:48" + (" sc0 sc1 " if cfg.OSC else ""))
    A("s_mov_b64 exec, -1")
    stamp(6, light=True)
    if cfg.DBGT == 2:
        A("s_cmp_lg_u32 s2, 0"); A("s_cbranch_scc1 L_end")
        A("s_memrealtime s[94:95]"); A("s_waitcnt lgkmcnt(0)")
        A("s_sub_u32 s96, s94, s92"); A("s_sub_i32 s96, s96, 7000"); A("s_max_i32 s96, s96, 0"); A("s_min_i32 s96, s96, 3000"); A("s_mul_i32 s96, s96, 10")
        A("L_dly:")
        A("s_memrealtime s[98:99]"); A("s_waitcnt lgkmcnt(0)")
        A("s_sub_u32 s98, s98, s94"); A("s_cmp_lt_u32 s98, s96"); A("s_cbranch_scc1 L_dly")
    if cfg.DBGT == 1:
        A("s_memrealtime s[94:95]")
        srd(28, 24, 256)
        A("s_waitcnt lgkmcnt(0)")
        A("s_not_b32 s92, s92")
        A("v_mov_b32 v24, s92"); A("v_mov_b32 v25, s94"); A("v_mov_b32 v26, 0")
        A("s_mov_b64 exec, 1")
        A("buffer_atomic_umax v24, v26, s[28:31], 0 offen sc1")
        A("buffer_atomic_umax v25, v26, s[28:31], 0 offen offset:4 sc1")
    A("L_end:")
    A("s_endpgm")
    A("L_h_epoch:")
    if cfg.HAL:
        A(f"v_mul_u32_u24 v22, {HBS}, v1")
        for k in range(4):
            A(f"s_mov_b32 s{64+k}, {WS_HA2 + 2048 + k*64*HBS}")
    else:
        A("v_lshlrev_b32 v22, 12, v11")
        A("v_lshl_add_u32 v22, v10, 7, v22")
        for k in range(4):
            A(f"s_mov_b32 s{64+k}, {WS_HM + k*4*4096}")
    A("s_waitcnt vmcnt(0) lgkmcnt(0)")
    A("s_barrier")
    A("s_barrier")
    if cfg.WOLATE == 4:
        A("s_barrier")
    if cfg.BAR4:
        A("s_barrier")
    A("L_h_epoll:")
    for k in range(4):
        A(f"buffer_load_dwordx2 v[{96+2*k}:{97+2*k}], v22, s[36:39], s{64+k} offen offset:8 sc1")
    A("s_waitcnt vmcnt(0)")
    tagcheck([], 24, full=range(96, 104))
    A("s_cbranch_vccz L_h_ego")
    spin_tail("L_h_epoll", sleep=8)
    A("L_h_ego:")
    A("v_mov_b32 v24, s58"); A("v_mov_b32 v25, 0")
    A("s_mov_b64 exec, 1")
    A(f"buffer_store_dword v24, v25, s[36:39], 0 offen offset:{WS_EP}" + (" sc0 sc1 " if cfg.OSC else ""))
    A("s_endpgm")
    nv = 256 if cfg.DIAG else 216
    A('.section .rodata,"a"'); A(".p2align 6"); A(f".amdhsa_kernel {NAME}")
    A.L.append(f"  .amdhsa_next_free_vgpr {nv}"); A.L.append("  .amdhsa_next_free_sgpr 102"); A.L.append(f"  .amdhsa_accum_offset {nv}")
    A.L.append("  .amdhsa_group_segment_fixed_size 0"); A.L.append("  .amdhsa_kernarg_size 96"); A.L.append("  .amdhsa_user_sgpr_count 2")
    A.L.append("  .amdhsa_user_sgpr_kernarg_segment_ptr 1"); A.L.append("  .amdhsa_system_sgpr_workgroup_id_x 1"); A(".end_amdhsa_kernel")
    CM = {'L_ld_k': 'loader phase 1: K double units', 'L_ld_v': 'loader phase 2: V double units', 'L_ld_c': 'loader phase 3: combined K+V units (extra unit, tickets)', 'L_ld_done': 'loader drain: publish total and the last landed counts', 'L_notloader': 'common set-up of the other waves', 'L_ck': 'consumer phase 1: scores', 'L_cv': 'consumer phase 2: softmax + P*V', 'L_cc': 'consumer phase 3: combined unit', 'L_c_tail': 'consumer exit: partial to LDS, combine and publish', 'L_x0': 'hop A: merge the 16 partials of 32 columns', 'L_p_wave': 'projection through wo and publication of the partial row', 'L_cv_resc': 'new running max: rescale', 'L_cc_resc': 'new running max: rescale', 'L_c_first': 'first unit: wait for q', 'L_helper': 'helper: layernorm, q slice', 'L_h_f1': 'FFN gate / up', 'L_h_f2': 'FFN down', 'L_h_noffn': 'final owners', 'L_h_bpoll': 'hop B', 'L_h_epoch': 'epoch update (workgroup 255)'}
    L2 = []
    for line in A.L:
        if line.endswith(":") and line[:-1] in CM:
            L2.append("; ---- " + CM[line[:-1]])
        L2.append(line)
    A.L = L2
    FL = {0: "sc1", 1: "sc0 sc1", 2: "sc0 sc1 nt", 3: "sc1 nt"}
    for i, line in enumerate(A.L):
        if line.startswith("buffer_load") and line.endswith(" sc1"):
            A.L[i] = line[:-3] + FL[cfg.PF]
        if line.startswith("buffer_load") and line.endswith(" nt"):
            A.L[i] = line[:-2] + POL[cfg.WP]
        if line.startswith("buffer_store") and line.endswith(" sc1"):
            A.L[i] = line[:-3] + FL[cfg.SF]
    if cfg.DIAG:
        sys.stderr.write(str(codes) + "\n")
    return "\n".join(A.L) + "\n"

if __name__ == "__main__":
    cfg = Cfg()
    out = sys.argv[1]
    for kv in sys.argv[2:]:
        k, v = kv.split("=")
        setattr(cfg, k, tuple(int(x) for x in v.split("/") if x) if k == "SIZES" else int(v))
    open(out, "w").write(gen(cfg))
```

```python
import sys, math
NAME = "recurrent_scan__gqa_block_cached__glu_gated_geglu__decode_kernel"

class Cfg:
    F = 20
    R = 9
    C = 6
    DIAG = False
    SPIN = 1 << 20
    NOSWZ = 0
    NOCOMP = 0
    NOWO = 0
    NOWQ = 0
    PSLEEP = 1
    QSLEEP = 4
    BAR3 = 1
    BAR4 = 1
    MASKP = 1
    DBGT = 0
    F3 = 32
    LBAR = 0
    FD = 8
    ET = 2
    PIPE = 0
    QV = 2
    HAL = 0
    EARLYK = 1
    WOLATE = 4
    NOCF = 0
    SVC = 0
    HBL = 1
    FP1 = 0
    OSC = 0
    G4 = 1
    WONT = 0
    FP2 = 47
    ICHK = 1
    LSLEEP = 16
    PGAP = 4
    EZ = 6
    HSLEEP = 1
    PF = 0
    FB = 128
    STAT = 2
    KP = 1
    VP = 1
    WP = 1
    ROT = 5
    GS = 43
    WIN = 1
    SF = 0
    SIZES = (3, 2, 1)
    NOFFN = 0

def lds_layout(R):
    o = R * 16384
    L = {}
    L['FLAGS'] = o; o += 256
    L['Q'] = o; o += 1024
    L['XN'] = o; o += 1792
    L['H'] = o; o += 512
    L['SC'] = o; o += 72 * 128
    L['END'] = o
    return L

WS_EP = 0
WS_PC = 0x1000
PCS = 4352
WS_QP = 0x20000
WS_HA = 0x40000
WS_HA2 = 0x280000
HBS = 2304
WS_HM = 0xC0000
WS_HB = 0xD0000
WS_HY = 0x150000
WS_DIAG = 0x200000
WS_SIZE = 0x400000
TAGM = 0xf
POL = {0: "", 1: "nt", 2: "sc1", 3: "sc0 sc1", 4: "sc1 nt", 5: "sc0 sc1 nt", 6: "sc0", 7: "sc0 nt"}
CSC = 0.0625 * math.log2(math.e)

import struct
def f2u(x):
    return struct.unpack('<I', struct.pack('<f', x))[0]

class Asm:
    def __init__(self):
        self.L = []
        self.n = 0
    def __call__(self, s):
        for line in s.strip('\n').split('\n'):
            self.L.append(line.strip() if not line.strip().endswith(':') else line.strip())
    def label(self, base):
        self.n += 1
        return f"L_{base}_{self.n}"

def gen(cfg):
    F, R, C = cfg.F, cfg.R, cfg.C
    LD = lds_layout(R)
    assert LD['END'] <= 163840, LD['END']
    A = Asm()
    NUNITS = 128
    SIZES = tuple(cfg.SIZES)
    S = NUNITS - sum(SIZES)
    NT = (15 if cfg.SVC else 16) * len(SIZES)
    assert len(SIZES) <= 8
    SZP = sum(v << (8 * r) for r, v in enumerate(SIZES))
    STP = sum((S + sum(SIZES[:r])) << (8 * r) for r in range(len(SIZES)))
    def srd(dst, base, size, add=None):
        if add is None:
            A(f"s_mov_b32 s{dst}, s{base}")
            A(f"s_and_b32 s{dst+1}, s{base+1}, 0xffff")
        else:
            A(f"s_add_u32 s{dst}, s{base}, s{add}")
            A(f"s_addc_u32 s{dst+1}, s{base+1}, 0")
            A(f"s_and_b32 s{dst+1}, s{dst+1}, 0xffff")
        A(f"s_mov_b32 s{dst+2}, {size}")
        A(f"s_mov_b32 s{dst+3}, 0x20000")
    def stamp(idx, tmpv=(250, 251, 252), light=False):
        if not cfg.DIAG or (cfg.DIAG == 2 and not light):
            return
        A(f"s_memrealtime s[96:97]")
        A(f"s_lshl_b32 s98, s2, 3")
        A(f"s_add_u32 s98, s98, s3")
        A(f"s_lshl_b32 s98, s98, 7")
        A(f"s_add_u32 s98, s98, {WS_DIAG + idx*8}")
        A(f"s_waitcnt lgkmcnt(0)")
        A(f"v_mov_b32 v{tmpv[0]}, s96")
        A(f"v_mov_b32 v{tmpv[1]}, s97")
        A(f"v_mov_b32 v{tmpv[2]}, 0")
        A(f"s_mov_b64 s[94:95], exec")
        A(f"s_mov_b64 exec, 1")
        A(f"buffer_store_dwordx2 v[{tmpv[0]}:{tmpv[1]}], v{tmpv[2]}, s[36:39], s98 offen")
        A(f"s_mov_b64 exec, s[94:95]")
    TG = 212
    def tag(v):
        A(f"v_bfi_b32 v{v}, s59, v{TG + v % 4}, v{v}")
    def tagcheck(regs, acc, full=(), strip=False):
        regs = list(regs)
        if strip:
            assert not cfg.PIPE and len(regs) % 2 == 0
            for r in regs:
                A(f"v_xor_b32 v{r}, v{r}, v{TG + r % 4}")
            A(f"v_or_b32 v{acc}, v{regs[0]}, v{regs[1]}")
            for k in range(2, len(regs), 2):
                A(f"v_or3_b32 v{acc}, v{acc}, v{regs[k]}, v{regs[k+1]}")
        elif len(regs) == 0:
            A(f"v_mov_b32 v{acc}, 0")
        elif True:
            raise AssertionError("use strip=True")
        elif len(regs) == 1:
            A(f"v_xor_b32 v{acc}, v{regs[0]}, v{TG}")
        else:
            A(f"v_bitop3_b32 v{acc}, v{regs[0]}, v{regs[1]}, v{TG} bitop3:0x7e")
            for r in regs[2:]:
                A(f"v_bitop3_b32 v{acc}, v{acc}, v{r}, v{TG} bitop3:0xf6")
        A(f"v_and_b32 v{acc}, s59, v{acc}")
        for r in full:
            A(f"v_bitop3_b32 v{acc}, v{acc}, v{r}, s58 bitop3:0xf6")
        A(f"v_cmp_ne_u32 vcc, 0, v{acc}")
    def remask():
        if cfg.MASKP:
            A("s_or_b32 s76, vcc_lo, vcc_hi"); A("s_lshr_b32 s77, s76, 16"); A("s_or_b32 s76, s76, s77")
            A("s_pack_ll_b32_b16 s76, s76, s76")
            A("s_mov_b32 exec_lo, s76"); A("s_mov_b32 exec_hi, s76")
    def poll(lbl, issue, n, check, go):
        if not cfg.PIPE:
            A(f"{lbl}:")
            issue()
            A("s_waitcnt vmcnt(0)")
            check()
            A(f"s_cbranch_vccz {go}")
            remask()
            if cfg.SVC and n == 3:
                q = A.label("awake")
                A("s_bcnt1_i32_b32 s77, s76"); A("s_cmp_lt_u32 s77, 30"); A(f"s_cbranch_scc1 {q}")
                A(f"s_sleep {cfg.LSLEEP}")
                A(f"{q}:")
            spin_tail(lbl, sleep=cfg.HSLEEP)
        else:
            issue()
            A("s_waitcnt vmcnt(0)")
            check()
            A(f"s_cbranch_vccz {go}")
            remask()
            for d in range(cfg.PIPE):
                issue()
                A(f"s_sleep {cfg.PGAP}")
            A(f"{lbl}:")
            issue()
            A(f"s_waitcnt vmcnt({n * cfg.PIPE})")
            check()
            A(f"s_cbranch_vccz {go}")
            remask()
            spin_tail(lbl, sleep=0)
    codes = {}
    def die(lbl):
        if cfg.DIAG:
            codes.setdefault(lbl, len(codes) + 1)
            A("s_mov_b64 exec, 1")
            A(f"v_mov_b32 v248, {codes[lbl]}"); A("v_mov_b32 v249, s40"); A("v_mov_b32 v250, s43"); A("v_mov_b32 v251, s73"); A("v_mov_b32 v252, 0")
            A("s_lshl_b32 s98, s2, 3"); A("s_add_u32 s98, s98, s3"); A("s_lshl_b32 s98, s98, 7"); A(f"s_add_u32 s98, s98, {WS_DIAG + 112}")
            A("buffer_store_dwordx4 v[248:251], v252, s[36:39], s98 offen")
        A("s_endpgm")
    def spin_tail(lbl, cnt="s45", sleep=1):
        A(f"s_sleep {sleep}")
        A(f"s_sub_u32 {cnt}, {cnt}, 1")
        A(f"s_cmp_lg_u32 {cnt}, 0")
        A(f"s_cbranch_scc1 {lbl}")
        die(lbl)

    hdr = open('recurrent_scan__gqa_block_cached__glu_gated_geglu__decode.s.ref').read().split('\n')
    for line in hdr:
        if line.startswith('; @launch') or not line.startswith(';'):
            break
        A.L.append(line)
    A(f"; @launch grid=(256,1,1) block=(512,1,1) lds={LD['END']}")
    A('.amdgcn_target "amdgcn-amd-amdhsa--gfx950"')

    DOC = """
; ---------------------------------------------------------------------------------------------
;   wave 0      loader: streams K, then V, by LDS-DMA into a ring of 9 x 16 KB slots with a fixed number of
;               loads in flight; the last few units of every group are handed out by a ticket counter.
; readers poll until every dword carries the tag.  All polling loops are bounded.
; ---------------------------------------------------------------------------------------------
"""
    for l in DOC.strip().split("\n"):
        A.L.append(l)
    A(".text"); A(f".globl {NAME}"); A(".p2align 8"); A(f".type {NAME},@function"); A(f"{NAME}:")
    if cfg.DIAG or cfg.DBGT:
        A("s_memrealtime s[92:93]")
    A(f"""
    s_cmp_ge_u32 s2, 256
    s_cbranch_scc1 L_end
    s_load_dwordx8 s[4:11], s[0:1], 0
    s_load_dwordx8 s[12:19], s[0:1], 32
    s_load_dwordx8 s[20:27], s[0:1], 64
    v_and_b32 v1, 63, v0
    v_lshrrev_b32 v2, 6, v0
    v_lshlrev_b32 v3, 2, v1
    v_add_u32 v3, {LD['FLAGS']}, v3
    v_mov_b32 v4, 0
    ds_write_b32 v3, v4
    v_readfirstlane_b32 s3, v2
    s_mov_b32 s45, {cfg.SPIN}
    s_mov_b32 s40, 0
    s_mov_b32 s43, 0
    s_mov_b32 s73, 0
    """)
    A("v_lshrrev_b32 v5, 5, v1")
    A("v_and_b32 v6, 31, v1")
    A("v_xor_b32 v6, v6, v5")
    A("v_lshlrev_b32 v5, 9, v5")
    for j in range(8):
        A(f"v_xor_b32 v7, {2*j}, v6")
        A(f"v_lshl_add_u32 v{8+j}, v7, 4, v5")
    A("v_lshlrev_b32 v16, 4, v1")
    A(f"v_mov_b32 v17, {LD['FLAGS']}")
    A("s_lshr_b32 s46, s2, 4")
    A("s_lshl_b32 s46, s46, 24")
    def ld_addr(dst, dt):
        if cfg.G4:
            if dst != "s42":
                return
            A("s_lshl_b32 s69, s67, 1")
            A("s_add_u32 s42, s69, s68"); A("s_and_b32 s42, s42, 255"); A("s_lshl_b32 s42, s42, 16")
            A(f"s_mul_i32 s69, s69, {cfg.ROT}"); A("s_add_u32 s69, s69, s66"); A("s_and_b32 s69, s69, 15"); A("s_lshl_b32 s75, s69, 12")
            return
        A(f"s_add_u32 s69, s67, {dt}")
        A(f"s_add_u32 {dst}, s69, s68"); A(f"s_and_b32 {dst}, {dst}, 127"); A(f"s_lshl_b32 {dst}, {dst}, 17")
        A(f"s_mul_i32 s69, s69, {cfg.ROT}"); A("s_add_u32 s69, s69, s66"); A("s_and_b32 s69, s69, 15"); A("s_lshl_b32 s69, s69, 13")
        A(f"s_or_b32 {dst}, {dst}, s69")
    A("s_mov_b32 s41, 0"); A("s_and_b32 s66, s2, 15"); A("s_mov_b32 s67, 0"); A("s_mov_b32 s44, 0")
    A("s_lshr_b32 s70, s2, 4"); A(f"s_mul_i32 s68, s70, {cfg.GS}")
    ld_addr("s42", 0); ld_addr("s75", 1)
    A("s_mov_b32 s53, 0")
    A(f"s_mov_b32 s30, {1 << 24}"); A("s_mov_b32 s31, 0x20000"); A(f"s_mov_b32 s34, {1 << 24}"); A("s_mov_b32 s35, 0x20000")
    A("s_waitcnt lgkmcnt(0)")
    A("s_add_u32 s28, s6, s46"); A("s_addc_u32 s29, s7, 0"); A("s_and_b32 s29, s29, 0xffff")
    if cfg.LBAR:
        A("s_cmp_eq_u32 s3, 0")
        A("s_cbranch_scc1 L_loader")
        A("s_barrier")
        A("s_branch L_notloader")
        A("L_loader:")
    else:
        A("s_barrier")
        A("s_cmp_lg_u32 s3, 0")
        A("s_cbranch_scc1 L_notloader")
    A("s_setprio 3")
    if cfg.DIAG:
        srd(36, 26, WS_SIZE)
    stamp(0)
    if cfg.DIAG == 1:
        A("v_mov_b32 v250, s92"); A("v_mov_b32 v251, s93"); A("s_mov_b64 exec, 1")
        A("buffer_store_dwordx2 v[250:251], v252, s[36:39], s98 offen offset:56")
        A("s_mov_b64 exec, -1")
    a_, jp = divmod(F - 1, 16)
    assert S % 2 == 0
    NFB = 1792 // cfg.FB
    assert (cfg.ET * cfg.EZ) % 2 == 0
    FC = 8 + cfg.ET * cfg.EZ // 2
    if cfg.DIAG:
        A("s_mov_b32 s90, 0")
        A("s_mov_b32 s88, 0")
    def ld_body(kinds, first=False, F=F):
        a_, jp = divmod(F - 1, 16)
        for j in range(16):
            if j % 4 == 0:
                A(f"s_add_u32 m0, s41, {j*1024}")
                if cfg.G4:
                    if kinds == "KV" and j >= 8:
                        A(f"s_mov_b32 s47, s{76 + (j - 8) // 4}")
                    else:
                        A("s_or_b32 s47, s42, s75")
                        if kinds == "KV":
                            A(f"s_mov_b32 s{76 + j // 4}, s47")
                else:
                    A(f"s_add_u32 s47, {'s42' if j < 8 else 's75'}, {(j % 8)*1024}")
            if cfg.G4 and j % 4 == 1 and not (kinds == "KV" and j >= 8):
                A("s_add_u32 s42, s42, 0x10000"); A("s_and_b32 s42, s42, 0xffffff")
                A(f"s_add_u32 s75, s75, {cfg.ROT << 12}"); A("s_and_b32 s75, s75, 0xffff")
            if j == 8:
                A("s_add_u32 s44, s44, 4"); A(f"s_cmp_ge_u32 s44, {R*4}"); A("s_cselect_b32 s44, 0, s44")
                A("v_add_u32 v19, s44, v17")
                A("ds_read_b32 v20, v19 offset:64")
            if not first:
                A(f"s_waitcnt vmcnt({F-1})")
            if kinds[j // 8] == 'K':
                A(f"buffer_load_dwordx4 v{8 + j % 8}, s[28:31], s47 offen offset:{(j%4)*1024} {POL[cfg.KP]} lds")
            else:
                A(f"buffer_load_dwordx4 v16, s[32:35], s47 offen offset:{(j%4)*1024} {POL[cfg.VP]} lds")
            if j == jp and not first:
                A(f"s_sub_i32 s49, s40, {a_}")
                A("s_max_i32 s43, s43, s49")
                A("v_mov_b32 v18, s43")
                A("ds_write_b32 v17, v18")
        A("s_add_u32 s40, s40, 1")
        A("s_add_u32 s41, s41, 16384"); A(f"s_cmp_ge_u32 s41, {R*16384}"); A("s_cselect_b32 s41, 0, s41")
        A("s_sub_u32 s53, s53, 1")
    def ld_ring(lbl):
        if cfg.DIAG == 1:
            n = A.label("nops")
            A("s_and_b32 s91, s40, 15"); A("s_cmp_lg_u32 s91, 0"); A(f"s_cbranch_scc1 {n}")
            A("s_cmp_gt_u32 s40, 80"); A(f"s_cbranch_scc1 {n}")
            A("s_memrealtime s[96:97]")
            A("s_lshl_b32 s98, s2, 10"); A("s_lshr_b32 s91, s40, 1"); A("s_add_u32 s98, s98, s91"); A(f"s_add_u32 s98, s98, {WS_DIAG + 64}")
            A("s_waitcnt lgkmcnt(0)")
            A("v_mov_b32 v250, s96"); A("v_mov_b32 v251, s97"); A("v_mov_b32 v252, 0")
            A("s_mov_b64 exec, 1")
            A("buffer_store_dwordx2 v[250:251], v252, s[36:39], s98 offen")
            A("s_mov_b64 exec, -1")
            A(f"{n}:")
        A(f"s_sub_i32 s48, s40, {R-1}")
        A("v_readfirstlane_b32 s47, v20")
        A("s_cmp_ge_i32 s47, s48")
        A(f"s_cbranch_scc1 {lbl}")
        if cfg.DIAG == 1:
            n = A.label("nost")
            A("s_cmp_lg_u32 s90, 0"); A(f"s_cbranch_scc1 {n}"); A("s_mov_b32 s90, 1")
            stamp(2)
            A(f"{n}:")
            stamp(3)
        A("s_waitcnt vmcnt(0)")
        A("s_mov_b32 s43, s40")
        A("v_mov_b32 v18, s43")
        A("ds_write_b32 v17, v18")
        sp = lbl + "_spin"
        A(f"{sp}:")
        A("ds_read_b32 v20, v19 offset:64")
        A("s_waitcnt lgkmcnt(0)")
        A("v_readfirstlane_b32 s47, v20")
        A("s_cmp_ge_i32 s47, s48")
        A(f"s_cbranch_scc1 {lbl}")
        spin_tail(sp)
    def ld_ticket_req():
        n = A.label("noat")
        A("s_add_u32 s74, s53, s71")
        A("s_cmp_lg_u32 s74, 1")
        A(f"s_cbranch_scc1 {n}")
        A("s_mov_b32 s54, 1")
        if NT:
            A("s_atomic_add s54, s[56:57], 0x0 glc")
        A(f"{n}:")
    def ld_adv():
        if not cfg.SVC:
            A("s_add_u32 s67, s67, 2")
            return
        o = A.label("own"); d = A.label("adv")
        A("s_cmp_eq_u32 s66, s70"); A(f"s_cbranch_scc1 {o}")
        A("s_cmp_lg_u32 s67, s83"); A(f"s_cbranch_scc1 {o}")
        A("s_mov_b32 s66, s70"); A("s_add_u32 s83, s83, 30"); A(f"s_branch {d}")
        A(f"{o}:")
        A("s_mov_b32 s66, s81"); A("s_add_u32 s67, s67, 2")
        A(f"{d}:")
    if cfg.SVC:
        assert 120 <= S <= 122 and not cfg.LBAR
        A("s_cmp_eq_u32 s66, s70")
        A("s_cbranch_scc1 L_ld_svc")
    ld_body("KK", first=True)
    A("s_add_u32 s32, s8, s46"); A("s_addc_u32 s33, s9, 0"); A("s_and_b32 s33, s33, 0xffff")
    if cfg.LBAR:
        A("s_barrier")
    A(f"s_mul_i32 s50, s70, {PCS}"); A(f"s_add_u32 s50, s50, {WS_PC}")
    A("s_add_u32 s56, s26, s50"); A("s_addc_u32 s57, s27, 0")
    A(f"s_mov_b32 s60, {hex(SZP & 0xffffffff)}"); A(f"s_mov_b32 s61, {hex(SZP >> 32)}")
    A(f"s_mov_b32 s62, {hex(STP & 0xffffffff)}"); A(f"s_mov_b32 s63, {hex(STP >> 32)}")
    A("s_mov_b32 s54, 0")
    if not cfg.SVC:
        A(f"s_cmp_lt_u32 s70, {0 if cfg.NOCF else NFB}"); A("s_cselect_b32 s71, 1, 0")
        A(f"s_add_u32 s72, s66, {S - 16}")
        A("s_cmp_eq_u32 s66, s70"); A("s_cselect_b32 s78, s71, 0"); A(f"s_mul_i32 s78, s78, {FC}"); A(f"s_sub_u32 s78, {S // 2}, s78")
        A(f"s_mul_i32 s80, s71, {cfg.ET}")
    else:
        A("s_mov_b32 s71, 0"); A(f"s_mov_b32 s78, {S // 2 + 4}"); A("s_mov_b32 s81, s66")
        A("s_cmp_gt_u32 s66, s70"); A("s_cselect_b32 s82, 1, 0"); A("s_sub_u32 s82, s66, s82"); A("s_lshl_b32 s82, s82, 1")
        A("s_mov_b32 s83, s82")
    A("s_sub_u32 s53, s78, 1")
    A("s_branch L_ld_kbot")
    if cfg.SVC:
        A("L_ld_svc:")
        A("s_add_u32 s32, s8, s46"); A("s_addc_u32 s33, s9, 0"); A("s_and_b32 s33, s33, 0xffff")
        A("s_mov_b32 s53, 8"); A("s_mov_b32 s67, 120"); A("s_mov_b32 s71, 64")
        A("s_mov_b32 s56, s26"); A("s_mov_b32 s57, s27")
        ld_addr("s42", 0)
        A("s_mov_b32 s75, s42")
        A("s_branch L_ld_c")
    A("L_ld_k:")
    ld_body("KK")
    A("L_ld_kbot:")
    ld_adv()
    A("s_cmp_lg_u32 s53, 0")
    A("s_cbranch_scc1 L_ld_kc")
    A("s_mov_b32 s67, 0"); A("s_mov_b32 s53, s78")
    if cfg.SVC:
        A("s_mov_b32 s66, s81"); A("s_mov_b32 s83, s82")
    A("s_branch L_ld_vc")
    A("L_ld_kc:")
    if not cfg.G4 or cfg.SVC:
        ld_addr("s42", 0); ld_addr("s75", 1)
    A("s_waitcnt lgkmcnt(0)")
    ld_ring("L_ld_k")
    A("L_ld_v:")
    ld_ticket_req()
    ld_body("VV")
    ld_adv()
    A("s_cmp_eq_u32 s53, 0")
    A("s_cbranch_scc1 L_ld_next")
    A("L_ld_vc:")
    ld_addr("s42", 0); ld_addr("s75", 1)
    A("s_waitcnt lgkmcnt(0)")
    ld_ring("L_ld_v")
    A("L_ld_c:")
    ld_ticket_req()
    F3 = cfg.F3 or F
    ld_body("KV", F=F3)
    A("s_add_u32 s67, s67, 1")
    A("s_cmp_lg_u32 s53, 0")
    A("s_cbranch_scc1 L_ld_cc")
    A("L_ld_next:")
    A("s_cmp_eq_u32 s71, 0"); A("s_cbranch_scc1 L_ld_tick")
    if cfg.SVC:
        A("s_branch L_ld_done")
    A("s_mov_b32 s71, 0"); A("s_mov_b32 s53, 1"); A("s_mov_b32 s66, s70"); A("s_mov_b32 s67, s72")
    A("s_branch L_ld_cc")
    A("L_ld_tick:")
    if cfg.DIAG == 1:
        A("s_memrealtime s[84:85]")
    A("s_waitcnt lgkmcnt(0)")
    if cfg.DIAG == 1:
        A("s_memrealtime s[86:87]"); A("s_waitcnt lgkmcnt(0)")
        A("s_sub_u32 s86, s86, s84"); A("s_lshl_b32 s88, s88, 8"); A("s_min_u32 s86, s86, 255"); A("s_or_b32 s88, s88, s86")
    if cfg.ET and not cfg.SVC:
        A("s_cmp_ge_u32 s54, s80"); A("s_cbranch_scc1 L_ld_tick2")
        A(f"s_mov_b32 s53, {cfg.EZ}"); A("s_mov_b32 s66, s70")
        A(f"s_mul_i32 s67, s54, {cfg.EZ}"); A(f"s_add_u32 s67, s67, {S - 2 * FC}")
        A("s_branch L_ld_cc")
        A("L_ld_tick2:")
        A("s_sub_u32 s54, s54, s80")
    A(f"s_cmp_ge_u32 s54, {NT}")
    A("s_cbranch_scc1 L_ld_done")
    if cfg.SVC:
        A("s_mul_i32 s51, s54, 4370"); A("s_lshr_b32 s51, s51, 16")
        A("s_mul_i32 s52, s51, 15"); A("s_sub_u32 s54, s54, s52")
        A("s_cmp_ge_u32 s54, s70"); A("s_addc_u32 s54, s54, 0")
        A("s_lshl_b32 s51, s51, 3")
    else:
        A("s_lshr_b32 s51, s54, 4"); A("s_lshl_b32 s51, s51, 3")
    A("s_lshr_b64 s[64:65], s[60:61], s51"); A("s_and_b32 s53, s64, 0xff")
    A("s_lshr_b64 s[64:65], s[62:63], s51"); A("s_and_b32 s67, s64, 0xff")
    A("s_and_b32 s66, s54, 15")
    A("L_ld_cc:")
    ld_addr("s42", 0)
    if not cfg.G4:
        A("s_mov_b32 s75, s42")
    A("s_waitcnt lgkmcnt(0)")
    ld_ring("L_ld_c")
    A("L_ld_done:")
    A("s_lshl_b32 s50, s40, 16")
    A("s_or_b32 s51, s50, s43")
    A("v_mov_b32 v18, s51")
    A("ds_write_b32 v17, v18")
    for k in range(3, -1, -1):
        if 16 * k < max(F, F3):
            A(f"s_sub_u32 s51, s40, {k}")
            A("s_max_u32 s51, s51, s43")
            A("s_or_b32 s51, s51, s50")
            A(f"s_waitcnt vmcnt({16*k})")
            A(f"v_mov_b32 v18, s51")
            A("ds_write_b32 v17, v18")
            if k == 1 and cfg.EARLYK:
                A("s_or_b32 s51, s51, 0x8000")
                A("s_waitcnt vmcnt(8)")
                A(f"v_mov_b32 v18, s51")
                A("ds_write_b32 v17, v18")
    if cfg.DIAG:
        A("v_mov_b32 v250, s40"); A("v_mov_b32 v251, s88"); A("v_mov_b32 v252, 0")
        A("s_lshl_b32 s98, s2, 10"); A(f"s_add_u32 s98, s98, {WS_DIAG + 8*8}")
        A("s_mov_b64 exec, 1")
        A("buffer_store_dwordx2 v[250:251], v252, s[36:39], s98 offen")
        A("s_mov_b64 exec, -1")
        A("s_nop 1")
    stamp(1, light=True)
    if cfg.DIAG == 2:
        A("s_nop 1")
        A("v_mov_b32 v250, s92"); A("v_mov_b32 v251, s93"); A("s_mov_b64 exec, 1")
        A("buffer_store_dwordx2 v[250:251], v252, s[36:39], s98 offen offset:48")
    A("s_endpgm")

    A("L_notloader:")
    A(f"s_load_dword s58, s[26:27], {WS_EP}")
    A(f"s_mov_b32 s59, {TAGM}")
    A("v_and_b32 v3, 7, v1")
    A("v_lshrrev_b32 v4, 1, v3")
    A("v_and_b32 v5, 1, v3")
    A("v_mov_b32 v6, 0x0c0c0100")
    A("v_mov_b32 v7, 0x01000c0c")
    A("v_cmp_eq_u32 vcc, 1, v5")
    A("v_mov_b32 v8, 0x0c0c0302")
    A("v_mov_b32 v9, 0x03020c0c")
    A("v_cndmask_b32 v6, v6, v7, vcc")
    A("v_cndmask_b32 v8, v8, v9, vcc")
    A("v_mov_b32 v7, 0x0c0c0c0c")
    for k in range(4):
        A(f"v_cmp_eq_u32 vcc, {k}, v4")
        A("s_nop 1")
        A(f"v_cndmask_b32 v{12+k}, v7, v6, vcc")
        A(f"v_cndmask_b32 v{16+k}, v7, v8, vcc")
    A("v_and_b32 v10, 15, v1")
    A("v_lshrrev_b32 v11, 4, v1")
    A("s_lshr_b32 s50, s2, 4")
    A("s_and_b32 s51, s2, 15")
    A("s_lshr_b32 s52, s2, 7")
    A("s_and_b32 s53, s50, 7")
    A(f"s_mov_b32 s54, {hex(f2u(CSC))}")
    srd(36, 26, WS_SIZE)
    A("s_cmp_eq_u32 s3, 4")
    A("s_cbranch_scc1 L_helper")

    A("s_sub_u32 s55, s3, 1")
    A("s_cmp_gt_u32 s3, 4")
    A("s_cselect_b32 s47, 1, 0")
    A("s_sub_u32 s55, s55, s47")
    def wo_loads(i_reg, s_reg, issue=True, prep=True):
        if prep:
            srd(28, 12, 4096 * 896)
            A(f"s_lshl_b32 s82, s53, 9"); A(f"s_lshl_b32 s47, s51, 5"); A(f"s_add_u32 s82, s82, s47")
            A(f"s_mul_i32 s82, s82, 896"); A(f"s_lshl_b32 s47, s55, 8"); A(f"s_add_u32 s82, s82, s47")
            A(f"v_mul_u32_u24 v204, 896, v{s_reg}")
            A(f"v_lshl_add_u32 v204, v{i_reg}, 4, v204")
            A(f"s_cmp_eq_u32 s55, 3")
            A(f"s_cselect_b32 s47, 8, 16")
            A(f"v_cmp_le_u32 vcc, s47, v{i_reg}")
            A(f"v_bfrev_b32 v205, 2")
            A(f"s_nop 0")
            A(f"v_cndmask_b32 v204, v204, v205, vcc")
        if issue:
            for rr in range(4):
                for hi in range(2):
                    t = 4 * hi + rr
                    A(f"buffer_load_dwordx4 v[{156+4*t}:{159+4*t}], v204, s[28:31], s82 offen offset:{hi*4*896}" + (" nt" if cfg.WONT else ""))
                if rr < 3:
                    A(f"s_add_u32 s82, s82, {8*896}")
    wo_loads(10, 11, issue=False)
    if not cfg.WOLATE:
        A(f"s_cmp_ge_u32 s55, {0 if cfg.NOWO else 4}")
        A("s_cbranch_scc1 L_c_nowo")
        wo_loads(10, 11, prep=False)
    A("L_c_nowo:")
    A("v_xor_b32 v23, v10, v11")
    A("v_lshlrev_b32 v24, 9, v10")
    for a in range(4):
        A(f"v_xor_b32 v25, {4*a}, v23")
        A(f"v_lshl_add_u32 v{2+a}, v25, 4, v24")
    A("v_lshlrev_b32 v24, 11, v11")
    A("v_lshl_add_u32 v6, v10, 4, v24")
    A(f"v_mov_b32 v188, {LD['FLAGS']}")
    A(f"v_mov_b32 v20, {hex(f2u(-3.0e38))}")
    A("v_mul_f32 v21, s54, v20")
    A("v_mov_b32 v22, 0")
    for k in range(8):
        A(f"v_mov_b32 v{132+k}, 0")
    A("v_mov_b32 v189, v10"); A("v_mov_b32 v190, v11")
    A("v_lshrrev_b32 v23, 3, v10"); A("v_lshlrev_b32 v23, 6, v23"); A("v_lshl_add_u32 v23, v11, 4, v23")
    A(f"v_add_u32 v202, {LD['SC']}, v23")
    if not cfg.SVC:
        A(f"s_cmp_lt_u32 s50, {0 if cfg.NOCF else NFB}"); A(f"s_cselect_b32 s78, {FC}, 0")
        A("s_cmp_eq_u32 s51, s50"); A("s_cselect_b32 s78, s78, 0"); A(f"s_sub_u32 s78, {S // 2}, s78")
    else:
        A("s_cmp_eq_u32 s51, s50"); A(f"s_cselect_b32 s78, 0, {S // 2 + 4}")
    A("s_lshl_b32 s79, s78, 1")
    A("s_mov_b32 s40, s55")
    A("s_lshl_b32 s41, s55, 14")
    A("s_mov_b32 s44, 0")
    A("s_waitcnt lgkmcnt(0)")
    A("s_add_u32 s58, s58, 0x1111")
    for k in range(4):
        A(f"s_bfe_u32 s46, s58, {hex(0x40000 + 4 * k)}")
        A(f"v_mov_b32 v{TG + k}, s46")
    def c_wait(lbl, can_end):
        A(f"{lbl}:")
        A("ds_read_b32 v23, v188")
        A("s_lshr_b32 s47, s41, 12")
        A("v_add_u32 v191, s47, v188")
        A("s_add_u32 s42, s40, 1")
        A("v_mov_b32 v192, s42")
        A("s_waitcnt lgkmcnt(0)")
        A("v_readfirstlane_b32 s43, v23")
        A("s_and_b32 s46, s43, 0x7fff")
        if can_end and cfg.EARLYK:
            A("s_bfe_u32 s47, s43, 0x1000f")
            A("s_add_u32 s46, s46, s47")
        A("s_cmp_gt_u32 s46, s40")
        A(f"s_cbranch_scc1 {lbl}_go")
        if can_end:
            A("s_lshr_b32 s46, s43, 16")
            A("s_sub_u32 s46, s46, 1")
            A("s_cmp_lt_u32 s46, s40")
            A("s_cbranch_scc1 L_c_tail")
        spin_tail(lbl, sleep=0 if can_end else cfg.PSLEEP)
        A(f"{lbl}_go:")
    def c_adv():
        A(f"s_add_u32 s40, s40, {C}")
        A(f"s_add_u32 s41, s41, {C*16384}")
        A(f"s_sub_u32 s47, s41, {R*16384}")
        A(f"s_cmp_ge_u32 s41, {R*16384}")
        A("s_cselect_b32 s41, s47, s41")
    def k_reads(base, off):
        for t in range(8):
            A(f"ds_read_b128 v[{base+4*t}:{base+3+4*t}], v{7 + t % 4} offset:{off + (t//4)*256}")
    def v_reads(base, off, rs=range(4)):
        for r in rs:
            for h in range(2):
                A(f"ds_read_b128 v[{base+8*r+4*h}:{base+3+8*r+4*h}], v11 offset:{off + r*512 + h*256}")
    def resc(lbl):
        A(f"{lbl}:")
        A("v_mov_b32 v31, v30")
        A("s_nop 1")
        A("v_permlane16_swap_b32 v30, v31")
        A("v_max_f32 v30, v30, v31")
        A("v_mov_b32 v31, v30")
        A("s_nop 1")
        A("v_permlane32_swap_b32 v30, v31")
        A("v_max3_f32 v20, v30, v31, v20")
        A("v_mul_f32 v30, s54, v20")
        A("v_sub_f32 v31, v21, v30")
        A("v_exp_f32 v31, v31")
        A("v_mov_b32 v21, v30")
        for k in range(8):
            A(f"v_mul_f32 v{132+k}, v{132+k}, v31")
        A("v_mul_f32 v22, v22, v31")
        A(f"s_branch {lbl}_ret")
    def pv(tiles):
        steps = [(pb + r // 2, 12 + 4 * (r % 2), vb + 8 * r) for (pb, vb) in tiles for r in range(4)]
        def mm(n):
            bb = 140 + 4 * (n % 4); vb = steps[n][2]
            for h in range(2):
                A(f"v_mfma_f32_16x16x32_bf16 v[{132+4*h}:{135+4*h}], v[{vb+4*h}:{vb+3+4*h}], v[{bb}:{bb+3}], v[{132+4*h}:{135+4*h}]")
        for n, (src, sel, vb) in enumerate(steps):
            for k in range(4):
                A(f"v_perm_b32 v{140+4*(n%4)+k}, v{src}, v{src}, v{sel+k}")
            if n >= 1:
                mm(n - 1)
        mm(len(steps) - 1)
    if cfg.SVC:
        A("s_cmp_eq_u32 s78, 0")
        A("s_cbranch_scc1 L_cc")
    c_wait("L_ck", False)
    for a in range(4):
        A(f"v_add_u32 v{7+a}, s41, v{2+a}")
    k_reads(64, 0); k_reads(96, 8192)
    A("s_lshl_b32 s47, s40, 7")
    A("v_add_u32 v203, s47, v202")
    A("s_waitcnt lgkmcnt(0)")
    A("ds_write_b32 v191, v192 offset:64")
    A("s_cmp_eq_u32 s44, 0")
    A("s_cbranch_scc1 L_c_first")
    A("L_ck_comp:")
    for t in range(8):
        A(f"v_mfma_f32_16x16x32_bf16 v[128:131], v[{64+4*t}:{67+4*t}], v[{32+4*t}:{35+4*t}], {'0' if t == 0 else 'v[128:131]'}")
        A(f"v_mfma_f32_16x16x32_bf16 v[140:143], v[{96+4*t}:{99+4*t}], v[{32+4*t}:{35+4*t}], {'0' if t == 0 else 'v[140:143]'}")
    c_adv()
    A("s_nop 2")
    A("v_cvt_pk_bf16_f32 v24, v128, v129")
    A("v_cvt_pk_bf16_f32 v25, v130, v131")
    A("v_cvt_pk_bf16_f32 v26, v140, v141")
    A("v_cvt_pk_bf16_f32 v27, v142, v143")
    A("s_mov_b32 exec_lo, 0x01010101"); A("s_mov_b32 exec_hi, 0x01010101")
    A("ds_write_b128 v203, v[24:27]")
    A("s_mov_b64 exec, -1")
    A("s_cmp_lt_u32 s40, s78")
    A("s_cbranch_scc1 L_ck")
    c_wait("L_cv", False)
    A("s_sub_u32 s47, s40, s78"); A("s_lshl_b32 s47, s47, 7")
    A("v_add_u32 v203, s47, v202")
    A("v_add_u32 v11, s41, v6")
    A("ds_read_b128 v[24:27], v203")
    v_reads(64, 0); v_reads(96, 8192, range(3))
    A("s_waitcnt lgkmcnt(14)")
    v_reads(96, 8192, [3])
    for k in range(4):
        A(f"v_lshlrev_b32 v{194+2*k}, 16, v{24+k}")
        A(f"v_and_b32 v{195+2*k}, 0xffff0000, v{24+k}")
    A("v_max3_f32 v30, v194, v195, v196")
    A("v_max3_f32 v31, v197, v198, v199")
    A("v_max3_f32 v30, v30, v200, v201")
    A("v_max_f32 v30, v30, v31")
    A("v_cmp_gt_f32 vcc, v30, v20")
    A("s_cbranch_vccnz L_cv_resc")
    A("L_cv_resc_ret:")
    for k in range(8):
        A(f"v_fma_f32 v{194+k}, v{194+k}, s54, -v21")
    for k in range(8):
        A(f"v_exp_f32 v{194+k}, v{194+k}")
    A("s_nop 0")
    for k in range(4):
        A(f"v_cvt_pk_bf16_f32 v{24+k}, v{194+2*k}, v{195+2*k}")
    for k in range(4):
        A(f"v_add_f32 v{194+2*k}, v{194+2*k}, v{195+2*k}")
    A("v_add_f32 v194, v194, v196"); A("v_add_f32 v198, v198, v200")
    A("v_add_f32 v22, v22, v194"); A("v_add_f32 v22, v22, v198")
    A("s_waitcnt lgkmcnt(0)")
    A("ds_write_b32 v191, v192 offset:64")
    pv([(24, 64), (26, 96)])
    c_adv()
    A("s_cmp_lt_u32 s40, s79")
    A("s_cbranch_scc1 L_cv")
    c_wait("L_cc", True)
    for a in range(4):
        A(f"v_add_u32 v{7+a}, s41, v{2+a}")
    A("v_add_u32 v11, s41, v6")
    if cfg.EARLYK:
        k_reads(64, 0)
        if cfg.SVC:
            A("s_cmp_eq_u32 s44, 0")
            A("s_cbranch_scc1 L_c_first")
            A("L_cc_comp:")
        for t in range(8):
            A(f"s_waitcnt lgkmcnt({7 - t})")
            A(f"v_mfma_f32_16x16x32_bf16 v[128:131], v[{64+4*t}:{67+4*t}], v[{32+4*t}:{35+4*t}], {'0' if t == 0 else 'v[128:131]'}")
        A("s_nop 7")
    else:
        k_reads(64, 0); v_reads(96, 8192)
        A("s_waitcnt lgkmcnt(8)")
        for t in range(8):
            A(f"v_mfma_f32_16x16x32_bf16 v[128:131], v[{64+4*t}:{67+4*t}], v[{32+4*t}:{35+4*t}], {'0' if t == 0 else 'v[128:131]'}")
        A("s_waitcnt lgkmcnt(0)")
        A("ds_write_b32 v191, v192 offset:64")
        c_adv()
        A("s_nop 0")
    A("v_cvt_pk_bf16_f32 v24, v128, v129")
    A("v_cvt_pk_bf16_f32 v25, v130, v131")
    A("v_lshlrev_b32 v26, 16, v24")
    A("v_and_b32 v27, 0xffff0000, v24")
    A("v_lshlrev_b32 v28, 16, v25")
    A("v_and_b32 v29, 0xffff0000, v25")
    A("v_max3_f32 v30, v26, v27, v28")
    A("v_max_f32 v30, v30, v29")
    A("v_cmp_gt_f32 vcc, v30, v20")
    A("s_cbranch_vccnz L_cc_resc")
    A("L_cc_resc_ret:")
    for k in range(4):
        A(f"v_fma_f32 v{26+k}, v{26+k}, s54, -v21")
    for k in range(4):
        A(f"v_exp_f32 v{26+k}, v{26+k}")
    A("s_nop 0")
    A("v_cvt_pk_bf16_f32 v24, v26, v27")
    A("v_cvt_pk_bf16_f32 v25, v28, v29")
    A("v_add_f32 v30, v26, v27")
    A("v_add_f32 v31, v28, v29")
    A("v_add_f32 v22, v22, v30")
    A("v_add_f32 v22, v22, v31")
    if cfg.EARLYK:
        A("L_cc_w2:")
        A("s_and_b32 s46, s43, 0x7fff")
        A("s_cmp_gt_u32 s46, s40")
        A("s_cbranch_scc1 L_cc_w2go")
        A("ds_read_b32 v23, v188")
        A("s_waitcnt lgkmcnt(0)")
        A("v_readfirstlane_b32 s43, v23")
        spin_tail("L_cc_w2", sleep=0)
        A("L_cc_w2go:")
        v_reads(96, 8192)
        for n in range(4):
            for k in range(4):
                A(f"v_perm_b32 v{140+4*n+k}, v{24 + n // 2}, v{24 + n // 2}, v{12 + 4 * (n % 2) + k}")
        c_adv()
        for n in range(4):
            for h in range(2):
                A(f"s_waitcnt lgkmcnt({7 - 2*n - h})")
                A(f"v_mfma_f32_16x16x32_bf16 v[{132+4*h}:{135+4*h}], v[{96+8*n+4*h}:{99+8*n+4*h}], v[{140+4*n}:{143+4*n}], v[{132+4*h}:{135+4*h}]")
        A("ds_write_b32 v191, v192 offset:64")
    else:
        pv([(24, 96)])
    A("s_lshr_b32 s46, s43, 16")
    A("s_sub_u32 s46, s46, 1")
    A("s_cmp_ge_u32 s46, s40")
    A("s_cbranch_scc1 L_cc")
    A("L_c_tail:")
    stamp(3)
    A(f"s_add_u32 s47, s41, {(R - C)*16384}")
    A(f"s_sub_u32 s48, s47, {R*16384}")
    A(f"s_cmp_ge_u32 s47, {R*16384}")
    A("s_cselect_b32 s47, s48, s47")
    A("v_lshl_add_u32 v25, v1, 4, s47")
    A("v_lshl_add_u32 v26, v1, 3, s47")
    A("v_mov_b32 v28, v21"); A("v_mov_b32 v29, v22")
    A("ds_write_b64 v26, v[28:29] offset:2048")
    A("ds_write_b128 v25, v[132:135]")
    A("ds_write_b128 v25, v[136:139] offset:1024")
    A("s_cmp_lt_u32 s55, 4")
    A("s_cbranch_scc1 L_p_wave")
    A("s_sub_u32 s56, s55, 4")
    A("s_lshr_b32 s46, s43, 16")
    A("s_sub_u32 s46, s40, s46")
    A("s_lshl_b32 s46, s46, 14")
    A("s_sub_i32 s46, s41, s46")
    for j in range(6):
        A("s_sub_i32 s46, s46, 16384")
        A(f"s_add_i32 s47, s46, {R*16384}")
        A("s_cmp_lt_i32 s46, 0")
        A("s_cselect_b32 s46, s47, s46")
        A(f"v_lshl_add_u32 v{70+j}, v1, 3, s46")
    A("s_lshl_b32 s47, s56, 10")
    A("v_lshl_add_u32 v27, v1, 3, s47")
    for j in range(6):
        A(f"v_add_u32 v{76+j}, v{70+j}, v27")
    if not cfg.HAL:
        A("v_lshrrev_b32 v26, 3, v189"); A("v_lshlrev_b32 v26, 14, v26"); A("v_lshl_add_u32 v26, v190, 11, v26")
        A("v_and_b32 v27, 7, v189"); A("v_lshl_add_u32 v26, v27, 4, v26")
        A("s_lshl_b32 s46, s50, 15"); A("s_lshl_b32 s47, s56, 13"); A("s_add_u32 s46, s46, s47")
        A("s_lshl_b32 s47, s51, 7"); A("s_add_u32 s46, s46, s47"); A(f"s_add_u32 s46, s46, {WS_HA}")
    else:
        A("v_lshrrev_b32 v26, 3, v189"); A("v_lshlrev_b32 v26, 9, v26"); A("v_lshl_add_u32 v26, v190, 7, v26")
        A("v_and_b32 v27, 7, v189"); A("v_lshl_add_u32 v26, v27, 4, v26")
        A(f"s_mul_i32 s46, s2, {HBS}"); A(f"s_add_u32 s49, s46, {WS_HA2 + 2048}")
        A("s_lshl_b32 s47, s56, 10"); A("s_add_u32 s46, s46, s47"); A(f"s_add_u32 s46, s46, {WS_HA2}")
    A("s_waitcnt lgkmcnt(0)")
    A("s_barrier")
    for j in range(6):
        A(f"ds_read_b64 v[{84+2*j}:{85+2*j}], v{70+j} offset:2048")
    for j in range(6):
        A(f"ds_read_b128 v[{96+4*j}:{99+4*j}], v{76+j}")
    A("s_waitcnt lgkmcnt(6)")
    A("v_max3_f32 v28, v84, v86, v88")
    A("v_max3_f32 v28, v28, v90, v92")
    A("v_max_f32 v28, v28, v94")
    for j in range(6):
        A(f"v_sub_f32 v{84+2*j}, v{84+2*j}, v28")
    for j in range(6):
        A(f"v_exp_f32 v{84+2*j}, v{84+2*j}")
    A("s_waitcnt lgkmcnt(0)")
    for k in range(4):
        A(f"v_mul_f32 v{120+k}, v84, v{96+k}")
    for j in range(1, 6):
        for k in range(4):
            A(f"v_fmac_f32 v{120+k}, v{84+2*j}, v{96+4*j+k}")
    for k in range(4):
        tag(120 + k)
    A("buffer_store_dwordx4 v[120:123], v26, s[36:39], s46 offen sc1")
    A("s_cmp_eq_u32 s56, 0")
    A("s_cbranch_scc1 L_x0")
    A("v_mul_f32 v29, v84, v85")
    for j in range(1, 6):
        A(f"v_fmac_f32 v29, v{84+2*j}, v{85+2*j}")
    A(f"v_lshlrev_b32 v27, {1 if cfg.HAL else 8}, v189")
    A("v_mov_b32 v24, v29")
    A("s_lshl_b32 s48, s50, 12"); A("s_lshl_b32 s47, s51, 7")
    A("v_permlane16_swap_b32 v29, v24")
    A("v_add_f32 v29, v29, v24")
    A("v_mov_b32 v24, v29")
    A("s_add_u32 s48, s48, s47"); A(f"s_add_u32 s48, s48, {WS_HM}")
    A("v_permlane32_swap_b32 v29, v24")
    A("v_add_f32 v29, v29, v24")
    A("v_mov_b32 v30, s58")
    A("v_mov_b32 v31, s58")
    A("s_mov_b64 exec, 0x101")
    A(f"buffer_store_dwordx4 v[28:31], v27, s[36:39], {'s49' if cfg.HAL else 's48'} offen sc1")
    A("s_mov_b64 exec, -1")
    if cfg.WOLATE == 4:
        A("s_barrier")
    stamp(4)
    A("s_endpgm")
    A("L_x0:")
    if cfg.WOLATE == 4:
        A("s_barrier")
    stamp(4)
    if not cfg.HAL:
        A("v_lshlrev_b32 v24, 7, v189")
        A("v_lshl_add_u32 v23, v190, 4, v24")
        A("s_lshl_b32 s46, s2, 11"); A(f"s_add_u32 s46, s46, {WS_HA}")
        A("s_lshl_b32 s48, s50, 12"); A("s_lshr_b32 s47, s51, 3"); A("s_lshl_b32 s47, s47, 11"); A("s_add_u32 s48, s48, s47"); A(f"s_add_u32 s48, s48, {WS_HM}")
    else:
        A(f"v_mul_u32_u24 v24, {HBS}, v189")
        A("v_lshl_add_u32 v23, v190, 4, v24")
        A(f"s_mul_i32 s48, s50, {16 * HBS}"); A(f"s_add_u32 s48, s48, {WS_HA2}")
        A("s_and_b32 s46, s51, 3"); A("s_lshl_b32 s46, s46, 7"); A("s_add_u32 s46, s46, s48")
        A("s_and_b32 s47, s51, 4"); A("s_lshl_b32 s47, s47, 8"); A("s_add_u32 s46, s46, s47")
        A("s_and_b32 s47, s51, 8"); A("s_lshl_b32 s49, s47, 6"); A("s_add_u32 s46, s46, s49")
        A("s_lshl_b32 s47, s47, 1"); A("s_add_u32 s48, s48, s47"); A("s_add_u32 s48, s48, 2048")
    A("v_lshl_add_u32 v27, v190, 4, v188")
    if cfg.BAR3:
        A("s_waitcnt vmcnt(0)")
    stamp(5)
    def issA():
        A("buffer_load_dwordx4 v[64:67], v23, s[36:39], s46 offen sc1")
        A("buffer_load_dwordx4 v[68:71], v23, s[36:39], s46 offen offset:64 sc1")
        A("buffer_load_dwordx4 v[72:75], v24, s[36:39], s48 offen sc1")
    poll("L_p_poll", issA, 3, lambda: tagcheck(range(64, 72), 25, full=(74, 75), strip=True), "L_p_go")
    A("L_p_go:")
    A("s_mov_b64 exec, -1")
    stamp(6)
    A("v_mov_b32 v26, v72")
    for sh in (8, 4, 2, 1):
        A("s_nop 1")
        A(f"v_max_f32_dpp v26, v26, v26 row_ror:{sh} row_mask:0xf bank_mask:0xf")
    A("v_sub_f32 v26, v72, v26")
    A("v_exp_f32 v26, v26")
    A("s_nop 0")
    A("v_mul_f32 v88, v73, v26")
    for k in range(8):
        A(f"v_mul_f32 v{80+k}, v{64+k}, v26")
    for sh in (8, 4, 2, 1):
        for k in (8, 0, 1, 2, 3, 4, 5, 6, 7):
            A(f"v_add_f32_dpp v{80+k}, v{80+k}, v{80+k} row_ror:{sh} row_mask:0xf bank_mask:0xf")
            if sh == 1 and k == 2:
                A("v_rcp_f32 v88, v88")
    for k in range(8):
        A(f"v_mul_f32 v{80+k}, v{80+k}, v88")
    for k in range(4):
        A(f"v_cvt_pk_bf16_f32 v{76+k}, v{80+2*k}, v{81+2*k}")
    A("s_mov_b32 exec_lo, 0x00010001"); A("s_mov_b32 exec_hi, 0x00010001")
    A("ds_write_b128 v27, v[76:79] offset:160")
    A("s_waitcnt lgkmcnt(0)")
    A("s_barrier")
    A("s_endpgm")
    A("L_p_wave:")
    if cfg.WOLATE == 1:
        wo_loads(0, 0, prep=False)
    A("v_lshl_add_u32 v27, v190, 4, v188")
    if cfg.HBL:
        A("v_lshlrev_b32 v23, 14, v190")
        A("v_lshl_add_u32 v23, v189, 4, v23")
        A("s_lshl_b32 s46, s52, 18"); A("s_lshl_b32 s47, s55, 16"); A("s_add_u32 s46, s46, s47")
        A("s_and_b32 s47, s2, 127"); A("s_lshl_b32 s47, s47, 7"); A("s_add_u32 s46, s46, s47"); A(f"s_add_u32 s46, s46, {WS_HB}")
    else:
        A("v_lshlrev_b32 v23, 7, v190")
        A("v_lshl_add_u32 v23, v189, 4, v23")
        A("s_lshl_b32 s46, s2, 11"); A("s_lshl_b32 s47, s55, 9"); A("s_add_u32 s46, s46, s47"); A(f"s_add_u32 s46, s46, {WS_HB}")
    A("s_cmp_eq_u32 s55, 3")
    A("s_cselect_b32 s47, 0, 0x00ff00ff")
    if cfg.WOLATE == 3:
        A("s_lshr_b32 s48, s43, 16"); A("s_sub_u32 s48, s40, s48")
        A(f"s_cmp_ge_u32 s48, {5 - (cfg.WOLATE - 3)}")
        A("s_cbranch_scc1 L_p_late")
        wo_loads(0, 0, prep=False)
        A("s_waitcnt lgkmcnt(0)")
        A("s_barrier")
        A("s_branch L_p_join")
        A("L_p_late:")
        A("s_waitcnt lgkmcnt(0)")
        A("s_barrier")
        wo_loads(0, 0, prep=False)
        A("L_p_join:")
    else:
        A("s_waitcnt lgkmcnt(0)")
        A("s_barrier")
    if cfg.WOLATE == 4:
        A("s_barrier")
    if cfg.WOLATE in (2, 4):
        wo_loads(0, 0, prep=False)
    A("s_waitcnt vmcnt(0)")
    A("s_barrier")
    A("ds_read_b128 v[76:79], v27 offset:160")
    stamp(5)
    A("s_waitcnt lgkmcnt(0)")
    for t in range(9):
        if t < 8:
            src = 76 + t // 2; sel = 12 + 4 * (t % 2)
            for k in range(4):
                A(f"v_perm_b32 v{96+4*t+k}, v{src}, v{src}, v{sel+k}")
        else:
            A("s_nop 0")
        if t >= 1:
            u = t - 1
            A(f"v_mfma_f32_16x16x32_bf16 v[128:131], v[{156+4*u}:{159+4*u}], v[{96+4*u}:{99+4*u}], {'0' if u == 0 else 'v[128:131]'}")
    A("s_mov_b32 exec_lo, 0x00ff00ff"); A("s_mov_b32 exec_hi, s47")
    A("s_nop 5")
    for k in range(4):
        tag(128 + k)
    A("buffer_store_dwordx4 v[128:131], v23, s[36:39], s46 offen sc1")
    A("s_mov_b64 exec, -1")
    stamp(6)
    A("s_waitcnt vmcnt(0)")
    A("s_endpgm")
    resc("L_cv_resc")
    resc("L_cc_resc")
    A("L_c_first:")
    A("L_c_qwait:")
    A("ds_read_b32 v23, v188 offset:4")
    A("s_waitcnt lgkmcnt(0)")
    A("v_readfirstlane_b32 s46, v23")
    A("s_cmp_lg_u32 s46, 0")
    A("s_cbranch_scc1 L_c_qgo")
    spin_tail("L_c_qwait")
    A("L_c_qgo:")
    A("v_lshrrev_b32 v23, 3, v189")
    A("v_lshlrev_b32 v23, 9, v23")
    A("v_lshl_add_u32 v23, v190, 4, v23")
    A(f"v_add_u32 v23, {LD['Q']}, v23")
    for t in range(8):
        A(f"ds_read_b128 v[{32+4*t}:{35+4*t}], v23 offset:{64*t}")
    A("s_mov_b32 s44, 1")
    A("s_waitcnt lgkmcnt(0)")
    stamp(2)
    if cfg.SVC:
        assert cfg.EARLYK
        A("s_cmp_eq_u32 s78, 0")
        A("s_cbranch_scc1 L_cc_comp")
    A("s_branch L_ck_comp")

    A("L_helper:")
    srd(28, 4, 1792)
    srd(32, 10, 16 if cfg.NOWQ else 448 * 8192)
    A("v_lshrrev_b32 v20, 5, v1")
    A("v_and_b32 v21, 31, v1")
    A("v_mul_u32_u24 v22, 896, v20")
    A("v_lshl_add_u32 v22, v21, 2, v22")
    for m in range(7):
        A(f"buffer_load_dword v{24+m}, v22, s[28:31], 0 offen offset:{128*m}")
    if cfg.QV == 1:
        A("s_and_b32 s56, s51, 3"); A("s_lshr_b32 s57, s51, 2")
        A(f"v_mul_u32_u24 v23, {28*8192}, v11")
        A("v_lshl_add_u32 v23, v10, 4, v23")
        A(f"s_mul_i32 s46, s57, {112*8192}"); A("s_lshl_b32 s47, s53, 10"); A("s_add_u32 s46, s46, s47")
        A("s_lshl_b32 s47, s56, 8"); A("s_add_u32 s46, s46, s47")
    else:
        A("s_and_b32 s56, s51, 7"); A("s_lshl_b32 s56, s56, 1"); A("s_lshr_b32 s57, s51, 3"); A("s_add_u32 s56, s56, s57")
        A("v_lshrrev_b32 v23, 2, v1"); A(f"v_mul_u32_u24 v23, {28*8192}, v23")
        A("v_and_b32 v31, 3, v1"); A("v_lshl_add_u32 v23, v31, 4, v23")
        A("s_lshl_b32 s46, s53, 10"); A("s_lshl_b32 s47, s56, 6"); A("s_add_u32 s46, s46, s47")
    for t in range(28):
        A(f"buffer_load_dwordx4 v[{64+4*t}:{67+4*t}], v23, s[32:35], s46 offen nt")
        if t < 27:
            A("s_add_u32 s46, s46, 8192")
    A(f"s_mul_i32 s46, s50, {PCS}"); A(f"s_add_u32 s46, s46, {WS_PC}")
    A("s_cmp_eq_u32 s51, 0"); A(f"s_cselect_b32 s46, s46, {WS_SIZE}")
    A("v_mov_b32 v186, 0")
    A("s_mov_b64 exec, 1")
    A("buffer_store_dword v186, v186, s[36:39], s46 offen sc1")
    A("s_mov_b64 exec, -1")
    A("s_waitcnt lgkmcnt(0)")
    A("s_add_u32 s58, s58, 0x1111")
    for k in range(4):
        A(f"s_bfe_u32 s46, s58, {hex(0x40000 + 4 * k)}")
        A(f"v_mov_b32 v{TG + k}, s46")
    NAFTER = 28 + 1
    stamp(0)
    ND = 1 if cfg.DIAG == 1 else 0
    A(f"s_waitcnt vmcnt({NAFTER + ND})")
    for m in range(7):
        A(f"v_lshlrev_b32 v{32+2*m}, 16, v{24+m}")
        A(f"v_and_b32 v{33+2*m}, 0xffff0000, v{24+m}")
    def red32(v, t):
        for sh in (8, 4, 2, 1):
            A("s_nop 1")
            A(f"v_add_f32_dpp v{v}, v{v}, v{v} row_ror:{sh} row_mask:0xf bank_mask:0xf")
        A(f"v_mov_b32 v{t}, v{v}")
        A("s_nop 1")
        A(f"v_permlane16_swap_b32 v{v}, v{t}")
        A(f"v_add_f32 v{v}, v{v}, v{t}")
    A("v_add_f32 v46, v32, v33")
    for k in range(2, 14):
        A(f"v_add_f32 v46, v46, v{32+k}")
    red32(46, 47)
    A(f"v_mul_f32 v46, {hex(f2u(1.0/448))}, v46")
    A("v_sub_f32 v48, v32, v46")
    A("v_mul_f32 v47, v48, v48")
    for k in range(1, 14):
        A(f"v_sub_f32 v48, v{32+k}, v46")
        A("v_fmac_f32 v47, v48, v48")
    red32(47, 48)
    A(f"v_mul_f32 v47, {hex(f2u(1.0/448))}, v47")
    A("v_cvt_pk_bf16_f32 v48, v46, v47")
    A("v_lshlrev_b32 v46, 16, v48")
    A("v_and_b32 v47, 0xffff0000, v48")
    A(f"v_add_f32 v47, {hex(f2u(1e-5))}, v47")
    A("v_cvt_pk_bf16_f32 v47, v47, v47")
    A("v_lshlrev_b32 v47, 16, v47")
    A("v_sqrt_f32 v47, v47")
    A("s_nop 0")
    A("v_cvt_pk_bf16_f32 v47, v47, v47")
    A("v_lshlrev_b32 v47, 16, v47")
    A("v_rcp_f32 v47, v47")
    for k in range(14):
        A(f"v_sub_f32 v{32+k}, v{32+k}, v46")
    for m in range(7):
        A(f"v_cvt_pk_bf16_f32 v{24+m}, v{32+2*m}, v{33+2*m}")
    for m in range(7):
        A(f"v_lshlrev_b32 v{32+2*m}, 16, v{24+m}")
        A(f"v_and_b32 v{33+2*m}, 0xffff0000, v{24+m}")
    for k in range(14):
        A(f"v_mul_f32 v{32+k}, v{32+k}, v47")
    for m in range(7):
        A(f"v_cvt_pk_bf16_f32 v{24+m}, v{32+2*m}, v{33+2*m}")
    A(f"v_add_u32 v22, {LD['XN']}, v22")
    for m in range(7):
        A(f"ds_write_b32 v22, v{24+m} offset:{128*m}")
    if cfg.QV == 1:
        A("s_mul_i32 s46, s52, 896"); A("s_mul_i32 s47, s57, 224"); A("s_add_u32 s46, s46, s47"); A(f"s_add_u32 s46, s46, {LD['XN']}")
        A("v_mul_u32_u24 v22, 56, v11")
        A("v_add_u32 v22, s46, v22")
        A("s_waitcnt lgkmcnt(0)")
        for m in range(7):
            A(f"ds_read_b64 v[{32+2*m}:{33+2*m}], v22 offset:{8*m}")
        A("s_waitcnt lgkmcnt(0)")
        for t in range(28):
            src = 32 + t // 2; sel = 12 + 4 * (t % 2); bb = 48 + 4 * (t % 2)
            for k in range(4):
                A(f"v_perm_b32 v{bb+k}, v{src}, v{src}, v{sel+k}")
            A(f"s_waitcnt vmcnt({27 - t + 1 + ND})")
            A("s_nop 0")
            A(f"v_mfma_f32_16x16x32_bf16 v[56:59], v[{64+4*t}:{67+4*t}], v[{bb}:{bb+3}], {'0' if t == 0 else 'v[56:59]'}")
        A("v_lshlrev_b32 v23, 7, v11")
        A("v_lshl_add_u32 v23, v10, 4, v23")
        A("s_lshl_b32 s46, s50, 13"); A("s_lshl_b32 s47, s56, 11"); A("s_add_u32 s46, s46, s47")
        A("s_lshl_b32 s47, s57, 9"); A("s_add_u32 s46, s46, s47"); A(f"s_add_u32 s46, s46, {WS_QP}")
        A("s_waitcnt vmcnt(0)")
        for k in range(4):
            tag(56 + k)
        A("s_mov_b32 exec_lo, 0x00ff00ff"); A("s_mov_b32 exec_hi, 0x00ff00ff")
        A("buffer_store_dwordx4 v[56:59], v23, s[36:39], s46 offen sc1")
        A("s_mov_b64 exec, -1")
        stamp(1)
        A("v_lshlrev_b32 v25, 7, v1")
        A("s_lshl_b32 s46, s50, 13"); A(f"s_add_u32 s46, s46, {WS_QP}")
        A("s_add_u32 s47, s46, 4096")
        A("v_lshlrev_b32 v22, 11, v20")
        A("v_lshl_add_u32 v22, v21, 4, v22")
        A("L_h_qpoll:")
        A("buffer_load_dword v26, v25, s[36:39], s46 offen sc1")
        A("s_waitcnt vmcnt(0)")
        tagcheck([26], 27)
        A("s_cbranch_vccz L_h_qgo")
        A("L_h_qretry:")
        spin_tail("L_h_qpoll", sleep=cfg.QSLEEP)
        A("L_h_qgo:")
        for z in range(2):
            for rs in range(4):
                A(f"buffer_load_dwordx4 v[{64+16*z+4*rs}:{67+16*z+4*rs}], v22, s[36:39], s{46+z} offen offset:{rs*512} sc1")
        A("s_waitcnt vmcnt(0)")
        tagcheck(range(64, 96), 27)
        A("s_cbranch_vccnz L_h_qretry")
        A("v_lshrrev_b32 v23, 3, v21")
        A("v_lshlrev_b32 v23, 6, v23")
        A("v_lshl_add_u32 v23, v20, 8, v23")
        A("v_lshl_add_u32 v23, v3, 1, v23")
        A(f"v_add_u32 v23, {LD['Q']}, v23")
        for z in range(2):
            b0 = 64 + 16 * z
            for k in range(4):
                A(f"v_add_f32 v{b0+k}, v{b0+k}, v{b0+4+k}")
                A(f"v_add_f32 v{b0+8+k}, v{b0+8+k}, v{b0+12+k}")
            for k in range(4):
                A(f"v_add_f32 v{b0+k}, v{b0+k}, v{b0+8+k}")
            A(f"v_cvt_pk_bf16_f32 v{b0}, v{b0}, v{b0+1}")
            A(f"v_cvt_pk_bf16_f32 v{b0+1}, v{b0+2}, v{b0+3}")
            A(f"ds_write_b16 v23, v{b0} offset:{z*512}")
            A(f"ds_write_b16_d16_hi v23, v{b0} offset:{z*512+16}")
            A(f"ds_write_b16 v23, v{b0+1} offset:{z*512+32}")
            A(f"ds_write_b16_d16_hi v23, v{b0+1} offset:{z*512+48}")
    else:
        A("s_mul_i32 s46, s52, 896"); A(f"s_add_u32 s46, s46, {LD['XN']}")
        A("v_lshrrev_b32 v22, 3, v10"); A("v_lshl_add_u32 v22, v11, 2, v22"); A("v_mul_u32_u24 v22, 56, v22")
        A("v_add_u32 v22, s46, v22")
        A("s_waitcnt lgkmcnt(0)")
        for m in range(7):
            A(f"ds_read_b64 v[{32+2*m}:{33+2*m}], v22 offset:{8*m}")
        for m in range(7):
            A(f"ds_read_b64 v[{176+2*m}:{177+2*m}], v22 offset:{112+8*m}")
        A("s_waitcnt lgkmcnt(0)")
        for t in range(28):
            sel = 12 + 4 * (t % 2)
            for k in range(4):
                A(f"v_perm_b32 v{48+k}, v{32+t//2}, v{32+t//2}, v{sel+k}")
            for k in range(4):
                A(f"v_perm_b32 v{52+k}, v{176+t//2}, v{176+t//2}, v{sel+k}")
            A(f"s_waitcnt vmcnt({27 - t + 1 + ND})")
            A(f"v_mfma_f32_16x16x32_bf16 v[56:59], v[{64+4*t}:{67+4*t}], v[48:51], {'0' if t == 0 else 'v[56:59]'}")
            A(f"v_mfma_f32_16x16x32_bf16 v[60:63], v[{64+4*t}:{67+4*t}], v[52:55], {'0' if t == 0 else 'v[60:63]'}")
        A("v_lshlrev_b32 v23, 4, v1")
        A("s_lshl_b32 s46, s50, 11"); A(f"s_add_u32 s46, s46, {WS_QP}")
        A("s_lshl_b32 s47, s56, 7"); A("s_add_u32 s47, s47, s46")
        A("s_mov_b32 exec_lo, 0")
        A("s_nop 2")
        for k in range(4):
            A(f"v_mov_b32 v{56+k}, v{60+k}")
        A("s_mov_b32 exec_lo, 0x00ffff00"); A("s_mov_b32 exec_hi, 0x00ffff00")
        for k in range(4):
            A(f"v_mov_b32 v{56+k}, 0")
        A("s_mov_b64 exec, -1")
        for k in range(4):
            A(f"v_add_f32_dpp v{56+k}, v{56+k}, v{56+k} row_ror:8 row_mask:0xf bank_mask:0xf")
        for sw in ("16", "32"):
            for k in range(4):
                A(f"v_mov_b32 v{60+k}, v{56+k}")
            A("s_nop 0")
            for k in range(4):
                A(f"v_permlane{sw}_swap_b32 v{56+k}, v{60+k}")
            for k in range(4):
                A(f"v_add_f32 v{56+k}, v{56+k}, v{60+k}")
        for k in range(4):
            A(f"v_cvt_pk_bf16_f32 v{56+k}, 0, v{56+k}")
        for k in range(4):
            A(f"v_or_b32 v{56+k}, v{56+k}, v{TG + k}")
        A("s_waitcnt vmcnt(0)")
        A("s_mov_b64 exec, 0xff")
        A("buffer_store_dwordx4 v[56:59], v23, s[36:39], s47 offen sc1")
        A("s_mov_b64 exec, -1")
        stamp(1)
        A("v_lshrrev_b32 v22, 3, v1"); A("v_lshlrev_b32 v22, 6, v22"); A("v_lshl_add_u32 v22, v3, 1, v22")
        A(f"v_add_u32 v22, {LD['Q']}, v22")
        A("s_waitcnt vmcnt(0)")
        A("L_h_qpoll:")
        A("buffer_load_dwordx4 v[64:67], v23, s[36:39], s46 offen sc1")
        A("buffer_load_dwordx4 v[68:71], v23, s[36:39], s46 offen offset:1024 sc1")
        A("s_waitcnt vmcnt(0)")
        tagcheck(range(64, 72), 27, strip=True)
        A("s_cbranch_vccz L_h_qgo")
        spin_tail("L_h_qpoll", sleep=cfg.QSLEEP)
        A("L_h_qgo:")
        for z in range(2):
            for r in range(4):
                A(f"ds_write_b16_d16_hi v22, v{64+4*z+r} offset:{z*512+16*r}")
    A(f"v_mov_b32 v24, {LD['FLAGS']}"); A("v_mov_b32 v25, 1")
    A("s_waitcnt lgkmcnt(0)")
    A("ds_write_b32 v24, v25 offset:4")
    stamp(2)
    A("s_mov_b32 s56, s50")
    A("s_cmp_lg_u32 s51, s50")
    A("s_cbranch_scc1 L_h_noffn")
    FB = cfg.FB; NFB = 1792 // FB; RS = FB // 4
    if NFB < 16:
        A(f"s_cmp_ge_u32 s50, {NFB}")
        A("s_cbranch_scc1 L_h_noffn")
    srd(28, 16, 16 if cfg.NOFFN in (1, 3) else 448 * 3584)
    srd(32, 18, 16 if cfg.NOFFN in (1, 3) else 448 * 3584)
    A(f"v_mul_u32_u24 v23, {112*3584}, v11")
    A("v_lshl_add_u32 v23, v10, 4, v23")
    A(f"v_cmp_le_u32 vcc, {FB // 8}, v10")
    A("v_bfrev_b32 v27, 2")
    A(f"s_mul_i32 s46, s56, {FB * 2}")
    A("v_cndmask_b32 v23, v23, v27, vcc")
    if cfg.NOFFN == 4:
        A("v_lshlrev_b32 v23, 4, v1"); A(f"s_mul_i32 s46, s56, {112 * 1024}")
    A("v_lshrrev_b32 v22, 3, v10")
    A("v_mul_u32_u24 v22, 896, v22")
    A("v_mul_u32_u24 v24, 224, v11")
    A(f"v_add3_u32 v22, v22, v24, 0")
    A(f"v_add_u32 v22, {LD['XN']}, v22")
    for k in range(8):
        A(f"v_mov_b32 v{56+k}, 0")
    def ffn_loads(t):
        A(f"buffer_load_dwordx4 v[{64+8*t}:{67+8*t}], v23, s[28:31], s46 offen nt")
        A(f"buffer_load_dwordx4 v[{68+8*t}:{71+8*t}], v23, s[32:35], s46 offen nt")
        A(f"s_add_u32 s46, s46, {1024 if cfg.NOFFN == 4 else 3584}")
    A("s_waitcnt vmcnt(0)")
    def fpause(lbl, units):
        if not units:
            return
        A(f"v_mov_b32 v30, {LD['FLAGS']}")
        A(f"{lbl}:")
        A("ds_read_b32 v29, v30")
        A("s_waitcnt lgkmcnt(0)")
        A("v_readfirstlane_b32 s75, v29")
        A("s_and_b32 s75, s75, 0x7fff")
        A(f"s_cmp_ge_u32 s75, {units}")
        A(f"s_cbranch_scc1 {lbl}_go")
        spin_tail(lbl, sleep=8)
        A(f"{lbl}_go:")
    fpause('L_h_fp1', cfg.FP1)
    FD = cfg.FD; DD = FD // 2; YA = 196
    for t in range(FD):
        ffn_loads(t)
    A(f"s_mov_b32 s57, {112 // FD - 1}")
    def ffn_iter(reissue):
        for z in range(FD // 8):
            A(f"ds_read_b128 v[{32+4*z}:{35+4*z}], v22 offset:{16*z}")
        A(f"v_add_u32 v22, {2*FD}, v22")
        A("s_waitcnt lgkmcnt(0)")
        for t in range(FD):
            src = 32 + t // 2; sel = 12 + 4 * (t % 2); bb = 48 + 4 * (t % 2)
            for k in range(4):
                A(f"v_perm_b32 v{bb+k}, v{src}, v{src}, v{sel+k}")
            A(f"s_waitcnt vmcnt({2*FD-2 if reissue else 2*FD-2 - 2*t})")
            A("s_nop 0")
            A(f"v_mfma_f32_16x16x32_bf16 v[56:59], v[{64+8*t}:{67+8*t}], v[{bb}:{bb+3}], v[56:59]")
            A(f"v_mfma_f32_16x16x32_bf16 v[60:63], v[{68+8*t}:{71+8*t}], v[{bb}:{bb+3}], v[60:63]")
            if reissue:
                ffn_loads(t)
    A("L_h_f1:")
    ffn_iter(True)
    A("s_sub_u32 s57, s57, 1"); A("s_cmp_lg_u32 s57, 0"); A("s_cbranch_scc1 L_h_f1")
    ffn_iter(False)
    srd(28, 20, 16 if cfg.NOFFN in (1, 2) else 1792 * 896)
    A(f"v_mul_u32_u24 v23, {RS*896}, v11")
    A("v_lshl_add_u32 v23, v10, 4, v23")
    A("v_cmp_le_u32 vcc, 8, v10")
    A(f"s_mul_i32 s46, s56, {FB*896}")
    A("s_nop 0")
    A("v_cndmask_b32 v26, v23, v27, vcc")
    def dn_loads(t):
        for nb in range(4):
            A(f"buffer_load_dwordx4 v[{64+16*t+4*nb}:{67+16*t+4*nb}], v{26 if nb == 3 else 23}, s[28:31], s46 offen offset:{nb*256} nt")
        A("s_add_u32 s46, s46, 896")
    A("s_nop 4")
    fpause('L_h_fp2', cfg.FP2)
    for t in range(DD):
        dn_loads(t)
    A("v_cvt_pk_bf16_f32 v32, v56, v57"); A("v_cvt_pk_bf16_f32 v33, v58, v59")
    A("v_cvt_pk_bf16_f32 v34, v60, v61"); A("v_cvt_pk_bf16_f32 v35, v62, v63")
    for k in range(4):
        A(f"v_lshlrev_b32 v{36+2*k}, 16, v{32+k}")
        A(f"v_and_b32 v{37+2*k}, 0xffff0000, v{32+k}")
    K0 = -2.0 * math.sqrt(2.0 / math.pi) * math.log2(math.e)
    A(f"s_mov_b32 s71, {hex(f2u(0.044715))}")
    for k in range(4):
        A(f"v_mul_f32 v{44+k}, v{36+k}, v{36+k}")
        A(f"v_mul_f32 v{44+k}, v{44+k}, v{36+k}")
        A(f"v_fma_f32 v{44+k}, v{44+k}, s71, v{36+k}")
        A(f"v_mul_f32 v{44+k}, {hex(f2u(K0))}, v{44+k}")
    for k in range(4):
        A(f"v_exp_f32 v{44+k}, v{44+k}")
    A("s_nop 0")
    for k in range(4):
        A(f"v_add_f32 v{44+k}, 1.0, v{44+k}")
    for k in range(4):
        A(f"v_rcp_f32 v{44+k}, v{44+k}")
    A("s_nop 0")
    for k in range(4):
        A(f"v_mul_f32 v{44+k}, v{44+k}, v{36+k}")
    A("v_cvt_pk_bf16_f32 v32, v44, v45"); A("v_cvt_pk_bf16_f32 v33, v46, v47")
    for k in range(2):
        A(f"v_lshlrev_b32 v{44+2*k}, 16, v{32+k}")
        A(f"v_and_b32 v{45+2*k}, 0xffff0000, v{32+k}")
    for k in range(4):
        A(f"v_mul_f32 v{44+k}, v{44+k}, v{40+k}")
    A("v_cvt_pk_bf16_f32 v32, v44, v45"); A("v_cvt_pk_bf16_f32 v33, v46, v47")
    A("v_lshrrev_b32 v22, 3, v10")
    A("v_lshlrev_b32 v22, 8, v22")
    A(f"v_add_u32 v22, {LD['H']}, v22")
    A("v_lshl_add_u32 v24, v11, 6, v22")
    A("v_lshl_add_u32 v24, v3, 1, v24")
    A(f"v_mul_u32_u24 v25, {RS*2}, v11")
    A("v_add_u32 v22, v22, v25")
    A("ds_write_b16 v24, v32")
    A("ds_write_b16_d16_hi v24, v32 offset:16")
    A("ds_write_b16 v24, v33 offset:32")
    A("ds_write_b16_d16_hi v24, v33 offset:48")
    for k in range(16):
        A(f"v_mov_b32 v{YA+k}, 0")
    A("s_waitcnt lgkmcnt(0)")
    A(f"s_mov_b32 s57, {RS // DD - 1}")
    def dn_iter(reissue):
        for z in range(DD // 4):
            A(f"ds_read_b64 v[{32+2*z}:{33+2*z}], v22 offset:{8*z}")
        A(f"v_add_u32 v22, {2*DD}, v22")
        A("s_waitcnt lgkmcnt(0)")
        for t in range(DD):
            src = 32 + t // 2; sel = 12 + 4 * (t % 2); bb = 48 + 4 * (t % 2)
            for k in range(4):
                A(f"v_perm_b32 v{bb+k}, v{src}, v{src}, v{sel+k}")
            A(f"s_waitcnt vmcnt({4*DD-4 if reissue else 4*DD-4 - 4*t})")
            A("s_nop 0")
            for nb in range(4):
                A(f"v_mfma_f32_16x16x32_bf16 v[{YA+4*nb}:{YA+3+4*nb}], v[{64+16*t+4*nb}:{67+16*t+4*nb}], v[{bb}:{bb+3}], v[{YA+4*nb}:{YA+3+4*nb}]")
            if reissue:
                dn_loads(t)
    A("L_h_f2:")
    dn_iter(True)
    A("s_sub_u32 s57, s57, 1"); A("s_cmp_lg_u32 s57, 0"); A("s_cbranch_scc1 L_h_f2")
    dn_iter(False)
    A("v_lshrrev_b32 v22, 3, v10")
    A("v_lshlrev_b32 v22, 11, v22")
    A("v_lshl_add_u32 v22, v11, 7, v22")
    A("v_lshl_add_u32 v22, v3, 4, v22")
    A("s_lshl_b32 s46, s56, 12"); A(f"s_add_u32 s46, s46, {WS_HY}")
    A("s_nop 4")
    for k in range(16):
        tag(YA + k)
    for nb in range(4):
        if nb == 3:
            A("s_mov_b32 exec_hi, 0")
        A(f"buffer_store_dwordx4 v[{YA+4*nb}:{YA+3+4*nb}], v22, s[36:39], s46 offen offset:{nb*512} sc1")
    A("s_mov_b64 exec, -1")
    stamp(3)
    A("L_h_noffn:")
    A("s_and_b32 s56, s2, 127")
    A("s_cmp_eq_u32 s2, 255")
    A("s_cbranch_scc1 L_h_epoch")
    A("s_cmp_ge_u32 s56, 28")
    A("s_cbranch_scc1 L_end")
    A("v_lshlrev_b32 v22, 12, v10")
    A("v_lshl_add_u32 v22, v11, 4, v22")
    A("s_lshl_b32 s46, s52, 11"); A("s_lshl_b32 s47, s56, 6"); A("s_add_u32 s46, s46, s47"); A(f"s_add_u32 s46, s46, {WS_HY}")
    for k in range(4):
        A(f"v_mov_b32 v{64+k}, 0")
    ym = ((1 << NFB) - 1) * 0x10001
    A(f"s_mov_b32 exec_lo, {hex(ym)}"); A(f"s_mov_b32 exec_hi, {hex(ym)}")
    A("L_h_ypoll:")
    A("buffer_load_dwordx4 v[64:67], v22, s[36:39], s46 offen sc1")
    A("s_waitcnt vmcnt(0)")
    tagcheck(range(64, 68), 27, strip=True)
    A("s_cbranch_vccz L_h_ygo")
    spin_tail("L_h_ypoll", sleep=64)
    A("L_h_ygo:")
    A("s_mov_b64 exec, -1")
    A("s_lshr_b32 s47, s56, 1"); A("s_lshl_b32 s47, s47, 5"); A("s_and_b32 s48, s56, 1"); A("s_lshl_b32 s48, s48, 2")
    A("s_add_u32 s47, s47, s48"); A("s_mul_i32 s48, s52, 448"); A("s_add_u32 s47, s47, s48"); A("s_lshl_b32 s57, s47, 1")
    srd(28, 4, 1792)
    srd(32, 22, 1792)
    A("v_lshlrev_b32 v23, 1, v11")
    for rr in range(4):
        A(f"buffer_load_ushort v{72+rr}, v23, s[28:31], s57 offen offset:{16*rr}")
    A("s_waitcnt vmcnt(0)")
    for sh in (8, 4, 2, 1):
        for k in range(4):
            A(f"v_add_f32_dpp v{64+k}, v{64+k}, v{64+k} row_ror:{sh} row_mask:0xf bank_mask:0xf")
    A("v_cvt_pk_bf16_f32 v68, v64, v65"); A("v_cvt_pk_bf16_f32 v69, v66, v67")
    for k in range(2):
        A(f"v_lshlrev_b32 v{64+2*k}, 16, v{68+k}")
        A(f"v_and_b32 v{65+2*k}, 0xffff0000, v{68+k}")
    for k in range(4):
        A(f"v_mul_f32 v{68+k}, {hex(f2u(-math.log2(math.e)))}, v{64+k}")
    for k in range(4):
        A(f"v_exp_f32 v{68+k}, v{68+k}")
    A("s_nop 0")
    for k in range(4):
        A(f"v_add_f32 v{68+k}, 1.0, v{68+k}")
    for k in range(4):
        A(f"v_rcp_f32 v{68+k}, v{68+k}")
    A("s_nop 0")
    for k in range(4):
        A(f"v_mul_f32 v{64+k}, v{64+k}, v{68+k}")
    A("v_cvt_pk_bf16_f32 v68, v64, v65"); A("v_cvt_pk_bf16_f32 v69, v66, v67")
    for k in range(2):
        A(f"v_lshlrev_b32 v{76+2*k}, 16, v{68+k}")
        A(f"v_and_b32 v{77+2*k}, 0xffff0000, v{68+k}")
    for k in range(4):
        A(f"v_lshlrev_b32 v{72+k}, 16, v{72+k}")
    if not cfg.HBL:
        A("v_lshlrev_b32 v22, 11, v10")
        A("v_lshl_add_u32 v22, v11, 4, v22")
        A("s_lshl_b32 s46, s52, 18"); A("s_lshl_b32 s47, s56, 6"); A("s_add_u32 s46, s46, s47"); A(f"s_add_u32 s46, s46, {WS_HB}")
        for k in range(1, 8):
            A(f"s_add_u32 s{63+k}, s46, {k*32768}")
    else:
        A("v_lshlrev_b32 v22, 7, v10")
        A("v_lshl_add_u32 v22, v11, 4, v22")
        A("s_lshl_b32 s46, s52, 18"); A("s_lshr_b32 s47, s56, 1"); A("s_lshl_b32 s47, s47, 14"); A("s_add_u32 s46, s46, s47")
        A("s_and_b32 s47, s56, 1"); A("s_lshl_b32 s47, s47, 6"); A("s_add_u32 s46, s46, s47"); A(f"s_add_u32 s46, s46, {WS_HB}")
        for k in range(1, 8):
            A(f"s_add_u32 s{63+k}, s46, {k*2048}")
    stamp(4)
    A("s_waitcnt vmcnt(0) lgkmcnt(0)")
    A("s_barrier")
    A("s_barrier")
    if cfg.WOLATE == 4:
        A("s_barrier")
    if cfg.BAR4:
        A("s_barrier")
    def issB():
        for k in range(8):
            A(f"buffer_load_dwordx4 v[{96+4*k}:{99+4*k}], v22, s[36:39], s{46 if k == 0 else 63+k} offen sc1")
    if cfg.ICHK:
        A("L_h_bpoll:")
        issB()
        for k in range(8):
            A(f"s_waitcnt vmcnt({7-k})")
            r0 = 96 + 4 * k
            for z in range(4):
                A(f"v_xor_b32 v{r0+z}, v{r0+z}, v{TG + z}")
            A(f"v_or_b32 v24, v{r0}, v{r0+1}" if k == 0 else f"v_or3_b32 v24, v24, v{r0}, v{r0+1}")
            A(f"v_or3_b32 v24, v24, v{r0+2}, v{r0+3}")
        A("v_and_b32 v24, s59, v24")
        A("v_cmp_ne_u32 vcc, 0, v24")
        A("s_cbranch_vccz L_h_bgo")
        remask()
        spin_tail("L_h_bpoll", sleep=cfg.HSLEEP)
    else:
        poll("L_h_bpoll", issB, 8, lambda: tagcheck(range(96, 128), 24), "L_h_bgo")
    A("L_h_bgo:")
    A("s_mov_b64 exec, -1")
    stamp(5)
    for k in range(16):
        A(f"v_add_f32 v{128+k}, v{96+k}, v{112+k}")
    for step in (8, 4):
        for k in range(step):
            A(f"v_add_f32 v{128+k}, v{128+k}, v{128+step+k}")
    A("s_nop 0")
    for sh in (8, 4, 2, 1):
        for k in range(4):
            A(f"v_add_f32_dpp v{128+k}, v{128+k}, v{128+k} row_ror:{sh} row_mask:0xf bank_mask:0xf")
    A("v_cvt_pk_bf16_f32 v132, v128, v129"); A("v_cvt_pk_bf16_f32 v133, v130, v131")
    for k in range(2):
        A(f"v_lshlrev_b32 v{128+2*k}, 16, v{132+k}")
        A(f"v_and_b32 v{129+2*k}, 0xffff0000, v{132+k}")
    for k in range(4):
        A(f"v_mul_f32 v{128+k}, v{128+k}, v{76+k}")
    A("v_cvt_pk_bf16_f32 v132, v128, v129"); A("v_cvt_pk_bf16_f32 v133, v130, v131")
    for k in range(2):
        A(f"v_lshlrev_b32 v{128+2*k}, 16, v{132+k}")
        A(f"v_and_b32 v{129+2*k}, 0xffff0000, v{132+k}")
    for k in range(4):
        A(f"v_add_f32 v{128+k}, v{128+k}, v{72+k}")
    A("v_cvt_pk_bf16_f32 v132, v128, v129"); A("v_cvt_pk_bf16_f32 v133, v130, v131")
    A("s_mov_b32 exec_lo, 0x00010001"); A("s_mov_b32 exec_hi, 0x00010001")
    A("buffer_store_short v132, v23, s[32:35], s57 offen" + (" sc0 sc1 " if cfg.OSC else ""))
    A("buffer_store_short_d16_hi v132, v23, s[32:35], s57 offen offset:16" + (" sc0 sc1 " if cfg.OSC else ""))
    A("buffer_store_short v133, v23, s[32:35], s57 offen offset:32" + (" sc0 sc1 " if cfg.OSC else ""))
    A("buffer_store_short_d16_hi v133, v23, s[32:35], s57 offen offset:48" + (" sc0 sc1 " if cfg.OSC else ""))
    A("s_mov_b64 exec, -1")
    stamp(6, light=True)
    if cfg.DBGT == 2:
        A("s_cmp_lg_u32 s2, 0"); A("s_cbranch_scc1 L_end")
        A("s_memrealtime s[94:95]"); A("s_waitcnt lgkmcnt(0)")
        A("s_sub_u32 s96, s94, s92"); A("s_sub_i32 s96, s96, 7000"); A("s_max_i32 s96, s96, 0"); A("s_min_i32 s96, s96, 3000"); A("s_mul_i32 s96, s96, 10")
        A("L_dly:")
        A("s_memrealtime s[98:99]"); A("s_waitcnt lgkmcnt(0)")
        A("s_sub_u32 s98, s98, s94"); A("s_cmp_lt_u32 s98, s96"); A("s_cbranch_scc1 L_dly")
    if cfg.DBGT == 1:
        A("s_memrealtime s[94:95]")
        srd(28, 24, 256)
        A("s_waitcnt lgkmcnt(0)")
        A("s_not_b32 s92, s92")
        A("v_mov_b32 v24, s92"); A("v_mov_b32 v25, s94"); A("v_mov_b32 v26, 0")
        A("s_mov_b64 exec, 1")
        A("buffer_atomic_umax v24, v26, s[28:31], 0 offen sc1")
        A("buffer_atomic_umax v25, v26, s[28:31], 0 offen offset:4 sc1")
    A("L_end:")
    A("s_endpgm")
    A("L_h_epoch:")
    if cfg.HAL:
        A(f"v_mul_u32_u24 v22, {HBS}, v1")
        for k in range(4):
            A(f"s_mov_b32 s{64+k}, {WS_HA2 + 2048 + k*64*HBS}")
    else:
        A("v_lshlrev_b32 v22, 12, v11")
        A("v_lshl_add_u32 v22, v10, 7, v22")
        for k in range(4):
            A(f"s_mov_b32 s{64+k}, {WS_HM + k*4*4096}")
    A("s_waitcnt vmcnt(0) lgkmcnt(0)")
    A("s_barrier")
    A("s_barrier")
    if cfg.WOLATE == 4:
        A("s_barrier")
    if cfg.BAR4:
        A("s_barrier")
    A("L_h_epoll:")
    for k in range(4):
        A(f"buffer_load_dwordx2 v[{96+2*k}:{97+2*k}], v22, s[36:39], s{64+k} offen offset:8 sc1")
    A("s_waitcnt vmcnt(0)")
    tagcheck([], 24, full=range(96, 104))
    A("s_cbranch_vccz L_h_ego")
    spin_tail("L_h_epoll", sleep=8)
    A("L_h_ego:")
    A("v_mov_b32 v24, s58"); A("v_mov_b32 v25, 0")
    A("s_mov_b64 exec, 1")
    A(f"buffer_store_dword v24, v25, s[36:39], 0 offen offset:{WS_EP}" + (" sc0 sc1 " if cfg.OSC else ""))
    A("s_endpgm")
    nv = 256 if cfg.DIAG else 216
    A('.section .rodata,"a"'); A(".p2align 6"); A(f".amdhsa_kernel {NAME}")
    A.L.append(f"  .amdhsa_next_free_vgpr {nv}"); A.L.append("  .amdhsa_next_free_sgpr 102"); A.L.append(f"  .amdhsa_accum_offset {nv}")
    A.L.append("  .amdhsa_group_segment_fixed_size 0"); A.L.append("  .amdhsa_kernarg_size 96"); A.L.append("  .amdhsa_user_sgpr_count 2")
    A.L.append("  .amdhsa_user_sgpr_kernarg_segment_ptr 1"); A.L.append("  .amdhsa_system_sgpr_workgroup_id_x 1"); A(".end_amdhsa_kernel")
    CM = {'L_ld_k': 'loader phase 1: K double units', 'L_ld_v': 'loader phase 2: V double units', 'L_ld_c': 'loader phase 3: combined K+V units (extra unit, tickets)', 'L_ld_done': 'loader drain: publish total and the last landed counts', 'L_notloader': 'common set-up of the other waves', 'L_ck': 'consumer phase 1: scores', 'L_cv': 'consumer phase 2: softmax + P*V', 'L_cc': 'consumer phase 3: combined unit', 'L_c_tail': 'consumer exit: partial to LDS, combine and publish', 'L_x0': 'hop A: merge the 16 partials of 32 columns', 'L_p_wave': 'projection through wo and publication of the partial row', 'L_cv_resc': 'new running max: rescale', 'L_cc_resc': 'new running max: rescale', 'L_c_first': 'first unit: wait for q', 'L_helper': 'helper: layernorm, q slice', 'L_h_f1': 'FFN gate / up', 'L_h_f2': 'FFN down', 'L_h_noffn': 'final owners', 'L_h_bpoll': 'hop B', 'L_h_epoch': 'epoch update (workgroup 255)'}
    L2 = []
    for line in A.L:
        if line.endswith(":") and line[:-1] in CM:
            L2.append("; ---- " + CM[line[:-1]])
        L2.append(line)
    A.L = L2
    FL = {0: "sc1", 1: "sc0 sc1", 2: "sc0 sc1 nt", 3: "sc1 nt"}
    for i, line in enumerate(A.L):
        if line.startswith("buffer_load") and line.endswith(" sc1"):
            A.L[i] = line[:-3] + FL[cfg.PF]
        if line.startswith("buffer_load") and line.endswith(" nt"):
            A.L[i] = line[:-2] + POL[cfg.WP]
        if line.startswith("buffer_store") and line.endswith(" sc1"):
            A.L[i] = line[:-3] + FL[cfg.SF]
    if cfg.DIAG:
        sys.stderr.write(str(codes) + "\n")
    return "\n".join(A.L) + "\n"

if __name__ == "__main__":
    cfg = Cfg()
    out = sys.argv[1]
    for kv in sys.argv[2:]:
        k, v = kv.split("=")
        setattr(cfg, k, tuple(int(x) for x in v.split("/") if x) if k == "SIZES" else int(v))
    open(out, "w").write(gen(cfg))
```
